```python
import torch

def _softmax(x, axis=-1):
    return torch.softmax(x, dim=axis)
def _gelu(x):
    return torch.nn.functional.gelu(x, approximate="tanh")
def _silu(x):
    return torch.nn.functional.silu(x)
def _sigmoid(x):
    return torch.sigmoid(x)
def _layernorm(x, axis=-1, eps=1e-5):
    m = x.mean(dim=axis, keepdim=True)
    v = x.var(dim=axis, keepdim=True, unbiased=False)
    return (x - m) / torch.sqrt(v + eps)
def _scatter_add(tgt, idx, src, axis=0):
    return tgt.clone().index_add_(axis, idx, src)
def _segment_sum(src, seg, n):
    out = torch.zeros((n,) + src.shape[1:], dtype=src.dtype)
    return out.index_add_(0, seg, src)
def _pad(x, pw):
    flat = tuple(v for pair in reversed(pw) for v in pair)
    return torch.nn.functional.pad(x, flat)

kernel_name = 'parallel_sum__linear_kernel_hedgehog__dense_activation_gelu__prompt'

def setup_inputs():

    _w = (lambda a: (lambda t: t.to(torch.bfloat16) if t.is_floating_point() else t)(torch.as_tensor(a)))
    def _A_setup():
        B, S, D, H = 1, 2048, 1024, 32
        Dh = D // H
        return {
            "x": _w((lambda *s: torch.randn(*s, dtype=torch.bfloat16) * 0.05)(B, S, D)),
            "wqkv": _w((lambda *s: torch.randn(*s, dtype=torch.bfloat16) * 0.2)(D, 3 * D)),
            "w_phi": _w((lambda *s: torch.randn(*s, dtype=torch.bfloat16) * 0.2)(H, Dh, Dh) * (Dh ** -0.5)),
            "wo": _w((lambda *s: torch.randn(*s, dtype=torch.bfloat16) * 0.05)(D, D)),
        }
    _A_in = _A_setup()

    def _B_setup():
        B, S, D, F = 1, 2048, 1024, 3584
        return {
            "x": _w((lambda *s: torch.randn(*s, dtype=torch.bfloat16) * 0.05)(B, S, D)),
            "w1": _w((lambda *s: torch.randn(*s, dtype=torch.bfloat16) * 0.8)(D, F) * (D ** -0.5)),
            "b1": _w((lambda *s: torch.randn(*s, dtype=torch.bfloat16) * 0.8)(F) * 0.01),
            "w2": _w((lambda *s: torch.randn(*s, dtype=torch.bfloat16) * 0.2)(F, D) * (F ** -0.5)),
            "b2": _w((lambda *s: torch.randn(*s, dtype=torch.bfloat16) * 0.2)(D) * 0.01),
        }
    _B_in = _B_setup()

    return {
        "A_x": _A_in["x"],
        "A_wqkv": _A_in["wqkv"],
        "A_w_phi": _A_in["w_phi"],
        "A_wo": _A_in["wo"],
        "B_x": _B_in["x"],
        "B_w1": _B_in["w1"],
        "B_b1": _B_in["b1"],
        "B_w2": _B_in["w2"],
        "B_b2": _B_in["b2"],
    }

def reference(A_x, A_wqkv, A_w_phi, A_wo, B_x, B_w1, B_b1, B_w2, B_b2):
    def _A_ref(x, wqkv, w_phi, wo):
        B, S, D = x.shape
        H = 32; Dh = D // H
        qkv = (lambda x, *d: x.permute(*d))((x @ wqkv).reshape(B, S, 3, H, Dh), 2, 0, 3, 1, 4)
        q, k, v = qkv[0], qkv[1], qkv[2]
        pq = torch.einsum("bhsd,hdf->bhsf", q, w_phi)
        pk = torch.einsum("bhsd,hdf->bhsf", k, w_phi)
        phi_q = torch.concatenate([_softmax(pq, axis=-1), _softmax(-pq, axis=-1)], axis=-1)
        phi_k = torch.concatenate([_softmax(pk, axis=-1), _softmax(-pk, axis=-1)], axis=-1)
        kv = torch.einsum("bhsf,bhsd->bhfd", phi_k, v)
        z  = torch.einsum("bhsf->bhf", phi_k)
        num = torch.einsum("bhqf,bhfd->bhqd", phi_q, kv)
        den = torch.einsum("bhqf,bhf->bhq", phi_q, z)[..., None] + 1e-6
        o = num / den
        return (lambda x, *d: x.permute(*d))(o, 0, 2, 1, 3).reshape(B, S, D) @ wo

    def _B_ref(x, w1, b1, w2, b2):
        h = torch.einsum("bsd,df->bsf", x, w1) + b1
        h = _gelu(h)
        return torch.einsum("bsf,fd->bsd", h, w2) + b2

    x = A_x
    xn = _layernorm(x, axis=-1)
    return x + _A_ref(xn, A_wqkv, A_w_phi, A_wo) + _B_ref(xn, B_w1, B_b1, B_w2, B_b2)
```

```python
import re

TRANS = ('v_exp_f32', 'v_log_f32', 'v_rcp_f32', 'v_rsq_f32', 'v_sqrt_f32', 'v_sin_f32', 'v_cos_f32')


def regs_of(tok, kind):
    tok = tok.strip()
    tok = tok.lstrip('-')
    m = re.fullmatch(r'(?:abs\()?%s(\d+)\)?' % kind, tok)
    if m:
        return {int(m.group(1))}
    m = re.fullmatch(r'%s\[(\d+):(\d+)\]' % kind, tok)
    if m:
        return set(range(int(m.group(1)), int(m.group(2)) + 1))
    return set()


class Ins:
    def __init__(self, text):
        self.text = text
        t = text.split(';')[0].strip()
        self.is_label = t.endswith(':')
        self.mn = t.split()[0] if t else ''
        rest = t[len(self.mn):].strip()
        ops = []
        depth = 0
        cur = ''
        for ch in rest:
            if ch == '[':
                depth += 1
            if ch == ']':
                depth -= 1
            if ch == ',' and depth == 0:
                ops.append(cur.strip())
                cur = ''
            else:
                cur += ch
        if cur.strip():
            last = cur.strip().split()
            ops.append(last[0])
            self.mods = last[1:]
        else:
            self.mods = []
        self.ops = ops
        mn = self.mn
        self.is_mfma = mn.startswith('v_mfma')
        self.is_valu = mn.startswith('v_') and not self.is_mfma
        self.is_trans = any(mn.startswith(x) for x in TRANS)
        self.is_dpp = '_dpp' in mn
        self.is_perm = mn.startswith('v_permlane')
        self.is_rfl = mn.startswith('v_readfirstlane') or mn.startswith('v_readlane')
        self.is_vmem = mn.startswith('buffer_') or mn.startswith('global_')
        self.is_ds = mn.startswith('ds_')
        self.is_lds_dma = self.is_vmem and 'lds' in self.mods
        self.is_store = self.is_vmem and 'store' in mn
        self.is_salu = mn.startswith('s_')
        self.vw = set(); self.vr = set(); self.sw = set(); self.sr = set()
        self.m0w = False
        if self.is_label or not mn:
            return
        allv = [regs_of(o, 'v') for o in ops]
        alls = [regs_of(o, 's') for o in ops]
        if self.is_mfma:
            self.vw = allv[0]
            self.ab = allv[1] | allv[2]
            self.c = allv[3]
            self.vr = self.ab | self.c
        elif self.is_valu:
            if mn.startswith('v_cmp'):
                self.sw = alls[0] | ({'vcc'} if ops[0] == 'vcc' else set())
                for a in allv[1:]: self.vr |= a
                for a in alls[1:]: self.sr |= a
            elif self.is_rfl:
                self.sw = alls[0]
                for a in allv[1:]: self.vr |= a
            elif self.is_perm:
                self.vw = allv[0] | allv[1]
                self.vr = allv[0] | allv[1]
            else:
                self.vw = allv[0]
                for a in allv[1:]: self.vr |= a
                for a in alls[1:]: self.sr |= a
                if 'vcc' in ops[1:]:
                    self.sr |= {'vcc'}
                if mn.startswith('v_fmac') or mn.startswith('v_pk_fmac') or '_d16' in mn:
                    self.vr |= allv[0]
                if mn.startswith('v_add_co') or mn.startswith('v_addc_co'):
                    self.sw |= {'vcc'}
        elif self.is_vmem:
            if self.is_store or self.is_lds_dma:
                for a in allv: self.vr |= a
            else:
                self.vw = allv[0]
                for a in allv[1:]: self.vr |= a
            for a in alls: self.sr |= a
        elif self.is_ds:
            if mn.startswith('ds_write') or mn.startswith('ds_add'):
                for a in allv: self.vr |= a
            else:
                self.vw = allv[0]
                for a in allv[1:]: self.vr |= a
        elif self.is_salu:
            if ops and ops[0] == 'm0':
                self.m0w = True

    def states(self):
        if self.is_label or not self.mn or '@skip' in self.text:
            return 0
        if self.mn == 's_nop':
            return int(self.ops[0]) + 1
        return 1


def need_states(p, c):
    n = 0
    if p.is_valu and not p.is_rfl and not p.mn.startswith('v_cmp'):
        if c.is_mfma and (p.vw & c.vr):
            n = max(n, 2)
        if c.is_dpp and (p.vw & c.vr):
            n = max(n, 2)
        if c.is_perm and (p.vw & c.vr):
            n = max(n, 2)
        if c.is_rfl and (p.vw & c.vr):
            n = max(n, 1)
        if p.is_trans and c.is_valu and not c.is_trans and (p.vw & (c.vr | c.vw)):
            n = max(n, 1)
    if p.is_valu and p.sw:
        if c.is_vmem and (p.sw & c.sr):
            n = max(n, 5)
        if c.is_valu and (p.sw & c.sr):
            n = max(n, 2)
        if c.is_salu:
            n = max(n, 2)
    if p.is_mfma:
        if c.is_mfma:
            if p.vw & c.ab:
                n = max(n, 8)
            if (p.vw & c.c) and p.vw != c.c:
                n = max(n, 6)
            if (p.vw & c.vw) and p.vw != c.c:
                n = max(n, 8)
        elif (c.is_valu or c.is_vmem or c.is_ds) and (p.vw & (c.vr | c.vw)):
            n = max(n, 8)
        if c.is_valu and (p.c & c.vw):
            n = max(n, 3)
    if p.is_store and ('x4' in p.mn or 'x3' in p.mn):
        data = regs_of(p.ops[0], 'v')
        if (c.is_valu or c.is_ds or c.is_vmem) and (data & c.vw):
            n = max(n, 2)
    if p.m0w and c.is_lds_dma:
        n = max(n, 1)
    return n


class Asm:
    def __init__(self):
        self.lines = []

    def __call__(self, text):
        for l in text.strip('\n').split('\n'):
            l = l.strip()
            if l:
                self.lines.append(l)

    def raw(self, text):
        self.lines.append('@RAW@' + text)

    def finalize(self):
        out = []
        hist = []
        for l in self.lines:
            if l.startswith('@RAW@'):
                out.append(l[5:])
                hist = []
                continue
            ins = Ins(l)
            m = re.search(r'offset:(\d+)', l)
            if m and ins.is_vmem:
                assert int(m.group(1)) < 4096, l
            if m and ins.is_ds:
                assert int(m.group(1)) < 65536, l
            if ins.is_label:
                out.append(l)
                continue
            need = 0
            dist = 0
            for p in reversed(hist):
                r = need_states(p, ins) - dist
                if r > need:
                    need = r
                dist += p.states()
                if dist > 12:
                    break
            if need > 0:
                nop = Ins('s_nop %d' % (need - 1))
                out.append('    s_nop %d' % (need - 1))
                hist.append(nop)
            out.append('    ' + l)
            if ins.mn.startswith('s_cbranch') or ins.mn == 's_branch':
                ins_states_zero = ins
            hist.append(ins)
            hist = hist[-16:]
        return '\n'.join(out) + '\n'
```

```python
import sys
from asmlib import Asm

NAME = 'parallel_sum__linear_kernel_hedgehog__dense_activation_gelu__prompt'
XN_OFF = 0
XN_SZ = 2048 * 1024 * 2
ACT2_OFF = 0x400000
ACT2_SZ = 2048 * 4608 * 2
PHIQ_OFF = 0x1600000
PHIQ_SZ = 2048 * 2048 * 2
KVP_OFF = 0x1E00000
KVP_ENT = 8448
KVP_SZ = 8 * 32 * KVP_ENT

LOG2E = 0x3fb8aa3b


def f2u(x):
    import struct
    return struct.unpack('<I', struct.pack('<f', x))[0]


def srd(a, d, base, size, off=0):
    if off:
        a(f's_add_u32 s{d}, s{base}, 0x{off:x}')
        a(f's_addc_u32 s{d+1}, s{base+1}, 0')
    else:
        a(f's_mov_b32 s{d}, s{base}')
        a(f's_mov_b32 s{d+1}, s{base+1}')
    a(f's_and_b32 s{d+1}, s{d+1}, 0xffff')
    a(f's_mov_b32 s{d+2}, 0x{size:x}')
    a(f's_mov_b32 s{d+3}, 0x00020000')


def kernel_begin(a, name):
    a.raw(f'.globl {name}')
    a.raw('.p2align 8')
    a.raw(f'.type {name},@function')
    a.raw(f'{name}:')


def descriptor(name, vgpr, sgpr=96):
    acc = (vgpr + 3) // 4 * 4
    return f'''.amdhsa_kernel {name}
  .amdhsa_next_free_vgpr {vgpr}
  .amdhsa_next_free_sgpr {sgpr}
  .amdhsa_accum_offset {acc}
  .amdhsa_group_segment_fixed_size 0
  .amdhsa_kernarg_size 96
  .amdhsa_user_sgpr_count 2
  .amdhsa_user_sgpr_kernarg_segment_ptr 1
  .amdhsa_system_sgpr_workgroup_id_x 1
.end_amdhsa_kernel
'''


def allreduce16(a, op, v, tmp):
    for r in (8, 4, 2, 1):
        a(f'{op}_dpp v{tmp}, v{v}, v{v} row_ror:{r} row_mask:0xf bank_mask:0xf')
        v, tmp = tmp, v
    return v


def cross_groups(a, op, v, t):
    a(f'v_mov_b32 v{t}, v{v}')
    a(f'v_permlane32_swap_b32 v{v}, v{t}')
    a(f'{op} v{v}, v{v}, v{t}')
    a(f'v_mov_b32 v{t}, v{v}')
    a(f'v_permlane16_swap_b32 v{v}, v{t}')
    a(f'{op} v{v}, v{v}, v{t}')


def round_bf16(a, d, s):
    a(f'v_cvt_pk_bf16_f32 v{d}, v{s}, v{s}')
    a(f'v_lshlrev_b32 v{d}, 16, v{d}')


def gen_ln(a):
    name = 'ln_kernel'
    kernel_begin(a, name)
    a('s_cmp_ge_u32 s2, 512')
    a('s_cbranch_scc1 ln_done')
    a('s_load_dwordx2 s[4:5], s[0:1], 0')
    a('s_load_dwordx2 s[6:7], s[0:1], 88')
    a('v_lshrrev_b32 v1, 6, v0')
    a('v_and_b32 v2, 63, v0')
    a('s_lshl_b32 s3, s2, 2')
    a('v_add_u32 v1, s3, v1')
    a('v_lshlrev_b32 v1, 11, v1')
    a('v_lshl_add_u32 v1, v2, 4, v1')
    a('s_waitcnt lgkmcnt(0)')
    srd(a, 8, 4, XN_SZ)
    srd(a, 12, 6, XN_SZ, XN_OFF)
    a('buffer_load_dwordx4 v[4:7], v1, s[8:11], 0 offen')
    a('buffer_load_dwordx4 v[8:11], v1, s[8:11], 0 offen offset:1024')
    a('s_mov_b32 s16, 0xffff0000')
    a('s_waitcnt vmcnt(0)')
    for i in range(8):
        a(f'v_lshlrev_b32 v{16+2*i}, 16, v{4+i}')
        a(f'v_and_b32 v{17+2*i}, s16, v{4+i}')
    for i in range(8):
        a(f'v_add_f32 v{32+i}, v{16+2*i}, v{17+2*i}')
    for i in range(4):
        a(f'v_add_f32 v{32+i}, v{32+2*i}, v{33+2*i}')
    a('v_add_f32 v32, v32, v33')
    a('v_add_f32 v34, v34, v35')
    a('v_add_f32 v32, v32, v34')
    r = allreduce16(a, 'v_add_f32', 32, 33)
    cross_groups(a, 'v_add_f32', r, 34)
    a(f'v_mul_f32 v40, 0x{f2u(1.0/1024):x}, v{r}')
    for i in range(16):
        a(f'v_sub_f32 v{44+i}, v{16+i}, v40')
    a('v_mul_f32 v32, v44, v44')
    a('v_mul_f32 v33, v45, v45')
    for i in range(2, 16, 2):
        a(f'v_fmac_f32 v32, v{44+i}, v{44+i}')
        a(f'v_fmac_f32 v33, v{45+i}, v{45+i}')
    a('v_add_f32 v32, v32, v33')
    r = allreduce16(a, 'v_add_f32', 32, 33)
    cross_groups(a, 'v_add_f32', r, 34)
    a(f'v_mul_f32 v41, 0x{f2u(1.0/1024):x}, v{r}')
    round_bf16(a, 40, 40)
    round_bf16(a, 41, 41)
    a(f'v_add_f32 v41, 0x{f2u(1e-5):x}, v41')
    round_bf16(a, 41, 41)
    a('v_sqrt_f32 v41, v41')
    round_bf16(a, 41, 41)
    a('v_rcp_f32 v42, v41')
    for i in range(0, 16, 2):
        a(f'v_sub_f32 v{16+i}, v{16+i}, v40')
        a(f'v_sub_f32 v{17+i}, v{17+i}, v40')
        a(f'v_cvt_pk_bf16_f32 v{44+i}, v{16+i}, v{17+i}')
        a(f'v_lshlrev_b32 v{16+i}, 16, v{44+i}')
        a(f'v_and_b32 v{17+i}, s16, v{44+i}')
    for i in range(16):
        a(f'v_mul_f32 v{44+i}, v{16+i}, v42')
    for i in range(16):
        a(f'v_fma_f32 v{16+i}, -v{44+i}, v41, v{16+i}')
    for i in range(16):
        a(f'v_fmac_f32 v{44+i}, v{16+i}, v42')
    for i in range(8):
        a(f'v_cvt_pk_bf16_f32 v{4+i}, v{44+2*i}, v{45+2*i}')
    a('buffer_store_dwordx4 v[4:7], v1, s[12:15], 0 offen')
    a('buffer_store_dwordx4 v[8:11], v1, s[12:15], 0 offen offset:1024')
    a('ln_done:')
    a('s_endpgm')
    return descriptor(name, 64, 24)


class VQ:
    def __init__(self):
        self.q = []

    def push(self, tag):
        self.q.append(tag)

    def wait_for(self, tags):
        last = -1
        for i, t in enumerate(self.q):
            if t in tags:
                last = i
        n = len(self.q) - 1 - last
        return min(n, 63)


A_SLOT = 32768
B_BASE = 98304
B_SLOT = 14336
G1_LDS = B_BASE + 4 * B_SLOT
ACC = 128
SETS = (32, 76)
VA = 2
VB = 8
VGA = 11
VGB0 = 12
VGB1 = 13
VLANE = 14
VG4 = 15
VL16 = 16
VTMP = 17


def gemm1_common_setup(a):
    a('v_lshrrev_b32 v1, 6, v0')
    a(f'v_and_b32 v{VLANE}, 63, v0')
    a('s_nop 0')
    a('v_readfirstlane_b32 s20, v1')
    a(f'v_lshrrev_b32 v{VG4}, 4, v{VLANE}')
    a(f'v_and_b32 v{VL16}, 15, v{VLANE}')
    a('s_nop 1')
    a('s_lshr_b32 s21, s20, 1')
    a('s_and_b32 s22, s20, 1')
    a('s_and_b32 s26, s2, 7')
    a('s_lshr_b32 s27, s2, 3')
    a('s_and_b32 s24, s26, 1')
    a('s_lshl_b32 s24, s24, 2')
    a('s_and_b32 s28, s27, 3')
    a('s_add_u32 s24, s24, s28')
    a('s_lshr_b32 s25, s26, 1')
    a('s_lshl_b32 s25, s25, 3')
    a('s_lshr_b32 s28, s27, 2')
    a('s_add_u32 s25, s25, s28')
    T = VTMP
    a('s_lshl_b32 s28, s21, 13')
    a(f'v_and_b32 v{T}, 7, v{VLANE}')
    a(f'v_xor_b32 v{T}, v{T}, v{VG4}')
    a(f'v_lshlrev_b32 v{T}, 4, v{T}')
    a(f'v_lshl_add_u32 v{T}, v{VL16}, 7, v{T}')
    a(f'v_add_u32 v{T}, s28, v{T}')
    a(f'v_xor_b32 v{T+1}, 64, v{T}')
    for sl in range(3):
        a(f'v_add_u32 v{VA+2*sl}, 0x{sl*A_SLOT:x}, v{T}')
        a(f'v_add_u32 v{VA+2*sl+1}, 0x{sl*A_SLOT:x}, v{T+1}')
    a(f'v_lshrrev_b32 v{T}, 3, v{VLANE}')
    a(f'v_and_b32 v{T+1}, 7, v{VLANE}')
    a(f'v_xor_b32 v{T+1}, v{T+1}, v{T}')
    a('s_lshl_b32 s28, s24, 8')
    a('s_lshl_b32 s29, s20, 5')
    a('s_add_u32 s28, s28, s29')
    a(f'v_add_u32 v{T}, s28, v{T}')
    a(f'v_lshlrev_b32 v{T}, 11, v{T}')
    a(f'v_lshl_add_u32 v{VGA}, v{T+1}, 4, v{T}')
    a('s_lshl_b32 s30, s20, 12')
    a('s_lshl_b32 s31, s20, 10')


def gemm1_variant(a, kind):
    w1 = kind == 'w1'
    NB = 7 if w1 else 6
    rowstride = 7168 if w1 else 6144
    nsecond = 6 if w1 else 4
    T = VTMP
    a(f'v_lshrrev_b32 v{T}, 2, v{VL16}')
    a(f'v_lshl_add_u32 v{T+1}, v{VG4}, 3, v{T}')
    a(f'v_lshrrev_b32 v{T+2}, 1, v{T}')
    a(f'v_and_b32 v{T+3}, 1, v{VG4}')
    a(f'v_lshl_or_b32 v{T+2}, v{T+3}, 1, v{T+2}')
    a(f'v_and_b32 v{T+4}, 3, v{VLANE}')
    a(f'v_lshlrev_b32 v{T+4}, 3, v{T+4}')
    a(f'v_lshl_add_u32 v{T+5}, v{T+1}, 7, v{T+4}')
    a(f'v_add_u32 v{T+5}, 0x{B_BASE:x}, v{T+5}')
    for e in range(2):
        if w1:
            a(f's_add_u32 s28, s22, {2*e}')
        else:
            a('s_lshl_b32 s28, s22, 1')
            a(f's_add_u32 s28, s28, {e}')
        a(f'v_xor_b32 v{T+6}, s28, v{T+2}')
        a(f'v_lshl_add_u32 v{VB+e}, v{T+6}, 5, v{T+5}')
    if w1:
        a(f'v_xor_b32 v{T+6}, s22, v{T+3}')
        a(f'v_lshl_add_u32 v{T+7}, v{T+1}, 6, v{T+4}')
        a(f'v_lshl_add_u32 v{T+7}, v{T+6}, 5, v{T+7}')
        a(f'v_add_u32 v{VB+2}, 0x{B_BASE+12288:x}, v{T+7}')
    colstride = 128 if w1 else 2048
    a(f'v_lshrrev_b32 v{T}, 3, v{VLANE}')
    a(f'v_bfe_u32 v{T+1}, v{VLANE}, 4, 1')
    a('s_and_b32 s28, s20, 1')
    a('s_lshl_b32 s28, s28, 1')
    a(f'v_or_b32 v{T+1}, s28, v{T+1}')
    a(f'v_bfe_u32 v{T+2}, v{VLANE}, 1, 2')
    a(f'v_xor_b32 v{T+2}, v{T+2}, v{T+1}')
    a(f'v_and_b32 v{T+3}, 1, v{VLANE}')
    a(f'v_lshlrev_b32 v{T+3}, 4, v{T+3}')
    a(f'v_lshl_add_u32 v{T+3}, v{T+2}, 5, v{T+3}')
    a('s_and_b32 s28, s20, 3')
    a('s_lshl_b32 s28, s28, 3')
    a(f'v_add_u32 v{T}, s28, v{T}')
    a(f's_mov_b32 s29, {rowstride}')
    a(f'v_mul_lo_u32 v{T}, v{T}, s29')
    a(f'v_add_u32 v{T}, v{T}, v{T+3}')
    a('s_lshr_b32 s28, s20, 2')
    a(f's_mul_i32 s28, s28, {colstride}')
    if w1:
        a('s_sub_u32 s32, s25, 16')
        a('s_mul_i32 s32, s32, 448')
    else:
        a('s_lshl_b32 s32, s25, 7')
    a('s_add_u32 s28, s28, s32')
    a(f'v_add_u32 v{VGB0}, s28, v{T}')
    a(f'v_add_u32 v{VGB1}, 0x{2*colstride:x}, v{VGB0}')
    if w1:
        a(f'v_lshrrev_b32 v{T}, 2, v{VLANE}')
        a('s_sub_u32 s28, s20, 4')
        a('s_lshl_b32 s28, s28, 4')
        a(f'v_add_u32 v{T}, s28, v{T}')
        a(f'v_mul_lo_u32 v{T}, v{T}, s29')
        a(f'v_bfe_u32 v{T+1}, v{VLANE}, 5, 1')
        a(f'v_bfe_u32 v{T+2}, v{VLANE}, 1, 1')
        a(f'v_xor_b32 v{T+2}, v{T+2}, v{T+1}')
        a(f'v_and_b32 v{T+3}, 1, v{VLANE}')
        a(f'v_lshlrev_b32 v{T+3}, 4, v{T+3}')
        a(f'v_lshl_add_u32 v{T+3}, v{T+2}, 5, v{T+3}')
        a(f'v_add_u32 v{T}, v{T}, v{T+3}')
        a('s_add_u32 s28, s32, 384')
        a(f'v_add_u32 v{T}, s28, v{T}')
        a('s_cmp_ge_u32 s20, 4')
        a('s_cselect_b64 s[34:35], -1, 0')
        a(f'v_cndmask_b32 v{VGB1}, v{VGB1}, v{T}, s[34:35]')
    if w1:
        a('s_lshl_b32 s28, s22, 5')
        a(f'v_lshl_add_u32 v{T}, v{VG4}, 3, s28')
        for nb in range(7):
            a(f'buffer_load_dwordx2 v[{240+2*nb}:{241+2*nb}], v{T}, s[40:43], s32 offen offset:{nb*64}')
    else:
        a('s_lshl_b32 s33, s25, 1')
        a('s_add_u32 s33, s33, s22')
        a('s_lshl_b32 s28, s33, 11')
        a(f'v_lshlrev_b32 v{T}, 8, v{VG4}')
        a(f'v_lshl_add_u32 v{T}, v{VL16}, 1, v{T}')
        for fb in range(2):
            for j in range(8):
                off = (16 * (j // 4) + j % 4) * 64 + fb * 32
                a(f'buffer_load_ushort v{224+8*fb+j}, v{T}, s[40:43], s28 offen offset:{off}')
    for i in range(NB * 16):
        a(f'v_mov_b32 v{ACC+i}, 0')

    vq = VQ()
    lbl = [0]

    def issue_A(i):
        for q in range(4):
            a(f's_add_u32 m0, s30, 0x{(i % 3) * A_SLOT + q * 1024:x}')
            a(f's_mov_b32 s28, 0x{i * 128 + q * 16384:x}')
            a(f'buffer_load_dwordx4 v{VGA}, s[8:11], s28 offen lds')
            vq.push(('A', i))

    def issue_B(j):
        base = B_BASE + (j % 4) * B_SLOT
        a(f's_add_u32 m0, s31, 0x{base:x}')
        a(f's_mov_b32 s28, 0x{j * 32 * rowstride:x}')
        a(f'buffer_load_dwordx4 v{VGB0}, s[12:15], s28 offen lds')
        vq.push(('B', j))
        L = f'g1{kind}_sk{lbl[0]}'
        lbl[0] += 1
        a(f's_cmp_ge_u32 s20, {nsecond}')
        a(f's_cbranch_scc1 {L}')
        a(f's_add_u32 m0, s31, 0x{base + 8192:x} ; @skip')
        a('s_nop 0 ; @skip')
        a(f'buffer_load_dwordx4 v{VGB1}, s[12:15], s28 offen lds ; @skip')
        a(f'{L}:')

    def frag_reads(j):
        S = SETS[j & 1]
        sl = (j // 2) % 3
        half = j & 1
        out = []
        for mb in range(4):
            out.append(f'ds_read_b128 v[{S+4*mb}:{S+4*mb+3}], v{VA+2*sl+half} offset:{mb*2048}')
        bs = (j % 4) * B_SLOT
        for nb in range(NB):
            d = S + 16 + 4 * nb
            if w1 and nb == 6:
                for t in range(2):
                    out.append(f'ds_read_b64_tr_b16 v[{d+2*t}:{d+2*t+1}], v{VB+2} offset:{bs + t*256}')
            else:
                G, e = nb // 2, nb % 2
                for t in range(2):
                    out.append(f'ds_read_b64_tr_b16 v[{d+2*t}:{d+2*t+1}], v{VB+e} offset:{bs + G*4096 + t*512}')
        return out

    def mfmas(j):
        S = SETS[j & 1]
        out = []
        for nb in range(NB):
            for mb in range(4):
                c = ACC + (nb * 4 + mb) * 4
                wf = f'v[{S+16+4*nb}:{S+19+4*nb}]'
                xf = f'v[{S+4*mb}:{S+4*mb+3}]'
                if (not w1) and nb >= 4:
                    out.append(f'v_mfma_f32_16x16x32_bf16 v[{c}:{c+3}], {xf}, {wf}, v[{c}:{c+3}]')
                else:
                    out.append(f'v_mfma_f32_16x16x32_bf16 v[{c}:{c+3}], {wf}, {xf}, v[{c}:{c+3}]')
        return out

    issue_A(0); issue_B(0); issue_B(1); issue_A(1); issue_B(2); issue_B(3); issue_A(2)
    a(f's_waitcnt vmcnt({vq.wait_for({("A", 0), ("B", 0)})})')
    a('s_barrier')
    for r in frag_reads(0):
        a(r)
    a('s_waitcnt lgkmcnt(0)')
    for j in range(32):
        if j + 1 < 32:
            a(f's_waitcnt vmcnt({vq.wait_for({("A", (j + 1) // 2), ("B", j + 1)})})')
        a('s_barrier')
        if j + 4 < 32:
            issue_B(j + 4)
        if j & 1 and (j // 2 + 3) < 16:
            issue_A(j // 2 + 3)
        rd = frag_reads(j + 1) if j + 1 < 32 else []
        mm = mfmas(j)
        k = 0
        for idx, m in enumerate(mm):
            a(m)
            if k < len(rd):
                a(rd[k]); k += 1
        while k < len(rd):
            a(rd[k]); k += 1
        a('s_waitcnt lgkmcnt(0)')
    if w1:
        epilogue_w1(a)
    else:
        epilogue_qkv(a)


def epilogue_w1(a):
    T = VTMP
    c1 = -2.0 * 0.7978845608028654 * 1.4426950408889634
    c2 = c1 * 0.044715
    a(f's_mov_b32 s44, 0x{f2u(c1):x}')
    a(f's_mov_b32 s45, 0x{f2u(c1):x}')
    a(f's_mov_b32 s46, 0x{f2u(c2):x}')
    a(f's_mov_b32 s47, 0x{f2u(c2):x}')
    a('s_mov_b32 s48, 1.0')
    a('s_mov_b32 s49, 1.0')
    a('s_mov_b32 s50, 0xffff0000')
    a('s_lshl_b32 s28, s24, 8')
    a('s_lshl_b32 s29, s21, 6')
    a('s_add_u32 s28, s28, s29')
    a(f'v_add_u32 v{T}, s28, v{VL16}')
    a('s_mov_b32 s29, 9216')
    a(f'v_mul_lo_u32 v{T}, v{T}, s29')
    a('s_lshl_b32 s28, s22, 5')
    a('s_add_u32 s28, s28, s32')
    a('s_add_u32 s28, s28, 2048')
    a(f'v_lshl_add_u32 v{T+1}, v{VG4}, 3, s28')
    a(f'v_add_u32 v{T}, v{T}, v{T+1}')
    for mb in range(1, 4):
        a(f's_mov_b32 s{52+mb}, {mb*16*9216}')
    a('s_mov_b32 s52, 0')
    B0 = 32
    for nb in range(7):
        for h in range(2):
            a(f'v_lshlrev_b32 v{B0+4*nb+2*h}, 16, v{240+2*nb+h}')
            a(f'v_and_b32 v{B0+4*nb+2*h+1}, s50, v{240+2*nb+h}')
    W = 64
    a('v_mov_b32 v60, s44')
    a('v_mov_b32 v61, s44')
    for nb in range(7):
        for mb in range(4):
            c = ACC + (nb * 4 + mb) * 4
            w = W + mb * 8
            for h in range(2):
                a(f'v_pk_add_f32 v[{c+2*h}:{c+2*h+1}], v[{c+2*h}:{c+2*h+1}], v[{B0+4*nb+2*h}:{B0+4*nb+2*h+1}]')
            for h in range(2):
                a(f'v_pk_mul_f32 v[{w+2*h}:{w+2*h+1}], v[{c+2*h}:{c+2*h+1}], v[{c+2*h}:{c+2*h+1}]')
            for h in range(2):
                a(f'v_pk_fma_f32 v[{w+2*h}:{w+2*h+1}], v[{w+2*h}:{w+2*h+1}], s[46:47], v[60:61]')
            for h in range(2):
                a(f'v_pk_mul_f32 v[{w+2*h}:{w+2*h+1}], v[{w+2*h}:{w+2*h+1}], v[{c+2*h}:{c+2*h+1}]')
        for mb in range(4):
            w = W + mb * 8
            for i in range(4):
                a(f'v_exp_f32 v{w+i}, v{w+i}')
        for mb in range(4):
            w = W + mb * 8
            for h in range(2):
                a(f'v_pk_add_f32 v[{w+2*h}:{w+2*h+1}], v[{w+2*h}:{w+2*h+1}], s[48:49]')
        for mb in range(4):
            w = W + mb * 8
            for i in range(4):
                a(f'v_rcp_f32 v{w+i}, v{w+i}')
        for mb in range(4):
            c = ACC + (nb * 4 + mb) * 4
            w = W + mb * 8
            for h in range(2):
                a(f'v_pk_mul_f32 v[{w+2*h}:{w+2*h+1}], v[{w+2*h}:{w+2*h+1}], v[{c+2*h}:{c+2*h+1}]')
            a(f'v_cvt_pk_bf16_f32 v{w+4}, v{w}, v{w+1}')
            a(f'v_cvt_pk_bf16_f32 v{w+5}, v{w+2}, v{w+3}')
            a(f'buffer_store_dwordx2 v[{w+4}:{w+5}], v{T}, s[16:19], s{52+mb} offen offset:{nb*64}')
    a('s_endpgm')


def epilogue_qkv(a):
    T = VTMP
    QF, KF, VF = 32, 48, 64
    WP = 240

    def acc(nb, mb):
        return ACC + (nb * 4 + mb) * 4
    a('s_mov_b32 s50, 0xffff0000')
    a(f's_mov_b32 s51, 0x{LOG2E:x}')
    for i in range(8):
        a(f'v_lshl_or_b32 v{WP+i}, v{224+2*i+1}, 16, v{224+2*i}')
    for mb in range(4):
        for e in range(2):
            c = acc(e, mb)
            a(f'v_cvt_pk_bf16_f32 v{QF+4*mb+2*e}, v{c}, v{c+1}')
            a(f'v_cvt_pk_bf16_f32 v{QF+4*mb+2*e+1}, v{c+2}, v{c+3}')
            c = acc(2 + e, mb)
            a(f'v_cvt_pk_bf16_f32 v{KF+4*mb+2*e}, v{c}, v{c+1}')
            a(f'v_cvt_pk_bf16_f32 v{KF+4*mb+2*e+1}, v{c+2}, v{c+3}')
    for ks in range(2):
        for db in range(2):
            for e in range(2):
                c = acc(4 + db, 2 * ks + e)
                d = VF + (ks * 2 + db) * 4 + 2 * e
                a(f'v_cvt_pk_bf16_f32 v{d}, v{c}, v{c+1}')
                a(f'v_cvt_pk_bf16_f32 v{d+1}, v{c+2}, v{c+3}')
    PQ, PK = 128, 160
    for mb in range(4):
        for fb in range(2):
            d = PQ + (mb * 2 + fb) * 4
            a(f'v_mfma_f32_16x16x32_bf16 v[{d}:{d+3}], v[{WP+4*fb}:{WP+4*fb+3}], v[{QF+4*mb}:{QF+4*mb+3}], 0')
    for mb in range(4):
        for fb in range(2):
            d = PK + (mb * 2 + fb) * 4
            a(f'v_mfma_f32_16x16x32_bf16 v[{d}:{d+3}], v[{KF+4*mb}:{KF+4*mb+3}], v[{WP+4*fb}:{WP+4*fb+3}], 0')
    for i in range(0, 64, 2):
        r = PQ + i
        a(f'v_cvt_pk_bf16_f32 v{T}, v{r}, v{r+1}')
        a(f'v_lshlrev_b32 v{r}, 16, v{T}')
        a(f'v_and_b32 v{r+1}, s50, v{T}')
    a('s_lshl_b32 s28, s24, 8')
    a('s_lshl_b32 s29, s21, 6')
    a('s_add_u32 s28, s28, s29')
    a(f'v_add_u32 v{T+1}, s28, v{VL16}')
    a(f'v_lshlrev_b32 v{T+1}, 12, v{T+1}')
    a('s_lshl_b32 s28, s33, 7')
    a(f'v_lshl_add_u32 v{T+2}, v{VG4}, 3, s28')
    a(f'v_add_u32 v{T+1}, v{T+1}, v{T+2}')
    MX, MN = 80, 84
    S1, S2 = 88, 92
    E = 96
    for mb in range(4):
        p = PQ + mb * 8
        a(f'v_max3_f32 v{MX+mb}, v{p}, v{p+1}, v{p+2}')
        a(f'v_max3_f32 v{MX+mb}, v{MX+mb}, v{p+3}, v{p+4}')
        a(f'v_max3_f32 v{MX+mb}, v{MX+mb}, v{p+5}, v{p+6}')
        a(f'v_max_f32 v{MX+mb}, v{MX+mb}, v{p+7}')
        a(f'v_min3_f32 v{MN+mb}, v{p}, v{p+1}, v{p+2}')
        a(f'v_min3_f32 v{MN+mb}, v{MN+mb}, v{p+3}, v{p+4}')
        a(f'v_min3_f32 v{MN+mb}, v{MN+mb}, v{p+5}, v{p+6}')
        a(f'v_min_f32 v{MN+mb}, v{MN+mb}, v{p+7}')
    for mb in range(4):
        cross_groups(a, 'v_max_f32', MX + mb, T + 3)
        cross_groups(a, 'v_min_f32', MN + mb, T + 4)
    for mb in range(4):
        p = PQ + mb * 8
        for i in range(8):
            a(f'v_sub_f32 v{E+i}, v{p+i}, v{MX+mb}')
            a(f'v_sub_f32 v{E+8+i}, v{MN+mb}, v{p+i}')
        for i in range(16):
            a(f'v_mul_f32 v{E+i}, s51, v{E+i}')
        for i in range(16):
            a(f'v_exp_f32 v{E+i}, v{E+i}')
        for (S, b) in ((S1, E), (S2, E + 8)):
            a(f'v_add_f32 v{S+mb}, v{b}, v{b+1}')
            for i in range(2, 8):
                a(f'v_add_f32 v{S+mb}, v{S+mb}, v{b+i}')
        cross_groups(a, 'v_add_f32', S1 + mb, T + 3)
        cross_groups(a, 'v_add_f32', S2 + mb, T + 4)
        a(f'v_rcp_f32 v{S1+mb}, v{S1+mb}')
        a(f'v_rcp_f32 v{S2+mb}, v{S2+mb}')
        for i in range(8):
            a(f'v_mul_f32 v{E+i}, v{E+i}, v{S1+mb}')
            a(f'v_mul_f32 v{E+8+i}, v{E+8+i}, v{S2+mb}')
        O = 112
        for i in range(8):
            a(f'v_cvt_pk_bf16_f32 v{O+i}, v{E+2*i}, v{E+2*i+1}')
        a(f's_mov_b32 s28, {mb*16*4096}')
        for sg in range(2):
            for fb in range(2):
                r = O + sg * 4 + fb * 2
                a(f'buffer_store_dwordx2 v[{r}:{r+1}], v{T+1}, s[36:39], s28 offen offset:{sg*64+fb*32}')
    KMX, KMN, KS1, KS2, KT = 80, 96, 32, 48, 112
    idx = [(mb, i) for mb in range(4) for i in range(4)]

    def pk(mb, fb, i):
        return PK + (mb * 2 + fb) * 4 + i
    for n, (mb, i) in enumerate(idx):
        a(f'v_max_f32 v{KMX+n}, v{pk(mb,0,i)}, v{pk(mb,1,i)}')
        a(f'v_min_f32 v{KMN+n}, v{pk(mb,0,i)}, v{pk(mb,1,i)}')
    for (base, op) in ((KMX, 'v_max_f32'), (KMN, 'v_min_f32')):
        src, dst = base, KT
        for r in (8, 4, 2, 1):
            for n in range(16):
                a(f'{op}_dpp v{dst+n}, v{src+n}, v{src+n} row_ror:{r} row_mask:0xf bank_mask:0xf')
            src, dst = dst, src
    EP = 128
    for n, (mb, i) in enumerate(idx):
        for fb in range(2):
            r = pk(mb, fb, i)
            a(f'v_sub_f32 v{EP + r - PK}, v{r}, v{KMX+n}')
            a(f'v_sub_f32 v{r}, v{KMN+n}, v{r}')
    for r in range(64):
        a(f'v_mul_f32 v{128+r}, s51, v{128+r}')
    for r in range(64):
        a(f'v_exp_f32 v{128+r}, v{128+r}')
    for n, (mb, i) in enumerate(idx):
        a(f'v_add_f32 v{KS1+n}, v{EP + pk(mb,0,i) - PK}, v{EP + pk(mb,1,i) - PK}')
        a(f'v_add_f32 v{KS2+n}, v{pk(mb,0,i)}, v{pk(mb,1,i)}')
    for base in (KS1, KS2):
        src, dst = base, KT
        for r in (8, 4, 2, 1):
            for n in range(16):
                a(f'v_add_f32_dpp v{dst+n}, v{src+n}, v{src+n} row_ror:{r} row_mask:0xf bank_mask:0xf')
            src, dst = dst, src
    for n in range(16):
        a(f'v_rcp_f32 v{KS1+n}, v{KS1+n}')
        a(f'v_rcp_f32 v{KS2+n}, v{KS2+n}')
    for n, (mb, i) in enumerate(idx):
        for fb in range(2):
            r = pk(mb, fb, i)
            a(f'v_mul_f32 v{EP + r - PK}, v{EP + r - PK}, v{KS1+n}')
            a(f'v_mul_f32 v{r}, v{r}, v{KS2+n}')
    PF = 80
    for sg in range(2):
        for fb in range(2):
            for ks in range(2):
                d = PF + ((sg * 2 + fb) * 2 + ks) * 4
                for e in range(2):
                    r = (EP if sg == 0 else PK) + ((2 * ks + e) * 2 + fb) * 4
                    a(f'v_cvt_pk_bf16_f32 v{d+2*e}, v{r}, v{r+1}')
                    a(f'v_cvt_pk_bf16_f32 v{d+2*e+1}, v{r+2}, v{r+3}')
    ONES = 112
    for i in range(4):
        a(f'v_mov_b32 v{ONES+i}, 0x3f803f80')
    KV = 128
    Z = 160
    for ks in range(2):
        for F in range(4):
            pf = PF + (F * 2 + ks) * 4
            for db in range(2):
                d = KV + (F * 2 + db) * 4
                vf = VF + (ks * 2 + db) * 4
                cc = '0' if ks == 0 else f'v[{d}:{d+3}]'
                a(f'v_mfma_f32_16x16x32_bf16 v[{d}:{d+3}], v[{pf}:{pf+3}], v[{vf}:{vf+3}], {cc}')
            d = Z + F * 4
            cc = '0' if ks == 0 else f'v[{d}:{d+3}]'
            a(f'v_mfma_f32_16x16x32_bf16 v[{d}:{d+3}], v[{pf}:{pf+3}], v[{ONES}:{ONES+3}], {cc}')
    a(f'v_lshlrev_b32 v{T+5}, 4, v{VLANE}')
    a('s_mul_i32 s28, s22, 3')
    a('s_add_u32 s28, s28, s21')
    a('s_sub_u32 s28, s28, 1')
    a('s_mul_i32 s28, s28, 12288')
    a('s_cmp_eq_u32 s21, 0')
    a('s_cbranch_scc1 g1q_nowrite')
    a(f'v_add_u32 v{T+6}, s28, v{T+5}')
    for r in range(12):
        a(f'ds_write_b128 v{T+6}, v[{KV+4*r}:{KV+4*r+3}] offset:{r*1024}')
    a('s_waitcnt lgkmcnt(0)')
    a('g1q_nowrite:')
    a('s_barrier')
    a('s_cmp_lg_u32 s21, 0')
    a('s_cbranch_scc1 g1q_end')
    a('s_mul_i32 s28, s22, 36864')
    a(f'v_add_u32 v{T+6}, s28, v{T+5}')
    for p in range(3):
        for r in range(12):
            a(f'ds_read_b128 v[{32+4*r}:{35+4*r}], v{T+6} offset:{p*12288 + r*1024}')
        a('s_waitcnt lgkmcnt(0)')
        for r in range(48):
            a(f'v_add_f32 v{KV+r}, v{KV+r}, v{32+r}')
    a('s_lshl_b32 s28, s24, 5')
    a('s_add_u32 s28, s28, s33')
    a(f's_mul_i32 s28, s28, {KVP_ENT}')
    a(f'v_lshlrev_b32 v{T+6}, 8, v{VL16}')
    a(f'v_lshl_add_u32 v{T+6}, v{VG4}, 4, v{T+6}')
    a('s_add_u32 s29, s28, 4096')
    for F in range(4):
        for db in range(2):
            d = KV + (F * 2 + db) * 4
            a(f'buffer_store_dwordx4 v[{d}:{d+3}], v{T+6}, s[44:47], s{28+db} offen offset:{F*64}')
    a(f'v_lshlrev_b32 v{T+7}, 4, v{VG4}')
    a(f'v_cmp_eq_u32 vcc, 0, v{VL16}')
    a('s_and_saveexec_b64 s[34:35], vcc')
    a('s_add_u32 s28, s28, 8192')
    for F in range(4):
        d = Z + F * 4
        a(f'buffer_store_dwordx4 v[{d}:{d+3}], v{T+7}, s[44:47], s28 offen offset:{F*64}')
    a('g1q_end:')
    a('s_endpgm')


def gen_gemm1(a):
    name = 'gemm1_kernel'
    kernel_begin(a, name)
    a('s_cmp_ge_u32 s2, 256')
    a('s_cbranch_scc1 g1_exit')
    a('s_load_dwordx2 s[4:5], s[0:1], 88')
    a('s_load_dwordx2 s[6:7], s[0:1], 8')
    a('s_load_dwordx2 s[56:57], s[0:1], 16')
    a('s_load_dwordx2 s[58:59], s[0:1], 40')
    a('s_load_dwordx2 s[60:61], s[0:1], 48')
    gemm1_common_setup(a)
    a('s_waitcnt lgkmcnt(0)')
    srd(a, 8, 4, XN_SZ, XN_OFF)
    a('s_cmp_ge_u32 s25, 16')
    a('s_cbranch_scc1 g1_w1')
    srd(a, 12, 6, 1024 * 3072 * 2)
    srd(a, 40, 56, 32 * 32 * 32 * 2)
    srd(a, 36, 4, PHIQ_SZ, PHIQ_OFF)
    srd(a, 44, 4, KVP_SZ, KVP_OFF)
    gemm1_variant(a, 'qkv')
    a('g1_w1:')
    srd(a, 12, 58, 1024 * 3584 * 2)
    srd(a, 40, 60, 3584 * 2)
    srd(a, 16, 4, ACT2_SZ, ACT2_OFF)
    gemm1_variant(a, 'w1')
    a('g1_exit:')
    a('s_endpgm')
    return descriptor(name, 256, 96)


def gen_o(a):
    name = 'attn_o_kernel'
    kernel_begin(a, name)
    a('s_cmp_ge_u32 s2, 256')
    a('s_cbranch_scc1 o_done')
    a('s_load_dwordx2 s[4:5], s[0:1], 88')
    a('v_lshrrev_b32 v1, 6, v0')
    a('v_and_b32 v2, 63, v0')
    a('s_nop 0')
    a('v_readfirstlane_b32 s20, v1')
    a('v_lshrrev_b32 v3, 4, v2')
    a('v_and_b32 v4, 15, v2')
    a('s_and_b32 s21, s2, 31')
    a('s_lshr_b32 s22, s2, 5')
    a('s_waitcnt lgkmcnt(0)')
    srd(a, 8, 4, KVP_SZ, KVP_OFF)
    srd(a, 12, 4, PHIQ_SZ, PHIQ_OFF)
    srd(a, 16, 4, ACT2_SZ, ACT2_OFF)
    a('s_and_b32 s23, s20, 1')
    a('s_lshr_b32 s24, s20, 1')
    a('s_lshl_b32 s25, s23, 12')
    a('s_lshl_b32 s26, s24, 7')
    a('s_add_u32 s25, s25, s26')
    a('v_lshlrev_b32 v5, 8, v4')
    a('v_lshl_add_u32 v5, v3, 5, v5')
    a('v_add_u32 v5, s25, v5')
    a(f's_mul_i32 s27, s21, {KVP_ENT}')
    for mt in range(8):
        a(f's_add_u32 s28, s27, {mt*32*KVP_ENT}')
        a(f'buffer_load_dwordx4 v[{32+8*mt}:{35+8*mt}], v5, s[8:11], s28 offen')
        a(f'buffer_load_dwordx4 v[{36+8*mt}:{39+8*mt}], v5, s[8:11], s28 offen offset:16')
    a('s_lshl_b32 s25, s23, 7')
    a('s_add_u32 s25, s25, 8192')
    a('v_lshl_add_u32 v6, v3, 5, s25')
    for mt in range(8):
        a(f's_add_u32 s28, s27, {mt*32*KVP_ENT}')
        a(f'buffer_load_dwordx4 v[{96+8*mt}:{99+8*mt}], v6, s[8:11], s28 offen')
        a(f'buffer_load_dwordx4 v[{100+8*mt}:{103+8*mt}], v6, s[8:11], s28 offen offset:16')
    a('s_lshl_b32 s25, s22, 8')
    a('s_lshl_b32 s26, s20, 6')
    a('s_add_u32 s25, s25, s26')
    a('v_add_u32 v7, s25, v4')
    a('v_lshlrev_b32 v8, 12, v7')
    a('s_lshl_b32 s26, s21, 7')
    a('v_lshl_add_u32 v9, v3, 4, s26')
    a('v_add_u32 v8, v8, v9')
    for mb in range(4):
        a(f's_mov_b32 s28, {mb*16*4096}')
        for ks in range(2):
            d = 160 + (mb * 2 + ks) * 4
            a(f'buffer_load_dwordx4 v[{d}:{d+3}], v8, s[12:15], s28 offen offset:{ks*64}')
    a('s_waitcnt vmcnt(8)')
    for base in (32, 96):
        for mt in range(1, 8):
            for i in range(8):
                a(f'v_add_f32 v{base+i}, v{base+i}, v{base+8*mt+i}')
    for i in range(4):
        a(f'v_cvt_pk_bf16_f32 v{12+i}, v{32+2*i}, v{33+2*i}')
        a(f'v_cvt_pk_bf16_f32 v{16+i}, v{96+2*i}, v{97+2*i}')
    a('v_lshlrev_b32 v10, 4, v2')
    a('s_lshl_b32 s25, s20, 10')
    a('v_add_u32 v11, s25, v10')
    a('ds_write_b128 v11, v[12:15]')
    a('s_cmp_ge_u32 s20, 2')
    a('s_cbranch_scc1 o_skipz')
    a('ds_write_b128 v11, v[16:19] offset:4096')
    a('o_skipz:')
    a('s_waitcnt lgkmcnt(0)')
    a('s_barrier')
    for i in range(6):
        a(f'ds_read_b128 v[{32+4*i}:{35+4*i}], v10 offset:{i*1024}')
    a('s_waitcnt vmcnt(0) lgkmcnt(0)')
    NUM = 64
    DEN = 96
    for ks in range(2):
        for mb in range(4):
            pf = 160 + (mb * 2 + ks) * 4
            for db in range(2):
                d = NUM + (mb * 2 + db) * 4
                kf = 32 + (ks * 2 + db) * 4
                cc = '0' if ks == 0 else f'v[{d}:{d+3}]'
                a(f'v_mfma_f32_16x16x32_bf16 v[{d}:{d+3}], v[{kf}:{kf+3}], v[{pf}:{pf+3}], {cc}')
            d = DEN + mb * 4
            zf = 32 + (4 + ks) * 4
            cc = '0' if ks == 0 else f'v[{d}:{d+3}]'
            a(f'v_mfma_f32_16x16x32_bf16 v[{d}:{d+3}], v[{zf}:{zf+3}], v[{pf}:{pf+3}], {cc}')
    a('s_mov_b32 s30, 0xffff0000')
    a('s_mov_b32 s29, 9216')
    a('v_mul_lo_u32 v8, v7, s29')
    a('s_lshl_b32 s26, s21, 6')
    a('v_lshl_add_u32 v9, v3, 3, s26')
    a('v_add_u32 v8, v8, v9')
    for mb in range(4):
        dn = DEN + mb * 4
        round_bf16(a, dn, dn)
        a(f'v_add_f32 v{dn}, 0x{f2u(1e-6):x}, v{dn}')
        round_bf16(a, dn, dn)
        a(f'v_rcp_f32 v{dn+1}, v{dn}')
        a(f's_mov_b32 s28, {mb*16*9216}')
        for db in range(2):
            n = NUM + (mb * 2 + db) * 4
            for h in range(2):
                a(f'v_cvt_pk_bf16_f32 v{12+h}, v{n+2*h}, v{n+2*h+1}')
                a(f'v_lshlrev_b32 v{n+2*h}, 16, v{12+h}')
                a(f'v_and_b32 v{n+2*h+1}, s30, v{12+h}')
            for i in range(4):
                a(f'v_mul_f32 v{16+i}, v{n+i}, v{dn+1}')
            for i in range(4):
                a(f'v_fma_f32 v{n+i}, -v{16+i}, v{dn}, v{n+i}')
            for i in range(4):
                a(f'v_fmac_f32 v{16+i}, v{n+i}, v{dn+1}')
            o = 20 + (mb * 2 + db) * 2
            a(f'v_cvt_pk_bf16_f32 v{o}, v16, v17')
            a(f'v_cvt_pk_bf16_f32 v{o+1}, v18, v19')
            a(f'buffer_store_dwordx2 v[{o}:{o+1}], v8, s[16:19], s28 offen offset:{db*32}')
    a('o_done:')
    a('s_endpgm')
    return descriptor(name, 192, 40)


G2_A = 32768
G2_BB = 98304
G2_B = 16384
G2_LDS = G2_BB + 3 * G2_B


def gen_gemm2(a):
    name = 'gemm2_kernel'
    kernel_begin(a, name)
    a('s_cmp_ge_u32 s2, 256')
    a('s_cbranch_scc1 g2_exit')
    a('s_load_dwordx2 s[4:5], s[0:1], 88')
    a('s_load_dwordx2 s[6:7], s[0:1], 24')
    a('s_load_dwordx2 s[56:57], s[0:1], 56')
    a('s_load_dwordx2 s[58:59], s[0:1], 64')
    a('s_load_dwordx2 s[60:61], s[0:1], 0')
    a('s_load_dwordx2 s[62:63], s[0:1], 72')
    LANE, G4, L16, T = 14, 15, 16, 17
    VA2, VB2, VGA2, VGB2 = 2, 5, 9, 10
    a('v_lshrrev_b32 v1, 6, v0')
    a(f'v_and_b32 v{LANE}, 63, v0')
    a('s_nop 0')
    a('v_readfirstlane_b32 s20, v1')
    a(f'v_lshrrev_b32 v{G4}, 4, v{LANE}')
    a(f'v_and_b32 v{L16}, 15, v{LANE}')
    a('s_nop 1')
    a('s_and_b32 s21, s20, 1')
    a('s_lshr_b32 s22, s20, 1')
    a('s_and_b32 s26, s2, 7')
    a('s_lshr_b32 s27, s2, 3')
    a('s_and_b32 s24, s26, 3')
    a('s_lshl_b32 s24, s24, 2')
    a('s_and_b32 s28, s27, 3')
    a('s_add_u32 s24, s24, s28')
    a('s_lshr_b32 s25, s26, 2')
    a('s_lshl_b32 s25, s25, 3')
    a('s_lshr_b32 s28, s27, 2')
    a('s_add_u32 s25, s25, s28')
    a('s_lshl_b32 s28, s22, 2')
    a(f'v_add_u32 v{T}, s28, v{G4}')
    a(f'v_xor_b32 v{T}, v{T}, v{L16}')
    a(f'v_lshlrev_b32 v{T}, 4, v{T}')
    a(f'v_lshl_add_u32 v{T}, v{L16}, 8, v{T}')
    a('s_lshl_b32 s28, s21, 14')
    a(f'v_add_u32 v{T}, s28, v{T}')
    for sl in range(3):
        a(f'v_add_u32 v{VA2+sl}, 0x{sl*G2_A:x}, v{T}')
    a(f'v_lshrrev_b32 v{T}, 2, v{L16}')
    a(f'v_lshl_add_u32 v{T+1}, v{G4}, 3, v{T}')
    a('s_lshl_b32 s28, s22, 5')
    a(f'v_add_u32 v{T+1}, s28, v{T+1}')
    a(f'v_lshrrev_b32 v{T+2}, 1, v{T}')
    a(f'v_and_b32 v{T+3}, 1, v{G4}')
    a(f'v_lshl_or_b32 v{T+2}, v{T+3}, 1, v{T+2}')
    a(f'v_and_b32 v{T+4}, 3, v{LANE}')
    a(f'v_lshlrev_b32 v{T+4}, 3, v{T+4}')
    a(f'v_lshl_add_u32 v{T+5}, v{T+1}, 7, v{T+4}')
    a(f'v_add_u32 v{T+5}, 0x{G2_BB:x}, v{T+5}')
    for nb in range(4):
        a(f'v_xor_b32 v{T+6}, {nb}, v{T+2}')
        a(f'v_lshl_add_u32 v{VB2+nb}, v{T+6}, 5, v{T+5}')
    a('s_lshl_b32 s28, s20, 2')
    a('s_and_b32 s29, s28, 15')
    a(f'v_add_u32 v{T}, s29, v{G4}')
    a(f'v_xor_b32 v{T}, v{T}, v{L16}')
    a('s_lshl_b32 s29, s24, 7')
    a('s_add_u32 s28, s28, s29')
    a(f'v_add_u32 v{T+1}, s28, v{G4}')
    a('s_mov_b32 s29, 9216')
    a(f'v_mul_lo_u32 v{T+1}, v{T+1}, s29')
    a(f'v_lshl_add_u32 v{VGA2}, v{T}, 4, v{T+1}')
    a('s_lshl_b32 s30, s20, 10')
    a(f'v_lshrrev_b32 v{T}, 3, v{LANE}')
    a(f'v_bfe_u32 v{T+1}, v{LANE}, 4, 1')
    a('s_lshl_b32 s28, s21, 1')
    a(f'v_or_b32 v{T+1}, s28, v{T+1}')
    a(f'v_bfe_u32 v{T+2}, v{LANE}, 1, 2')
    a(f'v_xor_b32 v{T+2}, v{T+2}, v{T+1}')
    a(f'v_and_b32 v{T+3}, 1, v{LANE}')
    a(f'v_lshlrev_b32 v{T+3}, 4, v{T+3}')
    a(f'v_lshl_add_u32 v{T+3}, v{T+2}, 5, v{T+3}')
    a('s_lshl_b32 s28, s20, 3')
    a(f'v_add_u32 v{T}, s28, v{T}')
    a(f'v_lshl_add_u32 v{T}, v{T}, 11, v{T+3}')
    a('s_lshl_b32 s32, s25, 7')
    a(f'v_add_u32 v{VGB2}, s32, v{T}')
    a('s_waitcnt lgkmcnt(0)')
    srd(a, 8, 4, ACT2_SZ, ACT2_OFF)
    srd(a, 12, 6, 1024 * 1024 * 2)
    srd(a, 16, 56, 3584 * 1024 * 2)
    srd(a, 36, 58, 2048)
    srd(a, 40, 60, XN_SZ)
    srd(a, 44, 62, XN_SZ)
    ACC2 = 64
    SETS2 = (24, 128)
    for i in range(64):
        a(f'v_mov_b32 v{ACC2+i}, 0')
    vq = VQ()
    NS = 36

    def issue(j):
        sl = j % 3
        for q in range(4):
            a(f's_add_u32 m0, s30, 0x{sl*G2_A + q*8192:x}')
            a(f's_mov_b32 s28, 0x{j*256 + q*32*9216:x}')
            a(f'buffer_load_dwordx4 v{VGA2}, s[8:11], s28 offen lds')
            vq.push(j)
        for q in range(2):
            k0 = j * 128 + q * 64
            if k0 < 1024:
                sr, ko = 's[12:15]', k0
            else:
                sr, ko = 's[16:19]', k0 - 1024
            a(f's_add_u32 m0, s30, 0x{G2_BB + sl*G2_B + q*8192:x}')
            a(f's_mov_b32 s28, 0x{ko*2048:x}')
            a(f'buffer_load_dwordx4 v{VGB2}, {sr}, s28 offen lds')
            vq.push(j)

    def frag_reads(j):
        S = SETS2[j & 1]
        sl = j % 3
        out = []
        for mb in range(4):
            out.append(f'ds_read_b128 v[{S+4*mb}:{S+4*mb+3}], v{VA2+sl} offset:{mb*4096}')
        for nb in range(4):
            d = S + 16 + 4 * nb
            for t in range(2):
                out.append(f'ds_read_b64_tr_b16 v[{d+2*t}:{d+2*t+1}], v{VB2+nb} offset:{sl*G2_B + t*512}')
        return out

    def mfmas(j):
        S = SETS2[j & 1]
        out = []
        for nb in range(4):
            for mb in range(4):
                c = ACC2 + (mb * 4 + nb) * 4
                out.append(f'v_mfma_f32_16x16x32_bf16 v[{c}:{c+3}], v[{S+16+4*nb}:{S+19+4*nb}], v[{S+4*mb}:{S+4*mb+3}], v[{c}:{c+3}]')
        return out

    issue(0); issue(1); issue(2)
    a(f's_waitcnt vmcnt({vq.wait_for({0})})')
    a('s_barrier')
    for r in frag_reads(0):
        a(r)
    a('s_waitcnt lgkmcnt(0)')
    for j in range(NS):
        if j + 1 < NS:
            a(f's_waitcnt vmcnt({vq.wait_for({j + 1})})')
        a('s_barrier')
        if j + 3 < NS:
            issue(j + 3)
        rd = frag_reads(j + 1) if j + 1 < NS else []
        mm = mfmas(j)
        k = 0
        for m in mm:
            a(m)
            if k < len(rd):
                a(rd[k]); k += 1
        a('s_waitcnt lgkmcnt(0)')
    a(f'v_lshlrev_b32 v{T}, 4, v{LANE}')
    a('s_lshl_b32 s28, s21, 16')
    a('s_lshl_b32 s29, s22, 12')
    a('s_add_u32 s28, s28, s29')
    a(f'v_add_u32 v{T+1}, s28, v{T}')
    for mb in range(4):
        for nb in range(4):
            c = ACC2 + (mb * 4 + nb) * 4
            a(f'ds_write_b128 v{T+1}, v[{c}:{c+3}] offset:{mb*16384 + nb*1024}')
    a('s_lshl_b32 s28, s24, 7')
    a('s_lshl_b32 s29, s21, 6')
    a('s_add_u32 s28, s28, s29')
    a('s_lshl_b32 s29, s22, 4')
    a('s_add_u32 s28, s28, s29')
    a(f'v_add_u32 v{T+2}, s28, v{L16}')
    a(f'v_lshlrev_b32 v{T+2}, 11, v{T+2}')
    a(f'v_lshl_add_u32 v{T+3}, v{G4}, 3, s32')
    a(f'v_add_u32 v{T+2}, v{T+2}, v{T+3}')
    for nb in range(4):
        a(f'buffer_load_dwordx2 v[{24+2*nb}:{25+2*nb}], v{T+2}, s[40:43], 0 offen offset:{nb*32}')
        a(f'buffer_load_dwordx2 v[{32+2*nb}:{33+2*nb}], v{T+3}, s[36:39], 0 offen offset:{nb*32}')
    a('s_waitcnt lgkmcnt(0)')
    a('s_barrier')
    a('s_lshl_b32 s28, s21, 16')
    a('s_lshl_b32 s29, s22, 14')
    a('s_add_u32 s28, s28, s29')
    a(f'v_add_u32 v{T+1}, s28, v{T}')
    for src in range(4):
        for nb in range(4):
            d = 128 + (src * 4 + nb) * 4
            a(f'ds_read_b128 v[{d}:{d+3}], v{T+1} offset:{src*4096 + nb*1024}')
    a('s_mov_b32 s50, 0xffff0000')
    a('s_waitcnt vmcnt(0) lgkmcnt(0)')
    for i in range(16):
        a(f'v_add_f32 v{128+i}, v{128+i}, v{144+i}')
        a(f'v_add_f32 v{160+i}, v{160+i}, v{176+i}')
    for i in range(16):
        a(f'v_add_f32 v{128+i}, v{128+i}, v{160+i}')
    for nb in range(4):
        for h in range(2):
            r = 128 + nb * 4 + 2 * h
            a(f'v_lshlrev_b32 v40, 16, v{24+2*nb+h}')
            a(f'v_and_b32 v41, s50, v{24+2*nb+h}')
            a(f'v_lshlrev_b32 v42, 16, v{32+2*nb+h}')
            a(f'v_and_b32 v43, s50, v{32+2*nb+h}')
            a(f'v_add_f32 v{r}, v{r}, v42')
            a(f'v_add_f32 v{r+1}, v{r+1}, v43')
            a(f'v_add_f32 v{r}, v{r}, v40')
            a(f'v_add_f32 v{r+1}, v{r+1}, v41')
            a(f'v_cvt_pk_bf16_f32 v{44+2*nb+h}, v{r}, v{r+1}')
        a(f'buffer_store_dwordx2 v[{44+2*nb}:{45+2*nb}], v{T+2}, s[44:47], 0 offen offset:{nb*32}')
    a('g2_exit:')
    a('s_endpgm')
    return descriptor(name, 192, 96)


def main():
    a = Asm()
    descs = []
    descs.append(gen_ln(a))
    descs.append(gen_gemm1(a))
    descs.append(gen_o(a))
    descs.append(gen_gemm2(a))
    head = open('cdna_kernels/%s.s.ref' % NAME).read().split('; @launch')[0]
    out = head
    out += '; @launch kernel=ln_kernel grid=(512,1,1) block=(256,1,1) lds=0\n'
    out += f'; @launch kernel=gemm1_kernel grid=(256,1,1) block=(512,1,1) lds={G1_LDS}\n'
    out += '; @launch kernel=attn_o_kernel grid=(256,1,1) block=(256,1,1) lds=8192\n'
    out += f'; @launch kernel=gemm2_kernel grid=(256,1,1) block=(512,1,1) lds={G2_LDS}\n'
    out += '.amdgcn_target "amdgcn-amd-amdhsa--gfx950"\n.text\n'
    out += a.finalize()
    out += '.section .rodata,"a"\n'
    for d in descs:
        out += '.p2align 6\n' + d
    path = sys.argv[1] if len(sys.argv) > 1 else 'cdna_kernels/%s.s' % NAME
    open(path, 'w').write(out)
    print('wrote', path, len(out))


if __name__ == '__main__':
    main()
```

```python
import sys, os
from asmlib import Asm
OPT = lambda k, d='': os.environ.get(k, d)

NAME = 'parallel_sum__linear_kernel_hedgehog__dense_activation_gelu__prompt'
XN_OFF = 0
XN_SZ = 2048 * 1024 * 2
ACT2_OFF = 0x400000
ACT2_SZ = 2048 * 4608 * 2
PHIQ_OFF = 0x1600000
PHIQ_SZ = 2048 * 2048 * 2
KVP_OFF = 0x1E00000
KVP_ENT = 8448
KVP_SZ = 8 * 32 * KVP_ENT

LOG2E = 0x3fb8aa3b


def f2u(x):
    import struct
    return struct.unpack('<I', struct.pack('<f', x))[0]


def srd(a, d, base, size, off=0):
    if off:
        a(f's_add_u32 s{d}, s{base}, 0x{off:x}')
        a(f's_addc_u32 s{d+1}, s{base+1}, 0')
    else:
        a(f's_mov_b32 s{d}, s{base}')
        a(f's_mov_b32 s{d+1}, s{base+1}')
    a(f's_and_b32 s{d+1}, s{d+1}, 0xffff')
    a(f's_mov_b32 s{d+2}, 0x{size:x}')
    a(f's_mov_b32 s{d+3}, 0x00020000')


STAMP_OFF = 0x3000000


def stamp(a, idx, real=False):
    if not OPT('STAMP'):
        return
    a('s_memrealtime s[78:79]' if real else 's_memtime s[78:79]')
    a('s_waitcnt lgkmcnt(0)')
    a(f's_mov_b32 s{80+idx}, s78')


def stamp_flush(a, n, kern):
    if not OPT('STAMP'):
        return
    a('s_mov_b64 exec, -1')
    srd(a, 92, 4, 0x1000000, STAMP_OFF + kern * 0x40000)
    a('s_lshl_b32 s78, s2, 3')
    a('s_add_u32 s78, s78, s20')
    a('s_lshl_b32 s78, s78, 6')
    a('v_mov_b32 v1, 0')
    for i in range(n):
        a(f'v_mov_b32 v2, s{80+i}')
        a(f'buffer_store_dword v2, v1, s[92:95], s78 offen offset:{4*i}')


def kernel_begin(a, name):
    a.raw(f'.globl {name}')
    a.raw('.p2align 8')
    a.raw(f'.type {name},@function')
    a.raw(f'{name}:')


def descriptor(name, vgpr, sgpr=96):
    acc = (vgpr + 3) // 4 * 4
    return f'''.amdhsa_kernel {name}
  .amdhsa_next_free_vgpr {vgpr}
  .amdhsa_next_free_sgpr {sgpr}
  .amdhsa_accum_offset {acc}
  .amdhsa_group_segment_fixed_size 0
  .amdhsa_kernarg_size 96
  .amdhsa_user_sgpr_count 2
  .amdhsa_user_sgpr_kernarg_segment_ptr 1
  .amdhsa_system_sgpr_workgroup_id_x 1
.end_amdhsa_kernel
'''


def allreduce16(a, op, v, tmp):
    for r in (8, 4, 2, 1):
        a(f'{op}_dpp v{tmp}, v{v}, v{v} row_ror:{r} row_mask:0xf bank_mask:0xf')
        v, tmp = tmp, v
    return v


def cross_groups(a, op, v, t):
    a(f'v_mov_b32 v{t}, v{v}')
    a(f'v_permlane32_swap_b32 v{v}, v{t}')
    a(f'{op} v{v}, v{v}, v{t}')
    a(f'v_mov_b32 v{t}, v{v}')
    a(f'v_permlane16_swap_b32 v{v}, v{t}')
    a(f'{op} v{v}, v{v}, v{t}')


def round_bf16(a, d, s):
    a(f'v_cvt_pk_bf16_f32 v{d}, v{s}, v{s}')
    a(f'v_lshlrev_b32 v{d}, 16, v{d}')


def gen_ln(a):
    name = 'ln_kernel'
    kernel_begin(a, name)
    a('s_cmp_ge_u32 s2, 512')
    a('s_cbranch_scc1 ln_done')
    a('s_load_dwordx2 s[4:5], s[0:1], 0')
    a('s_load_dwordx2 s[6:7], s[0:1], 88')
    a('s_load_dwordx2 s[24:25], s[0:1], 8')
    a('s_load_dwordx2 s[26:27], s[0:1], 40')
    a('v_lshrrev_b32 v1, 6, v0')
    a('v_and_b32 v2, 63, v0')
    a('s_lshl_b32 s3, s2, 2')
    a('v_add_u32 v1, s3, v1')
    a('v_lshlrev_b32 v3, 10, v1')
    a('v_lshl_add_u32 v3, v2, 4, v3')
    a('v_lshlrev_b32 v1, 11, v1')
    a('v_lshl_add_u32 v1, v2, 4, v1')
    a('s_waitcnt lgkmcnt(0)')
    srd(a, 8, 4, XN_SZ)
    srd(a, 12, 6, XN_SZ, XN_OFF)
    a('buffer_load_dwordx4 v[4:7], v1, s[8:11], 0 offen')
    a('buffer_load_dwordx4 v[8:11], v1, s[8:11], 0 offen offset:1024')
    npf = 0
    if OPT('LNPF'):
        srd(a, 28, 24, 1024 * 3072 * 2)
        srd(a, 32, 26, 1024 * 3584 * 2)
        for i in range(4):
            a(f's_mov_b32 s17, {i << 21}')
            if i < 3:
                a(f'buffer_load_dwordx4 v[64:67], v3, s[28:31], s17 offen')
                npf += 1
            a(f'buffer_load_dwordx4 v[68:71], v3, s[32:35], s17 offen')
            npf += 1
    a('s_mov_b32 s16, 0xffff0000')
    a(f's_waitcnt vmcnt({npf})')
    for i in range(8):
        a(f'v_lshlrev_b32 v{16+2*i}, 16, v{4+i}')
        a(f'v_and_b32 v{17+2*i}, s16, v{4+i}')
    for i in range(8):
        a(f'v_add_f32 v{32+i}, v{16+2*i}, v{17+2*i}')
    for i in range(4):
        a(f'v_add_f32 v{32+i}, v{32+2*i}, v{33+2*i}')
    a('v_add_f32 v32, v32, v33')
    a('v_add_f32 v34, v34, v35')
    a('v_add_f32 v32, v32, v34')
    r = allreduce16(a, 'v_add_f32', 32, 33)
    cross_groups(a, 'v_add_f32', r, 34)
    a(f'v_mul_f32 v40, 0x{f2u(1.0/1024):x}, v{r}')
    for i in range(16):
        a(f'v_sub_f32 v{44+i}, v{16+i}, v40')
    a('v_mul_f32 v32, v44, v44')
    a('v_mul_f32 v33, v45, v45')
    for i in range(2, 16, 2):
        a(f'v_fmac_f32 v32, v{44+i}, v{44+i}')
        a(f'v_fmac_f32 v33, v{45+i}, v{45+i}')
    a('v_add_f32 v32, v32, v33')
    r = allreduce16(a, 'v_add_f32', 32, 33)
    cross_groups(a, 'v_add_f32', r, 34)
    a(f'v_mul_f32 v41, 0x{f2u(1.0/1024):x}, v{r}')
    round_bf16(a, 40, 40)
    round_bf16(a, 41, 41)
    a(f'v_add_f32 v41, 0x{f2u(1e-5):x}, v41')
    round_bf16(a, 41, 41)
    a('v_sqrt_f32 v41, v41')
    round_bf16(a, 41, 41)
    a('v_rcp_f32 v42, v41')
    for i in range(0, 16, 2):
        a(f'v_sub_f32 v{16+i}, v{16+i}, v40')
        a(f'v_sub_f32 v{17+i}, v{17+i}, v40')
        a(f'v_cvt_pk_bf16_f32 v{44+i}, v{16+i}, v{17+i}')
        a(f'v_lshlrev_b32 v{16+i}, 16, v{44+i}')
        a(f'v_and_b32 v{17+i}, s16, v{44+i}')
    for i in range(16):
        a(f'v_mul_f32 v{44+i}, v{16+i}, v42')
    for i in range(16):
        a(f'v_fma_f32 v{16+i}, -v{44+i}, v41, v{16+i}')
    for i in range(16):
        a(f'v_fmac_f32 v{44+i}, v{16+i}, v42')
    for i in range(8):
        a(f'v_cvt_pk_bf16_f32 v{4+i}, v{44+2*i}, v{45+2*i}')
    a('buffer_store_dwordx4 v[4:7], v1, s[12:15], 0 offen')
    a('buffer_store_dwordx4 v[8:11], v1, s[12:15], 0 offen offset:1024')
    a('ln_done:')
    a('s_endpgm')
    return descriptor(name, 72, 40)


class VQ:
    def __init__(self):
        self.q = []

    def push(self, tag):
        self.q.append(tag)

    def wait_for(self, tags):
        last = -1
        for i, t in enumerate(self.q):
            if t in tags:
                last = i
        n = len(self.q) - 1 - last
        return min(n, 63)


def interleave(a, mm, rd, dma, emit_grp, first_dma=1, dma_every=4):
    rd = list(rd); dma = list(dma)
    for idx, m in enumerate(mm):
        a(m)
        if dma and idx >= first_dma and (idx - first_dma) % dma_every == 0:
            emit_grp(dma.pop(0))
        elif rd:
            a(rd.pop(0))
        elif dma:
            emit_grp(dma.pop(0))
    for r in rd:
        a(r)
    for g in dma:
        emit_grp(g)


A_SLOT = 32768
B_BASE = 98304
B_SLOT = 14336
G1_DUMMY = B_BASE + 4 * B_SLOT
G1_LDS = G1_DUMMY + 8192
ACC = 128
SETS = (32, 76)
VA = 2
VB = 8
VGA = 11
VGB0 = 12
VGB1 = 13
VLANE = 14
VG4 = 15
VL16 = 16
VPF = 31
VPF2 = 30
VTMP = 17


def gemm1_common_setup(a):
    a('v_lshrrev_b32 v1, 6, v0')
    a(f'v_and_b32 v{VLANE}, 63, v0')
    a('s_nop 0')
    a('v_readfirstlane_b32 s20, v1')
    a(f'v_lshrrev_b32 v{VG4}, 4, v{VLANE}')
    a(f'v_and_b32 v{VL16}, 15, v{VLANE}')
    a('s_nop 1')
    a('s_lshr_b32 s21, s20, 1')
    a('s_and_b32 s22, s20, 1')
    a('s_and_b32 s26, s2, 7')
    a('s_lshr_b32 s27, s2, 3')
    a('s_and_b32 s24, s26, 1')
    a('s_lshl_b32 s24, s24, 2')
    a('s_and_b32 s28, s27, 3')
    a('s_add_u32 s24, s24, s28')
    a('s_lshr_b32 s25, s26, 1')
    a('s_lshl_b32 s25, s25, 3')
    a('s_lshr_b32 s28, s27, 2')
    a('s_add_u32 s25, s25, s28')
    T = VTMP
    a('s_lshl_b32 s28, s21, 13')
    a(f'v_and_b32 v{T}, 7, v{VLANE}')
    a(f'v_xor_b32 v{T}, v{T}, v{VG4}')
    a(f'v_lshlrev_b32 v{T}, 4, v{T}')
    a(f'v_lshl_add_u32 v{T}, v{VL16}, 7, v{T}')
    a(f'v_add_u32 v{T}, s28, v{T}')
    a(f'v_xor_b32 v{T+1}, 64, v{T}')
    for sl in range(3):
        a(f'v_add_u32 v{VA+2*sl}, 0x{sl*A_SLOT:x}, v{T}')
        a(f'v_add_u32 v{VA+2*sl+1}, 0x{sl*A_SLOT:x}, v{T+1}')
    a(f'v_lshrrev_b32 v{T}, 3, v{VLANE}')
    a(f'v_and_b32 v{T+1}, 7, v{VLANE}')
    a(f'v_xor_b32 v{T+1}, v{T+1}, v{T}')
    a('s_lshl_b32 s28, s24, 8')
    a('s_lshl_b32 s29, s20, 5')
    a('s_add_u32 s28, s28, s29')
    a(f'v_add_u32 v{T}, s28, v{T}')
    a(f'v_lshlrev_b32 v{T}, 11, v{T}')
    a(f'v_lshl_add_u32 v{VGA}, v{T+1}, 4, v{T}')
    a(f'v_lshlrev_b32 v{VPF}, 4, v{VLANE}')
    a('s_lshl_b32 s30, s20, 12')
    a('s_lshl_b32 s31, s20, 10')


def gemm1_variant(a, kind):
    w1 = kind == 'w1'
    NB = 7 if w1 else 6
    rowstride = 7168 if w1 else 6144
    nsecond = 6 if w1 else 4
    T = VTMP
    a(f'v_lshrrev_b32 v{T}, 2, v{VL16}')
    a(f'v_lshl_add_u32 v{T+1}, v{VG4}, 3, v{T}')
    a(f'v_lshrrev_b32 v{T+2}, 1, v{T}')
    a(f'v_and_b32 v{T+3}, 1, v{VG4}')
    a(f'v_lshl_or_b32 v{T+2}, v{T+3}, 1, v{T+2}')
    a(f'v_and_b32 v{T+4}, 3, v{VLANE}')
    a(f'v_lshlrev_b32 v{T+4}, 3, v{T+4}')
    a(f'v_lshl_add_u32 v{T+5}, v{T+1}, 7, v{T+4}')
    a(f'v_add_u32 v{T+5}, 0x{B_BASE:x}, v{T+5}')
    for e in range(2):
        if w1:
            a(f's_add_u32 s28, s22, {2*e}')
        else:
            a('s_lshl_b32 s28, s22, 1')
            a(f's_add_u32 s28, s28, {e}')
        a(f'v_xor_b32 v{T+6}, s28, v{T+2}')
        a(f'v_lshl_add_u32 v{VB+e}, v{T+6}, 5, v{T+5}')
    if w1:
        a(f'v_xor_b32 v{T+6}, s22, v{T+3}')
        a(f'v_lshl_add_u32 v{T+7}, v{T+1}, 6, v{T+4}')
        a(f'v_lshl_add_u32 v{T+7}, v{T+6}, 5, v{T+7}')
        a(f'v_add_u32 v{VB+2}, 0x{B_BASE+12288:x}, v{T+7}')
    colstride = 128 if w1 else 2048
    a(f'v_lshrrev_b32 v{T}, 3, v{VLANE}')
    a(f'v_bfe_u32 v{T+1}, v{VLANE}, 4, 1')
    a('s_and_b32 s28, s20, 1')
    a('s_lshl_b32 s28, s28, 1')
    a(f'v_or_b32 v{T+1}, s28, v{T+1}')
    a(f'v_bfe_u32 v{T+2}, v{VLANE}, 1, 2')
    a(f'v_xor_b32 v{T+2}, v{T+2}, v{T+1}')
    a(f'v_and_b32 v{T+3}, 1, v{VLANE}')
    a(f'v_lshlrev_b32 v{T+3}, 4, v{T+3}')
    a(f'v_lshl_add_u32 v{T+3}, v{T+2}, 5, v{T+3}')
    a('s_and_b32 s28, s20, 3')
    a('s_lshl_b32 s28, s28, 3')
    a(f'v_add_u32 v{T}, s28, v{T}')
    a(f's_mov_b32 s29, {rowstride}')
    a(f'v_mul_lo_u32 v{T}, v{T}, s29')
    a(f'v_add_u32 v{T}, v{T}, v{T+3}')
    a('s_lshr_b32 s28, s20, 2')
    a(f's_mul_i32 s28, s28, {colstride}')
    if w1:
        a('s_sub_u32 s32, s25, 16')
        a('s_mul_i32 s32, s32, 448')
    else:
        a('s_lshl_b32 s32, s25, 7')
    a('s_add_u32 s28, s28, s32')
    a(f'v_add_u32 v{VGB0}, s28, v{T}')
    a(f'v_add_u32 v{VGB1}, 0x{2*colstride:x}, v{VGB0}')
    if w1:
        a(f'v_lshrrev_b32 v{T}, 2, v{VLANE}')
        a('s_sub_u32 s28, s20, 4')
        a('s_lshl_b32 s28, s28, 4')
        a(f'v_add_u32 v{T}, s28, v{T}')
        a(f'v_mul_lo_u32 v{T}, v{T}, s29')
        a(f'v_bfe_u32 v{T+1}, v{VLANE}, 5, 1')
        a(f'v_bfe_u32 v{T+2}, v{VLANE}, 1, 1')
        a(f'v_xor_b32 v{T+2}, v{T+2}, v{T+1}')
        a(f'v_and_b32 v{T+3}, 1, v{VLANE}')
        a(f'v_lshlrev_b32 v{T+3}, 4, v{T+3}')
        a(f'v_lshl_add_u32 v{T+3}, v{T+2}, 5, v{T+3}')
        a(f'v_add_u32 v{T}, v{T}, v{T+3}')
        a('s_add_u32 s28, s32, 384')
        a(f'v_add_u32 v{T}, s28, v{T}')
        a('s_cmp_ge_u32 s20, 4')
        a('s_cselect_b64 s[34:35], -1, 0')
        a(f'v_cndmask_b32 v{VGB1}, v{VGB1}, v{T}, s[34:35]')
    if w1:
        a('s_lshl_b32 s28, s22, 5')
        a(f'v_lshl_add_u32 v{T}, v{VG4}, 3, s28')
        for nb in range(7):
            a(f'buffer_load_dwordx2 v[{240+2*nb}:{241+2*nb}], v{T}, s[40:43], s32 offen offset:{nb*64}')
    else:
        a('s_lshl_b32 s33, s25, 1')
        a('s_add_u32 s33, s33, s22')
        a('s_lshl_b32 s28, s33, 11')
        a(f'v_lshlrev_b32 v{T}, 8, v{VG4}')
        a(f'v_lshl_add_u32 v{T}, v{VL16}, 1, v{T}')
        for fb in range(2):
            for j in range(8):
                off = (16 * (j // 4) + j % 4) * 64 + fb * 32
                a(f'buffer_load_ushort v{224+8*fb+j}, v{T}, s[40:43], s28 offen offset:{off}')
    for i in range(NB * 16):
        a(f'v_mov_b32 v{ACC+i}, 0')

    vq = VQ()
    lbl = [0]

    def grp_A(i):
        if OPT('G1_NOA'):
            return []
        out = []
        for q in range(4):
            out.append(([f's_add_u32 m0, s30, 0x{(i % 3) * A_SLOT + q * 1024:x}',
                         f's_mov_b32 s28, 0x{i * 128 + q * 16384:x}',
                         f'buffer_load_dwordx4 v{VGA}, s[8:11], s28 offen lds'], ('A', i)))
        return out

    def grp_B(j):
        if OPT('G1_NOB'):
            return []
        base = B_BASE + (j % 4) * B_SLOT
        L = f'g1{kind}_sk{lbl[0]}'
        lbl[0] += 1
        return [([f's_add_u32 m0, s31, 0x{base:x}',
                  f's_mov_b32 s28, 0x{j * 32 * rowstride:x}',
                  f'buffer_load_dwordx4 v{VGB0}, s[12:15], s28 offen lds'], ('B', j)),
                ([f's_cmp_ge_u32 s20, {nsecond}',
                  f's_cbranch_scc1 {L}',
                  f's_add_u32 m0, s31, 0x{base + 8192:x} ; @skip',
                  f's_mov_b32 s28, 0x{j * 32 * rowstride:x} ; @skip',
                  f'buffer_load_dwordx4 v{VGB1}, s[12:15], s28 offen lds ; @skip',
                  f'{L}:'], None)]

    def emit_grp(g):
        for l in g[0]:
            a(l)
        if g[1] is not None:
            vq.push(g[1])

    def issue_A(i):
        for g in grp_A(i):
            emit_grp(g)

    def issue_B(j):
        for g in grp_B(j):
            emit_grp(g)

    def frag_reads(j):
        S = SETS[j & 1]
        sl = (j // 2) % 3
        half = j & 1
        out = []
        for mb in range(4):
            out.append(f'ds_read_b128 v[{S+4*mb}:{S+4*mb+3}], v{VA+2*sl+half} offset:{mb*2048}')
        bs = (j % 4) * B_SLOT
        for nb in range(NB):
            d = S + 16 + 4 * nb
            if w1 and nb == 6:
                for t in range(2):
                    out.append(f'ds_read_b64_tr_b16 v[{d+2*t}:{d+2*t+1}], v{VB+2} offset:{bs + t*256}')
            else:
                G, e = nb // 2, nb % 2
                for t in range(2):
                    out.append(f'ds_read_b64_tr_b16 v[{d+2*t}:{d+2*t+1}], v{VB+e} offset:{bs + G*4096 + t*512}')
        return out

    def mfmas(j):
        S = SETS[j & 1]
        out = []
        for nb in range(NB):
            for mb in range(4):
                c = ACC + (nb * 4 + mb) * 4
                wf = f'v[{S+16+4*nb}:{S+19+4*nb}]'
                xf = f'v[{S+4*mb}:{S+4*mb+3}]'
                if (not w1) and nb >= 4:
                    out.append(f'v_mfma_f32_16x16x32_bf16 v[{c}:{c+3}], {xf}, {wf}, v[{c}:{c+3}]')
                else:
                    out.append(f'v_mfma_f32_16x16x32_bf16 v[{c}:{c+3}], {wf}, {xf}, v[{c}:{c+3}]')
        return out

    stamp(a, 1)
    def grp_pf(i):
        if OPT('NO_PF1'):
            return []
        return [([f's_add_u32 m0, s31, 0x{G1_DUMMY:x}',
                  f's_mov_b32 s28, 0x{i << 20:x}',
                  f'buffer_load_dwordx4 v{VPF2}, s[88:91], s28 offen lds'], None)]

    issue_A(0); issue_B(0); issue_B(1); issue_A(1); issue_B(2); issue_B(3); issue_A(2)
    for g in grp_pf(0) + grp_pf(1):
        emit_grp(g)
    a(f's_waitcnt vmcnt({vq.wait_for({("A", 0), ("B", 0)})})')
    a('s_barrier')
    for r in frag_reads(0):
        a(r)
    a('s_waitcnt lgkmcnt(0)')
    for j in range(32):
        if j + 1 < 32:
            a(f's_waitcnt vmcnt({vq.wait_for({("A", (j + 1) // 2), ("B", j + 1)})})')
        a('s_barrier')
        dma = []
        if j + 4 < 32:
            dma += grp_B(j + 4)
        if j & 1 and (j // 2 + 3) < 16:
            dma += grp_A(j // 2 + 3)
        if j in (2, 7, 12, 17, 22):
            dma += grp_pf(2 + (j - 2) // 5)
        if j == 28 and not OPT('NO_PF'):
            dma.append(([f's_add_u32 m0, s31, 0x{G1_DUMMY:x}',
                         's_lshl_b32 s28, s2, 13',
                         's_add_u32 s28, s28, s31',
                         f'buffer_load_dwordx4 v{VPF}, s[64:67], s28 offen lds',
                         's_mul_i32 s76, s2, 28672',
                         's_mul_i32 s29, s20, 3584',
                         's_add_u32 s76, s76, s29'], None))
            for i in range(4):
                dma.append(([f'buffer_load_dwordx4 v{VPF}, s[68:71], s76 offen lds',
                             's_add_u32 s76, s76, 1024'], None))
        rd = frag_reads(j + 1) if j + 1 < 32 else []
        mm = mfmas(j)
        if OPT('G1_NOCOMP'):
            rd = []; mm = []
        interleave(a, mm, rd, dma, emit_grp, int(OPT('G1_FD', '1')), int(OPT('G1_DE', '4')))
        a('s_waitcnt lgkmcnt(0)')
    stamp(a, 2)
    if w1:
        epilogue_w1(a)
    else:
        epilogue_qkv(a)


def epilogue_w1(a):
    T = VTMP
    c1 = -2.0 * 0.7978845608028654 * 1.4426950408889634
    c2 = c1 * 0.044715
    a(f's_mov_b32 s44, 0x{f2u(c1):x}')
    a(f's_mov_b32 s45, 0x{f2u(c1):x}')
    a(f's_mov_b32 s46, 0x{f2u(c2):x}')
    a(f's_mov_b32 s47, 0x{f2u(c2):x}')
    a('s_mov_b32 s48, 1.0')
    a('s_mov_b32 s49, 1.0')
    a('s_mov_b32 s50, 0xffff0000')
    a('s_mul_i32 s28, s21, 29696')
    a('s_lshl_b32 s29, s22, 5')
    a('s_add_u32 s28, s28, s29')
    a('s_movk_i32 s29, 464')
    a(f'v_mul_lo_u32 v{T}, v{VL16}, s29')
    a(f'v_lshl_add_u32 v{T+1}, v{VG4}, 3, s28')
    a(f'v_add_u32 v{T}, v{T}, v{T+1}')
    B0 = 32
    for nb in range(7):
        for h in range(2):
            a(f'v_lshlrev_b32 v{B0+4*nb+2*h}, 16, v{240+2*nb+h}')
            a(f'v_and_b32 v{B0+4*nb+2*h+1}, s50, v{240+2*nb+h}')
    W = 64
    a('v_mov_b32 v60, s44')
    a('v_mov_b32 v61, s44')
    for nb in range(7):
        for mb in range(4):
            c = ACC + (nb * 4 + mb) * 4
            w = W + mb * 8
            for h in range(2):
                a(f'v_pk_add_f32 v[{c+2*h}:{c+2*h+1}], v[{c+2*h}:{c+2*h+1}], v[{B0+4*nb+2*h}:{B0+4*nb+2*h+1}]')
            for h in range(2):
                a(f'v_pk_mul_f32 v[{w+2*h}:{w+2*h+1}], v[{c+2*h}:{c+2*h+1}], v[{c+2*h}:{c+2*h+1}]')
            for h in range(2):
                a(f'v_pk_fma_f32 v[{w+2*h}:{w+2*h+1}], v[{w+2*h}:{w+2*h+1}], s[46:47], v[60:61]')
            for h in range(2):
                a(f'v_pk_mul_f32 v[{w+2*h}:{w+2*h+1}], v[{w+2*h}:{w+2*h+1}], v[{c+2*h}:{c+2*h+1}]')
        for mb in range(4):
            w = W + mb * 8
            for i in range(4):
                a(f'v_exp_f32 v{w+i}, v{w+i}')
        for mb in range(4):
            w = W + mb * 8
            for h in range(2):
                a(f'v_pk_add_f32 v[{w+2*h}:{w+2*h+1}], v[{w+2*h}:{w+2*h+1}], s[48:49]')
        for mb in range(4):
            w = W + mb * 8
            for i in range(4):
                a(f'v_rcp_f32 v{w+i}, v{w+i}')
        for mb in range(4):
            c = ACC + (nb * 4 + mb) * 4
            w = W + mb * 8
            for h in range(2):
                a(f'v_pk_mul_f32 v[{w+2*h}:{w+2*h+1}], v[{w+2*h}:{w+2*h+1}], v[{c+2*h}:{c+2*h+1}]')
            a(f'v_cvt_pk_bf16_f32 v{w+4}, v{w}, v{w+1}')
            a(f'v_cvt_pk_bf16_f32 v{w+5}, v{w+2}, v{w+3}')
            a(f'ds_write_b64 v{T}, v[{w+4}:{w+5}] offset:{mb*7424 + nb*64}')
    a(f'v_cmp_le_u32 vcc, 28, v{VLANE}')
    a(f'v_cndmask_b32 v{T+2}, 0, 1, vcc')
    a(f'v_mul_u32_u24 v{T+3}, 28, v{T+2}')
    a(f'v_sub_u32 v{T+3}, v{VLANE}, v{T+3}')
    a('s_lshl_b32 s28, s20, 5')
    a(f'v_add_u32 v{T+2}, s28, v{T+2}')
    a(f'v_mul_lo_u32 v{T+4}, v{T+2}, s29')
    a(f'v_lshl_add_u32 v{T+4}, v{T+3}, 4, v{T+4}')
    a('s_lshl_b32 s28, s24, 8')
    a(f'v_add_u32 v{T+2}, s28, v{T+2}')
    a('s_movk_i32 s29, 9216')
    a(f'v_mul_lo_u32 v{T+2}, v{T+2}, s29')
    a('s_add_u32 s28, s32, 2048')
    a(f'v_lshl_add_u32 v{T+3}, v{T+3}, 4, s28')
    a(f'v_add_u32 v{T+2}, v{T+2}, v{T+3}')
    a('s_waitcnt lgkmcnt(0)')
    a('s_barrier')
    a(f'v_cmp_gt_u32 vcc, 56, v{VLANE}')
    a('s_and_saveexec_b64 s[34:35], vcc')
    for i in range(16):
        a(f'ds_read_b128 v[{64+4*i}:{67+4*i}], v{T+4} offset:{i*928}')
    for i in range(16):
        a(f's_mov_b32 s28, {i*2*9216}')
        a(f's_waitcnt lgkmcnt({15-i})')
        a(f'buffer_store_dwordx4 v[{64+4*i}:{67+4*i}], v{T+2}, s[16:19], s28 offen')
    stamp(a, 3)
    if OPT('STAMP'):
        a('s_waitcnt vmcnt(0)')
    stamp(a, 4)
    stamp(a, 6, True)
    stamp_flush(a, 7, 0)
    a('s_endpgm')


def epilogue_qkv(a):
    T = VTMP
    QF, KF, VF = 32, 48, 64
    WP = 240

    def acc(nb, mb):
        return ACC + (nb * 4 + mb) * 4
    a('s_mov_b32 s50, 0xffff0000')
    a(f's_mov_b32 s51, 0x{LOG2E:x}')
    for i in range(8):
        a(f'v_lshl_or_b32 v{WP+i}, v{224+2*i+1}, 16, v{224+2*i}')
    for mb in range(4):
        for e in range(2):
            c = acc(e, mb)
            a(f'v_cvt_pk_bf16_f32 v{QF+4*mb+2*e}, v{c}, v{c+1}')
            a(f'v_cvt_pk_bf16_f32 v{QF+4*mb+2*e+1}, v{c+2}, v{c+3}')
            c = acc(2 + e, mb)
            a(f'v_cvt_pk_bf16_f32 v{KF+4*mb+2*e}, v{c}, v{c+1}')
            a(f'v_cvt_pk_bf16_f32 v{KF+4*mb+2*e+1}, v{c+2}, v{c+3}')
    for ks in range(2):
        for db in range(2):
            for e in range(2):
                c = acc(4 + db, 2 * ks + e)
                d = VF + (ks * 2 + db) * 4 + 2 * e
                a(f'v_cvt_pk_bf16_f32 v{d}, v{c}, v{c+1}')
                a(f'v_cvt_pk_bf16_f32 v{d+1}, v{c+2}, v{c+3}')
    PQ, PK = 128, 160
    for mb in range(4):
        for fb in range(2):
            d = PQ + (mb * 2 + fb) * 4
            a(f'v_mfma_f32_16x16x32_bf16 v[{d}:{d+3}], v[{WP+4*fb}:{WP+4*fb+3}], v[{QF+4*mb}:{QF+4*mb+3}], 0')
    for mb in range(4):
        for fb in range(2):
            d = PK + (mb * 2 + fb) * 4
            a(f'v_mfma_f32_16x16x32_bf16 v[{d}:{d+3}], v[{KF+4*mb}:{KF+4*mb+3}], v[{WP+4*fb}:{WP+4*fb+3}], 0')
    for i in range(0, 64, 2):
        r = PQ + i
        a(f'v_cvt_pk_bf16_f32 v{T}, v{r}, v{r+1}')
        a(f'v_lshlrev_b32 v{r}, 16, v{T}')
        a(f'v_and_b32 v{r+1}, s50, v{T}')
    a('s_mul_i32 s28, s20, 9216')
    a('s_add_u32 s28, s28, 73728')
    a(f'v_mul_u32_u24 v{T+1}, 144, v{VL16}')
    a(f'v_lshl_add_u32 v{T+2}, v{VG4}, 3, s28')
    a(f'v_add_u32 v{T+1}, v{T+1}, v{T+2}')
    MX, MN = 80, 84
    S1, S2 = 88, 92
    E = 96
    for mb in range(4):
        p = PQ + mb * 8
        a(f'v_max3_f32 v{MX+mb}, v{p}, v{p+1}, v{p+2}')
        a(f'v_max3_f32 v{MX+mb}, v{MX+mb}, v{p+3}, v{p+4}')
        a(f'v_max3_f32 v{MX+mb}, v{MX+mb}, v{p+5}, v{p+6}')
        a(f'v_max_f32 v{MX+mb}, v{MX+mb}, v{p+7}')
        a(f'v_min3_f32 v{MN+mb}, v{p}, v{p+1}, v{p+2}')
        a(f'v_min3_f32 v{MN+mb}, v{MN+mb}, v{p+3}, v{p+4}')
        a(f'v_min3_f32 v{MN+mb}, v{MN+mb}, v{p+5}, v{p+6}')
        a(f'v_min_f32 v{MN+mb}, v{MN+mb}, v{p+7}')
    for mb in range(4):
        cross_groups(a, 'v_max_f32', MX + mb, T + 3)
        cross_groups(a, 'v_min_f32', MN + mb, T + 4)
    for mb in range(4):
        p = PQ + mb * 8
        for i in range(8):
            a(f'v_sub_f32 v{E+i}, v{p+i}, v{MX+mb}')
            a(f'v_sub_f32 v{E+8+i}, v{MN+mb}, v{p+i}')
        for i in range(16):
            a(f'v_mul_f32 v{E+i}, s51, v{E+i}')
        for i in range(16):
            a(f'v_exp_f32 v{E+i}, v{E+i}')
        for (S, b) in ((S1, E), (S2, E + 8)):
            a(f'v_add_f32 v{S+mb}, v{b}, v{b+1}')
            for i in range(2, 8):
                a(f'v_add_f32 v{S+mb}, v{S+mb}, v{b+i}')
        cross_groups(a, 'v_add_f32', S1 + mb, T + 3)
        cross_groups(a, 'v_add_f32', S2 + mb, T + 4)
        a(f'v_rcp_f32 v{S1+mb}, v{S1+mb}')
        a(f'v_rcp_f32 v{S2+mb}, v{S2+mb}')
        for i in range(8):
            a(f'v_mul_f32 v{E+i}, v{E+i}, v{S1+mb}')
            a(f'v_mul_f32 v{E+8+i}, v{E+8+i}, v{S2+mb}')
        O = 112
        for i in range(8):
            a(f'v_cvt_pk_bf16_f32 v{O+i}, v{E+2*i}, v{E+2*i+1}')
        for sg in range(2):
            for fb in range(2):
                r = O + sg * 4 + fb * 2
                a(f'ds_write_b64 v{T+1}, v[{r}:{r+1}] offset:{mb*2304 + sg*64+fb*32}')
    a(f'v_lshrrev_b32 v{T+2}, 3, v{VLANE}')
    a(f'v_and_b32 v{T+3}, 7, v{VLANE}')
    a(f'v_mul_u32_u24 v{T+1}, 144, v{T+2}')
    a(f'v_lshl_add_u32 v{T+1}, v{T+3}, 4, v{T+1}')
    a(f'v_add_u32 v{T+1}, s28, v{T+1}')
    a('s_lshl_b32 s28, s24, 8')
    a('s_lshl_b32 s29, s21, 6')
    a('s_add_u32 s28, s28, s29')
    a(f'v_add_u32 v{T+2}, s28, v{T+2}')
    a(f'v_lshlrev_b32 v{T+2}, 12, v{T+2}')
    a('s_lshl_b32 s28, s33, 7')
    a(f'v_lshl_add_u32 v{T+3}, v{T+3}, 4, s28')
    a(f'v_add_u32 v{T+2}, v{T+2}, v{T+3}')
    a('s_waitcnt lgkmcnt(0)')
    for i in range(8):
        a(f'ds_read_b128 v[{192+4*i}:{195+4*i}], v{T+1} offset:{i*1152}')
    for i in range(8):
        a(f's_mov_b32 s28, {i*8*4096}')
        a(f's_waitcnt lgkmcnt({7-i})')
        a(f'buffer_store_dwordx4 v[{192+4*i}:{195+4*i}], v{T+2}, s[36:39], s28 offen')
    KMX, KMN, KS1, KS2, KT = 80, 96, 32, 48, 112
    idx = [(mb, i) for mb in range(4) for i in range(4)]

    def pk(mb, fb, i):
        return PK + (mb * 2 + fb) * 4 + i
    for n, (mb, i) in enumerate(idx):
        a(f'v_max_f32 v{KMX+n}, v{pk(mb,0,i)}, v{pk(mb,1,i)}')
        a(f'v_min_f32 v{KMN+n}, v{pk(mb,0,i)}, v{pk(mb,1,i)}')
    for (base, op) in ((KMX, 'v_max_f32'), (KMN, 'v_min_f32')):
        src, dst = base, KT
        for r in (8, 4, 2, 1):
            for n in range(16):
                a(f'{op}_dpp v{dst+n}, v{src+n}, v{src+n} row_ror:{r} row_mask:0xf bank_mask:0xf')
            src, dst = dst, src
    EP = 128
    for n, (mb, i) in enumerate(idx):
        for fb in range(2):
            r = pk(mb, fb, i)
            a(f'v_sub_f32 v{EP + r - PK}, v{r}, v{KMX+n}')
            a(f'v_sub_f32 v{r}, v{KMN+n}, v{r}')
    for r in range(64):
        a(f'v_mul_f32 v{128+r}, s51, v{128+r}')
    for r in range(64):
        a(f'v_exp_f32 v{128+r}, v{128+r}')
    for n, (mb, i) in enumerate(idx):
        a(f'v_add_f32 v{KS1+n}, v{EP + pk(mb,0,i) - PK}, v{EP + pk(mb,1,i) - PK}')
        a(f'v_add_f32 v{KS2+n}, v{pk(mb,0,i)}, v{pk(mb,1,i)}')
    for base in (KS1, KS2):
        src, dst = base, KT
        for r in (8, 4, 2, 1):
            for n in range(16):
                a(f'v_add_f32_dpp v{dst+n}, v{src+n}, v{src+n} row_ror:{r} row_mask:0xf bank_mask:0xf')
            src, dst = dst, src
    for n in range(16):
        a(f'v_rcp_f32 v{KS1+n}, v{KS1+n}')
        a(f'v_rcp_f32 v{KS2+n}, v{KS2+n}')
    for n, (mb, i) in enumerate(idx):
        for fb in range(2):
            r = pk(mb, fb, i)
            a(f'v_mul_f32 v{EP + r - PK}, v{EP + r - PK}, v{KS1+n}')
            a(f'v_mul_f32 v{r}, v{r}, v{KS2+n}')
    PF = 80
    for sg in range(2):
        for fb in range(2):
            for ks in range(2):
                d = PF + ((sg * 2 + fb) * 2 + ks) * 4
                for e in range(2):
                    r = (EP if sg == 0 else PK) + ((2 * ks + e) * 2 + fb) * 4
                    a(f'v_cvt_pk_bf16_f32 v{d+2*e}, v{r}, v{r+1}')
                    a(f'v_cvt_pk_bf16_f32 v{d+2*e+1}, v{r+2}, v{r+3}')
    ONES = 112
    for i in range(4):
        a(f'v_mov_b32 v{ONES+i}, 0x3f803f80')
    KV = 128
    Z = 160
    for ks in range(2):
        for F in range(4):
            pf = PF + (F * 2 + ks) * 4
            for db in range(2):
                d = KV + (F * 2 + db) * 4
                vf = VF + (ks * 2 + db) * 4
                cc = '0' if ks == 0 else f'v[{d}:{d+3}]'
                a(f'v_mfma_f32_16x16x32_bf16 v[{d}:{d+3}], v[{pf}:{pf+3}], v[{vf}:{vf+3}], {cc}')
            d = Z + F * 4
            cc = '0' if ks == 0 else f'v[{d}:{d+3}]'
            a(f'v_mfma_f32_16x16x32_bf16 v[{d}:{d+3}], v[{pf}:{pf+3}], v[{ONES}:{ONES+3}], {cc}')
    a(f'v_lshlrev_b32 v{T+5}, 4, v{VLANE}')
    a('s_mul_i32 s28, s22, 3')
    a('s_add_u32 s28, s28, s21')
    a('s_sub_u32 s28, s28, 1')
    a('s_mul_i32 s28, s28, 12288')
    a('s_cmp_eq_u32 s21, 0')
    a('s_cbranch_scc1 g1q_nowrite')
    a(f'v_add_u32 v{T+6}, s28, v{T+5}')
    for r in range(12):
        a(f'ds_write_b128 v{T+6}, v[{KV+4*r}:{KV+4*r+3}] offset:{r*1024}')
    a('s_waitcnt lgkmcnt(0)')
    a('g1q_nowrite:')
    a('s_barrier')
    a('s_cmp_lg_u32 s21, 0')
    a('s_cbranch_scc1 g1q_end')
    a('s_mul_i32 s28, s22, 36864')
    a(f'v_add_u32 v{T+6}, s28, v{T+5}')
    for p in range(3):
        for r in range(12):
            a(f'ds_read_b128 v[{32+4*r}:{35+4*r}], v{T+6} offset:{p*12288 + r*1024}')
        a('s_waitcnt lgkmcnt(0)')
        for r in range(48):
            a(f'v_add_f32 v{KV+r}, v{KV+r}, v{32+r}')
    a('s_lshl_b32 s28, s24, 5')
    a('s_add_u32 s28, s28, s33')
    a(f's_mul_i32 s28, s28, {KVP_ENT}')
    a(f'v_lshlrev_b32 v{T+6}, 8, v{VL16}')
    a(f'v_lshl_add_u32 v{T+6}, v{VG4}, 4, v{T+6}')
    a('s_add_u32 s29, s28, 4096')
    for F in range(4):
        for db in range(2):
            d = KV + (F * 2 + db) * 4
            a(f'buffer_store_dwordx4 v[{d}:{d+3}], v{T+6}, s[44:47], s{28+db} offen offset:{F*64}')
    a(f'v_lshlrev_b32 v{T+7}, 4, v{VG4}')
    a(f'v_cmp_eq_u32 vcc, 0, v{VL16}')
    a('s_and_saveexec_b64 s[34:35], vcc')
    a('s_add_u32 s28, s28, 8192')
    for F in range(4):
        d = Z + F * 4
        a(f'buffer_store_dwordx4 v[{d}:{d+3}], v{T+7}, s[44:47], s28 offen offset:{F*64}')
    a('g1q_end:')
    stamp(a, 3)
    if OPT('STAMP'):
        a('s_waitcnt vmcnt(0)')
    stamp(a, 4)
    stamp(a, 6, True)
    stamp_flush(a, 7, 0)
    a('s_endpgm')


def gen_gemm1(a):
    name = 'gemm1_kernel'
    kernel_begin(a, name)
    a('s_cmp_ge_u32 s2, 256')
    a('s_cbranch_scc1 g1_exit')
    a('s_load_dwordx2 s[4:5], s[0:1], 88')
    a('s_load_dwordx2 s[6:7], s[0:1], 8')
    a('s_load_dwordx2 s[56:57], s[0:1], 16')
    a('s_load_dwordx2 s[58:59], s[0:1], 40')
    a('s_load_dwordx2 s[60:61], s[0:1], 48')
    a('s_load_dwordx2 s[72:73], s[0:1], 24')
    a('s_load_dwordx2 s[74:75], s[0:1], 56')
    gemm1_common_setup(a)
    a('s_waitcnt lgkmcnt(0)')
    stamp(a, 5, True)
    stamp(a, 0)
    srd(a, 8, 4, XN_SZ, XN_OFF)
    srd(a, 64, 72, 1024 * 1024 * 2)
    srd(a, 68, 74, 3584 * 1024 * 2)
    a('s_lshl_b32 s28, s2, 3')
    a('s_add_u32 s28, s28, s20')
    a('s_cmp_lt_u32 s28, 1024')
    a('s_cselect_b32 s88, s6, s58')
    a('s_cselect_b32 s89, s7, s59')
    a(f's_mov_b32 s90, 0x{1024*3584*2:x}')
    a(f's_cselect_b32 s90, 0x{1024*3072*2:x}, s90')
    a('s_and_b32 s89, s89, 0xffff')
    a('s_mov_b32 s91, 0x00020000')
    a('s_and_b32 s28, s28, 1023')
    a('s_lshl_b32 s28, s28, 10')
    a(f'v_add_u32 v{VPF2}, s28, v{VPF}')
    a('s_cmp_ge_u32 s25, 16')
    a('s_cbranch_scc1 g1_w1')
    srd(a, 12, 6, 1024 * 3072 * 2)
    srd(a, 40, 56, 32 * 32 * 32 * 2)
    srd(a, 36, 4, PHIQ_SZ, PHIQ_OFF)
    srd(a, 44, 4, KVP_SZ, KVP_OFF)
    gemm1_variant(a, 'qkv')
    a('g1_w1:')
    srd(a, 12, 58, 1024 * 3584 * 2)
    srd(a, 40, 60, 3584 * 2)
    srd(a, 16, 4, ACT2_SZ, ACT2_OFF)
    gemm1_variant(a, 'w1')
    a('g1_exit:')
    a('s_endpgm')
    return descriptor(name, 256, 100)


def gen_o(a):
    name = 'attn_o_kernel'
    kernel_begin(a, name)
    a('s_cmp_ge_u32 s2, 256')
    a('s_cbranch_scc1 o_done')
    a('s_load_dwordx2 s[4:5], s[0:1], 88')
    a('s_load_dwordx2 s[32:33], s[0:1], 24')
    a('s_load_dwordx2 s[34:35], s[0:1], 56')
    a('v_lshrrev_b32 v1, 6, v0')
    a('v_and_b32 v2, 63, v0')
    a('s_nop 0')
    a('v_readfirstlane_b32 s20, v1')
    a('v_lshrrev_b32 v3, 4, v2')
    a('v_and_b32 v4, 15, v2')
    a('s_and_b32 s21, s2, 31')
    a('s_lshr_b32 s22, s2, 5')
    a('s_waitcnt lgkmcnt(0)')
    srd(a, 8, 4, KVP_SZ, KVP_OFF)
    srd(a, 12, 4, PHIQ_SZ, PHIQ_OFF)
    srd(a, 16, 4, ACT2_SZ, ACT2_OFF)
    srd(a, 36, 4, FLAG_SZ, FLAG_OFF)
    a('s_lshl_b32 s23, s2, 9')
    a('v_lshlrev_b32 v5, 7, v0')
    a('v_mov_b32 v6, 0')
    a('v_cmp_gt_u32 vcc, 4, v0')
    a('s_and_saveexec_b64 s[24:25], vcc')
    a('buffer_store_dword v6, v5, s[36:39], s23 offen')
    a('s_mov_b64 exec, s[24:25]')
    a('s_and_b32 s23, s20, 1')
    a('s_lshr_b32 s24, s20, 1')
    a('s_lshl_b32 s25, s23, 12')
    a('s_lshl_b32 s26, s24, 7')
    a('s_add_u32 s25, s25, s26')
    a('v_lshlrev_b32 v5, 8, v4')
    a('v_lshl_add_u32 v5, v3, 5, v5')
    a('v_add_u32 v5, s25, v5')
    a(f's_mul_i32 s27, s21, {KVP_ENT}')
    for mt in range(8):
        a(f's_add_u32 s28, s27, {mt*32*KVP_ENT}')
        a(f'buffer_load_dwordx4 v[{32+8*mt}:{35+8*mt}], v5, s[8:11], s28 offen')
        a(f'buffer_load_dwordx4 v[{36+8*mt}:{39+8*mt}], v5, s[8:11], s28 offen offset:16')
    a('s_lshl_b32 s25, s23, 7')
    a('s_add_u32 s25, s25, 8192')
    a('v_lshl_add_u32 v6, v3, 5, s25')
    for mt in range(8):
        a(f's_add_u32 s28, s27, {mt*32*KVP_ENT}')
        a(f'buffer_load_dwordx4 v[{96+8*mt}:{99+8*mt}], v6, s[8:11], s28 offen')
        a(f'buffer_load_dwordx4 v[{100+8*mt}:{103+8*mt}], v6, s[8:11], s28 offen offset:16')
    a('s_lshl_b32 s25, s22, 8')
    a('s_lshl_b32 s26, s20, 6')
    a('s_add_u32 s25, s25, s26')
    a('v_add_u32 v7, s25, v4')
    a('v_lshlrev_b32 v8, 12, v7')
    a('s_lshl_b32 s26, s21, 7')
    a('v_lshl_add_u32 v9, v3, 4, s26')
    a('v_add_u32 v8, v8, v9')
    for mb in range(4):
        a(f's_mov_b32 s28, {mb*16*4096}')
        for ks in range(2):
            d = 160 + (mb * 2 + ks) * 4
            a(f'buffer_load_dwordx4 v[{d}:{d+3}], v8, s[12:15], s28 offen offset:{ks*64}')
    npf = 0
    if OPT('O_PF'):
        srd(a, 36, 32, 1024 * 1024 * 2)
        srd(a, 40, 34, 3584 * 1024 * 2)
        a('v_lshlrev_b32 v200, 4, v0')
        a('s_lshl_b32 s44, s2, 13')
        a('s_mul_i32 s45, s2, 28672')
        for r in range(2):
            a(f'buffer_load_dwordx4 v[{204+4*r}:{207+4*r}], v200, s[36:39], s44 offen')
            a('s_add_u32 s44, s44, 4096')
        for r in range(7):
            a(f'buffer_load_dwordx4 v[{212+4*r}:{215+4*r}], v200, s[40:43], s45 offen')
            a('s_add_u32 s45, s45, 4096')
        npf = 9
    a(f's_waitcnt vmcnt({8+npf})')
    for base in (32, 96):
        for mt in range(1, 8):
            for i in range(8):
                a(f'v_add_f32 v{base+i}, v{base+i}, v{base+8*mt+i}')
    for i in range(4):
        a(f'v_cvt_pk_bf16_f32 v{12+i}, v{32+2*i}, v{33+2*i}')
        a(f'v_cvt_pk_bf16_f32 v{16+i}, v{96+2*i}, v{97+2*i}')
    a('v_lshlrev_b32 v10, 4, v2')
    a('s_lshl_b32 s25, s20, 10')
    a('v_add_u32 v11, s25, v10')
    a('ds_write_b128 v11, v[12:15]')
    a('s_cmp_ge_u32 s20, 2')
    a('s_cbranch_scc1 o_skipz')
    a('ds_write_b128 v11, v[16:19] offset:4096')
    a('o_skipz:')
    a('s_waitcnt lgkmcnt(0)')
    a('s_barrier')
    for i in range(6):
        a(f'ds_read_b128 v[{32+4*i}:{35+4*i}], v10 offset:{i*1024}')
    a(f's_waitcnt vmcnt({npf}) lgkmcnt(0)')
    NUM = 64
    DEN = 96
    for ks in range(2):
        for mb in range(4):
            pf = 160 + (mb * 2 + ks) * 4
            for db in range(2):
                d = NUM + (mb * 2 + db) * 4
                kf = 32 + (ks * 2 + db) * 4
                cc = '0' if ks == 0 else f'v[{d}:{d+3}]'
                a(f'v_mfma_f32_16x16x32_bf16 v[{d}:{d+3}], v[{kf}:{kf+3}], v[{pf}:{pf+3}], {cc}')
            d = DEN + mb * 4
            zf = 32 + (4 + ks) * 4
            cc = '0' if ks == 0 else f'v[{d}:{d+3}]'
            a(f'v_mfma_f32_16x16x32_bf16 v[{d}:{d+3}], v[{zf}:{zf+3}], v[{pf}:{pf+3}], {cc}')
    a('s_mov_b32 s30, 0xffff0000')
    a('s_mov_b32 s29, 9216')
    a('v_mul_lo_u32 v8, v7, s29')
    a('s_lshl_b32 s26, s21, 6')
    a('v_lshl_add_u32 v9, v3, 3, s26')
    a('v_add_u32 v8, v8, v9')
    for mb in range(4):
        dn = DEN + mb * 4
        round_bf16(a, dn, dn)
        a(f'v_add_f32 v{dn}, 0x{f2u(1e-6):x}, v{dn}')
        round_bf16(a, dn, dn)
        a(f'v_rcp_f32 v{dn+1}, v{dn}')
        a(f's_mov_b32 s28, {mb*16*9216}')
        for db in range(2):
            n = NUM + (mb * 2 + db) * 4
            for h in range(2):
                a(f'v_cvt_pk_bf16_f32 v{12+h}, v{n+2*h}, v{n+2*h+1}')
                a(f'v_lshlrev_b32 v{n+2*h}, 16, v{12+h}')
                a(f'v_and_b32 v{n+2*h+1}, s30, v{12+h}')
            for i in range(4):
                a(f'v_mul_f32 v{16+i}, v{n+i}, v{dn+1}')
            for i in range(4):
                a(f'v_fma_f32 v{n+i}, -v{16+i}, v{dn}, v{n+i}')
            for i in range(4):
                a(f'v_fmac_f32 v{16+i}, v{n+i}, v{dn+1}')
            o = 20 + (mb * 2 + db) * 2
            a(f'v_cvt_pk_bf16_f32 v{o}, v16, v17')
            a(f'v_cvt_pk_bf16_f32 v{o+1}, v18, v19')
            a(f'buffer_store_dwordx2 v[{o}:{o+1}], v8, s[16:19], s28 offen offset:{db*32}')
    a('o_done:')
    a('s_endpgm')
    return descriptor(name, 240, 48)


G2_A = 32768
G2_BB = 98304
G2_B = 16384
G2_LDS = G2_BB + 3 * G2_B


def gen_gemm2(a):
    name = 'gemm2_kernel'
    kernel_begin(a, name)
    a('s_cmp_ge_u32 s2, 256')
    a('s_cbranch_scc1 g2_exit')
    a('s_load_dwordx2 s[4:5], s[0:1], 88')
    a('s_load_dwordx2 s[6:7], s[0:1], 24')
    a('s_load_dwordx2 s[56:57], s[0:1], 56')
    a('s_load_dwordx2 s[58:59], s[0:1], 64')
    a('s_load_dwordx2 s[60:61], s[0:1], 0')
    a('s_load_dwordx2 s[62:63], s[0:1], 72')
    LANE, G4, L16, T = 14, 15, 16, 17
    VA2, VB2, VGA2, VGB2 = 2, 5, 9, 10
    a('v_lshrrev_b32 v1, 6, v0')
    a(f'v_and_b32 v{LANE}, 63, v0')
    a('s_nop 0')
    a('v_readfirstlane_b32 s20, v1')
    a(f'v_lshrrev_b32 v{G4}, 4, v{LANE}')
    a(f'v_and_b32 v{L16}, 15, v{LANE}')
    a('s_nop 1')
    a('s_and_b32 s21, s20, 1')
    a('s_lshr_b32 s22, s20, 1')
    a('s_and_b32 s26, s2, 7')
    a('s_lshr_b32 s27, s2, 3')
    a('s_and_b32 s24, s26, 3')
    a('s_lshl_b32 s24, s24, 2')
    a('s_and_b32 s28, s27, 3')
    a('s_add_u32 s24, s24, s28')
    a('s_lshr_b32 s25, s26, 2')
    a('s_lshl_b32 s25, s25, 3')
    a('s_lshr_b32 s28, s27, 2')
    a('s_add_u32 s25, s25, s28')
    a('s_lshl_b32 s28, s22, 2')
    a(f'v_add_u32 v{T}, s28, v{G4}')
    a(f'v_xor_b32 v{T}, v{T}, v{L16}')
    a(f'v_lshlrev_b32 v{T}, 4, v{T}')
    a(f'v_lshl_add_u32 v{T}, v{L16}, 8, v{T}')
    a('s_lshl_b32 s28, s21, 14')
    a(f'v_add_u32 v{T}, s28, v{T}')
    for sl in range(3):
        a(f'v_add_u32 v{VA2+sl}, 0x{sl*G2_A:x}, v{T}')
    a(f'v_lshrrev_b32 v{T}, 2, v{L16}')
    a(f'v_lshl_add_u32 v{T+1}, v{G4}, 3, v{T}')
    a('s_lshl_b32 s28, s22, 5')
    a(f'v_add_u32 v{T+1}, s28, v{T+1}')
    a(f'v_lshrrev_b32 v{T+2}, 1, v{T}')
    a(f'v_and_b32 v{T+3}, 1, v{G4}')
    a(f'v_lshl_or_b32 v{T+2}, v{T+3}, 1, v{T+2}')
    a(f'v_and_b32 v{T+4}, 3, v{LANE}')
    a(f'v_lshlrev_b32 v{T+4}, 3, v{T+4}')
    a(f'v_lshl_add_u32 v{T+5}, v{T+1}, 7, v{T+4}')
    a(f'v_add_u32 v{T+5}, 0x{G2_BB:x}, v{T+5}')
    for nb in range(4):
        a(f'v_xor_b32 v{T+6}, {nb}, v{T+2}')
        a(f'v_lshl_add_u32 v{VB2+nb}, v{T+6}, 5, v{T+5}')
    a('s_lshl_b32 s28, s20, 2')
    a('s_and_b32 s29, s28, 15')
    a(f'v_add_u32 v{T}, s29, v{G4}')
    a(f'v_xor_b32 v{T}, v{T}, v{L16}')
    a('s_lshl_b32 s29, s24, 7')
    a('s_add_u32 s28, s28, s29')
    a(f'v_add_u32 v{T+1}, s28, v{G4}')
    a('s_mov_b32 s29, 9216')
    a(f'v_mul_lo_u32 v{T+1}, v{T+1}, s29')
    a(f'v_lshl_add_u32 v{VGA2}, v{T}, 4, v{T+1}')
    a('s_lshl_b32 s30, s20, 10')
    a(f'v_lshrrev_b32 v{T}, 3, v{LANE}')
    a(f'v_bfe_u32 v{T+1}, v{LANE}, 4, 1')
    a('s_lshl_b32 s28, s21, 1')
    a(f'v_or_b32 v{T+1}, s28, v{T+1}')
    a(f'v_bfe_u32 v{T+2}, v{LANE}, 1, 2')
    a(f'v_xor_b32 v{T+2}, v{T+2}, v{T+1}')
    a(f'v_and_b32 v{T+3}, 1, v{LANE}')
    a(f'v_lshlrev_b32 v{T+3}, 4, v{T+3}')
    a(f'v_lshl_add_u32 v{T+3}, v{T+2}, 5, v{T+3}')
    a('s_lshl_b32 s28, s20, 3')
    a(f'v_add_u32 v{T}, s28, v{T}')
    a(f'v_lshl_add_u32 v{T}, v{T}, 11, v{T+3}')
    a('s_lshl_b32 s32, s25, 7')
    a(f'v_add_u32 v{VGB2}, s32, v{T}')
    a('s_waitcnt lgkmcnt(0)')
    srd(a, 8, 4, ACT2_SZ, ACT2_OFF)
    srd(a, 12, 6, 1024 * 1024 * 2)
    srd(a, 16, 56, 3584 * 1024 * 2)
    srd(a, 36, 58, 2048)
    srd(a, 40, 60, XN_SZ)
    srd(a, 44, 62, XN_SZ)
    stamp(a, 5, True)
    stamp(a, 0)
    ACC2 = 64
    SETS2 = (24, 128)
    for i in range(64):
        a(f'v_mov_b32 v{ACC2+i}, 0')
    vq = VQ()
    NS = 36

    def grp(j):
        sl = j % 3
        out = []
        for q in range(4):
            if OPT('G2_NOA'):
                break
            out.append(([f's_add_u32 m0, s30, 0x{sl*G2_A + q*8192:x}',
                         f's_mov_b32 s28, 0x{j*256 + q*32*9216:x}',
                         f'buffer_load_dwordx4 v{VGA2}, s[8:11], s28 offen lds'], j))
        for q in range(2):
            if OPT('G2_NOB'):
                break
            k0 = j * 128 + q * 64
            if k0 < 1024:
                sr, ko = 's[12:15]', k0
            else:
                sr, ko = 's[16:19]', k0 - 1024
            out.append(([f's_add_u32 m0, s30, 0x{G2_BB + sl*G2_B + q*8192:x}',
                         f's_mov_b32 s28, 0x{ko*2048:x}',
                         f'buffer_load_dwordx4 v{VGB2}, {sr}, s28 offen lds'], j))
        return out

    def emit_grp(g):
        for l in g[0]:
            a(l)
        vq.push(g[1])

    def issue(j):
        for g in grp(j):
            emit_grp(g)

    def frag_reads(j):
        S = SETS2[j & 1]
        sl = j % 3
        out = []
        for mb in range(4):
            out.append(f'ds_read_b128 v[{S+4*mb}:{S+4*mb+3}], v{VA2+sl} offset:{mb*4096}')
        for nb in range(4):
            d = S + 16 + 4 * nb
            for t in range(2):
                out.append(f'ds_read_b64_tr_b16 v[{d+2*t}:{d+2*t+1}], v{VB2+nb} offset:{sl*G2_B + t*512}')
        return out

    def mfmas(j):
        S = SETS2[j & 1]
        out = []
        for nb in range(4):
            for mb in range(4):
                c = ACC2 + (mb * 4 + nb) * 4
                out.append(f'v_mfma_f32_16x16x32_bf16 v[{c}:{c+3}], v[{S+16+4*nb}:{S+19+4*nb}], v[{S+4*mb}:{S+4*mb+3}], v[{c}:{c+3}]')
        return out

    issue(0); issue(1); issue(2)
    a(f's_waitcnt vmcnt({vq.wait_for({0})})')
    a('s_barrier')
    stamp(a, 1)
    for r in frag_reads(0):
        a(r)
    a('s_waitcnt lgkmcnt(0)')
    for j in range(NS):
        if j + 1 < NS:
            a(f's_waitcnt vmcnt({vq.wait_for({j + 1})})')
        a('s_barrier')
        dma = grp(j + 3) if j + 3 < NS else []
        rd = frag_reads(j + 1) if j + 1 < NS else []
        mm = mfmas(j)
        if OPT('G2_NOCOMP'):
            rd = []; mm = []
        interleave(a, mm, rd, dma, emit_grp, 0, 3)
        a('s_waitcnt lgkmcnt(0)')
    stamp(a, 2)
    a(f'v_lshlrev_b32 v{T}, 4, v{LANE}')
    a('s_lshl_b32 s28, s21, 16')
    a('s_lshl_b32 s29, s22, 12')
    a('s_add_u32 s28, s28, s29')
    a(f'v_add_u32 v{T+1}, s28, v{T}')
    for mb in range(4):
        for nb in range(4):
            c = ACC2 + (mb * 4 + nb) * 4
            a(f'ds_write_b128 v{T+1}, v[{c}:{c+3}] offset:{mb*16384 + nb*1024}')
    a('s_lshl_b32 s28, s24, 7')
    a('s_lshl_b32 s29, s21, 6')
    a('s_add_u32 s28, s28, s29')
    a('s_lshl_b32 s29, s22, 4')
    a('s_add_u32 s28, s28, s29')
    a(f'v_add_u32 v{T+2}, s28, v{L16}')
    a(f'v_lshlrev_b32 v{T+2}, 11, v{T+2}')
    a(f'v_lshl_add_u32 v{T+3}, v{G4}, 3, s32')
    a(f'v_add_u32 v{T+2}, v{T+2}, v{T+3}')
    for nb in range(4):
        a(f'buffer_load_dwordx2 v[{24+2*nb}:{25+2*nb}], v{T+2}, s[40:43], 0 offen offset:{nb*32}')
        a(f'buffer_load_dwordx2 v[{32+2*nb}:{33+2*nb}], v{T+3}, s[36:39], 0 offen offset:{nb*32}')
    a('s_waitcnt lgkmcnt(0)')
    a('s_barrier')
    a('s_lshl_b32 s28, s21, 16')
    a('s_lshl_b32 s29, s22, 14')
    a('s_add_u32 s28, s28, s29')
    a(f'v_add_u32 v{T+1}, s28, v{T}')
    for src in range(4):
        for nb in range(4):
            d = 128 + (src * 4 + nb) * 4
            a(f'ds_read_b128 v[{d}:{d+3}], v{T+1} offset:{src*4096 + nb*1024}')
    a('s_mov_b32 s50, 0xffff0000')
    a('s_waitcnt vmcnt(0) lgkmcnt(0)')
    for i in range(16):
        a(f'v_add_f32 v{128+i}, v{128+i}, v{144+i}')
        a(f'v_add_f32 v{160+i}, v{160+i}, v{176+i}')
    for i in range(16):
        a(f'v_add_f32 v{128+i}, v{128+i}, v{160+i}')
    for nb in range(4):
        for h in range(2):
            r = 128 + nb * 4 + 2 * h
            a(f'v_lshlrev_b32 v40, 16, v{24+2*nb+h}')
            a(f'v_and_b32 v41, s50, v{24+2*nb+h}')
            a(f'v_lshlrev_b32 v42, 16, v{32+2*nb+h}')
            a(f'v_and_b32 v43, s50, v{32+2*nb+h}')
            a(f'v_add_f32 v{r}, v{r}, v42')
            a(f'v_add_f32 v{r+1}, v{r+1}, v43')
            a(f'v_add_f32 v{r}, v{r}, v40')
            a(f'v_add_f32 v{r+1}, v{r+1}, v41')
            a(f'v_cvt_pk_bf16_f32 v{44+2*nb+h}, v{r}, v{r+1}')
        a(f'buffer_store_dwordx2 v[{44+2*nb}:{45+2*nb}], v{T+2}, s[44:47], 0 offen offset:{nb*32}')
    stamp(a, 3)
    if OPT('STAMP'):
        a('s_waitcnt vmcnt(0)')
    stamp(a, 4)
    stamp(a, 6, True)
    stamp_flush(a, 7, 1)
    a('g2_exit:')
    a('s_endpgm')
    return descriptor(name, 192, 100)


X_OFF = 0x2200000
X_SZ = 256 * 32768
FLAG_OFF = 0x2A00000
FLAG_SZ = 256 * 512
H_SLOT = 32768
H_LDS = 4 * H_SLOT


def gen_gemm2b(a):
    name = 'gemm2_kernel'
    kernel_begin(a, name)
    a('s_cmp_ge_u32 s2, 256')
    a('s_cbranch_scc1 g2_exit')
    a('s_load_dwordx2 s[4:5], s[0:1], 88')
    a('s_load_dwordx2 s[6:7], s[0:1], 24')
    a('s_load_dwordx2 s[56:57], s[0:1], 56')
    a('s_load_dwordx2 s[58:59], s[0:1], 64')
    a('s_load_dwordx2 s[60:61], s[0:1], 0')
    a('s_load_dwordx2 s[62:63], s[0:1], 72')
    a('s_load_dwordx2 s[64:65], s[0:1], 80')
    LANE, G4, L16, T = 14, 15, 16, 17
    VA2, VB2, VGA2, VGB2 = 2, 4, 9, 10
    a('v_lshrrev_b32 v1, 6, v0')
    a(f'v_and_b32 v{LANE}, 63, v0')
    a('s_nop 0')
    a('v_readfirstlane_b32 s20, v1')
    a(f'v_lshrrev_b32 v{G4}, 4, v{LANE}')
    a(f'v_and_b32 v{L16}, 15, v{LANE}')
    a('s_nop 1')
    a('s_and_b32 s21, s20, 1')
    a('s_bfe_u32 s23, s20, 0x10001')
    a('s_lshr_b32 s22, s20, 2')
    a('s_and_b32 s26, s2, 7')
    a('s_lshr_b32 s27, s2, 3')
    a('s_and_b32 s33, s26, 1')
    a('s_lshr_b32 s24, s26, 1')
    a('s_lshl_b32 s24, s24, 2')
    a('s_and_b32 s28, s27, 3')
    a('s_add_u32 s24, s24, s28')
    a('s_lshr_b32 s25, s27, 2')
    a(f'v_lshrrev_b32 v{T}, 3, v{LANE}')
    a(f'v_and_b32 v{T+1}, 7, v{LANE}')
    a(f'v_xor_b32 v{T+1}, v{T+1}, v{T}')
    a('s_lshl_b32 s28, s24, 7')
    a('s_lshl_b32 s29, s20, 3')
    a('s_add_u32 s28, s28, s29')
    a(f'v_add_u32 v{T}, s28, v{T}')
    a('s_movk_i32 s29, 9216')
    a(f'v_mul_lo_u32 v{T}, v{T}, s29')
    a(f'v_lshl_add_u32 v{T}, v{T+1}, 4, v{T}')
    a('s_mul_i32 s28, s33, 4608')
    a(f'v_add_u32 v{VGA2}, s28, v{T}')
    a('s_lshl_b32 s30, s20, 10')
    a(f'v_lshrrev_b32 v{T}, 3, v{LANE}')
    a(f'v_bfe_u32 v{T+1}, v{LANE}, 4, 1')
    a('s_lshl_b32 s28, s21, 1')
    a(f'v_or_b32 v{T+1}, s28, v{T+1}')
    a(f'v_bfe_u32 v{T+2}, v{LANE}, 1, 2')
    a(f'v_xor_b32 v{T+2}, v{T+2}, v{T+1}')
    a(f'v_and_b32 v{T+3}, 1, v{LANE}')
    a(f'v_lshlrev_b32 v{T+3}, 4, v{T+3}')
    a(f'v_lshl_add_u32 v{T+3}, v{T+2}, 5, v{T+3}')
    a('s_lshl_b32 s28, s20, 3')
    a(f'v_add_u32 v{T}, s28, v{T}')
    a(f'v_lshl_add_u32 v{T}, v{T}, 11, v{T+3}')
    a('s_lshl_b32 s32, s25, 8')
    a(f'v_add_u32 v{VGB2}, s32, v{T}')
    a('s_waitcnt lgkmcnt(0)')
    srd(a, 8, 4, ACT2_SZ, ACT2_OFF)
    a('s_cmp_eq_u32 s33, 0')
    a('s_cbranch_scc0 g2_kh1')
    srd(a, 12, 6, 1024 * 2048)
    a(f's_sub_u32 s16, s56, 0x{1024*2048:x}')
    a('s_subb_u32 s17, s57, 0')
    a('s_and_b32 s17, s17, 0xffff')
    a(f's_mov_b32 s18, 0x{4608*2048:x}')
    a('s_mov_b32 s19, 0x00020000')
    a('s_branch g2_khd')
    a('g2_kh1:')
    srd(a, 12, 56, (3584 - 1280) * 2048, 1280 * 2048)
    srd(a, 16, 56, (3584 - 1280) * 2048, 1280 * 2048)
    a('g2_khd:')
    vq = VQ()
    NS = 36

    def grp(j):
        sl = j % 4
        out = []
        for q in range(2):
            out.append(([f's_add_u32 m0, s30, 0x{sl*H_SLOT + q*8192:x}',
                         f's_mov_b32 s28, 0x{j*128 + q*64*9216:x}',
                         f'buffer_load_dwordx4 v{VGA2}, s[8:11], s28 offen lds'], j))
        sr = 's[12:15]' if j < 16 else 's[16:19]'
        for q in range(2):
            out.append(([f's_add_u32 m0, s30, 0x{sl*H_SLOT + 16384 + q*8192:x}',
                         f's_mov_b32 s28, 0x{j*64*2048 + q*128:x}',
                         f'buffer_load_dwordx4 v{VGB2}, {sr}, s28 offen lds'], j))
        return out

    def emit_grp(g):
        for l in g[0]:
            a(l)
        vq.push(g[1])

    for j in range(4):
        for g in grp(j):
            emit_grp(g)
    stamp(a, 5, True)
    stamp(a, 0)
    srd(a, 36, 58, 2048)
    srd(a, 40, 60, XN_SZ)
    srd(a, 44, 62, XN_SZ)
    srd(a, 48, 4, X_SZ, X_OFF)
    srd(a, 52, 4, FLAG_SZ, FLAG_OFF)
    a('s_lshl_b32 s28, s22, 2')
    a(f'v_add_u32 v{T}, s28, v{G4}')
    a(f'v_and_b32 v{T+1}, 7, v{LANE}')
    a(f'v_xor_b32 v{T}, v{T}, v{T+1}')
    a(f'v_lshlrev_b32 v{T}, 4, v{T}')
    a(f'v_lshl_add_u32 v{T}, v{L16}, 7, v{T}')
    a('s_lshl_b32 s28, s21, 13')
    a(f'v_add_u32 v{VA2}, s28, v{T}')
    a(f'v_add_u32 v{VA2+1}, 0x10000, v{VA2}')
    a(f'v_lshrrev_b32 v{T}, 2, v{L16}')
    a(f'v_lshl_add_u32 v{T+1}, v{G4}, 3, v{T}')
    a('s_lshl_b32 s28, s22, 5')
    a(f'v_add_u32 v{T+1}, s28, v{T+1}')
    a(f'v_lshrrev_b32 v{T+2}, 1, v{T}')
    a(f'v_and_b32 v{T+3}, 1, v{G4}')
    a(f'v_lshl_or_b32 v{T+2}, v{T+3}, 1, v{T+2}')
    a(f'v_and_b32 v{T+4}, 3, v{LANE}')
    a(f'v_lshlrev_b32 v{T+4}, 3, v{T+4}')
    a(f'v_lshl_add_u32 v{T+5}, v{T+1}, 7, v{T+4}')
    a('s_lshl_b32 s28, s23, 13')
    a('s_add_u32 s28, s28, 16384')
    a(f'v_add_u32 v{T+5}, s28, v{T+5}')
    for nb in range(4):
        a(f'v_xor_b32 v{T+6}, {nb}, v{T+2}')
        a(f'v_lshl_add_u32 v{VB2+nb}, v{T+6}, 5, v{T+5}')
        a(f'v_add_u32 v{24+nb}, 0x10000, v{VB2+nb}')
    ACC2 = 64
    SETS2 = (32, 128)
    for i in range(64):
        a(f'v_mov_b32 v{ACC2+i}, 0')

    def frag_reads(j):
        S = SETS2[j & 1]
        sl = j % 4
        hi = sl >> 1
        so = (sl & 1) * H_SLOT
        out = []
        for mb in range(4):
            out.append(f'ds_read_b128 v[{S+4*mb}:{S+4*mb+3}], v{VA2+hi} offset:{so + mb*2048}')
        for nb in range(4):
            d = S + 16 + 4 * nb
            vb = (24 if hi else VB2) + nb
            for t in range(2):
                out.append(f'ds_read_b64_tr_b16 v[{d+2*t}:{d+2*t+1}], v{vb} offset:{so + t*512}')
        return out

    def mfmas(j):
        S = SETS2[j & 1]
        out = []
        for nb in range(4):
            for mb in range(4):
                c = ACC2 + (mb * 4 + nb) * 4
                out.append(f'v_mfma_f32_16x16x32_bf16 v[{c}:{c+3}], v[{S+16+4*nb}:{S+19+4*nb}], v[{S+4*mb}:{S+4*mb+3}], v[{c}:{c+3}]')
        return out

    a(f's_waitcnt vmcnt({vq.wait_for({0})})')
    a('s_barrier')
    stamp(a, 1)
    for r in frag_reads(0):
        a(r)
    a('s_waitcnt lgkmcnt(0)')
    for j in range(NS):
        if j + 1 < NS:
            a(f's_waitcnt vmcnt({vq.wait_for({j + 1})})')
        a('s_barrier')
        dma = grp(j + 4) if j + 4 < NS else []
        rd = frag_reads(j + 1) if j + 1 < NS else []
        mm = mfmas(j)
        interleave(a, mm, rd, dma, emit_grp, 0, 4)
        a('s_waitcnt lgkmcnt(0)')
    stamp(a, 2)
    a(f'v_lshlrev_b32 v{T}, 4, v{LANE}')
    a('s_and_b32 s28, s20, 3')
    a('s_lshl_b32 s28, s28, 14')
    a('s_xor_b32 s29, s22, 1')
    a('s_lshl_b32 s29, s29, 13')
    a('s_add_u32 s29, s29, s28')
    a(f'v_add_u32 v{T+1}, s29, v{T}')
    a('s_lshl_b32 s29, s22, 13')
    a('s_add_u32 s29, s29, s28')
    a(f'v_add_u32 v{T+2}, s29, v{T}')
    a('s_cmp_eq_u32 s22, 0')
    a('s_cbranch_scc0 g2_ks1')
    for r in range(8):
        a(f'ds_write_b128 v{T+1}, v[{ACC2+32+4*r}:{ACC2+35+4*r}] offset:{r*1024}')
    a('s_branch g2_ksd')
    a('g2_ks1:')
    for r in range(8):
        a(f'ds_write_b128 v{T+1}, v[{ACC2+4*r}:{ACC2+3+4*r}] offset:{r*1024}')
    for r in range(32):
        a(f'v_mov_b32 v{ACC2+r}, v{ACC2+32+r}')
    a('g2_ksd:')
    a('s_waitcnt lgkmcnt(0)')
    a('s_barrier')
    for r in range(8):
        a(f'ds_read_b128 v[{128+4*r}:{131+4*r}], v{T+2} offset:{r*1024}')
    a('s_waitcnt lgkmcnt(0)')
    for r in range(32):
        a(f'v_add_f32 v{ACC2+r}, v{ACC2+r}, v{128+r}')
    a('s_lshl_b32 s28, s21, 1')
    a('s_add_u32 s28, s28, s22')
    a('s_lshl_b32 s67, s28, 7')
    a('s_lshl_b32 s28, s28, 13')
    a(f'v_add_u32 v{T+1}, s28, v{T}')
    a('s_cmp_eq_u32 s23, s33')
    a('s_cbranch_scc1 g2_recv')
    a('s_lshl_b32 s28, s2, 15')
    for r in range(8):
        a(f'buffer_store_dwordx4 v[{ACC2+4*r}:{ACC2+3+4*r}], v{T+1}, s[48:51], s28 offen offset:{r*1024 if r < 4 else (r-4)*1024} sc1' if r < 4 else
          f'buffer_store_dwordx4 v[{ACC2+4*r}:{ACC2+3+4*r}], v{T+1}, s[48:51], s29 offen offset:{(r-4)*1024} sc1')
        if r == 3:
            a('s_add_u32 s29, s28, 4096')
    a('s_waitcnt vmcnt(0)')
    a('s_lshl_b32 s28, s2, 9')
    a('s_add_u32 s28, s28, s67')
    a('v_mov_b32 v1, 1')
    a('v_mov_b32 v2, s28')
    a('s_mov_b64 exec, 1')
    a('buffer_store_dword v1, v2, s[52:55], 0 offen sc1')
    a('s_branch g2_fin')
    a('g2_recv:')
    a('s_lshl_b32 s28, s24, 7')
    a('s_lshl_b32 s29, s21, 6')
    a('s_add_u32 s28, s28, s29')
    a('s_lshl_b32 s29, s22, 5')
    a('s_add_u32 s28, s28, s29')
    a(f'v_add_u32 v{T+2}, s28, v{L16}')
    a(f'v_lshlrev_b32 v{T+2}, 11, v{T+2}')
    a('s_lshl_b32 s29, s23, 7')
    a('s_add_u32 s29, s29, s32')
    a(f'v_lshl_add_u32 v{T+3}, v{G4}, 3, s29')
    a(f'v_add_u32 v{T+2}, v{T+2}, v{T+3}')
    a('s_mov_b32 s34, 32768')
    for e in range(2):
        for nb in range(4):
            so = '0' if e == 0 else 's34'
            a(f'buffer_load_dwordx2 v[{32+8*e+2*nb}:{33+8*e+2*nb}], v{T+2}, s[40:43], {so} offen offset:{nb*32}')
    for nb in range(4):
        a(f'buffer_load_dwordx2 v[{48+2*nb}:{49+2*nb}], v{T+3}, s[36:39], 0 offen offset:{nb*32}')
    a('s_xor_b32 s35, s2, 1')
    a('s_lshl_b32 s28, s35, 9')
    a('s_add_u32 s28, s28, s67')
    a('v_mov_b32 v2, s28')
    a('g2_poll:')
    a('buffer_load_dword v1, v2, s[52:55], 0 offen sc1')
    a('s_waitcnt vmcnt(0)')
    a('v_readfirstlane_b32 s28, v1')
    a('s_nop 3')
    a('s_cmp_eq_u32 s28, 1')
    a('s_cbranch_scc1 g2_ready')
    a('s_sleep 1')
    a('s_branch g2_poll')
    a('g2_ready:')
    a('s_lshl_b32 s28, s35, 15')
    a('s_add_u32 s29, s28, 4096')
    for r in range(8):
        a(f'buffer_load_dwordx4 v[{128+4*r}:{131+4*r}], v{T+1}, s[48:51], s{28 if r < 4 else 29} offen offset:{(r % 4)*1024} sc1')
    a('s_mov_b32 s66, 0xffff0000')
    a('s_waitcnt vmcnt(0)')
    for r in range(32):
        a(f'v_add_f32 v{ACC2+r}, v{ACC2+r}, v{128+r}')
    for e in range(2):
        for nb in range(4):
            for h in range(2):
                r = ACC2 + (e * 4 + nb) * 4 + 2 * h
                xr = 32 + 8 * e + 2 * nb + h
                br = 48 + 2 * nb + h
                a(f'v_lshlrev_b32 v56, 16, v{xr}')
                a(f'v_and_b32 v57, s66, v{xr}')
                a(f'v_lshlrev_b32 v58, 16, v{br}')
                a(f'v_and_b32 v59, s66, v{br}')
                a(f'v_add_f32 v{r}, v{r}, v58')
                a(f'v_add_f32 v{r+1}, v{r+1}, v59')
                a(f'v_add_f32 v{r}, v{r}, v56')
                a(f'v_add_f32 v{r+1}, v{r+1}, v57')
                a(f'v_cvt_pk_bf16_f32 v{160+(e*4+nb)*2+h}, v{r}, v{r+1}')
            o = 160 + (e * 4 + nb) * 2
            so = '0' if e == 0 else 's34'
            a(f'buffer_store_dwordx2 v[{o}:{o+1}], v{T+2}, s[44:47], {so} offen offset:{nb*32}')
    a('g2_fin:')
    stamp(a, 3)
    if OPT('STAMP'):
        a('s_waitcnt vmcnt(0)')
    stamp(a, 4)
    stamp(a, 6, True)
    stamp_flush(a, 7, 1)
    a('g2_exit:')
    a('s_endpgm')
    return descriptor(name, 192, 100)


def main():
    a = Asm()
    descs = []
    descs.append(gen_ln(a))
    descs.append(gen_gemm1(a))
    descs.append(gen_o(a))
    descs.append(gen_gemm2(a) if OPT('G2_OLD') else gen_gemm2b(a))
    head = open('cdna_kernels/%s.s.ref' % NAME).read().split('; @launch')[0]
    out = head
    out += '; @launch kernel=ln_kernel grid=(512,1,1) block=(256,1,1) lds=0\n'
    out += f'; @launch kernel=gemm1_kernel grid=(256,1,1) block=(512,1,1) lds={G1_LDS}\n'
    out += '; @launch kernel=attn_o_kernel grid=(256,1,1) block=(256,1,1) lds=8192\n'
    out += f'; @launch kernel=gemm2_kernel grid=(256,1,1) block=(512,1,1) lds={G2_LDS if OPT("G2_OLD") else H_LDS}\n'
    out += '.amdgcn_target "amdgcn-amd-amdhsa--gfx950"\n.text\n'
    out += a.finalize()
    out += '.section .rodata,"a"\n'
    for d in descs:
        out += '.p2align 6\n' + d
    path = sys.argv[1] if len(sys.argv) > 1 else 'cdna_kernels/%s.s' % NAME
    open(path, 'w').write(out)
    print('wrote', path, len(out))


if __name__ == '__main__':
    main()
```

```python
import sys, os
from asmlib import Asm
OPT = lambda k, d='': os.environ.get(k, d)

NAME = 'parallel_sum__linear_kernel_hedgehog__dense_activation_gelu__prompt'
XN_OFF = 0
XN_SZ = 2048 * 1024 * 2
ACT2_OFF = 0x400000
ACT2_SZ = 2048 * 4608 * 2
PHIQ_OFF = 0x1600000
PHIQ_SZ = 2048 * 2048 * 2
KVP_OFF = 0x1E00000
KVP_ENT = 8448
KVP_SZ = 8 * 32 * KVP_ENT

LOG2E = 0x3fb8aa3b


def f2u(x):
    import struct
    return struct.unpack('<I', struct.pack('<f', x))[0]


def srd(a, d, base, size, off=0):
    if off:
        a(f's_add_u32 s{d}, s{base}, 0x{off:x}')
        a(f's_addc_u32 s{d+1}, s{base+1}, 0')
    else:
        a(f's_mov_b32 s{d}, s{base}')
        a(f's_mov_b32 s{d+1}, s{base+1}')
    a(f's_and_b32 s{d+1}, s{d+1}, 0xffff')
    a(f's_mov_b32 s{d+2}, 0x{size:x}')
    a(f's_mov_b32 s{d+3}, 0x00020000')


STAMP_OFF = 0x3000000
STAMP_REGS = [80, 81, 82, 83, 84, 85, 86]


def stamp(a, idx, real=False):
    if not OPT('STAMP'):
        return
    a('s_memrealtime s[78:79]' if real else 's_memtime s[78:79]')
    a('s_waitcnt lgkmcnt(0)')
    a(f's_mov_b32 s{STAMP_REGS[idx]}, s78')


def stamp_flush(a, n, kern):
    if not OPT('STAMP'):
        return
    a('s_mov_b64 exec, -1')
    srd(a, 92, 4, 0x1000000, STAMP_OFF + kern * 0x40000)
    a('s_lshl_b32 s78, s2, 3')
    a('s_add_u32 s78, s78, s20')
    a('s_lshl_b32 s78, s78, 6')
    a('v_mov_b32 v1, 0')
    for i in range(n):
        a(f'v_mov_b32 v2, s{STAMP_REGS[i]}')
        a(f'buffer_store_dword v2, v1, s[92:95], s78 offen offset:{4*i}')


def kernel_begin(a, name):
    a.raw(f'.globl {name}')
    a.raw('.p2align 8')
    a.raw(f'.type {name},@function')
    a.raw(f'{name}:')


def descriptor(name, vgpr, sgpr=96):
    acc = (vgpr + 3) // 4 * 4
    return f'''.amdhsa_kernel {name}
  .amdhsa_next_free_vgpr {vgpr}
  .amdhsa_next_free_sgpr {sgpr}
  .amdhsa_accum_offset {acc}
  .amdhsa_group_segment_fixed_size 0
  .amdhsa_kernarg_size 96
  .amdhsa_user_sgpr_count 2
  .amdhsa_user_sgpr_kernarg_segment_ptr 1
  .amdhsa_system_sgpr_workgroup_id_x 1
.end_amdhsa_kernel
'''


def allreduce16(a, op, v, tmp):
    for r in (8, 4, 2, 1):
        a(f'{op}_dpp v{tmp}, v{v}, v{v} row_ror:{r} row_mask:0xf bank_mask:0xf')
        v, tmp = tmp, v
    return v


def cross_groups(a, op, v, t):
    a(f'v_mov_b32 v{t}, v{v}')
    a(f'v_permlane32_swap_b32 v{v}, v{t}')
    a(f'{op} v{v}, v{v}, v{t}')
    a(f'v_mov_b32 v{t}, v{v}')
    a(f'v_permlane16_swap_b32 v{v}, v{t}')
    a(f'{op} v{v}, v{v}, v{t}')


def round_bf16(a, d, s):
    a(f'v_cvt_pk_bf16_f32 v{d}, v{s}, v{s}')
    a(f'v_lshlrev_b32 v{d}, 16, v{d}')


def gen_ln(a):
    name = 'ln_kernel'
    kernel_begin(a, name)
    a('s_cmp_ge_u32 s2, 512')
    a('s_cbranch_scc1 ln_done')
    a('s_load_dwordx2 s[4:5], s[0:1], 0')
    a('s_load_dwordx2 s[6:7], s[0:1], 88')
    a('s_load_dwordx2 s[24:25], s[0:1], 8')
    a('s_load_dwordx2 s[26:27], s[0:1], 40')
    a('v_lshrrev_b32 v1, 6, v0')
    a('v_and_b32 v2, 63, v0')
    a('s_lshl_b32 s3, s2, 2')
    a('v_add_u32 v1, s3, v1')
    a('v_lshlrev_b32 v3, 10, v1')
    a('v_lshl_add_u32 v3, v2, 4, v3')
    a('v_lshlrev_b32 v1, 11, v1')
    a('v_lshl_add_u32 v1, v2, 4, v1')
    a('s_waitcnt lgkmcnt(0)')
    srd(a, 8, 4, XN_SZ)
    srd(a, 12, 6, XN_SZ, XN_OFF)
    a('buffer_load_dwordx4 v[4:7], v1, s[8:11], 0 offen')
    a('buffer_load_dwordx4 v[8:11], v1, s[8:11], 0 offen offset:1024')
    npf = 0
    if OPT('LNPF'):
        srd(a, 28, 24, 1024 * 3072 * 2)
        srd(a, 32, 26, 1024 * 3584 * 2)
        for i in range(int(OPT('LNPF'))):
            a(f's_mov_b32 s17, {i << 21}')
            if i < 3:
                a(f'buffer_load_dwordx4 v[64:67], v3, s[28:31], s17 offen')
                npf += 1
            a(f'buffer_load_dwordx4 v[68:71], v3, s[32:35], s17 offen')
            npf += 1
    a('s_mov_b32 s16, 0xffff0000')
    a(f's_waitcnt vmcnt({npf})')
    for i in range(8):
        a(f'v_lshlrev_b32 v{16+2*i}, 16, v{4+i}')
        a(f'v_and_b32 v{17+2*i}, s16, v{4+i}')
    for i in range(8):
        a(f'v_add_f32 v{32+i}, v{16+2*i}, v{17+2*i}')
    for i in range(4):
        a(f'v_add_f32 v{32+i}, v{32+2*i}, v{33+2*i}')
    a('v_add_f32 v32, v32, v33')
    a('v_add_f32 v34, v34, v35')
    a('v_add_f32 v32, v32, v34')
    r = allreduce16(a, 'v_add_f32', 32, 33)
    cross_groups(a, 'v_add_f32', r, 34)
    a(f'v_mul_f32 v40, 0x{f2u(1.0/1024):x}, v{r}')
    for i in range(16):
        a(f'v_sub_f32 v{44+i}, v{16+i}, v40')
    a('v_mul_f32 v32, v44, v44')
    a('v_mul_f32 v33, v45, v45')
    for i in range(2, 16, 2):
        a(f'v_fmac_f32 v32, v{44+i}, v{44+i}')
        a(f'v_fmac_f32 v33, v{45+i}, v{45+i}')
    a('v_add_f32 v32, v32, v33')
    r = allreduce16(a, 'v_add_f32', 32, 33)
    cross_groups(a, 'v_add_f32', r, 34)
    a(f'v_mul_f32 v41, 0x{f2u(1.0/1024):x}, v{r}')
    round_bf16(a, 40, 40)
    round_bf16(a, 41, 41)
    a(f'v_add_f32 v41, 0x{f2u(1e-5):x}, v41')
    round_bf16(a, 41, 41)
    a('v_sqrt_f32 v41, v41')
    round_bf16(a, 41, 41)
    a('v_rcp_f32 v42, v41')
    for i in range(0, 16, 2):
        a(f'v_sub_f32 v{16+i}, v{16+i}, v40')
        a(f'v_sub_f32 v{17+i}, v{17+i}, v40')
        a(f'v_cvt_pk_bf16_f32 v{44+i}, v{16+i}, v{17+i}')
        a(f'v_lshlrev_b32 v{16+i}, 16, v{44+i}')
        a(f'v_and_b32 v{17+i}, s16, v{44+i}')
    for i in range(16):
        a(f'v_mul_f32 v{44+i}, v{16+i}, v42')
    for i in range(16):
        a(f'v_fma_f32 v{16+i}, -v{44+i}, v41, v{16+i}')
    for i in range(16):
        a(f'v_fmac_f32 v{44+i}, v{16+i}, v42')
    for i in range(8):
        a(f'v_cvt_pk_bf16_f32 v{4+i}, v{44+2*i}, v{45+2*i}')
    a('buffer_store_dwordx4 v[4:7], v1, s[12:15], 0 offen')
    a('buffer_store_dwordx4 v[8:11], v1, s[12:15], 0 offen offset:1024')
    a('ln_done:')
    a('s_endpgm')
    return descriptor(name, 72, 40)


class VQ:
    def __init__(self):
        self.q = []

    def push(self, tag):
        self.q.append(tag)

    def wait_for(self, tags):
        last = -1
        for i, t in enumerate(self.q):
            if t in tags:
                last = i
        n = len(self.q) - 1 - last
        return min(n, 63)


def interleave(a, mm, rd, dma, emit_grp, first_dma=1, dma_every=4):
    rd = list(rd); dma = list(dma)
    for idx, m in enumerate(mm):
        a(m)
        if dma and idx >= first_dma and (idx - first_dma) % dma_every == 0:
            emit_grp(dma.pop(0))
        elif rd:
            a(rd.pop(0))
        elif dma:
            emit_grp(dma.pop(0))
    for r in rd:
        a(r)
    for g in dma:
        emit_grp(g)


A_SLOT = 32768
B_BASE = 98304
B_SLOT = 14336
G1_DUMMY = B_BASE + 4 * B_SLOT
G1_LDS = G1_DUMMY + 8192
ACC = 128
SETS = (32, 76)
VA = 2
VB = 8
VGA = 11
VGB0 = 12
VGB1 = 13
VLANE = 14
VG4 = 15
VL16 = 16
VPF = 31
VPF2 = 30
VTMP = 17


def gemm1_common_setup(a):
    a('v_lshrrev_b32 v1, 6, v0')
    a(f'v_and_b32 v{VLANE}, 63, v0')
    a('s_nop 0')
    a('v_readfirstlane_b32 s20, v1')
    a(f'v_lshrrev_b32 v{VG4}, 4, v{VLANE}')
    a(f'v_and_b32 v{VL16}, 15, v{VLANE}')
    a('s_nop 1')
    a('s_lshr_b32 s21, s20, 1')
    a('s_and_b32 s22, s20, 1')
    a('s_and_b32 s26, s2, 7')
    a('s_lshr_b32 s27, s2, 3')
    a('s_and_b32 s24, s26, 1')
    a('s_lshl_b32 s24, s24, 2')
    a('s_and_b32 s28, s27, 3')
    a('s_add_u32 s24, s24, s28')
    a('s_lshr_b32 s25, s26, 1')
    a('s_lshl_b32 s25, s25, 3')
    a('s_lshr_b32 s28, s27, 2')
    a('s_add_u32 s25, s25, s28')
    T = VTMP
    a('s_lshl_b32 s28, s21, 13')
    a(f'v_and_b32 v{T}, 7, v{VLANE}')
    a(f'v_xor_b32 v{T}, v{T}, v{VG4}')
    a(f'v_lshlrev_b32 v{T}, 4, v{T}')
    a(f'v_lshl_add_u32 v{T}, v{VL16}, 7, v{T}')
    a(f'v_add_u32 v{T}, s28, v{T}')
    a(f'v_xor_b32 v{T+1}, 64, v{T}')
    for sl in range(3):
        a(f'v_add_u32 v{VA+2*sl}, 0x{sl*A_SLOT:x}, v{T}')
        a(f'v_add_u32 v{VA+2*sl+1}, 0x{sl*A_SLOT:x}, v{T+1}')
    a(f'v_lshrrev_b32 v{T}, 3, v{VLANE}')
    a(f'v_and_b32 v{T+1}, 7, v{VLANE}')
    a(f'v_xor_b32 v{T+1}, v{T+1}, v{T}')
    a('s_lshl_b32 s28, s24, 8')
    a('s_lshl_b32 s29, s20, 5')
    a('s_add_u32 s28, s28, s29')
    a(f'v_add_u32 v{T}, s28, v{T}')
    a(f'v_lshlrev_b32 v{T}, 11, v{T}')
    a(f'v_lshl_add_u32 v{VGA}, v{T+1}, 4, v{T}')
    a(f'v_lshlrev_b32 v{VPF}, 4, v{VLANE}')
    a('s_lshl_b32 s30, s20, 12')
    a('s_lshl_b32 s31, s20, 10')


def gemm1_variant(a, kind):
    w1 = kind == 'w1'
    NB = 7 if w1 else 6
    rowstride = 7168 if w1 else 6144
    nsecond = 6 if w1 else 4
    T = VTMP
    a(f'v_lshrrev_b32 v{T}, 2, v{VL16}')
    a(f'v_lshl_add_u32 v{T+1}, v{VG4}, 3, v{T}')
    a(f'v_lshrrev_b32 v{T+2}, 1, v{T}')
    a(f'v_and_b32 v{T+3}, 1, v{VG4}')
    a(f'v_lshl_or_b32 v{T+2}, v{T+3}, 1, v{T+2}')
    a(f'v_and_b32 v{T+4}, 3, v{VLANE}')
    a(f'v_lshlrev_b32 v{T+4}, 3, v{T+4}')
    a(f'v_lshl_add_u32 v{T+5}, v{T+1}, 7, v{T+4}')
    a(f'v_add_u32 v{T+5}, 0x{B_BASE:x}, v{T+5}')
    for e in range(2):
        if w1:
            a(f's_add_u32 s28, s22, {2*e}')
        else:
            a('s_lshl_b32 s28, s22, 1')
            a(f's_add_u32 s28, s28, {e}')
        a(f'v_xor_b32 v{T+6}, s28, v{T+2}')
        a(f'v_lshl_add_u32 v{VB+e}, v{T+6}, 5, v{T+5}')
    if w1:
        a(f'v_xor_b32 v{T+6}, s22, v{T+3}')
        a(f'v_lshl_add_u32 v{T+7}, v{T+1}, 6, v{T+4}')
        a(f'v_lshl_add_u32 v{T+7}, v{T+6}, 5, v{T+7}')
        a(f'v_add_u32 v{VB+2}, 0x{B_BASE+12288:x}, v{T+7}')
    colstride = 128 if w1 else 2048
    a(f'v_lshrrev_b32 v{T}, 3, v{VLANE}')
    a(f'v_bfe_u32 v{T+1}, v{VLANE}, 4, 1')
    a('s_and_b32 s28, s20, 1')
    a('s_lshl_b32 s28, s28, 1')
    a(f'v_or_b32 v{T+1}, s28, v{T+1}')
    a(f'v_bfe_u32 v{T+2}, v{VLANE}, 1, 2')
    a(f'v_xor_b32 v{T+2}, v{T+2}, v{T+1}')
    a(f'v_and_b32 v{T+3}, 1, v{VLANE}')
    a(f'v_lshlrev_b32 v{T+3}, 4, v{T+3}')
    a(f'v_lshl_add_u32 v{T+3}, v{T+2}, 5, v{T+3}')
    a('s_and_b32 s28, s20, 3')
    a('s_lshl_b32 s28, s28, 3')
    a(f'v_add_u32 v{T}, s28, v{T}')
    a(f's_mov_b32 s29, {rowstride}')
    a(f'v_mul_lo_u32 v{T}, v{T}, s29')
    a(f'v_add_u32 v{T}, v{T}, v{T+3}')
    a('s_lshr_b32 s28, s20, 2')
    a(f's_mul_i32 s28, s28, {colstride}')
    if w1:
        a('s_sub_u32 s32, s25, 16')
        a('s_mul_i32 s32, s32, 448')
    else:
        a('s_lshl_b32 s32, s25, 7')
    a('s_add_u32 s28, s28, s32')
    a(f'v_add_u32 v{VGB0}, s28, v{T}')
    a(f'v_add_u32 v{VGB1}, 0x{2*colstride:x}, v{VGB0}')
    if w1:
        a(f'v_lshrrev_b32 v{T}, 2, v{VLANE}')
        a('s_sub_u32 s28, s20, 4')
        a('s_lshl_b32 s28, s28, 4')
        a(f'v_add_u32 v{T}, s28, v{T}')
        a(f'v_mul_lo_u32 v{T}, v{T}, s29')
        a(f'v_bfe_u32 v{T+1}, v{VLANE}, 5, 1')
        a(f'v_bfe_u32 v{T+2}, v{VLANE}, 1, 1')
        a(f'v_xor_b32 v{T+2}, v{T+2}, v{T+1}')
        a(f'v_and_b32 v{T+3}, 1, v{VLANE}')
        a(f'v_lshlrev_b32 v{T+3}, 4, v{T+3}')
        a(f'v_lshl_add_u32 v{T+3}, v{T+2}, 5, v{T+3}')
        a(f'v_add_u32 v{T}, v{T}, v{T+3}')
        a('s_add_u32 s28, s32, 384')
        a(f'v_add_u32 v{T}, s28, v{T}')
        a('s_cmp_ge_u32 s20, 4')
        a('s_cselect_b64 s[34:35], -1, 0')
        a(f'v_cndmask_b32 v{VGB1}, v{VGB1}, v{T}, s[34:35]')
    if w1:
        a('s_lshl_b32 s28, s22, 5')
        a(f'v_lshl_add_u32 v{T}, v{VG4}, 3, s28')
        for nb in range(7):
            a(f'buffer_load_dwordx2 v[{240+2*nb}:{241+2*nb}], v{T}, s[40:43], s32 offen offset:{nb*64}')
    else:
        a('s_lshl_b32 s33, s25, 1')
        a('s_add_u32 s33, s33, s22')
        a('s_lshl_b32 s28, s33, 11')
        a(f'v_lshlrev_b32 v{T}, 8, v{VG4}')
        a(f'v_lshl_add_u32 v{T}, v{VL16}, 1, v{T}')
        for fb in range(2):
            for j in range(8):
                off = (16 * (j // 4) + j % 4) * 64 + fb * 32
                a(f'buffer_load_ushort v{224+8*fb+j}, v{T}, s[40:43], s28 offen offset:{off}')
    for i in range(NB * 16):
        a(f'v_mov_b32 v{ACC+i}, 0')

    vq = VQ()
    lbl = [0]

    def grp_A(i):
        if OPT('G1_NOA'):
            return []
        out = []
        for q in range(4):
            out.append(([f's_add_u32 m0, s30, 0x{(i % 3) * A_SLOT + q * 1024:x}',
                         f's_mov_b32 s28, 0x{i * 128 + q * 16384:x}',
                         f'buffer_load_dwordx4 v{VGA}, s[8:11], s28 offen lds'], ('A', i)))
        return out

    def grp_B(j):
        if OPT('G1_NOB'):
            return []
        base = B_BASE + (j % 4) * B_SLOT
        L = f'g1{kind}_sk{lbl[0]}'
        lbl[0] += 1
        return [([f's_add_u32 m0, s31, 0x{base:x}',
                  f's_mov_b32 s28, 0x{j * 32 * rowstride:x}',
                  f'buffer_load_dwordx4 v{VGB0}, s[12:15], s28 offen lds'], ('B', j)),
                ([f's_cmp_ge_u32 s20, {nsecond}',
                  f's_cbranch_scc1 {L}',
                  f's_add_u32 m0, s31, 0x{base + 8192:x} ; @skip',
                  f's_mov_b32 s28, 0x{j * 32 * rowstride:x} ; @skip',
                  f'buffer_load_dwordx4 v{VGB1}, s[12:15], s28 offen lds ; @skip',
                  f'{L}:'], None)]

    def emit_grp(g):
        for l in g[0]:
            a(l)
        if g[1] is not None:
            vq.push(g[1])

    def issue_A(i):
        for g in grp_A(i):
            emit_grp(g)

    def issue_B(j):
        for g in grp_B(j):
            emit_grp(g)

    def frag_reads(j):
        S = SETS[j & 1]
        sl = (j // 2) % 3
        half = j & 1
        out = []
        for mb in range(4):
            out.append(f'ds_read_b128 v[{S+4*mb}:{S+4*mb+3}], v{VA+2*sl+half} offset:{mb*2048}')
        bs = (j % 4) * B_SLOT
        for nb in range(NB):
            d = S + 16 + 4 * nb
            if w1 and nb == 6:
                for t in range(2):
                    out.append(f'ds_read_b64_tr_b16 v[{d+2*t}:{d+2*t+1}], v{VB+2} offset:{bs + t*256}')
            else:
                G, e = nb // 2, nb % 2
                for t in range(2):
                    out.append(f'ds_read_b64_tr_b16 v[{d+2*t}:{d+2*t+1}], v{VB+e} offset:{bs + G*4096 + t*512}')
        return out

    def mfmas(j):
        S = SETS[j & 1]
        out = []
        for nb in range(NB):
            for mb in range(4):
                c = ACC + (nb * 4 + mb) * 4
                wf = f'v[{S+16+4*nb}:{S+19+4*nb}]'
                xf = f'v[{S+4*mb}:{S+4*mb+3}]'
                if (not w1) and nb >= 4:
                    out.append(f'v_mfma_f32_16x16x32_bf16 v[{c}:{c+3}], {xf}, {wf}, v[{c}:{c+3}]')
                else:
                    out.append(f'v_mfma_f32_16x16x32_bf16 v[{c}:{c+3}], {wf}, {xf}, v[{c}:{c+3}]')
        return out

    stamp(a, 1)
    def grp_pf(i):
        if OPT('NO_PF1'):
            return []
        return [([f's_add_u32 m0, s31, 0x{G1_DUMMY:x}',
                  f's_mov_b32 s28, 0x{i << 20:x}',
                  f'buffer_load_dwordx4 v{VPF2}, s[88:91], s28 offen lds'], None)]

    issue_A(0); issue_B(0); issue_B(1); issue_A(1); issue_B(2); issue_B(3); issue_A(2)
    for g in grp_pf(0) + grp_pf(1):
        emit_grp(g)
    a(f's_waitcnt vmcnt({vq.wait_for({("A", 0), ("B", 0)})})')
    a('s_barrier')
    for r in frag_reads(0):
        a(r)
    a('s_waitcnt lgkmcnt(0)')
    for j in range(32):
        if j + 1 < 32:
            a(f's_waitcnt vmcnt({vq.wait_for({("A", (j + 1) // 2), ("B", j + 1)})})')
        a('s_barrier')
        dma = []
        if j + 4 < 32:
            dma += grp_B(j + 4)
        if j & 1 and (j // 2 + 3) < 16:
            dma += grp_A(j // 2 + 3)
        if j in (2, 7, 12, 17, 22):
            dma += grp_pf(2 + (j - 2) // 5)
        if j == 28 and not OPT('NO_PF'):
            dma.append(([f's_add_u32 m0, s31, 0x{G1_DUMMY:x}',
                         's_lshl_b32 s28, s2, 13',
                         's_add_u32 s28, s28, s31',
                         f'buffer_load_dwordx4 v{VPF}, s[64:67], s28 offen lds',
                         's_mul_i32 s76, s2, 28672',
                         's_mul_i32 s29, s20, 3584',
                         's_add_u32 s76, s76, s29'], None))
            for i in range(4):
                dma.append(([f'buffer_load_dwordx4 v{VPF}, s[68:71], s76 offen lds',
                             's_add_u32 s76, s76, 1024'], None))
        rd = frag_reads(j + 1) if j + 1 < 32 else []
        mm = mfmas(j)
        if OPT('G1_NOCOMP'):
            rd = []; mm = []
        interleave(a, mm, rd, dma, emit_grp, int(OPT('G1_FD', '1')), int(OPT('G1_DE', '4')))
        a('s_waitcnt lgkmcnt(0)')
    stamp(a, 2)
    if w1:
        epilogue_w1(a)
    else:
        epilogue_qkv(a)


def epilogue_w1(a):
    T = VTMP
    c1 = -2.0 * 0.7978845608028654 * 1.4426950408889634
    c2 = c1 * 0.044715
    a(f's_mov_b32 s44, 0x{f2u(c1):x}')
    a(f's_mov_b32 s45, 0x{f2u(c1):x}')
    a(f's_mov_b32 s46, 0x{f2u(c2):x}')
    a(f's_mov_b32 s47, 0x{f2u(c2):x}')
    a('s_mov_b32 s48, 1.0')
    a('s_mov_b32 s49, 1.0')
    a('s_mov_b32 s50, 0xffff0000')
    a('s_mul_i32 s28, s21, 29696')
    a('s_lshl_b32 s29, s22, 5')
    a('s_add_u32 s28, s28, s29')
    a('s_movk_i32 s29, 464')
    a(f'v_mul_lo_u32 v{T}, v{VL16}, s29')
    a(f'v_lshl_add_u32 v{T+1}, v{VG4}, 3, s28')
    a(f'v_add_u32 v{T}, v{T}, v{T+1}')
    B0 = 32
    for nb in range(7):
        for h in range(2):
            a(f'v_lshlrev_b32 v{B0+4*nb+2*h}, 16, v{240+2*nb+h}')
            a(f'v_and_b32 v{B0+4*nb+2*h+1}, s50, v{240+2*nb+h}')
    W = 64
    a('v_mov_b32 v60, s44')
    a('v_mov_b32 v61, s44')
    for nb in range(7):
        for mb in range(4):
            c = ACC + (nb * 4 + mb) * 4
            w = W + mb * 8
            for h in range(2):
                a(f'v_pk_add_f32 v[{c+2*h}:{c+2*h+1}], v[{c+2*h}:{c+2*h+1}], v[{B0+4*nb+2*h}:{B0+4*nb+2*h+1}]')
            for h in range(2):
                a(f'v_pk_mul_f32 v[{w+2*h}:{w+2*h+1}], v[{c+2*h}:{c+2*h+1}], v[{c+2*h}:{c+2*h+1}]')
            for h in range(2):
                a(f'v_pk_fma_f32 v[{w+2*h}:{w+2*h+1}], v[{w+2*h}:{w+2*h+1}], s[46:47], v[60:61]')
            for h in range(2):
                a(f'v_pk_mul_f32 v[{w+2*h}:{w+2*h+1}], v[{w+2*h}:{w+2*h+1}], v[{c+2*h}:{c+2*h+1}]')
        for mb in range(4):
            w = W + mb * 8
            for i in range(4):
                a(f'v_exp_f32 v{w+i}, v{w+i}')
        for mb in range(4):
            w = W + mb * 8
            for h in range(2):
                a(f'v_pk_add_f32 v[{w+2*h}:{w+2*h+1}], v[{w+2*h}:{w+2*h+1}], s[48:49]')
        for mb in range(4):
            w = W + mb * 8
            for i in range(4):
                a(f'v_rcp_f32 v{w+i}, v{w+i}')
        for mb in range(4):
            c = ACC + (nb * 4 + mb) * 4
            w = W + mb * 8
            for h in range(2):
                a(f'v_pk_mul_f32 v[{w+2*h}:{w+2*h+1}], v[{w+2*h}:{w+2*h+1}], v[{c+2*h}:{c+2*h+1}]')
            a(f'v_cvt_pk_bf16_f32 v{w+4}, v{w}, v{w+1}')
            a(f'v_cvt_pk_bf16_f32 v{w+5}, v{w+2}, v{w+3}')
            a(f'ds_write_b64 v{T}, v[{w+4}:{w+5}] offset:{mb*7424 + nb*64}')
    a(f'v_cmp_le_u32 vcc, 28, v{VLANE}')
    a(f'v_cndmask_b32 v{T+2}, 0, 1, vcc')
    a(f'v_mul_u32_u24 v{T+3}, 28, v{T+2}')
    a(f'v_sub_u32 v{T+3}, v{VLANE}, v{T+3}')
    a('s_lshl_b32 s28, s20, 5')
    a(f'v_add_u32 v{T+2}, s28, v{T+2}')
    a(f'v_mul_lo_u32 v{T+4}, v{T+2}, s29')
    a(f'v_lshl_add_u32 v{T+4}, v{T+3}, 4, v{T+4}')
    a('s_lshl_b32 s28, s24, 8')
    a(f'v_add_u32 v{T+2}, s28, v{T+2}')
    a('s_movk_i32 s29, 9216')
    a(f'v_mul_lo_u32 v{T+2}, v{T+2}, s29')
    a('s_add_u32 s28, s32, 2048')
    a(f'v_lshl_add_u32 v{T+3}, v{T+3}, 4, s28')
    a(f'v_add_u32 v{T+2}, v{T+2}, v{T+3}')
    a('s_waitcnt lgkmcnt(0)')
    a('s_barrier')
    a(f'v_cmp_gt_u32 vcc, 56, v{VLANE}')
    a('s_and_saveexec_b64 s[34:35], vcc')
    for i in range(16):
        a(f'ds_read_b128 v[{64+4*i}:{67+4*i}], v{T+4} offset:{i*928}')
    for i in range(16):
        a(f's_mov_b32 s28, {i*2*9216}')
        a(f's_waitcnt lgkmcnt({15-i})')
        a(f'buffer_store_dwordx4 v[{64+4*i}:{67+4*i}], v{T+2}, s[16:19], s28 offen')
    stamp(a, 3)
    if OPT('STAMP'):
        a('s_waitcnt vmcnt(0)')
    stamp(a, 4)
    stamp(a, 6, True)
    stamp_flush(a, 7, 0)
    a('s_endpgm')


def epilogue_qkv(a):
    T = VTMP
    QF, KF, VF = 32, 48, 64
    WP = 240

    def acc(nb, mb):
        return ACC + (nb * 4 + mb) * 4
    a('s_mov_b32 s50, 0xffff0000')
    a(f's_mov_b32 s51, 0x{LOG2E:x}')
    for i in range(8):
        a(f'v_lshl_or_b32 v{WP+i}, v{224+2*i+1}, 16, v{224+2*i}')
    for mb in range(4):
        for e in range(2):
            c = acc(e, mb)
            a(f'v_cvt_pk_bf16_f32 v{QF+4*mb+2*e}, v{c}, v{c+1}')
            a(f'v_cvt_pk_bf16_f32 v{QF+4*mb+2*e+1}, v{c+2}, v{c+3}')
            c = acc(2 + e, mb)
            a(f'v_cvt_pk_bf16_f32 v{KF+4*mb+2*e}, v{c}, v{c+1}')
            a(f'v_cvt_pk_bf16_f32 v{KF+4*mb+2*e+1}, v{c+2}, v{c+3}')
    for ks in range(2):
        for db in range(2):
            for e in range(2):
                c = acc(4 + db, 2 * ks + e)
                d = VF + (ks * 2 + db) * 4 + 2 * e
                a(f'v_cvt_pk_bf16_f32 v{d}, v{c}, v{c+1}')
                a(f'v_cvt_pk_bf16_f32 v{d+1}, v{c+2}, v{c+3}')
    PQ, PK = 128, 160
    for mb in range(4):
        for fb in range(2):
            d = PQ + (mb * 2 + fb) * 4
            a(f'v_mfma_f32_16x16x32_bf16 v[{d}:{d+3}], v[{WP+4*fb}:{WP+4*fb+3}], v[{QF+4*mb}:{QF+4*mb+3}], 0')
    for mb in range(4):
        for fb in range(2):
            d = PK + (mb * 2 + fb) * 4
            a(f'v_mfma_f32_16x16x32_bf16 v[{d}:{d+3}], v[{KF+4*mb}:{KF+4*mb+3}], v[{WP+4*fb}:{WP+4*fb+3}], 0')
    for i in range(0, 64, 2):
        r = PQ + i
        a(f'v_cvt_pk_bf16_f32 v{T}, v{r}, v{r+1}')
        a(f'v_lshlrev_b32 v{r}, 16, v{T}')
        a(f'v_and_b32 v{r+1}, s50, v{T}')
    a('s_mul_i32 s28, s20, 9216')
    a('s_add_u32 s28, s28, 73728')
    a(f'v_mul_u32_u24 v{T+1}, 144, v{VL16}')
    a(f'v_lshl_add_u32 v{T+2}, v{VG4}, 3, s28')
    a(f'v_add_u32 v{T+1}, v{T+1}, v{T+2}')
    MX, MN = 80, 84
    S1, S2 = 88, 92
    E = 96
    for mb in range(4):
        p = PQ + mb * 8
        a(f'v_max3_f32 v{MX+mb}, v{p}, v{p+1}, v{p+2}')
        a(f'v_max3_f32 v{MX+mb}, v{MX+mb}, v{p+3}, v{p+4}')
        a(f'v_max3_f32 v{MX+mb}, v{MX+mb}, v{p+5}, v{p+6}')
        a(f'v_max_f32 v{MX+mb}, v{MX+mb}, v{p+7}')
        a(f'v_min3_f32 v{MN+mb}, v{p}, v{p+1}, v{p+2}')
        a(f'v_min3_f32 v{MN+mb}, v{MN+mb}, v{p+3}, v{p+4}')
        a(f'v_min3_f32 v{MN+mb}, v{MN+mb}, v{p+5}, v{p+6}')
        a(f'v_min_f32 v{MN+mb}, v{MN+mb}, v{p+7}')
    for mb in range(4):
        cross_groups(a, 'v_max_f32', MX + mb, T + 3)
        cross_groups(a, 'v_min_f32', MN + mb, T + 4)
    for mb in range(4):
        p = PQ + mb * 8
        for i in range(8):
            a(f'v_sub_f32 v{E+i}, v{p+i}, v{MX+mb}')
            a(f'v_sub_f32 v{E+8+i}, v{MN+mb}, v{p+i}')
        for i in range(16):
            a(f'v_mul_f32 v{E+i}, s51, v{E+i}')
        for i in range(16):
            a(f'v_exp_f32 v{E+i}, v{E+i}')
        for (S, b) in ((S1, E), (S2, E + 8)):
            a(f'v_add_f32 v{S+mb}, v{b}, v{b+1}')
            for i in range(2, 8):
                a(f'v_add_f32 v{S+mb}, v{S+mb}, v{b+i}')
        cross_groups(a, 'v_add_f32', S1 + mb, T + 3)
        cross_groups(a, 'v_add_f32', S2 + mb, T + 4)
        a(f'v_rcp_f32 v{S1+mb}, v{S1+mb}')
        a(f'v_rcp_f32 v{S2+mb}, v{S2+mb}')
        for i in range(8):
            a(f'v_mul_f32 v{E+i}, v{E+i}, v{S1+mb}')
            a(f'v_mul_f32 v{E+8+i}, v{E+8+i}, v{S2+mb}')
        O = 112
        for i in range(8):
            a(f'v_cvt_pk_bf16_f32 v{O+i}, v{E+2*i}, v{E+2*i+1}')
        for sg in range(2):
            for fb in range(2):
                r = O + sg * 4 + fb * 2
                a(f'ds_write_b64 v{T+1}, v[{r}:{r+1}] offset:{mb*2304 + sg*64+fb*32}')
    a(f'v_mul_u32_u24 v{T+1}, 144, v{VL16}')
    a(f'v_lshl_add_u32 v{T+1}, v{VG4}, 4, v{T+1}')
    a(f'v_add_u32 v{T+1}, s28, v{T+1}')
    a('s_lshl_b32 s28, s24, 4')
    a('s_lshl_b32 s29, s21, 2')
    a('s_add_u32 s28, s28, s29')
    a('s_lshl_b32 s28, s28, 11')
    a('s_lshl_b32 s29, s33, 18')
    a('s_add_u32 s28, s28, s29')
    a('s_add_u32 s29, s28, 4096')
    a('s_waitcnt lgkmcnt(0)')
    for i in range(8):
        a(f'ds_read_b128 v[{192+4*i}:{195+4*i}], v{T+1} offset:{(i >> 1)*2304 + (i & 1)*64}')
    for i in range(8):
        a(f's_waitcnt lgkmcnt({7-i})')
        a(f'buffer_store_dwordx4 v[{192+4*i}:{195+4*i}], v{VPF}, s[36:39], s{28 + (i >> 2)} offen offset:{(i & 3)*1024}')
    KMX, KMN, KS1, KS2, KT = 80, 96, 32, 48, 112
    idx = [(mb, i) for mb in range(4) for i in range(4)]

    def pk(mb, fb, i):
        return PK + (mb * 2 + fb) * 4 + i
    for n, (mb, i) in enumerate(idx):
        a(f'v_max_f32 v{KMX+n}, v{pk(mb,0,i)}, v{pk(mb,1,i)}')
        a(f'v_min_f32 v{KMN+n}, v{pk(mb,0,i)}, v{pk(mb,1,i)}')
    for (base, op) in ((KMX, 'v_max_f32'), (KMN, 'v_min_f32')):
        src, dst = base, KT
        for r in (8, 4, 2, 1):
            for n in range(16):
                a(f'{op}_dpp v{dst+n}, v{src+n}, v{src+n} row_ror:{r} row_mask:0xf bank_mask:0xf')
            src, dst = dst, src
    EP = 128
    for n, (mb, i) in enumerate(idx):
        for fb in range(2):
            r = pk(mb, fb, i)
            a(f'v_sub_f32 v{EP + r - PK}, v{r}, v{KMX+n}')
            a(f'v_sub_f32 v{r}, v{KMN+n}, v{r}')
    for r in range(64):
        a(f'v_mul_f32 v{128+r}, s51, v{128+r}')
    for r in range(64):
        a(f'v_exp_f32 v{128+r}, v{128+r}')
    for n, (mb, i) in enumerate(idx):
        a(f'v_add_f32 v{KS1+n}, v{EP + pk(mb,0,i) - PK}, v{EP + pk(mb,1,i) - PK}')
        a(f'v_add_f32 v{KS2+n}, v{pk(mb,0,i)}, v{pk(mb,1,i)}')
    for base in (KS1, KS2):
        src, dst = base, KT
        for r in (8, 4, 2, 1):
            for n in range(16):
                a(f'v_add_f32_dpp v{dst+n}, v{src+n}, v{src+n} row_ror:{r} row_mask:0xf bank_mask:0xf')
            src, dst = dst, src
    for n in range(16):
        a(f'v_rcp_f32 v{KS1+n}, v{KS1+n}')
        a(f'v_rcp_f32 v{KS2+n}, v{KS2+n}')
    for n, (mb, i) in enumerate(idx):
        for fb in range(2):
            r = pk(mb, fb, i)
            a(f'v_mul_f32 v{EP + r - PK}, v{EP + r - PK}, v{KS1+n}')
            a(f'v_mul_f32 v{r}, v{r}, v{KS2+n}')
    PF = 80
    for sg in range(2):
        for fb in range(2):
            for ks in range(2):
                d = PF + ((sg * 2 + fb) * 2 + ks) * 4
                for e in range(2):
                    r = (EP if sg == 0 else PK) + ((2 * ks + e) * 2 + fb) * 4
                    a(f'v_cvt_pk_bf16_f32 v{d+2*e}, v{r}, v{r+1}')
                    a(f'v_cvt_pk_bf16_f32 v{d+2*e+1}, v{r+2}, v{r+3}')
    ONES = 112
    for i in range(4):
        a(f'v_mov_b32 v{ONES+i}, 0x3f803f80')
    KV = 128
    Z = 160
    for ks in range(2):
        for F in range(4):
            pf = PF + (F * 2 + ks) * 4
            for db in range(2):
                d = KV + (F * 2 + db) * 4
                vf = VF + (ks * 2 + db) * 4
                cc = '0' if ks == 0 else f'v[{d}:{d+3}]'
                a(f'v_mfma_f32_16x16x32_bf16 v[{d}:{d+3}], v[{pf}:{pf+3}], v[{vf}:{vf+3}], {cc}')
            d = Z + F * 4
            cc = '0' if ks == 0 else f'v[{d}:{d+3}]'
            a(f'v_mfma_f32_16x16x32_bf16 v[{d}:{d+3}], v[{pf}:{pf+3}], v[{ONES}:{ONES+3}], {cc}')
    a(f'v_lshlrev_b32 v{T+5}, 4, v{VLANE}')
    a('s_mul_i32 s28, s22, 3')
    a('s_add_u32 s28, s28, s21')
    a('s_sub_u32 s28, s28, 1')
    a('s_mul_i32 s28, s28, 12288')
    a('s_cmp_eq_u32 s21, 0')
    a('s_cbranch_scc1 g1q_nowrite')
    a(f'v_add_u32 v{T+6}, s28, v{T+5}')
    for r in range(12):
        a(f'ds_write_b128 v{T+6}, v[{KV+4*r}:{KV+4*r+3}] offset:{r*1024}')
    a('s_waitcnt lgkmcnt(0)')
    a('g1q_nowrite:')
    a('s_barrier')
    a('s_cmp_lg_u32 s21, 0')
    a('s_cbranch_scc1 g1q_end')
    a('s_mul_i32 s28, s22, 36864')
    a(f'v_add_u32 v{T+6}, s28, v{T+5}')
    for p in range(3):
        for r in range(12):
            a(f'ds_read_b128 v[{32+4*r}:{35+4*r}], v{T+6} offset:{p*12288 + r*1024}')
        a('s_waitcnt lgkmcnt(0)')
        for r in range(48):
            a(f'v_add_f32 v{KV+r}, v{KV+r}, v{32+r}')
    a('s_lshl_b32 s28, s33, 3')
    a('s_add_u32 s28, s28, s24')
    a(f's_mul_i32 s28, s28, {KVP_ENT}')
    a(f'v_and_b32 v{T+6}, 1, v{VG4}')
    a(f'v_lshlrev_b32 v{T+6}, 10, v{T+6}')
    a(f'v_lshrrev_b32 v{T+7}, 1, v{VG4}')
    a(f'v_lshl_add_u32 v{T+6}, v{T+7}, 8, v{T+6}')
    a(f'v_lshl_add_u32 v{T+6}, v{VL16}, 4, v{T+6}')
    a('s_add_u32 s29, s28, 4096')
    for F in range(4):
        for db in range(2):
            d = KV + (F * 2 + db) * 4
            a(f'buffer_store_dwordx4 v[{d}:{d+3}], v{T+6}, s[44:47], s{28+db} offen offset:{(F >> 1)*2048 + (F & 1)*512}')
    a(f'v_lshlrev_b32 v{T+7}, 4, v{VG4}')
    a(f'v_cmp_eq_u32 vcc, 0, v{VL16}')
    a('s_and_saveexec_b64 s[34:35], vcc')
    a('s_add_u32 s28, s28, 8192')
    for F in range(4):
        d = Z + F * 4
        a(f'buffer_store_dwordx4 v[{d}:{d+3}], v{T+7}, s[44:47], s28 offen offset:{F*64}')
    a('g1q_end:')
    stamp(a, 3)
    if OPT('STAMP'):
        a('s_waitcnt vmcnt(0)')
    stamp(a, 4)
    stamp(a, 6, True)
    stamp_flush(a, 7, 0)
    a('s_endpgm')


def gen_gemm1(a):
    name = 'gemm1_kernel'
    kernel_begin(a, name)
    a('s_cmp_ge_u32 s2, 256')
    a('s_cbranch_scc1 g1_exit')
    a('s_load_dwordx2 s[4:5], s[0:1], 88')
    a('s_load_dwordx2 s[6:7], s[0:1], 8')
    a('s_load_dwordx2 s[56:57], s[0:1], 16')
    a('s_load_dwordx2 s[58:59], s[0:1], 40')
    a('s_load_dwordx2 s[60:61], s[0:1], 48')
    a('s_load_dwordx2 s[72:73], s[0:1], 24')
    a('s_load_dwordx2 s[74:75], s[0:1], 56')
    gemm1_common_setup(a)
    a('s_waitcnt lgkmcnt(0)')
    stamp(a, 5, True)
    stamp(a, 0)
    srd(a, 8, 4, XN_SZ, XN_OFF)
    srd(a, 64, 72, 1024 * 1024 * 2)
    srd(a, 68, 74, 3584 * 1024 * 2)
    srd(a, 92, 4, 0x200000, FLAG_OFF)
    a('s_lshl_b32 s28, s2, 9')
    a('v_lshlrev_b32 v17, 7, v0')
    a('v_mov_b32 v18, 0')
    a('v_cmp_gt_u32 vcc, 4, v0')
    a('s_and_saveexec_b64 s[34:35], vcc')
    a('buffer_store_dword v18, v17, s[92:95], s28 offen')
    a('s_mov_b64 exec, s[34:35]')
    a('s_lshl_b32 s28, s2, 2')
    a(f's_add_u32 s28, s28, 0x{OFLAG_OFF - FLAG_OFF:x}')
    a('v_mov_b32 v17, 0')
    a('v_cmp_eq_u32 vcc, 0, v0')
    a('s_and_saveexec_b64 s[34:35], vcc')
    a('buffer_store_dword v18, v17, s[92:95], s28 offen')
    a('s_mov_b64 exec, s[34:35]')
    a('s_lshl_b32 s28, s2, 3')
    a('s_add_u32 s28, s28, s20')
    a('s_cmp_lt_u32 s28, 1024')
    a('s_cselect_b32 s88, s6, s58')
    a('s_cselect_b32 s89, s7, s59')
    a(f's_mov_b32 s90, 0x{1024*3584*2:x}')
    a(f's_cselect_b32 s90, 0x{1024*3072*2:x}, s90')
    a('s_and_b32 s89, s89, 0xffff')
    a('s_mov_b32 s91, 0x00020000')
    a('s_and_b32 s28, s28, 1023')
    a('s_lshl_b32 s28, s28, 10')
    a(f'v_add_u32 v{VPF2}, s28, v{VPF}')
    a('s_cmp_ge_u32 s25, 16')
    a('s_cbranch_scc1 g1_w1')
    srd(a, 12, 6, 1024 * 3072 * 2)
    srd(a, 40, 56, 32 * 32 * 32 * 2)
    srd(a, 36, 4, PHIQ_SZ, PHIQ_OFF)
    srd(a, 44, 4, KVP_SZ, KVP_OFF)
    gemm1_variant(a, 'qkv')
    a('g1_w1:')
    srd(a, 12, 58, 1024 * 3584 * 2)
    srd(a, 40, 60, 3584 * 2)
    srd(a, 16, 4, ACT2_SZ, ACT2_OFF)
    gemm1_variant(a, 'w1')
    a('g1_exit:')
    a('s_endpgm')
    return descriptor(name, 256, 100)


def gen_o(a):
    name = 'attn_o_kernel'
    kernel_begin(a, name)
    a('s_cmp_ge_u32 s2, 256')
    a('s_cbranch_scc1 o_done')
    a('s_load_dwordx2 s[4:5], s[0:1], 88')
    a('s_load_dwordx2 s[32:33], s[0:1], 24')
    a('s_load_dwordx2 s[34:35], s[0:1], 56')
    a('v_lshrrev_b32 v1, 6, v0')
    a('v_and_b32 v2, 63, v0')
    a('s_nop 0')
    a('v_readfirstlane_b32 s20, v1')
    a('v_lshrrev_b32 v3, 4, v2')
    a('v_and_b32 v4, 15, v2')
    a('s_and_b32 s21, s2, 31')
    a('s_lshr_b32 s22, s2, 5')
    a('s_waitcnt lgkmcnt(0)')
    srd(a, 8, 4, KVP_SZ, KVP_OFF)
    srd(a, 12, 4, PHIQ_SZ, PHIQ_OFF)
    srd(a, 16, 4, ACT2_SZ, ACT2_OFF)
    srd(a, 36, 4, FLAG_SZ, FLAG_OFF)
    a('s_lshl_b32 s23, s2, 9')
    a('v_lshlrev_b32 v5, 7, v0')
    a('v_mov_b32 v6, 0')
    a('v_cmp_gt_u32 vcc, 4, v0')
    a('s_and_saveexec_b64 s[24:25], vcc')
    a('buffer_store_dword v6, v5, s[36:39], s23 offen')
    a('s_mov_b64 exec, s[24:25]')
    a('s_and_b32 s23, s20, 1')
    a('s_lshr_b32 s24, s20, 1')
    a('s_lshl_b32 s25, s23, 12')
    a('s_lshl_b32 s26, s24, 7')
    a('s_add_u32 s25, s25, s26')
    a('v_lshlrev_b32 v5, 8, v4')
    a('v_lshl_add_u32 v5, v3, 5, v5')
    a('v_add_u32 v5, s25, v5')
    a(f's_mul_i32 s27, s21, {KVP_ENT}')
    for mt in range(8):
        a(f's_add_u32 s28, s27, {mt*32*KVP_ENT}')
        a(f'buffer_load_dwordx4 v[{32+8*mt}:{35+8*mt}], v5, s[8:11], s28 offen')
        a(f'buffer_load_dwordx4 v[{36+8*mt}:{39+8*mt}], v5, s[8:11], s28 offen offset:16')
    a('s_lshl_b32 s25, s23, 7')
    a('s_add_u32 s25, s25, 8192')
    a('v_lshl_add_u32 v6, v3, 5, s25')
    for mt in range(8):
        a(f's_add_u32 s28, s27, {mt*32*KVP_ENT}')
        a(f'buffer_load_dwordx4 v[{96+8*mt}:{99+8*mt}], v6, s[8:11], s28 offen')
        a(f'buffer_load_dwordx4 v[{100+8*mt}:{103+8*mt}], v6, s[8:11], s28 offen offset:16')
    a('s_lshl_b32 s25, s22, 8')
    a('s_lshl_b32 s26, s20, 6')
    a('s_add_u32 s25, s25, s26')
    a('v_add_u32 v7, s25, v4')
    a('v_lshlrev_b32 v8, 12, v7')
    a('s_lshl_b32 s26, s21, 7')
    a('v_lshl_add_u32 v9, v3, 4, s26')
    a('v_add_u32 v8, v8, v9')
    for mb in range(4):
        a(f's_mov_b32 s28, {mb*16*4096}')
        for ks in range(2):
            d = 160 + (mb * 2 + ks) * 4
            a(f'buffer_load_dwordx4 v[{d}:{d+3}], v8, s[12:15], s28 offen offset:{ks*64}')
    npf = 0
    if OPT('O_PF'):
        srd(a, 36, 32, 1024 * 1024 * 2)
        srd(a, 40, 34, 3584 * 1024 * 2)
        a('v_lshlrev_b32 v200, 4, v0')
        a('s_lshl_b32 s44, s2, 13')
        a('s_mul_i32 s45, s2, 28672')
        for r in range(2):
            a(f'buffer_load_dwordx4 v[{204+4*r}:{207+4*r}], v200, s[36:39], s44 offen')
            a('s_add_u32 s44, s44, 4096')
        for r in range(7):
            a(f'buffer_load_dwordx4 v[{212+4*r}:{215+4*r}], v200, s[40:43], s45 offen')
            a('s_add_u32 s45, s45, 4096')
        npf = 9
    a(f's_waitcnt vmcnt({8+npf})')
    for base in (32, 96):
        for mt in range(1, 8):
            for i in range(8):
                a(f'v_add_f32 v{base+i}, v{base+i}, v{base+8*mt+i}')
    for i in range(4):
        a(f'v_cvt_pk_bf16_f32 v{12+i}, v{32+2*i}, v{33+2*i}')
        a(f'v_cvt_pk_bf16_f32 v{16+i}, v{96+2*i}, v{97+2*i}')
    a('v_lshlrev_b32 v10, 4, v2')
    a('s_lshl_b32 s25, s20, 10')
    a('v_add_u32 v11, s25, v10')
    a('ds_write_b128 v11, v[12:15]')
    a('s_cmp_ge_u32 s20, 2')
    a('s_cbranch_scc1 o_skipz')
    a('ds_write_b128 v11, v[16:19] offset:4096')
    a('o_skipz:')
    a('s_waitcnt lgkmcnt(0)')
    a('s_barrier')
    for i in range(6):
        a(f'ds_read_b128 v[{32+4*i}:{35+4*i}], v10 offset:{i*1024}')
    a(f's_waitcnt vmcnt({npf}) lgkmcnt(0)')
    NUM = 64
    DEN = 96
    for ks in range(2):
        for mb in range(4):
            pf = 160 + (mb * 2 + ks) * 4
            for db in range(2):
                d = NUM + (mb * 2 + db) * 4
                kf = 32 + (ks * 2 + db) * 4
                cc = '0' if ks == 0 else f'v[{d}:{d+3}]'
                a(f'v_mfma_f32_16x16x32_bf16 v[{d}:{d+3}], v[{kf}:{kf+3}], v[{pf}:{pf+3}], {cc}')
            d = DEN + mb * 4
            zf = 32 + (4 + ks) * 4
            cc = '0' if ks == 0 else f'v[{d}:{d+3}]'
            a(f'v_mfma_f32_16x16x32_bf16 v[{d}:{d+3}], v[{zf}:{zf+3}], v[{pf}:{pf+3}], {cc}')
    a('s_mov_b32 s30, 0xffff0000')
    a('s_mov_b32 s29, 9216')
    a('v_mul_lo_u32 v8, v7, s29')
    a('s_lshl_b32 s26, s21, 6')
    a('v_lshl_add_u32 v9, v3, 3, s26')
    a('v_add_u32 v8, v8, v9')
    for mb in range(4):
        dn = DEN + mb * 4
        round_bf16(a, dn, dn)
        a(f'v_add_f32 v{dn}, 0x{f2u(1e-6):x}, v{dn}')
        round_bf16(a, dn, dn)
        a(f'v_rcp_f32 v{dn+1}, v{dn}')
        a(f's_mov_b32 s28, {mb*16*9216}')
        for db in range(2):
            n = NUM + (mb * 2 + db) * 4
            for h in range(2):
                a(f'v_cvt_pk_bf16_f32 v{12+h}, v{n+2*h}, v{n+2*h+1}')
                a(f'v_lshlrev_b32 v{n+2*h}, 16, v{12+h}')
                a(f'v_and_b32 v{n+2*h+1}, s30, v{12+h}')
            for i in range(4):
                a(f'v_mul_f32 v{16+i}, v{n+i}, v{dn+1}')
            for i in range(4):
                a(f'v_fma_f32 v{n+i}, -v{16+i}, v{dn}, v{n+i}')
            for i in range(4):
                a(f'v_fmac_f32 v{16+i}, v{n+i}, v{dn+1}')
            o = 20 + (mb * 2 + db) * 2
            a(f'v_cvt_pk_bf16_f32 v{o}, v16, v17')
            a(f'v_cvt_pk_bf16_f32 v{o+1}, v18, v19')
            a(f'buffer_store_dwordx2 v[{o}:{o+1}], v8, s[16:19], s28 offen offset:{db*32}')
    a('o_done:')
    a('s_endpgm')
    return descriptor(name, 240, 48)


G2_A = 32768
G2_BB = 98304
G2_B = 16384
G2_LDS = G2_BB + 3 * G2_B


def gen_gemm2(a):
    name = 'gemm2_kernel'
    kernel_begin(a, name)
    a('s_cmp_ge_u32 s2, 256')
    a('s_cbranch_scc1 g2_exit')
    a('s_load_dwordx2 s[4:5], s[0:1], 88')
    a('s_load_dwordx2 s[6:7], s[0:1], 24')
    a('s_load_dwordx2 s[56:57], s[0:1], 56')
    a('s_load_dwordx2 s[58:59], s[0:1], 64')
    a('s_load_dwordx2 s[60:61], s[0:1], 0')
    a('s_load_dwordx2 s[62:63], s[0:1], 72')
    LANE, G4, L16, T = 14, 15, 16, 17
    VA2, VB2, VGA2, VGB2 = 2, 5, 9, 10
    a('v_lshrrev_b32 v1, 6, v0')
    a(f'v_and_b32 v{LANE}, 63, v0')
    a('s_nop 0')
    a('v_readfirstlane_b32 s20, v1')
    a(f'v_lshrrev_b32 v{G4}, 4, v{LANE}')
    a(f'v_and_b32 v{L16}, 15, v{LANE}')
    a('s_nop 1')
    a('s_and_b32 s21, s20, 1')
    a('s_lshr_b32 s22, s20, 1')
    a('s_and_b32 s26, s2, 7')
    a('s_lshr_b32 s27, s2, 3')
    a('s_and_b32 s24, s26, 3')
    a('s_lshl_b32 s24, s24, 2')
    a('s_and_b32 s28, s27, 3')
    a('s_add_u32 s24, s24, s28')
    a('s_lshr_b32 s25, s26, 2')
    a('s_lshl_b32 s25, s25, 3')
    a('s_lshr_b32 s28, s27, 2')
    a('s_add_u32 s25, s25, s28')
    a('s_lshl_b32 s28, s22, 2')
    a(f'v_add_u32 v{T}, s28, v{G4}')
    a(f'v_xor_b32 v{T}, v{T}, v{L16}')
    a(f'v_lshlrev_b32 v{T}, 4, v{T}')
    a(f'v_lshl_add_u32 v{T}, v{L16}, 8, v{T}')
    a('s_lshl_b32 s28, s21, 14')
    a(f'v_add_u32 v{T}, s28, v{T}')
    for sl in range(3):
        a(f'v_add_u32 v{VA2+sl}, 0x{sl*G2_A:x}, v{T}')
    a(f'v_lshrrev_b32 v{T}, 2, v{L16}')
    a(f'v_lshl_add_u32 v{T+1}, v{G4}, 3, v{T}')
    a('s_lshl_b32 s28, s22, 5')
    a(f'v_add_u32 v{T+1}, s28, v{T+1}')
    a(f'v_lshrrev_b32 v{T+2}, 1, v{T}')
    a(f'v_and_b32 v{T+3}, 1, v{G4}')
    a(f'v_lshl_or_b32 v{T+2}, v{T+3}, 1, v{T+2}')
    a(f'v_and_b32 v{T+4}, 3, v{LANE}')
    a(f'v_lshlrev_b32 v{T+4}, 3, v{T+4}')
    a(f'v_lshl_add_u32 v{T+5}, v{T+1}, 7, v{T+4}')
    a(f'v_add_u32 v{T+5}, 0x{G2_BB:x}, v{T+5}')
    for nb in range(4):
        a(f'v_xor_b32 v{T+6}, {nb}, v{T+2}')
        a(f'v_lshl_add_u32 v{VB2+nb}, v{T+6}, 5, v{T+5}')
    a('s_lshl_b32 s28, s20, 2')
    a('s_and_b32 s29, s28, 15')
    a(f'v_add_u32 v{T}, s29, v{G4}')
    a(f'v_xor_b32 v{T}, v{T}, v{L16}')
    a('s_lshl_b32 s29, s24, 7')
    a('s_add_u32 s28, s28, s29')
    a(f'v_add_u32 v{T+1}, s28, v{G4}')
    a('s_mov_b32 s29, 9216')
    a(f'v_mul_lo_u32 v{T+1}, v{T+1}, s29')
    a(f'v_lshl_add_u32 v{VGA2}, v{T}, 4, v{T+1}')
    a('s_lshl_b32 s30, s20, 10')
    a(f'v_lshrrev_b32 v{T}, 3, v{LANE}')
    a(f'v_bfe_u32 v{T+1}, v{LANE}, 4, 1')
    a('s_lshl_b32 s28, s21, 1')
    a(f'v_or_b32 v{T+1}, s28, v{T+1}')
    a(f'v_bfe_u32 v{T+2}, v{LANE}, 1, 2')
    a(f'v_xor_b32 v{T+2}, v{T+2}, v{T+1}')
    a(f'v_and_b32 v{T+3}, 1, v{LANE}')
    a(f'v_lshlrev_b32 v{T+3}, 4, v{T+3}')
    a(f'v_lshl_add_u32 v{T+3}, v{T+2}, 5, v{T+3}')
    a('s_lshl_b32 s28, s20, 3')
    a(f'v_add_u32 v{T}, s28, v{T}')
    a(f'v_lshl_add_u32 v{T}, v{T}, 11, v{T+3}')
    a('s_lshl_b32 s32, s25, 7')
    a(f'v_add_u32 v{VGB2}, s32, v{T}')
    a('s_waitcnt lgkmcnt(0)')
    srd(a, 8, 4, ACT2_SZ, ACT2_OFF)
    srd(a, 12, 6, 1024 * 1024 * 2)
    srd(a, 16, 56, 3584 * 1024 * 2)
    srd(a, 36, 58, 2048)
    srd(a, 40, 60, XN_SZ)
    srd(a, 44, 62, XN_SZ)
    stamp(a, 5, True)
    stamp(a, 0)
    ACC2 = 64
    SETS2 = (24, 128)
    for i in range(64):
        a(f'v_mov_b32 v{ACC2+i}, 0')
    vq = VQ()
    NS = 36

    def grp(j):
        sl = j % 3
        out = []
        for q in range(4):
            if OPT('G2_NOA'):
                break
            out.append(([f's_add_u32 m0, s30, 0x{sl*G2_A + q*8192:x}',
                         f's_mov_b32 s28, 0x{j*256 + q*32*9216:x}',
                         f'buffer_load_dwordx4 v{VGA2}, s[8:11], s28 offen lds'], j))
        for q in range(2):
            if OPT('G2_NOB'):
                break
            k0 = j * 128 + q * 64
            if k0 < 1024:
                sr, ko = 's[12:15]', k0
            else:
                sr, ko = 's[16:19]', k0 - 1024
            out.append(([f's_add_u32 m0, s30, 0x{G2_BB + sl*G2_B + q*8192:x}',
                         f's_mov_b32 s28, 0x{ko*2048:x}',
                         f'buffer_load_dwordx4 v{VGB2}, {sr}, s28 offen lds'], j))
        return out

    def emit_grp(g):
        for l in g[0]:
            a(l)
        vq.push(g[1])

    def issue(j):
        for g in grp(j):
            emit_grp(g)

    def frag_reads(j):
        S = SETS2[j & 1]
        sl = j % 3
        out = []
        for mb in range(4):
            out.append(f'ds_read_b128 v[{S+4*mb}:{S+4*mb+3}], v{VA2+sl} offset:{mb*4096}')
        for nb in range(4):
            d = S + 16 + 4 * nb
            for t in range(2):
                out.append(f'ds_read_b64_tr_b16 v[{d+2*t}:{d+2*t+1}], v{VB2+nb} offset:{sl*G2_B + t*512}')
        return out

    def mfmas(j):
        S = SETS2[j & 1]
        out = []
        for nb in range(4):
            for mb in range(4):
                c = ACC2 + (mb * 4 + nb) * 4
                out.append(f'v_mfma_f32_16x16x32_bf16 v[{c}:{c+3}], v[{S+16+4*nb}:{S+19+4*nb}], v[{S+4*mb}:{S+4*mb+3}], v[{c}:{c+3}]')
        return out

    issue(0); issue(1); issue(2)
    a(f's_waitcnt vmcnt({vq.wait_for({0})})')
    a('s_barrier')
    stamp(a, 1)
    for r in frag_reads(0):
        a(r)
    a('s_waitcnt lgkmcnt(0)')
    for j in range(NS):
        if j + 1 < NS:
            a(f's_waitcnt vmcnt({vq.wait_for({j + 1})})')
        a('s_barrier')
        dma = grp(j + 3) if j + 3 < NS else []
        rd = frag_reads(j + 1) if j + 1 < NS else []
        mm = mfmas(j)
        if OPT('G2_NOCOMP'):
            rd = []; mm = []
        interleave(a, mm, rd, dma, emit_grp, 0, 3)
        a('s_waitcnt lgkmcnt(0)')
    stamp(a, 2)
    a(f'v_lshlrev_b32 v{T}, 4, v{LANE}')
    a('s_lshl_b32 s28, s21, 16')
    a('s_lshl_b32 s29, s22, 12')
    a('s_add_u32 s28, s28, s29')
    a(f'v_add_u32 v{T+1}, s28, v{T}')
    for mb in range(4):
        for nb in range(4):
            c = ACC2 + (mb * 4 + nb) * 4
            a(f'ds_write_b128 v{T+1}, v[{c}:{c+3}] offset:{mb*16384 + nb*1024}')
    a('s_lshl_b32 s28, s24, 7')
    a('s_lshl_b32 s29, s21, 6')
    a('s_add_u32 s28, s28, s29')
    a('s_lshl_b32 s29, s22, 4')
    a('s_add_u32 s28, s28, s29')
    a(f'v_add_u32 v{T+2}, s28, v{L16}')
    a(f'v_lshlrev_b32 v{T+2}, 11, v{T+2}')
    a(f'v_lshl_add_u32 v{T+3}, v{G4}, 3, s32')
    a(f'v_add_u32 v{T+2}, v{T+2}, v{T+3}')
    for nb in range(4):
        a(f'buffer_load_dwordx2 v[{24+2*nb}:{25+2*nb}], v{T+2}, s[40:43], 0 offen offset:{nb*32}')
        a(f'buffer_load_dwordx2 v[{32+2*nb}:{33+2*nb}], v{T+3}, s[36:39], 0 offen offset:{nb*32}')
    a('s_waitcnt lgkmcnt(0)')
    a('s_barrier')
    a('s_lshl_b32 s28, s21, 16')
    a('s_lshl_b32 s29, s22, 14')
    a('s_add_u32 s28, s28, s29')
    a(f'v_add_u32 v{T+1}, s28, v{T}')
    for src in range(4):
        for nb in range(4):
            d = 128 + (src * 4 + nb) * 4
            a(f'ds_read_b128 v[{d}:{d+3}], v{T+1} offset:{src*4096 + nb*1024}')
    a('s_mov_b32 s50, 0xffff0000')
    a('s_waitcnt vmcnt(0) lgkmcnt(0)')
    for i in range(16):
        a(f'v_add_f32 v{128+i}, v{128+i}, v{144+i}')
        a(f'v_add_f32 v{160+i}, v{160+i}, v{176+i}')
    for i in range(16):
        a(f'v_add_f32 v{128+i}, v{128+i}, v{160+i}')
    for nb in range(4):
        for h in range(2):
            r = 128 + nb * 4 + 2 * h
            a(f'v_lshlrev_b32 v40, 16, v{24+2*nb+h}')
            a(f'v_and_b32 v41, s50, v{24+2*nb+h}')
            a(f'v_lshlrev_b32 v42, 16, v{32+2*nb+h}')
            a(f'v_and_b32 v43, s50, v{32+2*nb+h}')
            a(f'v_add_f32 v{r}, v{r}, v42')
            a(f'v_add_f32 v{r+1}, v{r+1}, v43')
            a(f'v_add_f32 v{r}, v{r}, v40')
            a(f'v_add_f32 v{r+1}, v{r+1}, v41')
            a(f'v_cvt_pk_bf16_f32 v{44+2*nb+h}, v{r}, v{r+1}')
        a(f'buffer_store_dwordx2 v[{44+2*nb}:{45+2*nb}], v{T+2}, s[44:47], 0 offen offset:{nb*32}')
    stamp(a, 3)
    if OPT('STAMP'):
        a('s_waitcnt vmcnt(0)')
    stamp(a, 4)
    stamp(a, 6, True)
    stamp_flush(a, 7, 1)
    a('g2_exit:')
    a('s_endpgm')
    return descriptor(name, 192, 100)


X_OFF = 0x2200000
X_SZ = 256 * 32768
FLAG_OFF = 0x2A00000
FLAG_SZ = 256 * 512
OFLAG_OFF = 0x2B00000
H_SLOT = 32768
H_LDS = 4 * H_SLOT


def gen_gemm2b(a):
    name = 'gemm2_kernel'
    kernel_begin(a, name)
    a('s_cmp_ge_u32 s2, 256')
    a('s_cbranch_scc1 g2_exit')
    a('s_load_dwordx2 s[4:5], s[0:1], 88')
    a('s_load_dwordx2 s[6:7], s[0:1], 24')
    a('s_load_dwordx2 s[56:57], s[0:1], 56')
    a('s_load_dwordx2 s[58:59], s[0:1], 64')
    a('s_load_dwordx2 s[60:61], s[0:1], 0')
    a('s_load_dwordx2 s[62:63], s[0:1], 72')
    a('s_load_dwordx2 s[64:65], s[0:1], 80')
    LANE, G4, L16, T = 14, 15, 16, 17
    VA2, VB2, VGA2, VGB2 = 2, 4, 9, 10
    a('v_lshrrev_b32 v1, 6, v0')
    a(f'v_and_b32 v{LANE}, 63, v0')
    a('s_nop 0')
    a('v_readfirstlane_b32 s20, v1')
    a(f'v_lshrrev_b32 v{G4}, 4, v{LANE}')
    a(f'v_and_b32 v{L16}, 15, v{LANE}')
    a('s_nop 1')
    a('s_and_b32 s21, s20, 1')
    a('s_bfe_u32 s23, s20, 0x10001')
    a('s_lshr_b32 s22, s20, 2')
    a('s_and_b32 s26, s2, 7')
    a('s_lshr_b32 s27, s2, 3')
    a('s_and_b32 s33, s26, 1')
    a('s_lshr_b32 s24, s26, 1')
    a('s_lshl_b32 s24, s24, 2')
    a('s_and_b32 s28, s27, 3')
    a('s_add_u32 s24, s24, s28')
    a('s_lshr_b32 s25, s27, 2')
    a(f'v_lshrrev_b32 v{T}, 3, v{LANE}')
    a(f'v_and_b32 v{T+1}, 7, v{LANE}')
    a(f'v_xor_b32 v{T+1}, v{T+1}, v{T}')
    a('s_lshl_b32 s28, s24, 7')
    a('s_lshl_b32 s29, s20, 3')
    a('s_add_u32 s28, s28, s29')
    a(f'v_add_u32 v{T}, s28, v{T}')
    a('s_movk_i32 s29, 9216')
    a(f'v_mul_lo_u32 v{T}, v{T}, s29')
    a(f'v_lshl_add_u32 v{T}, v{T+1}, 4, v{T}')
    a('s_mul_i32 s28, s33, 4608')
    a(f'v_add_u32 v{VGA2}, s28, v{T}')
    a('s_lshl_b32 s30, s20, 10')
    a(f'v_lshrrev_b32 v{T}, 3, v{LANE}')
    a(f'v_bfe_u32 v{T+1}, v{LANE}, 4, 1')
    a('s_lshl_b32 s28, s21, 1')
    a(f'v_or_b32 v{T+1}, s28, v{T+1}')
    a(f'v_bfe_u32 v{T+2}, v{LANE}, 1, 2')
    a(f'v_xor_b32 v{T+2}, v{T+2}, v{T+1}')
    a(f'v_and_b32 v{T+3}, 1, v{LANE}')
    a(f'v_lshlrev_b32 v{T+3}, 4, v{T+3}')
    a(f'v_lshl_add_u32 v{T+3}, v{T+2}, 5, v{T+3}')
    a('s_lshl_b32 s28, s20, 3')
    a(f'v_add_u32 v{T}, s28, v{T}')
    a(f'v_lshl_add_u32 v{T}, v{T}, 11, v{T+3}')
    a('s_lshl_b32 s32, s25, 8')
    a(f'v_add_u32 v{VGB2}, s32, v{T}')
    a('s_waitcnt lgkmcnt(0)')
    srd(a, 8, 4, ACT2_SZ, ACT2_OFF)
    a('s_cmp_eq_u32 s33, 0')
    a('s_cbranch_scc0 g2_kh1')
    srd(a, 12, 6, 1024 * 2048)
    a(f's_sub_u32 s16, s56, 0x{1024*2048:x}')
    a('s_subb_u32 s17, s57, 0')
    a('s_and_b32 s17, s17, 0xffff')
    a(f's_mov_b32 s18, 0x{4608*2048:x}')
    a('s_mov_b32 s19, 0x00020000')
    a('s_branch g2_khd')
    a('g2_kh1:')
    srd(a, 12, 56, (3584 - 1280) * 2048, 1280 * 2048)
    srd(a, 16, 56, (3584 - 1280) * 2048, 1280 * 2048)
    a('g2_khd:')
    vq = VQ()
    NS = 36

    def grp(j):
        sl = j % 4
        out = []
        for q in range(2):
            out.append(([f's_add_u32 m0, s30, 0x{sl*H_SLOT + q*8192:x}',
                         f's_mov_b32 s28, 0x{j*128 + q*64*9216:x}',
                         f'buffer_load_dwordx4 v{VGA2}, s[8:11], s28 offen lds'], j))
        sr = 's[12:15]' if j < 16 else 's[16:19]'
        for q in range(2):
            out.append(([f's_add_u32 m0, s30, 0x{sl*H_SLOT + 16384 + q*8192:x}',
                         f's_mov_b32 s28, 0x{j*64*2048 + q*128:x}',
                         f'buffer_load_dwordx4 v{VGB2}, {sr}, s28 offen lds'], j))
        return out

    def emit_grp(g):
        for l in g[0]:
            a(l)
        vq.push(g[1])

    for j in range(4):
        for g in grp(j):
            emit_grp(g)
    stamp(a, 5, True)
    stamp(a, 0)
    srd(a, 36, 58, 2048)
    srd(a, 40, 60, XN_SZ)
    srd(a, 44, 62, XN_SZ)
    srd(a, 48, 4, X_SZ, X_OFF)
    srd(a, 52, 4, FLAG_SZ, FLAG_OFF)
    a('s_lshl_b32 s28, s22, 2')
    a(f'v_add_u32 v{T}, s28, v{G4}')
    a(f'v_and_b32 v{T+1}, 7, v{LANE}')
    a(f'v_xor_b32 v{T}, v{T}, v{T+1}')
    a(f'v_lshlrev_b32 v{T}, 4, v{T}')
    a(f'v_lshl_add_u32 v{T}, v{L16}, 7, v{T}')
    a('s_lshl_b32 s28, s21, 13')
    a(f'v_add_u32 v{VA2}, s28, v{T}')
    a(f'v_add_u32 v{VA2+1}, 0x10000, v{VA2}')
    a(f'v_lshrrev_b32 v{T}, 2, v{L16}')
    a(f'v_lshl_add_u32 v{T+1}, v{G4}, 3, v{T}')
    a('s_lshl_b32 s28, s22, 5')
    a(f'v_add_u32 v{T+1}, s28, v{T+1}')
    a(f'v_lshrrev_b32 v{T+2}, 1, v{T}')
    a(f'v_and_b32 v{T+3}, 1, v{G4}')
    a(f'v_lshl_or_b32 v{T+2}, v{T+3}, 1, v{T+2}')
    a(f'v_and_b32 v{T+4}, 3, v{LANE}')
    a(f'v_lshlrev_b32 v{T+4}, 3, v{T+4}')
    a(f'v_lshl_add_u32 v{T+5}, v{T+1}, 7, v{T+4}')
    a('s_lshl_b32 s28, s23, 13')
    a('s_add_u32 s28, s28, 16384')
    a(f'v_add_u32 v{T+5}, s28, v{T+5}')
    for nb in range(4):
        a(f'v_xor_b32 v{T+6}, {nb}, v{T+2}')
        a(f'v_lshl_add_u32 v{VB2+nb}, v{T+6}, 5, v{T+5}')
        a(f'v_add_u32 v{24+nb}, 0x10000, v{VB2+nb}')
    ACC2 = 64
    SETS2 = (32, 128)
    for i in range(64):
        a(f'v_mov_b32 v{ACC2+i}, 0')

    def frag_reads(j):
        S = SETS2[j & 1]
        sl = j % 4
        hi = sl >> 1
        so = (sl & 1) * H_SLOT
        out = []
        for mb in range(4):
            out.append(f'ds_read_b128 v[{S+4*mb}:{S+4*mb+3}], v{VA2+hi} offset:{so + mb*2048}')
        for nb in range(4):
            d = S + 16 + 4 * nb
            vb = (24 if hi else VB2) + nb
            for t in range(2):
                out.append(f'ds_read_b64_tr_b16 v[{d+2*t}:{d+2*t+1}], v{vb} offset:{so + t*512}')
        return out

    def mfmas(j):
        S = SETS2[j & 1]
        out = []
        for nb in range(4):
            for mb in range(4):
                c = ACC2 + (mb * 4 + nb) * 4
                out.append(f'v_mfma_f32_16x16x32_bf16 v[{c}:{c+3}], v[{S+16+4*nb}:{S+19+4*nb}], v[{S+4*mb}:{S+4*mb+3}], v[{c}:{c+3}]')
        return out

    a(f's_waitcnt vmcnt({vq.wait_for({0})})')
    a('s_barrier')
    stamp(a, 1)
    for r in frag_reads(0):
        a(r)
    a('s_waitcnt lgkmcnt(0)')
    for j in range(NS):
        if j + 1 < NS:
            a(f's_waitcnt vmcnt({vq.wait_for({j + 1})})')
        a('s_barrier')
        dma = grp(j + 4) if j + 4 < NS else []
        rd = frag_reads(j + 1) if j + 1 < NS else []
        mm = mfmas(j)
        interleave(a, mm, rd, dma, emit_grp, 0, 4)
        a('s_waitcnt lgkmcnt(0)')
    stamp(a, 2)
    a(f'v_lshlrev_b32 v{T}, 4, v{LANE}')
    a('s_and_b32 s28, s20, 3')
    a('s_lshl_b32 s28, s28, 14')
    a('s_xor_b32 s29, s22, 1')
    a('s_lshl_b32 s29, s29, 13')
    a('s_add_u32 s29, s29, s28')
    a(f'v_add_u32 v{T+1}, s29, v{T}')
    a('s_lshl_b32 s29, s22, 13')
    a('s_add_u32 s29, s29, s28')
    a(f'v_add_u32 v{T+2}, s29, v{T}')
    a('s_cmp_eq_u32 s22, 0')
    a('s_cbranch_scc0 g2_ks1')
    for r in range(8):
        a(f'ds_write_b128 v{T+1}, v[{ACC2+32+4*r}:{ACC2+35+4*r}] offset:{r*1024}')
    a('s_branch g2_ksd')
    a('g2_ks1:')
    for r in range(8):
        a(f'ds_write_b128 v{T+1}, v[{ACC2+4*r}:{ACC2+3+4*r}] offset:{r*1024}')
    for r in range(32):
        a(f'v_mov_b32 v{ACC2+r}, v{ACC2+32+r}')
    a('g2_ksd:')
    a('s_waitcnt lgkmcnt(0)')
    a('s_barrier')
    for r in range(8):
        a(f'ds_read_b128 v[{128+4*r}:{131+4*r}], v{T+2} offset:{r*1024}')
    a('s_waitcnt lgkmcnt(0)')
    for r in range(32):
        a(f'v_add_f32 v{ACC2+r}, v{ACC2+r}, v{128+r}')
    a('s_lshl_b32 s28, s21, 1')
    a('s_add_u32 s28, s28, s22')
    a('s_lshl_b32 s67, s28, 7')
    a('s_lshl_b32 s28, s28, 13')
    a(f'v_add_u32 v{T+1}, s28, v{T}')
    a('s_cmp_eq_u32 s23, s33')
    a('s_cbranch_scc1 g2_recv')
    a('s_lshl_b32 s28, s2, 15')
    for r in range(8):
        a(f'buffer_store_dwordx4 v[{ACC2+4*r}:{ACC2+3+4*r}], v{T+1}, s[48:51], s28 offen offset:{r*1024 if r < 4 else (r-4)*1024} sc1' if r < 4 else
          f'buffer_store_dwordx4 v[{ACC2+4*r}:{ACC2+3+4*r}], v{T+1}, s[48:51], s29 offen offset:{(r-4)*1024} sc1')
        if r == 3:
            a('s_add_u32 s29, s28, 4096')
    a('s_waitcnt vmcnt(0)')
    a('s_lshl_b32 s28, s2, 9')
    a('s_add_u32 s28, s28, s67')
    a('v_mov_b32 v1, 1')
    a('v_mov_b32 v2, s28')
    a('s_mov_b64 exec, 1')
    a('buffer_store_dword v1, v2, s[52:55], 0 offen sc1')
    a('s_branch g2_fin')
    a('g2_recv:')
    a('s_lshl_b32 s28, s24, 7')
    a('s_lshl_b32 s29, s21, 6')
    a('s_add_u32 s28, s28, s29')
    a('s_lshl_b32 s29, s22, 5')
    a('s_add_u32 s28, s28, s29')
    a(f'v_add_u32 v{T+2}, s28, v{L16}')
    a(f'v_lshlrev_b32 v{T+2}, 11, v{T+2}')
    a('s_lshl_b32 s29, s23, 7')
    a('s_add_u32 s29, s29, s32')
    a(f'v_lshl_add_u32 v{T+3}, v{G4}, 3, s29')
    a(f'v_add_u32 v{T+2}, v{T+2}, v{T+3}')
    a('s_mov_b32 s34, 32768')
    for e in range(2):
        for nb in range(4):
            so = '0' if e == 0 else 's34'
            a(f'buffer_load_dwordx2 v[{32+8*e+2*nb}:{33+8*e+2*nb}], v{T+2}, s[40:43], {so} offen offset:{nb*32}')
    for nb in range(4):
        a(f'buffer_load_dwordx2 v[{48+2*nb}:{49+2*nb}], v{T+3}, s[36:39], 0 offen offset:{nb*32}')
    a('s_xor_b32 s35, s2, 1')
    a('s_lshl_b32 s28, s35, 9')
    a('s_add_u32 s28, s28, s67')
    a('v_mov_b32 v2, s28')
    a('g2_poll:')
    a('buffer_load_dword v1, v2, s[52:55], 0 offen sc1')
    a('s_waitcnt vmcnt(0)')
    a('v_readfirstlane_b32 s28, v1')
    a('s_nop 3')
    a('s_cmp_eq_u32 s28, 1')
    a('s_cbranch_scc1 g2_ready')
    a('s_sleep 1')
    a('s_branch g2_poll')
    a('g2_ready:')
    a('s_lshl_b32 s28, s35, 15')
    a('s_add_u32 s29, s28, 4096')
    for r in range(8):
        a(f'buffer_load_dwordx4 v[{128+4*r}:{131+4*r}], v{T+1}, s[48:51], s{28 if r < 4 else 29} offen offset:{(r % 4)*1024} sc1')
    a('s_mov_b32 s66, 0xffff0000')
    a('s_waitcnt vmcnt(0)')
    for r in range(32):
        a(f'v_add_f32 v{ACC2+r}, v{ACC2+r}, v{128+r}')
    for e in range(2):
        for nb in range(4):
            for h in range(2):
                r = ACC2 + (e * 4 + nb) * 4 + 2 * h
                xr = 32 + 8 * e + 2 * nb + h
                br = 48 + 2 * nb + h
                a(f'v_lshlrev_b32 v56, 16, v{xr}')
                a(f'v_and_b32 v57, s66, v{xr}')
                a(f'v_lshlrev_b32 v58, 16, v{br}')
                a(f'v_and_b32 v59, s66, v{br}')
                a(f'v_add_f32 v{r}, v{r}, v58')
                a(f'v_add_f32 v{r+1}, v{r+1}, v59')
                a(f'v_add_f32 v{r}, v{r}, v56')
                a(f'v_add_f32 v{r+1}, v{r+1}, v57')
                a(f'v_cvt_pk_bf16_f32 v{160+(e*4+nb)*2+h}, v{r}, v{r+1}')
            o = 160 + (e * 4 + nb) * 2
            so = '0' if e == 0 else 's34'
            a(f'buffer_store_dwordx2 v[{o}:{o+1}], v{T+2}, s[44:47], {so} offen offset:{nb*32}')
    a('g2_fin:')
    stamp(a, 3)
    if OPT('STAMP'):
        a('s_waitcnt vmcnt(0)')
    stamp(a, 4)
    stamp(a, 6, True)
    stamp_flush(a, 7, 1)
    a('g2_exit:')
    a('s_endpgm')
    return descriptor(name, 192, 100)


def gen_gemm2c(a):
    STAMP_REGS[:] = [96, 97, 98, 99, 100, 101, 75]
    name = 'gemm2_kernel'
    kernel_begin(a, name)
    a('s_cmp_ge_u32 s2, 256')
    a('s_cbranch_scc1 g2_exit')
    a('s_load_dwordx2 s[4:5], s[0:1], 88')
    a('s_load_dwordx2 s[6:7], s[0:1], 24')
    a('s_load_dwordx2 s[56:57], s[0:1], 56')
    a('s_load_dwordx2 s[58:59], s[0:1], 64')
    a('s_load_dwordx2 s[60:61], s[0:1], 0')
    a('s_load_dwordx2 s[62:63], s[0:1], 72')
    a('s_load_dwordx2 s[64:65], s[0:1], 80')
    LANE, G4, L16, T = 14, 15, 16, 17
    VA2, VB2, VGA2, VGB2 = 2, 4, 9, 10
    a('v_lshrrev_b32 v1, 6, v0')
    a(f'v_and_b32 v{LANE}, 63, v0')
    a('s_nop 0')
    a('v_readfirstlane_b32 s20, v1')
    a(f'v_lshrrev_b32 v{G4}, 4, v{LANE}')
    a(f'v_and_b32 v{L16}, 15, v{LANE}')
    a('s_nop 1')
    a('s_and_b32 s21, s20, 1')
    a('s_bfe_u32 s23, s20, 0x10001')
    a('s_lshr_b32 s22, s20, 2')
    a('s_and_b32 s26, s2, 7')
    a('s_lshr_b32 s27, s2, 3')
    a('s_and_b32 s33, s26, 1')
    a('s_lshr_b32 s24, s26, 1')
    a('s_lshl_b32 s24, s24, 2')
    a('s_and_b32 s28, s27, 3')
    a('s_add_u32 s24, s24, s28')
    a('s_lshr_b32 s25, s27, 2')
    a(f'v_lshrrev_b32 v{T}, 3, v{LANE}')
    a(f'v_and_b32 v{T+1}, 7, v{LANE}')
    a(f'v_xor_b32 v{T+1}, v{T+1}, v{T}')
    a('s_lshl_b32 s28, s24, 7')
    a('s_lshl_b32 s29, s20, 3')
    a('s_add_u32 s28, s28, s29')
    a(f'v_add_u32 v{T}, s28, v{T}')
    a('s_movk_i32 s29, 9216')
    a(f'v_mul_lo_u32 v{T}, v{T}, s29')
    a(f'v_lshl_add_u32 v{T}, v{T+1}, 4, v{T}')
    a(f'v_mov_b32 v{VGA2}, v{T}')
    a('s_lshl_b32 s30, s20, 10')
    a(f'v_lshrrev_b32 v{T}, 3, v{LANE}')
    a(f'v_bfe_u32 v{T+1}, v{LANE}, 4, 1')
    a('s_lshl_b32 s28, s21, 1')
    a(f'v_or_b32 v{T+1}, s28, v{T+1}')
    a(f'v_bfe_u32 v{T+2}, v{LANE}, 1, 2')
    a(f'v_xor_b32 v{T+2}, v{T+2}, v{T+1}')
    a(f'v_and_b32 v{T+3}, 1, v{LANE}')
    a(f'v_lshlrev_b32 v{T+3}, 4, v{T+3}')
    a(f'v_lshl_add_u32 v{T+3}, v{T+2}, 5, v{T+3}')
    a('s_lshl_b32 s28, s20, 3')
    a(f'v_add_u32 v{T}, s28, v{T}')
    a(f'v_lshl_add_u32 v{T}, v{T}, 11, v{T+3}')
    a('s_lshl_b32 s32, s25, 8')
    a(f'v_add_u32 v{VGB2}, s32, v{T}')
    a('s_waitcnt lgkmcnt(0)')
    srd(a, 8, 4, ACT2_SZ, ACT2_OFF)
    a('s_cmp_eq_u32 s33, 0')
    a('s_cbranch_scc0 g2_kh1')
    srd(a, 12, 56, 3584 * 2048)
    a(f's_sub_u32 s16, s6, 0x{20*131072:x}')
    a('s_subb_u32 s17, s7, 0')
    a('s_and_b32 s17, s17, 0xffff')
    a(f's_mov_b32 s18, 0x{36*131072:x}')
    a('s_mov_b32 s19, 0x00020000')
    a('s_movk_i32 s68, 2048')
    a('s_mov_b32 s69, -2560')
    a('s_branch g2_khd')
    a('g2_kh1:')
    srd(a, 12, 56, (3584 - 1280) * 2048, 1280 * 2048)
    srd(a, 16, 56, (3584 - 1280) * 2048, 1280 * 2048)
    a('s_movk_i32 s68, 4608')
    a('s_movk_i32 s69, 4608')
    a('g2_khd:')
    vq = VQ()
    NS = 36

    def grp(j):
        sl = j % 4
        out = []
        for q in range(2):
            out.append(([f's_add_u32 m0, s30, 0x{sl*H_SLOT + q*8192:x}',
                         f's_add_u32 s28, s{68 if j < 20 else 69}, 0x{j*128 + q*64*9216:x}',
                         f'buffer_load_dwordx4 v{VGA2}, s[8:11], s28 offen lds'], j))
        sr = 's[12:15]' if j < 20 else 's[16:19]'
        for q in range(2):
            out.append(([f's_add_u32 m0, s30, 0x{sl*H_SLOT + 16384 + q*8192:x}',
                         f's_mov_b32 s28, 0x{j*64*2048 + q*128:x}',
                         f'buffer_load_dwordx4 v{VGB2}, {sr}, s28 offen lds'], j))
        return out

    def emit_grp(g):
        for l in g[0]:
            a(l)
        vq.push(g[1])

    for j in range(4):
        for g in grp(j):
            emit_grp(g)
    stamp(a, 5, True)
    stamp(a, 0)
    srd(a, 80, 4, KVP_SZ, KVP_OFF)
    srd(a, 84, 4, PHIQ_SZ, PHIQ_OFF)
    a('s_and_b32 s70, s2, 31')
    a('s_lshr_b32 s71, s2, 5')
    a('s_lshl_b32 s28, s21, 12')
    a('s_bfe_u32 s29, s20, 0x10001')
    a('s_lshl_b32 s29, s29, 11')
    a('s_add_u32 s28, s28, s29')
    a(f'v_lshl_add_u32 v{T}, v{LANE}, 4, s28')
    a(f'v_add_u32 v{T+1}, 1024, v{T}')
    a('s_lshl_b32 s29, s21, 7')
    a('s_add_u32 s29, s29, 8192')
    a(f'v_lshl_add_u32 v{T+2}, v{G4}, 5, s29')
    a(f'v_add_u32 v{T+3}, 16, v{T+2}')
    a('s_cmp_lt_u32 s20, 4')
    a('s_cselect_b64 s[34:35], -1, 0')
    a(f'v_cndmask_b32 v{T}, v{T+2}, v{T}, s[34:35]')
    a(f'v_cndmask_b32 v13, v{T+3}, v{T+1}, s[34:35]')
    a(f's_mul_i32 s72, s70, {8*KVP_ENT}')
    a(f'v_mov_b32 v11, v{T}')
    ogrp = []
    for mt in range(8):
        ogrp.append(([f's_add_u32 s28, s72, {mt*KVP_ENT}',
                      f'buffer_load_dwordx4 v[{160+8*mt}:{163+8*mt}], v11, s[80:83], s28 offen'], 'o'))
        ogrp.append(([f's_add_u32 s28, s72, {mt*KVP_ENT}',
                      f'buffer_load_dwordx4 v[{164+8*mt}:{167+8*mt}], v13, s[80:83], s28 offen'], 'o'))
    a('s_lshl_b32 s28, s71, 8')
    a('s_lshl_b32 s29, s20, 5')
    a('s_add_u32 s28, s28, s29')
    a(f'v_add_u32 v{T+1}, s28, v{L16}')
    a('s_lshl_b32 s28, s71, 4')
    a('s_lshl_b32 s29, s20, 1')
    a('s_add_u32 s28, s28, s29')
    a('s_lshl_b32 s28, s28, 11')
    a('s_lshl_b32 s29, s70, 18')
    a('s_add_u32 s28, s28, s29')
    a(f'v_lshl_add_u32 v12, v{LANE}, 4, s28')
    for mb in range(2):
        for ks in range(2):
            d = 224 + (mb * 2 + ks) * 4
            ogrp.append(([f'buffer_load_dwordx4 v[{d}:{d+3}], v12, s[84:87], 0 offen offset:{mb*2048 + ks*1024}'], 'oq'))
    OST = H_LDS + 8192
    a('s_mul_i32 s28, s20, 2560')
    a(f's_add_u32 s28, s28, {OST}')
    a(f'v_mul_u32_u24 v26, 80, v{L16}')
    a(f'v_lshl_add_u32 v26, v{G4}, 3, v26')
    a('v_add_u32 v26, s28, v26')
    a(f'v_lshrrev_b32 v{T+2}, 2, v{LANE}')
    a(f'v_and_b32 v{T+3}, 3, v{LANE}')
    a(f'v_mul_u32_u24 v27, 80, v{T+2}')
    a(f'v_lshl_add_u32 v27, v{T+3}, 4, v27')
    a('v_add_u32 v27, s28, v27')
    a('s_lshl_b32 s28, s71, 8')
    a('s_lshl_b32 s29, s20, 5')
    a('s_add_u32 s28, s28, s29')
    a(f'v_add_u32 v{T+2}, s28, v{T+2}')
    a('s_movk_i32 s29, 9216')
    a(f'v_mul_lo_u32 v28, v{T+2}, s29')
    a('s_lshl_b32 s28, s70, 6')
    a(f'v_lshl_add_u32 v{T+3}, v{T+3}, 4, s28')
    a(f'v_add_u32 v28, v28, v{T+3}')
    a(f'v_lshlrev_b32 v29, 4, v{LANE}')
    a(f'v_add_u32 v29, 0x{H_LDS:x}, v29')
    a('v_add_u32 v30, s30, v29')

    def o_phase1():
        a(f's_waitcnt vmcnt({vq.wait_for({"o", "oq"})})')
        for mt in range(1, 8):
            for i in range(8):
                a(f'v_add_f32 v{160+i}, v{160+i}, v{160+8*mt+i}')
        for i in range(4):
            a(f'v_cvt_pk_bf16_f32 v{168+i}, v{160+2*i}, v{161+2*i}')
        a('ds_write_b128 v30, v[168:171]')

    def o_phase2():
        KF0, NUM, DEN = 160, 184, 200
        for i in range(6):
            a(f'ds_read_b128 v[{KF0+4*i}:{KF0+3+4*i}], v29 offset:{i*1024}')
        a('s_waitcnt lgkmcnt(0)')
        for ks in range(2):
            for mb in range(2):
                pf = 224 + (mb * 2 + ks) * 4
                for db in range(2):
                    d = NUM + (mb * 2 + db) * 4
                    kf = KF0 + (ks * 2 + db) * 4
                    cc = '0' if ks == 0 else f'v[{d}:{d+3}]'
                    a(f'v_mfma_f32_16x16x32_bf16 v[{d}:{d+3}], v[{kf}:{kf+3}], v[{pf}:{pf+3}], {cc}')
                d = DEN + mb * 4
                zf = KF0 + (4 + ks) * 4
                cc = '0' if ks == 0 else f'v[{d}:{d+3}]'
                a(f'v_mfma_f32_16x16x32_bf16 v[{d}:{d+3}], v[{zf}:{zf+3}], v[{pf}:{pf+3}], {cc}')
        a('s_mov_b32 s66, 0xffff0000')
        a(f's_mov_b32 s73, {16*9216}')
        for mb in range(2):
            dn = DEN + mb * 4
            round_bf16(a, dn, dn)
            a(f'v_add_f32 v{dn}, 0x{f2u(1e-6):x}, v{dn}')
            round_bf16(a, dn, dn)
            a(f'v_rcp_f32 v{dn+1}, v{dn}')
            for db in range(2):
                n = NUM + (mb * 2 + db) * 4
                for h in range(2):
                    a(f'v_cvt_pk_bf16_f32 v{208+h}, v{n+2*h}, v{n+2*h+1}')
                    a(f'v_lshlrev_b32 v{n+2*h}, 16, v{208+h}')
                    a(f'v_and_b32 v{n+2*h+1}, s66, v{208+h}')
                for i in range(4):
                    a(f'v_mul_f32 v{212+i}, v{n+i}, v{dn+1}')
                for i in range(4):
                    a(f'v_fma_f32 v{n+i}, -v{212+i}, v{dn}, v{n+i}')
                for i in range(4):
                    a(f'v_fmac_f32 v{212+i}, v{n+i}, v{dn+1}')
                o = 216 + (mb * 2 + db) * 2
                a(f'v_cvt_pk_bf16_f32 v{o}, v212, v213')
                a(f'v_cvt_pk_bf16_f32 v{o+1}, v214, v215')
                a(f'ds_write_b64 v26, v[{o}:{o+1}] offset:{mb*1280 + db*32}')
        a('s_waitcnt lgkmcnt(0)')
        for i in range(2):
            a(f'ds_read_b128 v[{160+4*i}:{163+4*i}], v27 offset:{i*1280}')
        for i in range(2):
            a(f's_waitcnt lgkmcnt({1-i})')
            a(f'buffer_store_dwordx4 v[{160+4*i}:{163+4*i}], v28, s[8:11], {"0" if i == 0 else "s73"} offen sc1')
            vq.push('os')

    srd(a, 88, 4, 1024, OFLAG_OFF)
    srd(a, 36, 58, 2048)
    srd(a, 40, 60, XN_SZ)
    srd(a, 44, 62, XN_SZ)
    srd(a, 48, 4, X_SZ, X_OFF)
    srd(a, 52, 4, FLAG_SZ, FLAG_OFF)
    a('s_lshl_b32 s28, s22, 2')
    a(f'v_add_u32 v{T}, s28, v{G4}')
    a(f'v_and_b32 v{T+1}, 7, v{LANE}')
    a(f'v_xor_b32 v{T}, v{T}, v{T+1}')
    a(f'v_lshlrev_b32 v{T}, 4, v{T}')
    a(f'v_lshl_add_u32 v{T}, v{L16}, 7, v{T}')
    a('s_lshl_b32 s28, s21, 13')
    a(f'v_add_u32 v{VA2}, s28, v{T}')
    a(f'v_add_u32 v{VA2+1}, 0x10000, v{VA2}')
    a(f'v_lshrrev_b32 v{T}, 2, v{L16}')
    a(f'v_lshl_add_u32 v{T+1}, v{G4}, 3, v{T}')
    a('s_lshl_b32 s28, s22, 5')
    a(f'v_add_u32 v{T+1}, s28, v{T+1}')
    a(f'v_lshrrev_b32 v{T+2}, 1, v{T}')
    a(f'v_and_b32 v{T+3}, 1, v{G4}')
    a(f'v_lshl_or_b32 v{T+2}, v{T+3}, 1, v{T+2}')
    a(f'v_and_b32 v{T+4}, 3, v{LANE}')
    a(f'v_lshlrev_b32 v{T+4}, 3, v{T+4}')
    a(f'v_lshl_add_u32 v{T+5}, v{T+1}, 7, v{T+4}')
    a('s_lshl_b32 s28, s23, 13')
    a('s_add_u32 s28, s28, 16384')
    a(f'v_add_u32 v{T+5}, s28, v{T+5}')
    for nb in range(4):
        a(f'v_xor_b32 v{T+6}, {nb}, v{T+2}')
        a(f'v_lshl_add_u32 v{VB2+nb}, v{T+6}, 5, v{T+5}')
        a(f'v_add_u32 v{240+nb}, 0x10000, v{VB2+nb}')
    ACC2 = 64
    SETS2 = (32, 128)
    for i in range(64):
        a(f'v_mov_b32 v{ACC2+i}, 0')

    def frag_reads(j):
        S = SETS2[j & 1]
        sl = j % 4
        hi = sl >> 1
        so = (sl & 1) * H_SLOT
        out = []
        for mb in range(4):
            out.append(f'ds_read_b128 v[{S+4*mb}:{S+4*mb+3}], v{VA2+hi} offset:{so + mb*2048}')
        for nb in range(4):
            d = S + 16 + 4 * nb
            vb = (240 if hi else VB2) + nb
            for t in range(2):
                out.append(f'ds_read_b64_tr_b16 v[{d+2*t}:{d+2*t+1}], v{vb} offset:{so + t*512}')
        return out

    def mfmas(j):
        S = SETS2[j & 1]
        out = []
        for nb in range(4):
            for mb in range(4):
                c = ACC2 + (mb * 4 + nb) * 4
                out.append(f'v_mfma_f32_16x16x32_bf16 v[{c}:{c+3}], v[{S+16+4*nb}:{S+19+4*nb}], v[{S+4*mb}:{S+4*mb+3}], v[{c}:{c+3}]')
        return out

    a(f's_waitcnt vmcnt({vq.wait_for({0})})')
    a('s_barrier')
    stamp(a, 1)
    for r in frag_reads(0):
        a(r)
    a('s_waitcnt lgkmcnt(0)')
    for j in range(NS):
        if j + 1 < NS:
            a(f's_waitcnt vmcnt({vq.wait_for({j + 1})})')
        a('s_barrier')
        OJ = int(OPT('OJ', '3'))
        if j == OJ + 5 and not OPT('O_NOPH'):
            o_phase1()
        if j == OJ + 6 and not OPT('O_NOPH'):
            o_phase2()
        if j == OJ + 11:
            a('s_cmp_lg_u32 s20, 0')
            a('s_cbranch_scc1 g2_noflag')
            a('s_lshl_b32 s28, s2, 2 ; @skip')
            a('v_mov_b32 v1, 1 ; @skip')
            a('v_mov_b32 v31, s28 ; @skip')
            a('s_mov_b64 exec, 1 ; @skip')
            a('buffer_store_dword v1, v31, s[88:91], 0 offen sc1 ; @skip')
            a('s_mov_b64 exec, -1 ; @skip')
            a('g2_noflag:')
        if j == 16:
            if OPT('STAMP2') and not OPT('STAMP3'):
                stamp(a, 2)
            a('s_cmp_lg_u32 s33, 0')
            a('s_cbranch_scc1 g2_opolled')
            a('s_lshr_b32 s28, s24, 1')
            a('s_lshl_b32 s28, s28, 7')
            a(f'v_and_b32 v31, 31, v{LANE}')
            a('v_lshlrev_b32 v31, 2, v31')
            a('g2_opoll:')
            a('buffer_load_dword v1, v31, s[88:91], s28 offen sc1')
            a('s_waitcnt vmcnt(0)')
            a('v_cmp_ne_u32 vcc, 1, v1')
            a('s_nop 3')
            a('s_cmp_eq_u64 vcc, 0')
            a('s_cbranch_scc1 g2_opolled')
            a('s_sleep 1')
            a('s_branch g2_opoll')
            a('g2_opolled:')
            if OPT('STAMP2') and not OPT('STAMP3'):
                stamp(a, 3)
        dma = grp(j + 4) if j + 4 < NS else []
        if j == OJ and OPT('STAMP3'):
            a('s_waitcnt vmcnt(0)')
            stamp(a, 2)
            for gg in (ogrp[:16] if OPT('STAMP3') == '1' else ogrp[16:]):
                emit_grp(gg)
            a('s_waitcnt vmcnt(0)')
            stamp(a, 3)
        elif j == OJ:
            dma += ogrp
        rd = frag_reads(j + 1) if j + 1 < NS else []
        mm = mfmas(j)
        interleave(a, mm, rd, dma, emit_grp, 0, 4)
        a('s_waitcnt lgkmcnt(0)')
    stamp(a, 4 if OPT('STAMP2') else 2)
    a(f'v_lshlrev_b32 v{T}, 4, v{LANE}')
    a('s_and_b32 s28, s20, 3')
    a('s_lshl_b32 s28, s28, 14')
    a('s_xor_b32 s29, s22, 1')
    a('s_lshl_b32 s29, s29, 13')
    a('s_add_u32 s29, s29, s28')
    a(f'v_add_u32 v{T+1}, s29, v{T}')
    a('s_lshl_b32 s29, s22, 13')
    a('s_add_u32 s29, s29, s28')
    a(f'v_add_u32 v{T+2}, s29, v{T}')
    a('s_cmp_eq_u32 s22, 0')
    a('s_cbranch_scc0 g2_ks1')
    for r in range(8):
        a(f'ds_write_b128 v{T+1}, v[{ACC2+32+4*r}:{ACC2+35+4*r}] offset:{r*1024}')
    a('s_branch g2_ksd')
    a('g2_ks1:')
    for r in range(8):
        a(f'ds_write_b128 v{T+1}, v[{ACC2+4*r}:{ACC2+3+4*r}] offset:{r*1024}')
    for r in range(32):
        a(f'v_mov_b32 v{ACC2+r}, v{ACC2+32+r}')
    a('g2_ksd:')
    a('s_waitcnt lgkmcnt(0)')
    a('s_barrier')
    for r in range(8):
        a(f'ds_read_b128 v[{128+4*r}:{131+4*r}], v{T+2} offset:{r*1024}')
    a('s_waitcnt lgkmcnt(0)')
    for r in range(32):
        a(f'v_add_f32 v{ACC2+r}, v{ACC2+r}, v{128+r}')
    a('s_lshl_b32 s28, s21, 1')
    a('s_add_u32 s28, s28, s22')
    a('s_lshl_b32 s67, s28, 7')
    a('s_lshl_b32 s28, s28, 13')
    a(f'v_add_u32 v{T+1}, s28, v{T}')
    a('s_cmp_eq_u32 s23, s33')
    a('s_cbranch_scc1 g2_recv')
    a('s_lshl_b32 s28, s2, 15')
    for r in range(8):
        a(f'buffer_store_dwordx4 v[{ACC2+4*r}:{ACC2+3+4*r}], v{T+1}, s[48:51], s28 offen offset:{r*1024 if r < 4 else (r-4)*1024} sc1' if r < 4 else
          f'buffer_store_dwordx4 v[{ACC2+4*r}:{ACC2+3+4*r}], v{T+1}, s[48:51], s29 offen offset:{(r-4)*1024} sc1')
        if r == 3:
            a('s_add_u32 s29, s28, 4096')
    a('s_waitcnt vmcnt(0)')
    a('s_lshl_b32 s28, s2, 9')
    a('s_add_u32 s28, s28, s67')
    a('v_mov_b32 v1, 1')
    a('v_mov_b32 v2, s28')
    a('s_mov_b64 exec, 1')
    a('buffer_store_dword v1, v2, s[52:55], 0 offen sc1')
    a('s_branch g2_fin')
    a('g2_recv:')
    a(f'v_lshrrev_b32 v{T+2}, 3, v{LANE}')
    a(f'v_and_b32 v{T+3}, 7, v{LANE}')
    a('s_lshl_b32 s28, s24, 7')
    a('s_lshl_b32 s29, s21, 6')
    a('s_add_u32 s28, s28, s29')
    a('s_lshl_b32 s29, s22, 5')
    a('s_add_u32 s28, s28, s29')
    a(f'v_add_u32 v{T+4}, s28, v{T+2}')
    a(f'v_lshlrev_b32 v{T+4}, 11, v{T+4}')
    a('s_lshl_b32 s29, s23, 7')
    a('s_add_u32 s29, s29, s32')
    a(f'v_lshl_add_u32 v{T+5}, v{T+3}, 4, s29')
    a(f'v_add_u32 v{T+4}, v{T+4}, v{T+5}')
    for i in range(4):
        a(f's_mov_b32 s34, {i*16384}')
        a(f'buffer_load_dwordx4 v[{32+4*i}:{35+4*i}], v{T+4}, s[40:43], s34 offen')
    a(f'buffer_load_dwordx4 v[48:51], v{T+5}, s[36:39], 0 offen')
    a('s_mul_i32 s28, s20, 8704')
    a('s_add_u32 s28, s28, 65536')
    a(f'v_mul_u32_u24 v{T+6}, 272, v{L16}')
    a(f'v_lshl_add_u32 v{T+6}, v{G4}, 4, v{T+6}')
    a(f'v_add_u32 v{T+6}, s28, v{T+6}')
    a(f'v_mul_u32_u24 v{T+2}, 272, v{T+2}')
    a(f'v_lshl_add_u32 v{T+2}, v{T+3}, 5, v{T+2}')
    a(f'v_add_u32 v{T+2}, s28, v{T+2}')
    a('s_xor_b32 s35, s2, 1')
    a('s_lshl_b32 s28, s35, 9')
    a('s_add_u32 s28, s28, s67')
    a('v_mov_b32 v2, s28')
    a('g2_poll:')
    a('buffer_load_dword v1, v2, s[52:55], 0 offen sc1')
    a('s_waitcnt vmcnt(0)')
    a('v_readfirstlane_b32 s28, v1')
    a('s_nop 3')
    a('s_cmp_eq_u32 s28, 1')
    a('s_cbranch_scc1 g2_ready')
    a('s_sleep 1')
    a('s_branch g2_poll')
    a('g2_ready:')
    a('s_lshl_b32 s28, s35, 15')
    a('s_add_u32 s29, s28, 4096')
    for r in range(8):
        a(f'buffer_load_dwordx4 v[{128+4*r}:{131+4*r}], v{T+1}, s[48:51], s{28 if r < 4 else 29} offen offset:{(r % 4)*1024} sc1')
    a('s_mov_b32 s66, 0xffff0000')
    a('s_waitcnt vmcnt(0)')
    for r in range(32):
        a(f'v_add_f32 v{ACC2+r}, v{ACC2+r}, v{128+r}')
    for e in range(2):
        for nb in range(4):
            r = ACC2 + (e * 4 + nb) * 4
            a(f'ds_write_b128 v{T+6}, v[{r}:{r+3}] offset:{e*4352 + nb*64}')
    for h in range(4):
        a(f'v_lshlrev_b32 v{52+2*h}, 16, v{48+h}')
        a(f'v_and_b32 v{53+2*h}, s66, v{48+h}')
    a('s_waitcnt lgkmcnt(0)')
    for i in range(4):
        a(f'ds_read_b128 v[{128+8*i}:{131+8*i}], v{T+2} offset:{i*2176}')
        a(f'ds_read_b128 v[{132+8*i}:{135+8*i}], v{T+2} offset:{i*2176 + 16}')
    for i in range(4):
        a(f's_waitcnt lgkmcnt({6-2*i})')
        for h in range(4):
            r = 128 + 8 * i + 2 * h
            a(f'v_lshlrev_b32 v60, 16, v{32+4*i+h}')
            a(f'v_and_b32 v61, s66, v{32+4*i+h}')
            a(f'v_add_f32 v{r}, v{r}, v{52+2*h}')
            a(f'v_add_f32 v{r+1}, v{r+1}, v{53+2*h}')
            a(f'v_add_f32 v{r}, v{r}, v60')
            a(f'v_add_f32 v{r+1}, v{r+1}, v61')
            a(f'v_cvt_pk_bf16_f32 v{160+4*i+h}, v{r}, v{r+1}')
        a(f's_mov_b32 s34, {i*16384}')
        a(f'buffer_store_dwordx4 v[{160+4*i}:{163+4*i}], v{T+4}, s[44:47], s34 offen')
    a('g2_fin:')
    if not OPT('STAMP2'):
        stamp(a, 3)
        if OPT('STAMP'):
            a('s_waitcnt vmcnt(0)')
        stamp(a, 4)
    stamp(a, 6, True)
    stamp_flush(a, 7, 1)
    a('g2_exit:')
    a('s_endpgm')
    return descriptor(name, 256, 102 if OPT('STAMP') else 96)


def main():
    a = Asm()
    descs = []
    descs.append(gen_ln(a))
    descs.append(gen_gemm1(a))
    fused = not OPT('SEP_O')
    if not fused:
        descs.append(gen_o(a))
    descs.append(gen_gemm2c(a) if fused else gen_gemm2b(a))
    head = open('cdna_kernels/%s.s.ref' % NAME).read().split('; @launch')[0]
    out = head
    out += '; @launch kernel=ln_kernel grid=(512,1,1) block=(256,1,1) lds=0\n'
    out += f'; @launch kernel=gemm1_kernel grid=(256,1,1) block=(512,1,1) lds={G1_LDS}\n'
    if not fused:
        out += '; @launch kernel=attn_o_kernel grid=(256,1,1) block=(256,1,1) lds=8192\n'
    out += f'; @launch kernel=gemm2_kernel grid=(256,1,1) block=(512,1,1) lds={H_LDS + 8192 + 20480}\n'
    out += '.amdgcn_target "amdgcn-amd-amdhsa--gfx950"\n.text\n'
    out += a.finalize()
    out += '.section .rodata,"a"\n'
    for d in descs:
        out += '.p2align 6\n' + d
    path = sys.argv[1] if len(sys.argv) > 1 else 'cdna_kernels/%s.s' % NAME
    open(path, 'w').write(out)
    print('wrote', path, len(out))


if __name__ == '__main__':
    main()
```

```python
import sys, os
from asmlib import Asm
OPT = lambda k, d='': os.environ.get(k, d)

NAME = 'parallel_sum__linear_kernel_hedgehog__dense_activation_gelu__prompt'
XN_OFF = 0
XN_SZ = 2048 * 1024 * 2
ACT2_OFF = 0x400000
ACT2_SZ = 2048 * 4608 * 2
PHIQ_OFF = 0x1600000
PHIQ_SZ = 2048 * 2048 * 2
KVP_OFF = 0x1E00000
KVP_ENT = 8448
KVP_SZ = 8 * 32 * KVP_ENT

LOG2E = 0x3fb8aa3b


def f2u(x):
    import struct
    return struct.unpack('<I', struct.pack('<f', x))[0]


def srd(a, d, base, size, off=0):
    if off:
        a(f's_add_u32 s{d}, s{base}, 0x{off:x}')
        a(f's_addc_u32 s{d+1}, s{base+1}, 0')
    else:
        a(f's_mov_b32 s{d}, s{base}')
        a(f's_mov_b32 s{d+1}, s{base+1}')
    a(f's_and_b32 s{d+1}, s{d+1}, 0xffff')
    a(f's_mov_b32 s{d+2}, 0x{size:x}')
    a(f's_mov_b32 s{d+3}, 0x00020000')


STAMP_OFF = 0x3000000
STAMP_REGS = [80, 81, 82, 83, 84, 85, 86]


def stamp(a, idx, real=False):
    if not OPT('STAMP'):
        return
    a('s_memrealtime s[78:79]' if real else 's_memtime s[78:79]')
    a('s_waitcnt lgkmcnt(0)')
    a(f's_mov_b32 s{STAMP_REGS[idx]}, s78')


def stamp_flush(a, n, kern):
    if not OPT('STAMP'):
        return
    a('s_mov_b64 exec, -1')
    srd(a, 92, 4, 0x1000000, STAMP_OFF + kern * 0x40000)
    a('s_lshl_b32 s78, s2, 3')
    a('s_add_u32 s78, s78, s20')
    a('s_lshl_b32 s78, s78, 6')
    a('v_mov_b32 v1, 0')
    for i in range(n):
        a(f'v_mov_b32 v2, s{STAMP_REGS[i]}')
        a(f'buffer_store_dword v2, v1, s[92:95], s78 offen offset:{4*i}')


def kernel_begin(a, name):
    a.raw(f'.globl {name}')
    a.raw('.p2align 8')
    a.raw(f'.type {name},@function')
    a.raw(f'{name}:')


def descriptor(name, vgpr, sgpr=96):
    acc = (vgpr + 3) // 4 * 4
    return f'''.amdhsa_kernel {name}
  .amdhsa_next_free_vgpr {vgpr}
  .amdhsa_next_free_sgpr {sgpr}
  .amdhsa_accum_offset {acc}
  .amdhsa_group_segment_fixed_size 0
  .amdhsa_kernarg_size 96
  .amdhsa_user_sgpr_count 2
  .amdhsa_user_sgpr_kernarg_segment_ptr 1
  .amdhsa_system_sgpr_workgroup_id_x 1
.end_amdhsa_kernel
'''


def allreduce16(a, op, v, tmp):
    for r in (8, 4, 2, 1):
        a(f'{op}_dpp v{tmp}, v{v}, v{v} row_ror:{r} row_mask:0xf bank_mask:0xf')
        v, tmp = tmp, v
    return v


def cross_groups(a, op, v, t):
    a(f'v_mov_b32 v{t}, v{v}')
    a(f'v_permlane32_swap_b32 v{v}, v{t}')
    a(f'{op} v{v}, v{v}, v{t}')
    a(f'v_mov_b32 v{t}, v{v}')
    a(f'v_permlane16_swap_b32 v{v}, v{t}')
    a(f'{op} v{v}, v{v}, v{t}')


def round_bf16(a, d, s):
    a(f'v_cvt_pk_bf16_f32 v{d}, v{s}, v{s}')
    a(f'v_lshlrev_b32 v{d}, 16, v{d}')


def gen_ln(a):
    name = 'ln_kernel'
    kernel_begin(a, name)
    a('s_cmp_ge_u32 s2, 512')
    a('s_cbranch_scc1 ln_done')
    a('s_load_dwordx2 s[4:5], s[0:1], 0')
    a('s_load_dwordx2 s[6:7], s[0:1], 88')
    a('s_load_dwordx2 s[24:25], s[0:1], 8')
    a('s_load_dwordx2 s[26:27], s[0:1], 40')
    a('v_lshrrev_b32 v1, 6, v0')
    a('v_and_b32 v2, 63, v0')
    a('s_lshl_b32 s3, s2, 2')
    a('v_add_u32 v1, s3, v1')
    a('v_lshlrev_b32 v3, 10, v1')
    a('v_lshl_add_u32 v3, v2, 4, v3')
    a('v_lshlrev_b32 v1, 11, v1')
    a('v_lshl_add_u32 v1, v2, 4, v1')
    a('s_waitcnt lgkmcnt(0)')
    srd(a, 8, 4, XN_SZ)
    srd(a, 12, 6, XN_SZ, XN_OFF)
    a('buffer_load_dwordx4 v[4:7], v1, s[8:11], 0 offen')
    a('buffer_load_dwordx4 v[8:11], v1, s[8:11], 0 offen offset:1024')
    npf = 0
    if OPT('LNPF'):
        srd(a, 28, 24, 1024 * 3072 * 2)
        srd(a, 32, 26, 1024 * 3584 * 2)
        for i in range(int(OPT('LNPF'))):
            a(f's_mov_b32 s17, {i << 21}')
            if i < 3:
                a(f'buffer_load_dwordx4 v[64:67], v3, s[28:31], s17 offen')
                npf += 1
            a(f'buffer_load_dwordx4 v[68:71], v3, s[32:35], s17 offen')
            npf += 1
    a('s_mov_b32 s16, 0xffff0000')
    a(f's_waitcnt vmcnt({npf})')
    for i in range(8):
        a(f'v_lshlrev_b32 v{16+2*i}, 16, v{4+i}')
        a(f'v_and_b32 v{17+2*i}, s16, v{4+i}')
    for i in range(8):
        a(f'v_add_f32 v{32+i}, v{16+2*i}, v{17+2*i}')
    for i in range(4):
        a(f'v_add_f32 v{32+i}, v{32+2*i}, v{33+2*i}')
    a('v_add_f32 v32, v32, v33')
    a('v_add_f32 v34, v34, v35')
    a('v_add_f32 v32, v32, v34')
    r = allreduce16(a, 'v_add_f32', 32, 33)
    cross_groups(a, 'v_add_f32', r, 34)
    a(f'v_mul_f32 v40, 0x{f2u(1.0/1024):x}, v{r}')
    for i in range(16):
        a(f'v_sub_f32 v{44+i}, v{16+i}, v40')
    a('v_mul_f32 v32, v44, v44')
    a('v_mul_f32 v33, v45, v45')
    for i in range(2, 16, 2):
        a(f'v_fmac_f32 v32, v{44+i}, v{44+i}')
        a(f'v_fmac_f32 v33, v{45+i}, v{45+i}')
    a('v_add_f32 v32, v32, v33')
    r = allreduce16(a, 'v_add_f32', 32, 33)
    cross_groups(a, 'v_add_f32', r, 34)
    a(f'v_mul_f32 v41, 0x{f2u(1.0/1024):x}, v{r}')
    round_bf16(a, 40, 40)
    round_bf16(a, 41, 41)
    a(f'v_add_f32 v41, 0x{f2u(1e-5):x}, v41')
    round_bf16(a, 41, 41)
    a('v_sqrt_f32 v41, v41')
    round_bf16(a, 41, 41)
    a('v_rcp_f32 v42, v41')
    for i in range(0, 16, 2):
        a(f'v_sub_f32 v{16+i}, v{16+i}, v40')
        a(f'v_sub_f32 v{17+i}, v{17+i}, v40')
        a(f'v_cvt_pk_bf16_f32 v{44+i}, v{16+i}, v{17+i}')
        a(f'v_lshlrev_b32 v{16+i}, 16, v{44+i}')
        a(f'v_and_b32 v{17+i}, s16, v{44+i}')
    for i in range(16):
        a(f'v_mul_f32 v{44+i}, v{16+i}, v42')
    for i in range(16):
        a(f'v_fma_f32 v{16+i}, -v{44+i}, v41, v{16+i}')
    for i in range(16):
        a(f'v_fmac_f32 v{44+i}, v{16+i}, v42')
    for i in range(8):
        a(f'v_cvt_pk_bf16_f32 v{4+i}, v{44+2*i}, v{45+2*i}')
    a('buffer_store_dwordx4 v[4:7], v1, s[12:15], 0 offen')
    a('buffer_store_dwordx4 v[8:11], v1, s[12:15], 0 offen offset:1024')
    a('ln_done:')
    a('s_endpgm')
    return descriptor(name, 72, 40)


class VQ:
    def __init__(self):
        self.q = []

    def push(self, tag):
        self.q.append(tag)

    def wait_for(self, tags):
        last = -1
        for i, t in enumerate(self.q):
            if t in tags:
                last = i
        n = len(self.q) - 1 - last
        return min(n, 63)


def interleave(a, mm, rd, dma, emit_grp, first_dma=1, dma_every=4):
    rd = list(rd); dma = list(dma)
    for idx, m in enumerate(mm):
        a(m)
        if dma and idx >= first_dma and (idx - first_dma) % dma_every == 0:
            emit_grp(dma.pop(0))
        elif rd:
            a(rd.pop(0))
        elif dma:
            emit_grp(dma.pop(0))
    for r in rd:
        a(r)
    for g in dma:
        emit_grp(g)


class FlagSync:
    def __init__(self, a, tag, cnt, vsig, vcnt, vone, vt1, vt2, st):
        self.a, self.tag, self.cnt = a, tag, cnt
        self.vsig, self.vcnt, self.vone, self.vt1, self.vt2, self.st = vsig, vcnt, vone, vt1, vt2, st
        self.nfull = [0, 0, 0, 0]
        self.nempty = [0, 0, 0, 0]
        self.n = 0

    def setup(self, vlane, swave):
        a = self.a
        a(f'v_lshlrev_b32 v{self.vsig}, 2, v{vlane}')
        a(f'v_add_u32 v{self.vsig}, 0x{self.cnt + 512:x}, v{self.vsig}')
        a(f'v_mov_b32 v{self.vcnt}, 0x{self.cnt:x}')
        a(f'v_cmp_eq_u32 vcc, 0, v{vlane}')
        a(f'v_cndmask_b32 v{self.vsig}, v{self.vsig}, v{self.vcnt}, vcc')
        a(f'v_mov_b32 v{self.vone}, 1')
        a(f'v_lshlrev_b32 v{self.vt1}, 2, v{vlane}')
        a(f'v_and_b32 v{self.vt1}, 31, v{self.vt1}')
        a(f'v_add_u32 v{self.vt1}, v{self.vcnt}, v{self.vt1}')
        a(f'v_mov_b32 v{self.vt2}, 0')
        a(f'ds_write_b32 v{self.vt1}, v{self.vt2}')

    def sig_full(self, s):
        self.nfull[s % 4] += 8
        return f'ds_add_u32 v{self.vsig}, v{self.vone} offset:{4 * (s % 4)}'

    def sig_empty(self, s):
        self.nempty[s % 4] += 8
        return f'ds_add_u32 v{self.vsig}, v{self.vone} offset:{16 + 4 * (s % 4)}'

    def rd_full(self, s):
        return f'ds_read_b32 v{self.vt1}, v{self.vcnt} offset:{4 * (s % 4)}'

    def rd_empty(self, s):
        return f'ds_read_b32 v{self.vt2}, v{self.vcnt} offset:{16 + 4 * (s % 4)}'

    def check(self, kind, s, lgkm):
        a = self.a
        v = self.vt1 if kind == 'F' else self.vt2
        target = (self.nfull if kind == 'F' else self.nempty)[s % 4]
        rd = self.rd_full(s) if kind == 'F' else self.rd_empty(s)
        L = f'{self.tag}_c{self.n}'
        self.n += 1
        a(f's_waitcnt lgkmcnt({lgkm})')
        a(f'{L}r:')
        a(f'v_readfirstlane_b32 s{self.st}, v{v}')
        a('s_nop 1')
        a(f's_cmp_ge_u32 s{self.st}, {target}')
        a(f's_cbranch_scc1 {L}o')
        a(rd + ' ; @skip')
        a('s_waitcnt lgkmcnt(0) ; @skip')
        a(f's_branch {L}r ; @skip')
        a(f'{L}o:')


def flag_iter(a, fs, j, nst, mm, rd, dma, emit_grp, vmwait, cF, cE, extra=None):
    rd = list(rd); dma = list(dma)
    n = len(mm)
    need_full = rd and j >= 1
    need_empty = bool(dma)
    a(fs.sig_empty(j))
    if need_full:
        a(fs.rd_full(j + 1))
    since_e = None
    dma_ok = not need_empty
    for idx, m in enumerate(mm):
        a(m)
        if idx == cF and need_full:
            fs.check('F', j + 1, 0)
        if idx < cF:
            continue
        if need_empty and idx == cE - 3:
            a(fs.rd_empty(j))
            since_e = 0
            continue
        if need_empty and idx == cE:
            fs.check('E', j, since_e)
            dma_ok = True
            continue
        if idx == (int(OPT('FS_CS')) if OPT('FS_CS') else n - 2) and vmwait:
            a(vmwait())
            a(fs.sig_full(j + 2))
            continue
        if dma_ok and dma and (not rd or (idx - cE) % 3 == 1):
            emit_grp(dma.pop(0))
        elif rd:
            a(rd.pop(0))
            if since_e is not None and not dma_ok:
                since_e += 1
    for r in rd:
        a(r)
    for g in dma:
        emit_grp(g)
    a('s_waitcnt lgkmcnt(0)')


A_SLOT = 32768
B_BASE = 98304
B_SLOT = 14336
G1_DUMMY = B_BASE + 4 * B_SLOT
G1_LDS = G1_DUMMY + 8192
ACC = 128
SETS = (32, 76)
VA = 2
VB = 8
VGA = 11
VGB0 = 12
VGB1 = 13
VLANE = 14
VG4 = 15
VL16 = 16
VPF = 31
VPF2 = 30
VTMP = 17


def gemm1_common_setup(a):
    a('v_lshrrev_b32 v1, 6, v0')
    a(f'v_and_b32 v{VLANE}, 63, v0')
    a('s_nop 0')
    a('v_readfirstlane_b32 s20, v1')
    a(f'v_lshrrev_b32 v{VG4}, 4, v{VLANE}')
    a(f'v_and_b32 v{VL16}, 15, v{VLANE}')
    a('s_nop 1')
    a('s_lshr_b32 s21, s20, 1')
    a('s_and_b32 s22, s20, 1')
    a('s_and_b32 s26, s2, 7')
    a('s_lshr_b32 s27, s2, 3')
    a('s_and_b32 s24, s26, 1')
    a('s_lshl_b32 s24, s24, 2')
    a('s_and_b32 s28, s27, 3')
    a('s_add_u32 s24, s24, s28')
    a('s_lshr_b32 s25, s26, 1')
    a('s_lshl_b32 s25, s25, 2')
    a('s_bfe_u32 s28, s27, 0x20002')
    a('s_add_u32 s25, s25, s28')
    a('s_lshr_b32 s28, s27, 4')
    a('s_lshl_b32 s28, s28, 4')
    a('s_add_u32 s25, s25, s28')
    T = VTMP
    a('s_lshl_b32 s28, s21, 13')
    a(f'v_and_b32 v{T}, 7, v{VLANE}')
    a(f'v_xor_b32 v{T}, v{T}, v{VG4}')
    a(f'v_lshlrev_b32 v{T}, 4, v{T}')
    a(f'v_lshl_add_u32 v{T}, v{VL16}, 7, v{T}')
    a(f'v_add_u32 v{T}, s28, v{T}')
    a(f'v_xor_b32 v{T+1}, 64, v{T}')
    for sl in range(3):
        a(f'v_add_u32 v{VA+2*sl}, 0x{sl*A_SLOT:x}, v{T}')
        a(f'v_add_u32 v{VA+2*sl+1}, 0x{sl*A_SLOT:x}, v{T+1}')
    a(f'v_lshrrev_b32 v{T}, 3, v{VLANE}')
    a(f'v_and_b32 v{T+1}, 7, v{VLANE}')
    a(f'v_xor_b32 v{T+1}, v{T+1}, v{T}')
    a('s_lshl_b32 s28, s24, 8')
    a('s_lshl_b32 s29, s20, 5')
    a('s_add_u32 s28, s28, s29')
    a(f'v_add_u32 v{T}, s28, v{T}')
    a(f'v_lshlrev_b32 v{T}, 11, v{T}')
    a(f'v_lshl_add_u32 v{VGA}, v{T+1}, 4, v{T}')
    a(f'v_lshlrev_b32 v{VPF}, 4, v{VLANE}')
    a('s_lshl_b32 s30, s20, 12')
    a('s_lshl_b32 s31, s20, 10')
    a('s_and_b32 s77, s31, 0xc00')


def gemm1_variant(a, kind):
    w1 = kind == 'w1'
    NB = 7 if w1 else 6
    rowstride = 7168 if w1 else 6144
    nsecond = 6 if w1 else 4
    T = VTMP
    a(f'v_lshrrev_b32 v{T}, 2, v{VL16}')
    a(f'v_lshl_add_u32 v{T+1}, v{VG4}, 3, v{T}')
    a(f'v_lshrrev_b32 v{T+2}, 1, v{T}')
    a(f'v_and_b32 v{T+3}, 1, v{VG4}')
    a(f'v_lshl_or_b32 v{T+2}, v{T+3}, 1, v{T+2}')
    a(f'v_and_b32 v{T+4}, 3, v{VLANE}')
    a(f'v_lshlrev_b32 v{T+4}, 3, v{T+4}')
    a(f'v_lshl_add_u32 v{T+5}, v{T+1}, 7, v{T+4}')
    a(f'v_add_u32 v{T+5}, 0x{B_BASE:x}, v{T+5}')
    for e in range(2):
        if w1:
            a(f's_add_u32 s28, s22, {2*e}')
        else:
            a('s_lshl_b32 s28, s22, 1')
            a(f's_add_u32 s28, s28, {e}')
        a(f'v_xor_b32 v{T+6}, s28, v{T+2}')
        a(f'v_lshl_add_u32 v{VB+e}, v{T+6}, 5, v{T+5}')
    if w1:
        a(f'v_xor_b32 v{T+6}, s22, v{T+3}')
        a(f'v_lshl_add_u32 v{T+7}, v{T+1}, 6, v{T+4}')
        a(f'v_lshl_add_u32 v{T+7}, v{T+6}, 5, v{T+7}')
        a(f'v_add_u32 v{VB+2}, 0x{B_BASE+12288:x}, v{T+7}')
    colstride = 128 if w1 else 2048
    a(f'v_lshrrev_b32 v{T}, 3, v{VLANE}')
    a(f'v_bfe_u32 v{T+1}, v{VLANE}, 4, 1')
    a('s_and_b32 s28, s20, 1')
    a('s_lshl_b32 s28, s28, 1')
    a(f'v_or_b32 v{T+1}, s28, v{T+1}')
    a(f'v_bfe_u32 v{T+2}, v{VLANE}, 1, 2')
    a(f'v_xor_b32 v{T+2}, v{T+2}, v{T+1}')
    a(f'v_and_b32 v{T+3}, 1, v{VLANE}')
    a(f'v_lshlrev_b32 v{T+3}, 4, v{T+3}')
    a(f'v_lshl_add_u32 v{T+3}, v{T+2}, 5, v{T+3}')
    a('s_and_b32 s28, s20, 3')
    a('s_lshl_b32 s28, s28, 3')
    a(f'v_add_u32 v{T}, s28, v{T}')
    a(f's_mov_b32 s29, {rowstride}')
    a(f'v_mul_lo_u32 v{T}, v{T}, s29')
    a(f'v_add_u32 v{T}, v{T}, v{T+3}')
    a('s_lshr_b32 s28, s20, 2')
    a(f's_mul_i32 s28, s28, {colstride}')
    if w1:
        a('s_sub_u32 s32, s25, 16')
        a('s_mul_i32 s32, s32, 448')
    else:
        a('s_lshl_b32 s32, s25, 7')
    a('s_add_u32 s28, s28, s32')
    a(f'v_add_u32 v{VGB0}, s28, v{T}')
    a(f'v_add_u32 v{VGB1}, 0x{2*colstride:x}, v{VGB0}')
    if w1:
        a(f'v_lshrrev_b32 v{T}, 2, v{VLANE}')
        a('s_sub_u32 s28, s20, 4')
        a('s_lshl_b32 s28, s28, 4')
        a(f'v_add_u32 v{T}, s28, v{T}')
        a(f'v_mul_lo_u32 v{T}, v{T}, s29')
        a(f'v_bfe_u32 v{T+1}, v{VLANE}, 5, 1')
        a(f'v_bfe_u32 v{T+2}, v{VLANE}, 1, 1')
        a(f'v_xor_b32 v{T+2}, v{T+2}, v{T+1}')
        a(f'v_and_b32 v{T+3}, 1, v{VLANE}')
        a(f'v_lshlrev_b32 v{T+3}, 4, v{T+3}')
        a(f'v_lshl_add_u32 v{T+3}, v{T+2}, 5, v{T+3}')
        a(f'v_add_u32 v{T}, v{T}, v{T+3}')
        a('s_add_u32 s28, s32, 384')
        a(f'v_add_u32 v{T}, s28, v{T}')
        a('s_cmp_ge_u32 s20, 4')
        a('s_cselect_b64 s[34:35], -1, 0')
        a(f'v_cndmask_b32 v{VGB1}, v{VGB1}, v{T}, s[34:35]')
    if w1:
        a('s_lshl_b32 s28, s22, 5')
        a(f'v_lshl_add_u32 v{T}, v{VG4}, 3, s28')
        for nb in range(7):
            a(f'buffer_load_dwordx2 v[{240+2*nb}:{241+2*nb}], v{T}, s[40:43], s32 offen offset:{nb*64}')
    else:
        a('s_lshl_b32 s33, s25, 1')
        a('s_add_u32 s33, s33, s22')
        a('s_lshl_b32 s28, s33, 11')
        a(f'v_lshlrev_b32 v{T}, 8, v{VG4}')
        a(f'v_lshl_add_u32 v{T}, v{VL16}, 1, v{T}')
        for fb in range(2):
            for j in range(8):
                off = (16 * (j // 4) + j % 4) * 64 + fb * 32
                a(f'buffer_load_ushort v{224+8*fb+j}, v{T}, s[40:43], s28 offen offset:{off}')
    if not w1:
        for i in range(NB * 16):
            a(f'v_mov_b32 v{ACC+i}, 0')

    vq = VQ()
    lbl = [0]

    def grp_A(i):
        if OPT('G1_NOA'):
            return []
        out = []
        for q in range(4):
            out.append(([f's_add_u32 m0, s30, 0x{(i % 3) * A_SLOT + q * 1024:x}',
                         f's_mov_b32 s28, 0x{i * 128 + q * 16384:x}',
                         f'buffer_load_dwordx4 v{VGA}, s[8:11], s28 offen lds'], ('A', i)))
        return out

    def grp_B(j):
        if OPT('G1_NOB'):
            return []
        base = B_BASE + (j % 4) * B_SLOT
        L = f'g1{kind}_sk{lbl[0]}'
        lbl[0] += 1
        return [([f's_add_u32 m0, s31, 0x{base:x}',
                  f's_mov_b32 s28, 0x{j * 32 * rowstride:x}',
                  f'buffer_load_dwordx4 v{VGB0}, s[12:15], s28 offen lds'], ('B', j)),
                ([f's_cmp_ge_u32 s20, {nsecond}',
                  f's_cbranch_scc1 {L}',
                  f's_add_u32 m0, s31, 0x{base + 8192:x} ; @skip',
                  f's_mov_b32 s28, 0x{j * 32 * rowstride:x} ; @skip',
                  f'buffer_load_dwordx4 v{VGB1}, s[12:15], s28 offen lds ; @skip',
                  f'{L}:'], None)]

    def emit_grp(g):
        for l in g[0]:
            a(l)
        if g[1] is not None:
            vq.push(g[1])

    def issue_A(i):
        for g in grp_A(i):
            emit_grp(g)

    def issue_B(j):
        for g in grp_B(j):
            emit_grp(g)

    def frag_reads(j):
        S = SETS[j & 1]
        sl = (j // 2) % 3
        half = j & 1
        out = []
        for mb in range(4):
            out.append(f'ds_read_b128 v[{S+4*mb}:{S+4*mb+3}], v{VA+2*sl+half} offset:{mb*2048}')
        bs = (j % 4) * B_SLOT
        for nb in range(NB):
            d = S + 16 + 4 * nb
            if w1 and nb == 6:
                for t in range(2):
                    out.append(f'ds_read_b64_tr_b16 v[{d+2*t}:{d+2*t+1}], v{VB+2} offset:{bs + t*256}')
            else:
                G, e = nb // 2, nb % 2
                for t in range(2):
                    out.append(f'ds_read_b64_tr_b16 v[{d+2*t}:{d+2*t+1}], v{VB+e} offset:{bs + G*4096 + t*512}')
        return out

    def mfmas(j):
        S = SETS[j & 1]
        out = []
        for nb in range(NB):
            for mb in range(4):
                c = ACC + (nb * 4 + mb) * 4
                wf = f'v[{S+16+4*nb}:{S+19+4*nb}]'
                xf = f'v[{S+4*mb}:{S+4*mb+3}]'
                if (not w1) and nb >= 4:
                    out.append(f'v_mfma_f32_16x16x32_bf16 v[{c}:{c+3}], {xf}, {wf}, v[{c}:{c+3}]')
                else:
                    out.append(f'v_mfma_f32_16x16x32_bf16 v[{c}:{c+3}], {wf}, {xf}, v[{c}:{c+3}]')
        return out

    stamp(a, 1)
    def grp_pf(i):
        if OPT('NO_PF1'):
            return []
        return [([f's_add_u32 m0, s77, 0x{G1_DUMMY:x}',
                  f's_mov_b32 s28, 0x{i << 20:x}',
                  f'buffer_load_dwordx4 v{VPF2}, s[88:91], s28 offen lds'], None)]

    issue_A(0); issue_B(0); issue_B(1); issue_A(1); issue_B(2); issue_B(3); issue_A(2)
    for g in grp_pf(0) + grp_pf(1):
        emit_grp(g)
    use_flags = bool(OPT('G1_FLAGS'))
    half_bar = bool(OPT('G1_HB'))
    if use_flags:
        fs = FlagSync(a, f'g1{kind}', G1_DUMMY + 4096, 25, 26, 27, 28, 29, 62)
        fs.setup(VLANE, 20)
        a(f's_waitcnt vmcnt({vq.wait_for({("A", 0), ("B", 0), ("B", 1)})}) lgkmcnt(0)')
    else:
        a(f's_waitcnt vmcnt({vq.wait_for({("A", 0), ("B", 0)})})')
    a('s_barrier')
    for r in frag_reads(0):
        a(r)
    if w1:
        a('s_mov_b32 s50, 0xffff0000')
        for nb in range(7):
            for mb in range(4):
                c = ACC + (nb * 4 + mb) * 4
                for h in range(2):
                    a(f'v_lshlrev_b32 v{c+2*h}, 16, v{240+2*nb+h}')
                    a(f'v_and_b32 v{c+2*h+1}, s50, v{240+2*nb+h}')
    a('s_waitcnt lgkmcnt(0)')
    for j in range(32):
        if half_bar:
            dma = []
            if j % 2 == 0:
                need = {("A", (j + 1) // 2), ("B", j + 1)}
                if j + 2 < 32:
                    need |= {("A", (j + 2) // 2), ("B", j + 2)}
                a(f's_waitcnt vmcnt({vq.wait_for(need)})')
                a('s_barrier')
                if j >= 2:
                    for jj in (j + 3, j + 4):
                        if 4 <= jj < 32:
                            dma += grp_B(jj)
                    if (j // 2 + 2) < 16 and j // 2 + 2 >= 3:
                        dma += grp_A(j // 2 + 2)
                else:
                    dma += grp_B(4)
        else:
            if not use_flags:
                if j + 1 < 32:
                    a(f's_waitcnt vmcnt({vq.wait_for({("A", (j + 1) // 2), ("B", j + 1)})})')
                a('s_barrier')
            dma = []
            if j + 4 < 32:
                dma += grp_B(j + 4)
            if j & 1 and (j // 2 + 3) < 16:
                dma += grp_A(j // 2 + 3)
        if j in (2, 7, 12, 17, 22):
            dma += grp_pf(2 + (j - 2) // 5)
        if j == 28 and not OPT('NO_PF'):
            dma.append(([f's_add_u32 m0, s77, 0x{G1_DUMMY:x}',
                         's_lshl_b32 s28, s2, 13',
                         's_add_u32 s28, s28, s31',
                         f'buffer_load_dwordx4 v{VPF}, s[64:67], s28 offen lds',
                         's_mul_i32 s76, s2, 28672',
                         's_mul_i32 s29, s20, 3584',
                         's_add_u32 s76, s76, s29'], None))
            for i in range(4):
                dma.append(([f'buffer_load_dwordx4 v{VPF}, s[68:71], s76 offen lds',
                             's_add_u32 s76, s76, 1024'], None))
        rd = frag_reads(j + 1) if j + 1 < 32 else []
        mm = mfmas(j)
        if OPT('G1_NOCOMP'):
            rd = []; mm = []
        if use_flags:
            vmw = (lambda jj=j: f's_waitcnt vmcnt({vq.wait_for({("A", (jj + 2) // 2), ("B", jj + 2)})})') if j + 2 < 32 else None
            flag_iter(a, fs, j, 32, mm, rd, dma, emit_grp, vmw, int(OPT('G1_CF', '2')), int(OPT('G1_CE', '9')))
        else:
            interleave(a, mm, rd, dma, emit_grp, int(OPT('G1_FD', '1')), int(OPT('G1_DE', '4')))
            a('s_waitcnt lgkmcnt(0)')
    if use_flags or half_bar:
        a('s_barrier')
    stamp(a, 2)
    if w1:
        epilogue_w1(a)
    else:
        epilogue_qkv(a)


def epilogue_w1(a):
    T = VTMP
    c1 = -2.0 * 0.7978845608028654 * 1.4426950408889634
    c2 = c1 * 0.044715
    a(f's_mov_b32 s44, 0x{f2u(c1):x}')
    a(f's_mov_b32 s46, 0x{f2u(c2):x}')
    a(f's_mov_b32 s47, 0x{f2u(c2):x}')
    a('s_mov_b32 s48, 1.0')
    a('s_mov_b32 s49, 1.0')
    a('s_lshl_b32 s28, s24, 8')
    a('s_lshl_b32 s29, s21, 6')
    a('s_add_u32 s28, s28, s29')
    a(f'v_add_u32 v{T}, s28, v{VL16}')
    a(f'v_and_b32 v{T+1}, 1, v{VG4}')
    a(f'v_lshl_add_u32 v{T}, v{T+1}, 4, v{T}')
    a(f'v_lshrrev_b32 v{T+1}, 1, v{VG4}')
    a(f'v_lshl_add_u32 v{T}, v{T+1}, 11, v{T}')
    a(f'v_lshlrev_b32 v{T}, 4, v{T}')
    a('s_lshr_b32 s28, s32, 4')
    a('s_lshl_b32 s29, s22, 1')
    a('s_add_u32 s28, s28, s29')
    a('s_add_u32 s28, s28, 128')
    a('s_lshl_b32 s52, s28, 15')
    W = 64
    O = 32
    a('v_mov_b32 v60, s44')
    a('v_mov_b32 v61, s44')
    for nb in range(7):
        for mb in range(4):
            c = ACC + (nb * 4 + mb) * 4
            w = W + mb * 4
            for h in range(2):
                a(f'v_pk_mul_f32 v[{w+2*h}:{w+2*h+1}], v[{c+2*h}:{c+2*h+1}], v[{c+2*h}:{c+2*h+1}]')
            for h in range(2):
                a(f'v_pk_fma_f32 v[{w+2*h}:{w+2*h+1}], v[{w+2*h}:{w+2*h+1}], s[46:47], v[60:61]')
            for h in range(2):
                a(f'v_pk_mul_f32 v[{w+2*h}:{w+2*h+1}], v[{w+2*h}:{w+2*h+1}], v[{c+2*h}:{c+2*h+1}]')
        for i in range(16):
            a(f'v_exp_f32 v{W+i}, v{W+i}')
        for h in range(8):
            a(f'v_pk_add_f32 v[{W+2*h}:{W+2*h+1}], v[{W+2*h}:{W+2*h+1}], s[48:49]')
        for i in range(16):
            a(f'v_rcp_f32 v{W+i}, v{W+i}')
        o = O + (nb & 1) * 8
        for mb in range(4):
            c = ACC + (nb * 4 + mb) * 4
            w = W + mb * 4
            for h in range(2):
                a(f'v_pk_mul_f32 v[{w+2*h}:{w+2*h+1}], v[{w+2*h}:{w+2*h+1}], v[{c+2*h}:{c+2*h+1}]')
            a(f'v_cvt_pk_bf16_f32 v{o+2*mb}, v{w}, v{w+1}')
            a(f'v_cvt_pk_bf16_f32 v{o+2*mb+1}, v{w+2}, v{w+3}')
        for p in range(2):
            a(f'v_permlane16_swap_b32 v{o+4*p}, v{o+4*p+2}')
            a(f'v_permlane16_swap_b32 v{o+4*p+1}, v{o+4*p+3}')
        a(f's_add_u32 s28, s52, 0x{nb*4*32768:x}')
        for p in range(2):
            a(f'buffer_store_dwordx4 v[{o+4*p}:{o+4*p+3}], v{T}, s[16:19], s28 offen offset:{p*512}')
    stamp(a, 3)
    if OPT('STAMP'):
        a('s_waitcnt vmcnt(0)')
    stamp(a, 4)
    stamp(a, 6, True)
    stamp_flush(a, 7, 0)
    a('s_endpgm')


def epilogue_qkv(a):
    T = VTMP
    QF, KF, VF = 32, 48, 64
    WP = 240

    def acc(nb, mb):
        return ACC + (nb * 4 + mb) * 4
    a('s_mov_b32 s50, 0xffff0000')
    a(f's_mov_b32 s51, 0x{LOG2E:x}')
    for i in range(8):
        a(f'v_lshl_or_b32 v{WP+i}, v{224+2*i+1}, 16, v{224+2*i}')
    for mb in range(4):
        for e in range(2):
            c = acc(e, mb)
            a(f'v_cvt_pk_bf16_f32 v{QF+4*mb+2*e}, v{c}, v{c+1}')
            a(f'v_cvt_pk_bf16_f32 v{QF+4*mb+2*e+1}, v{c+2}, v{c+3}')
            c = acc(2 + e, mb)
            a(f'v_cvt_pk_bf16_f32 v{KF+4*mb+2*e}, v{c}, v{c+1}')
            a(f'v_cvt_pk_bf16_f32 v{KF+4*mb+2*e+1}, v{c+2}, v{c+3}')
    for ks in range(2):
        for db in range(2):
            for e in range(2):
                c = acc(4 + db, 2 * ks + e)
                d = VF + (ks * 2 + db) * 4 + 2 * e
                a(f'v_cvt_pk_bf16_f32 v{d}, v{c}, v{c+1}')
                a(f'v_cvt_pk_bf16_f32 v{d+1}, v{c+2}, v{c+3}')
    PQ, PK = 128, 160
    for mb in range(4):
        for fb in range(2):
            d = PK + (mb * 2 + fb) * 4
            a(f'v_mfma_f32_16x16x32_bf16 v[{d}:{d+3}], v[{KF+4*mb}:{KF+4*mb+3}], v[{WP+4*fb}:{WP+4*fb+3}], 0')
    a('s_lshl_b32 s28, s24, 4')
    a('s_lshl_b32 s29, s21, 2')
    a('s_add_u32 s28, s28, s29')
    a('s_lshl_b32 s28, s28, 10')
    a('s_lshl_b32 s29, s33, 17')
    a('s_add_u32 s28, s28, s29')
    for mb in range(4):
        a(f'buffer_store_dwordx4 v[{QF+4*mb}:{QF+4*mb+3}], v{VPF}, s[36:39], s28 offen offset:{mb*1024}')
    a('s_or_b32 s28, s24, s21')
    a('s_cmp_lg_u32 s28, 0')
    a('s_cbranch_scc1 g1q_nowp')
    a('s_lshl_b32 s28, s33, 11 ; @skip')
    a('s_add_u32 s28, s28, 0x400000 ; @skip')
    a(f'buffer_store_dwordx4 v[{WP}:{WP+3}], v{VPF}, s[36:39], s28 offen ; @skip')
    a(f'buffer_store_dwordx4 v[{WP+4}:{WP+7}], v{VPF}, s[36:39], s28 offen offset:1024 ; @skip')
    a('g1q_nowp:')
    for i in range(0, 32, 2):
        r = PK + i
        a(f'v_cvt_pk_bf16_f32 v{T+(i>>1)%4}, v{r}, v{r+1}')
        a(f'v_lshlrev_b32 v{r}, 16, v{T+(i>>1)%4}')
        a(f'v_and_b32 v{r+1}, s50, v{T+(i>>1)%4}')
    KMX, KMN, KS1, KS2, KT = 80, 96, 32, 48, 112
    idx = [(mb, i) for mb in range(4) for i in range(4)]

    def pk(mb, fb, i):
        return PK + (mb * 2 + fb) * 4 + i
    for n, (mb, i) in enumerate(idx):
        a(f'v_max_f32 v{KMX+n}, v{pk(mb,0,i)}, v{pk(mb,1,i)}')
        a(f'v_min_f32 v{KMN+n}, v{pk(mb,0,i)}, v{pk(mb,1,i)}')
    for (base, op) in ((KMX, 'v_max_f32'), (KMN, 'v_min_f32')):
        src, dst = base, KT
        for r in (8, 4, 2, 1):
            for n in range(16):
                a(f'{op}_dpp v{dst+n}, v{src+n}, v{src+n} row_ror:{r} row_mask:0xf bank_mask:0xf')
            src, dst = dst, src
    EP = 128
    for n in range(16):
        a(f'v_mul_f32 v{KMX+n}, s51, v{KMX+n}')
        a(f'v_mul_f32 v{KMN+n}, s51, v{KMN+n}')
    for n, (mb, i) in enumerate(idx):
        for fb in range(2):
            r = pk(mb, fb, i)
            a(f'v_fma_f32 v{EP + r - PK}, v{r}, s51, -v{KMX+n}')
            a(f'v_fma_f32 v{r}, -v{r}, s51, v{KMN+n}')
    for r in range(64):
        a(f'v_exp_f32 v{128+r}, v{128+r}')
    for n, (mb, i) in enumerate(idx):
        a(f'v_add_f32 v{KS1+n}, v{EP + pk(mb,0,i) - PK}, v{EP + pk(mb,1,i) - PK}')
        a(f'v_add_f32 v{KS2+n}, v{pk(mb,0,i)}, v{pk(mb,1,i)}')
    for base in (KS1, KS2):
        src, dst = base, KT
        for r in (8, 4, 2, 1):
            for n in range(16):
                a(f'v_add_f32_dpp v{dst+n}, v{src+n}, v{src+n} row_ror:{r} row_mask:0xf bank_mask:0xf')
            src, dst = dst, src
    for n in range(16):
        a(f'v_rcp_f32 v{KS1+n}, v{KS1+n}')
        a(f'v_rcp_f32 v{KS2+n}, v{KS2+n}')
    for n, (mb, i) in enumerate(idx):
        for fb in range(2):
            r = pk(mb, fb, i)
            a(f'v_mul_f32 v{EP + r - PK}, v{EP + r - PK}, v{KS1+n}')
            a(f'v_mul_f32 v{r}, v{r}, v{KS2+n}')
    PF = 80
    for sg in range(2):
        for fb in range(2):
            for ks in range(2):
                d = PF + ((sg * 2 + fb) * 2 + ks) * 4
                for e in range(2):
                    r = (EP if sg == 0 else PK) + ((2 * ks + e) * 2 + fb) * 4
                    a(f'v_cvt_pk_bf16_f32 v{d+2*e}, v{r}, v{r+1}')
                    a(f'v_cvt_pk_bf16_f32 v{d+2*e+1}, v{r+2}, v{r+3}')
    ONES = 112
    for i in range(4):
        a(f'v_mov_b32 v{ONES+i}, 0x3f803f80')
    KV = 128
    Z = 160
    for ks in range(2):
        for F in range(4):
            pf = PF + (F * 2 + ks) * 4
            for db in range(2):
                d = KV + (F * 2 + db) * 4
                vf = VF + (ks * 2 + db) * 4
                cc = '0' if ks == 0 else f'v[{d}:{d+3}]'
                a(f'v_mfma_f32_16x16x32_bf16 v[{d}:{d+3}], v[{pf}:{pf+3}], v[{vf}:{vf+3}], {cc}')
            d = Z + F * 4
            cc = '0' if ks == 0 else f'v[{d}:{d+3}]'
            a(f'v_mfma_f32_16x16x32_bf16 v[{d}:{d+3}], v[{pf}:{pf+3}], v[{ONES}:{ONES+3}], {cc}')
    a('s_lshl_b32 s28, s22, 2')
    a('s_add_u32 s28, s28, s21')
    a('s_mul_i32 s28, s28, 12288')
    a(f'v_add_u32 v{T+6}, s28, v{VPF}')
    for r in range(12):
        a(f'ds_write_b128 v{T+6}, v[{KV+4*r}:{KV+4*r+3}] offset:{r*1024}')
    a('s_mul_i32 s28, s22, 49152')
    a('s_mul_i32 s29, s21, 3072')
    a('s_add_u32 s28, s28, s29')
    a(f'v_add_u32 v{T+6}, s28, v{VPF}')
    a('s_waitcnt lgkmcnt(0)')
    a('s_barrier')
    for p in range(4):
        for r in range(3):
            a(f'ds_read_b128 v[{32+12*p+4*r}:{35+12*p+4*r}], v{T+6} offset:{p*12288 + r*1024}')
    a('s_lshl_b32 s28, s33, 3')
    a('s_add_u32 s28, s28, s24')
    a(f's_mul_i32 s28, s28, {KVP_ENT}')
    a(f'v_lshlrev_b32 v{T+7}, 4, v{VG4}')
    a(f'v_cmp_eq_u32 vcc, 0, v{VL16}')
    a('s_waitcnt lgkmcnt(0)')
    for r in range(12):
        a(f'v_add_f32 v{32+r}, v{32+r}, v{44+r}')
        a(f'v_add_f32 v{56+r}, v{56+r}, v{68+r}')
    for r in range(12):
        a(f'v_add_f32 v{32+r}, v{32+r}, v{56+r}')

    def qoff(q):
        if q < 8:
            F, db = q >> 1, q & 1
            return ((db * 2 + (F >> 1)) * 2 + (F & 1)) * 1024
        return 8192 + (q - 8) * 64
    for wm in range(4):
        a(f's_cmp_lg_u32 s21, {wm}')
        a(f's_cbranch_scc1 g1q_st{wm}')
        for r in range(3):
            q = 3 * wm + r
            a(f's_add_u32 s29, s28, {qoff(q)} ; @skip')
            if q < 8:
                a(f'buffer_store_dwordx4 v[{32+4*r}:{35+4*r}], v{VPF}, s[44:47], s29 offen ; @skip')
            else:
                a('s_and_saveexec_b64 s[34:35], vcc ; @skip')
                a(f'buffer_store_dwordx4 v[{32+4*r}:{35+4*r}], v{T+7}, s[44:47], s29 offen ; @skip')
                a('s_mov_b64 exec, s[34:35] ; @skip')
        a(f'g1q_st{wm}:')
    a('g1q_end:')
    stamp(a, 3)
    if OPT('STAMP'):
        a('s_waitcnt vmcnt(0)')
    stamp(a, 4)
    stamp(a, 6, True)
    stamp_flush(a, 7, 0)
    a('s_endpgm')


def gen_gemm1(a):
    name = 'gemm1_kernel'
    kernel_begin(a, name)
    a('s_cmp_ge_u32 s2, 256')
    a('s_cbranch_scc1 g1_exit')
    a('s_load_dwordx2 s[4:5], s[0:1], 88')
    a('s_load_dwordx2 s[6:7], s[0:1], 8')
    a('s_load_dwordx2 s[56:57], s[0:1], 16')
    a('s_load_dwordx2 s[58:59], s[0:1], 40')
    a('s_load_dwordx2 s[60:61], s[0:1], 48')
    a('s_load_dwordx2 s[72:73], s[0:1], 24')
    a('s_load_dwordx2 s[74:75], s[0:1], 56')
    gemm1_common_setup(a)
    a('s_waitcnt lgkmcnt(0)')
    stamp(a, 5, True)
    stamp(a, 0)
    srd(a, 8, 4, XN_SZ, XN_OFF)
    srd(a, 64, 72, 1024 * 1024 * 2)
    srd(a, 68, 74, 3584 * 1024 * 2)
    srd(a, 92, 4, 0x200000, FLAG_OFF)
    a('s_lshl_b32 s28, s2, 9')
    a('v_lshlrev_b32 v17, 7, v0')
    a('v_mov_b32 v18, 0')
    a('v_cmp_gt_u32 vcc, 4, v0')
    a('s_and_saveexec_b64 s[34:35], vcc')
    a('buffer_store_dword v18, v17, s[92:95], s28 offen')
    a('s_mov_b64 exec, s[34:35]')
    a('s_lshl_b32 s28, s2, 2')
    a(f's_add_u32 s28, s28, 0x{OFLAG_OFF - FLAG_OFF:x}')
    a('v_mov_b32 v17, 0')
    a('v_cmp_eq_u32 vcc, 0, v0')
    a('s_and_saveexec_b64 s[34:35], vcc')
    a('buffer_store_dword v18, v17, s[92:95], s28 offen')
    a('s_mov_b64 exec, s[34:35]')
    a('s_lshl_b32 s28, s2, 3')
    a('s_add_u32 s28, s28, s20')
    a('s_cmp_lt_u32 s28, 1024')
    a('s_cselect_b32 s88, s6, s58')
    a('s_cselect_b32 s89, s7, s59')
    a(f's_mov_b32 s90, 0x{1024*3584*2:x}')
    a(f's_cselect_b32 s90, 0x{1024*3072*2:x}, s90')
    a('s_and_b32 s89, s89, 0xffff')
    a('s_mov_b32 s91, 0x00020000')
    a('s_and_b32 s28, s28, 1023')
    a('s_lshl_b32 s28, s28, 10')
    a(f'v_add_u32 v{VPF2}, s28, v{VPF}')
    a('s_cmp_ge_u32 s25, 16')
    a('s_cbranch_scc1 g1_w1')
    srd(a, 12, 6, 1024 * 3072 * 2)
    srd(a, 40, 56, 32 * 32 * 32 * 2)
    srd(a, 36, 4, PHIQ_SZ, PHIQ_OFF)
    srd(a, 44, 4, KVP_SZ, KVP_OFF)
    gemm1_variant(a, 'qkv')
    a('g1_w1:')
    srd(a, 12, 58, 1024 * 3584 * 2)
    srd(a, 40, 60, 3584 * 2)
    srd(a, 16, 4, ACT2_SZ, ACT2_OFF)
    gemm1_variant(a, 'w1')
    a('g1_exit:')
    a('s_endpgm')
    return descriptor(name, 256, 100)


def gen_o(a):
    name = 'attn_o_kernel'
    kernel_begin(a, name)
    a('s_cmp_ge_u32 s2, 256')
    a('s_cbranch_scc1 o_done')
    a('s_load_dwordx2 s[4:5], s[0:1], 88')
    a('s_load_dwordx2 s[32:33], s[0:1], 24')
    a('s_load_dwordx2 s[34:35], s[0:1], 56')
    a('v_lshrrev_b32 v1, 6, v0')
    a('v_and_b32 v2, 63, v0')
    a('s_nop 0')
    a('v_readfirstlane_b32 s20, v1')
    a('v_lshrrev_b32 v3, 4, v2')
    a('v_and_b32 v4, 15, v2')
    a('s_and_b32 s21, s2, 31')
    a('s_lshr_b32 s22, s2, 5')
    a('s_waitcnt lgkmcnt(0)')
    srd(a, 8, 4, KVP_SZ, KVP_OFF)
    srd(a, 12, 4, PHIQ_SZ, PHIQ_OFF)
    srd(a, 16, 4, ACT2_SZ, ACT2_OFF)
    srd(a, 36, 4, FLAG_SZ, FLAG_OFF)
    a('s_lshl_b32 s23, s2, 9')
    a('v_lshlrev_b32 v5, 7, v0')
    a('v_mov_b32 v6, 0')
    a('v_cmp_gt_u32 vcc, 4, v0')
    a('s_and_saveexec_b64 s[24:25], vcc')
    a('buffer_store_dword v6, v5, s[36:39], s23 offen')
    a('s_mov_b64 exec, s[24:25]')
    a('s_and_b32 s23, s20, 1')
    a('s_lshr_b32 s24, s20, 1')
    a('s_lshl_b32 s25, s23, 12')
    a('s_lshl_b32 s26, s24, 7')
    a('s_add_u32 s25, s25, s26')
    a('v_lshlrev_b32 v5, 8, v4')
    a('v_lshl_add_u32 v5, v3, 5, v5')
    a('v_add_u32 v5, s25, v5')
    a(f's_mul_i32 s27, s21, {KVP_ENT}')
    for mt in range(8):
        a(f's_add_u32 s28, s27, {mt*32*KVP_ENT}')
        a(f'buffer_load_dwordx4 v[{32+8*mt}:{35+8*mt}], v5, s[8:11], s28 offen')
        a(f'buffer_load_dwordx4 v[{36+8*mt}:{39+8*mt}], v5, s[8:11], s28 offen offset:16')
    a('s_lshl_b32 s25, s23, 7')
    a('s_add_u32 s25, s25, 8192')
    a('v_lshl_add_u32 v6, v3, 5, s25')
    for mt in range(8):
        a(f's_add_u32 s28, s27, {mt*32*KVP_ENT}')
        a(f'buffer_load_dwordx4 v[{96+8*mt}:{99+8*mt}], v6, s[8:11], s28 offen')
        a(f'buffer_load_dwordx4 v[{100+8*mt}:{103+8*mt}], v6, s[8:11], s28 offen offset:16')
    a('s_lshl_b32 s25, s22, 8')
    a('s_lshl_b32 s26, s20, 6')
    a('s_add_u32 s25, s25, s26')
    a('v_add_u32 v7, s25, v4')
    a('v_lshlrev_b32 v8, 12, v7')
    a('s_lshl_b32 s26, s21, 7')
    a('v_lshl_add_u32 v9, v3, 4, s26')
    a('v_add_u32 v8, v8, v9')
    for mb in range(4):
        a(f's_mov_b32 s28, {mb*16*4096}')
        for ks in range(2):
            d = 160 + (mb * 2 + ks) * 4
            a(f'buffer_load_dwordx4 v[{d}:{d+3}], v8, s[12:15], s28 offen offset:{ks*64}')
    npf = 0
    if OPT('O_PF'):
        srd(a, 36, 32, 1024 * 1024 * 2)
        srd(a, 40, 34, 3584 * 1024 * 2)
        a('v_lshlrev_b32 v200, 4, v0')
        a('s_lshl_b32 s44, s2, 13')
        a('s_mul_i32 s45, s2, 28672')
        for r in range(2):
            a(f'buffer_load_dwordx4 v[{204+4*r}:{207+4*r}], v200, s[36:39], s44 offen')
            a('s_add_u32 s44, s44, 4096')
        for r in range(7):
            a(f'buffer_load_dwordx4 v[{212+4*r}:{215+4*r}], v200, s[40:43], s45 offen')
            a('s_add_u32 s45, s45, 4096')
        npf = 9
    a(f's_waitcnt vmcnt({8+npf})')
    for base in (32, 96):
        for mt in range(1, 8):
            for i in range(8):
                a(f'v_add_f32 v{base+i}, v{base+i}, v{base+8*mt+i}')
    for i in range(4):
        a(f'v_cvt_pk_bf16_f32 v{12+i}, v{32+2*i}, v{33+2*i}')
        a(f'v_cvt_pk_bf16_f32 v{16+i}, v{96+2*i}, v{97+2*i}')
    a('v_lshlrev_b32 v10, 4, v2')
    a('s_lshl_b32 s25, s20, 10')
    a('v_add_u32 v11, s25, v10')
    a('ds_write_b128 v11, v[12:15]')
    a('s_cmp_ge_u32 s20, 2')
    a('s_cbranch_scc1 o_skipz')
    a('ds_write_b128 v11, v[16:19] offset:4096')
    a('o_skipz:')
    a('s_waitcnt lgkmcnt(0)')
    a('s_barrier')
    for i in range(6):
        a(f'ds_read_b128 v[{32+4*i}:{35+4*i}], v10 offset:{i*1024}')
    a(f's_waitcnt vmcnt({npf}) lgkmcnt(0)')
    NUM = 64
    DEN = 96
    for ks in range(2):
        for mb in range(4):
            pf = 160 + (mb * 2 + ks) * 4
            for db in range(2):
                d = NUM + (mb * 2 + db) * 4
                kf = 32 + (ks * 2 + db) * 4
                cc = '0' if ks == 0 else f'v[{d}:{d+3}]'
                a(f'v_mfma_f32_16x16x32_bf16 v[{d}:{d+3}], v[{kf}:{kf+3}], v[{pf}:{pf+3}], {cc}')
            d = DEN + mb * 4
            zf = 32 + (4 + ks) * 4
            cc = '0' if ks == 0 else f'v[{d}:{d+3}]'
            a(f'v_mfma_f32_16x16x32_bf16 v[{d}:{d+3}], v[{zf}:{zf+3}], v[{pf}:{pf+3}], {cc}')
    a('s_mov_b32 s30, 0xffff0000')
    a('s_mov_b32 s29, 9216')
    a('v_mul_lo_u32 v8, v7, s29')
    a('s_lshl_b32 s26, s21, 6')
    a('v_lshl_add_u32 v9, v3, 3, s26')
    a('v_add_u32 v8, v8, v9')
    for mb in range(4):
        dn = DEN + mb * 4
        round_bf16(a, dn, dn)
        a(f'v_add_f32 v{dn}, 0x{f2u(1e-6):x}, v{dn}')
        round_bf16(a, dn, dn)
        a(f'v_rcp_f32 v{dn+1}, v{dn}')
        a(f's_mov_b32 s28, {mb*16*9216}')
        for db in range(2):
            n = NUM + (mb * 2 + db) * 4
            for h in range(2):
                a(f'v_cvt_pk_bf16_f32 v{12+h}, v{n+2*h}, v{n+2*h+1}')
                a(f'v_lshlrev_b32 v{n+2*h}, 16, v{12+h}')
                a(f'v_and_b32 v{n+2*h+1}, s30, v{12+h}')
            for i in range(4):
                a(f'v_mul_f32 v{16+i}, v{n+i}, v{dn+1}')
            for i in range(4):
                a(f'v_fma_f32 v{n+i}, -v{16+i}, v{dn}, v{n+i}')
            for i in range(4):
                a(f'v_fmac_f32 v{16+i}, v{n+i}, v{dn+1}')
            o = 20 + (mb * 2 + db) * 2
            a(f'v_cvt_pk_bf16_f32 v{o}, v16, v17')
            a(f'v_cvt_pk_bf16_f32 v{o+1}, v18, v19')
            a(f'buffer_store_dwordx2 v[{o}:{o+1}], v8, s[16:19], s28 offen offset:{db*32}')
    a('o_done:')
    a('s_endpgm')
    return descriptor(name, 240, 48)


G2_A = 32768
G2_BB = 98304
G2_B = 16384
G2_LDS = G2_BB + 3 * G2_B


def gen_gemm2(a):
    name = 'gemm2_kernel'
    kernel_begin(a, name)
    a('s_cmp_ge_u32 s2, 256')
    a('s_cbranch_scc1 g2_exit')
    a('s_load_dwordx2 s[4:5], s[0:1], 88')
    a('s_load_dwordx2 s[6:7], s[0:1], 24')
    a('s_load_dwordx2 s[56:57], s[0:1], 56')
    a('s_load_dwordx2 s[58:59], s[0:1], 64')
    a('s_load_dwordx2 s[60:61], s[0:1], 0')
    a('s_load_dwordx2 s[62:63], s[0:1], 72')
    LANE, G4, L16, T = 14, 15, 16, 17
    VA2, VB2, VGA2, VGB2 = 2, 5, 9, 10
    a('v_lshrrev_b32 v1, 6, v0')
    a(f'v_and_b32 v{LANE}, 63, v0')
    a('s_nop 0')
    a('v_readfirstlane_b32 s20, v1')
    a(f'v_lshrrev_b32 v{G4}, 4, v{LANE}')
    a(f'v_and_b32 v{L16}, 15, v{LANE}')
    a('s_nop 1')
    a('s_and_b32 s21, s20, 1')
    a('s_lshr_b32 s22, s20, 1')
    a('s_and_b32 s26, s2, 7')
    a('s_lshr_b32 s27, s2, 3')
    a('s_and_b32 s24, s26, 3')
    a('s_lshl_b32 s24, s24, 2')
    a('s_and_b32 s28, s27, 3')
    a('s_add_u32 s24, s24, s28')
    a('s_lshr_b32 s25, s26, 2')
    a('s_lshl_b32 s25, s25, 3')
    a('s_lshr_b32 s28, s27, 2')
    a('s_add_u32 s25, s25, s28')
    a('s_lshl_b32 s28, s22, 2')
    a(f'v_add_u32 v{T}, s28, v{G4}')
    a(f'v_xor_b32 v{T}, v{T}, v{L16}')
    a(f'v_lshlrev_b32 v{T}, 4, v{T}')
    a(f'v_lshl_add_u32 v{T}, v{L16}, 8, v{T}')
    a('s_lshl_b32 s28, s21, 14')
    a(f'v_add_u32 v{T}, s28, v{T}')
    for sl in range(3):
        a(f'v_add_u32 v{VA2+sl}, 0x{sl*G2_A:x}, v{T}')
    a(f'v_lshrrev_b32 v{T}, 2, v{L16}')
    a(f'v_lshl_add_u32 v{T+1}, v{G4}, 3, v{T}')
    a('s_lshl_b32 s28, s22, 5')
    a(f'v_add_u32 v{T+1}, s28, v{T+1}')
    a(f'v_lshrrev_b32 v{T+2}, 1, v{T}')
    a(f'v_and_b32 v{T+3}, 1, v{G4}')
    a(f'v_lshl_or_b32 v{T+2}, v{T+3}, 1, v{T+2}')
    a(f'v_and_b32 v{T+4}, 3, v{LANE}')
    a(f'v_lshlrev_b32 v{T+4}, 3, v{T+4}')
    a(f'v_lshl_add_u32 v{T+5}, v{T+1}, 7, v{T+4}')
    a(f'v_add_u32 v{T+5}, 0x{G2_BB:x}, v{T+5}')
    for nb in range(4):
        a(f'v_xor_b32 v{T+6}, {nb}, v{T+2}')
        a(f'v_lshl_add_u32 v{VB2+nb}, v{T+6}, 5, v{T+5}')
    a('s_lshl_b32 s28, s20, 2')
    a('s_and_b32 s29, s28, 15')
    a(f'v_add_u32 v{T}, s29, v{G4}')
    a(f'v_xor_b32 v{T}, v{T}, v{L16}')
    a('s_lshl_b32 s29, s24, 7')
    a('s_add_u32 s28, s28, s29')
    a(f'v_add_u32 v{T+1}, s28, v{G4}')
    a('s_mov_b32 s29, 9216')
    a(f'v_mul_lo_u32 v{T+1}, v{T+1}, s29')
    a(f'v_lshl_add_u32 v{VGA2}, v{T}, 4, v{T+1}')
    a('s_lshl_b32 s30, s20, 10')
    a(f'v_lshrrev_b32 v{T}, 3, v{LANE}')
    a(f'v_bfe_u32 v{T+1}, v{LANE}, 4, 1')
    a('s_lshl_b32 s28, s21, 1')
    a(f'v_or_b32 v{T+1}, s28, v{T+1}')
    a(f'v_bfe_u32 v{T+2}, v{LANE}, 1, 2')
    a(f'v_xor_b32 v{T+2}, v{T+2}, v{T+1}')
    a(f'v_and_b32 v{T+3}, 1, v{LANE}')
    a(f'v_lshlrev_b32 v{T+3}, 4, v{T+3}')
    a(f'v_lshl_add_u32 v{T+3}, v{T+2}, 5, v{T+3}')
    a('s_lshl_b32 s28, s20, 3')
    a(f'v_add_u32 v{T}, s28, v{T}')
    a(f'v_lshl_add_u32 v{T}, v{T}, 11, v{T+3}')
    a('s_lshl_b32 s32, s25, 7')
    a(f'v_add_u32 v{VGB2}, s32, v{T}')
    a('s_waitcnt lgkmcnt(0)')
    srd(a, 8, 4, ACT2_SZ, ACT2_OFF)
    srd(a, 12, 6, 1024 * 1024 * 2)
    srd(a, 16, 56, 3584 * 1024 * 2)
    srd(a, 36, 58, 2048)
    srd(a, 40, 60, XN_SZ)
    srd(a, 44, 62, XN_SZ)
    stamp(a, 5, True)
    stamp(a, 0)
    ACC2 = 64
    SETS2 = (24, 128)
    for i in range(64):
        a(f'v_mov_b32 v{ACC2+i}, 0')
    vq = VQ()
    NS = 36

    def grp(j):
        sl = j % 3
        out = []
        for q in range(4):
            if OPT('G2_NOA'):
                break
            out.append(([f's_add_u32 m0, s30, 0x{sl*G2_A + q*8192:x}',
                         f's_mov_b32 s28, 0x{j*256 + q*32*9216:x}',
                         f'buffer_load_dwordx4 v{VGA2}, s[8:11], s28 offen lds'], j))
        for q in range(2):
            if OPT('G2_NOB'):
                break
            k0 = j * 128 + q * 64
            if k0 < 1024:
                sr, ko = 's[12:15]', k0
            else:
                sr, ko = 's[16:19]', k0 - 1024
            out.append(([f's_add_u32 m0, s30, 0x{G2_BB + sl*G2_B + q*8192:x}',
                         f's_mov_b32 s28, 0x{ko*2048:x}',
                         f'buffer_load_dwordx4 v{VGB2}, {sr}, s28 offen lds'], j))
        return out

    def emit_grp(g):
        for l in g[0]:
            a(l)
        vq.push(g[1])

    def issue(j):
        for g in grp(j):
            emit_grp(g)

    def frag_reads(j):
        S = SETS2[j & 1]
        sl = j % 3
        out = []
        for mb in range(4):
            out.append(f'ds_read_b128 v[{S+4*mb}:{S+4*mb+3}], v{VA2+sl} offset:{mb*4096}')
        for nb in range(4):
            d = S + 16 + 4 * nb
            for t in range(2):
                out.append(f'ds_read_b64_tr_b16 v[{d+2*t}:{d+2*t+1}], v{VB2+nb} offset:{sl*G2_B + t*512}')
        return out

    def mfmas(j):
        S = SETS2[j & 1]
        out = []
        for nb in range(4):
            for mb in range(4):
                c = ACC2 + (mb * 4 + nb) * 4
                out.append(f'v_mfma_f32_16x16x32_bf16 v[{c}:{c+3}], v[{S+16+4*nb}:{S+19+4*nb}], v[{S+4*mb}:{S+4*mb+3}], v[{c}:{c+3}]')
        return out

    issue(0); issue(1); issue(2)
    a(f's_waitcnt vmcnt({vq.wait_for({0})})')
    a('s_barrier')
    stamp(a, 1)
    for r in frag_reads(0):
        a(r)
    a('s_waitcnt lgkmcnt(0)')
    for j in range(NS):
        if j + 1 < NS:
            a(f's_waitcnt vmcnt({vq.wait_for({j + 1})})')
        a('s_barrier')
        dma = grp(j + 3) if j + 3 < NS else []
        rd = frag_reads(j + 1) if j + 1 < NS else []
        mm = mfmas(j)
        if OPT('G2_NOCOMP'):
            rd = []; mm = []
        interleave(a, mm, rd, dma, emit_grp, 0, 3)
        a('s_waitcnt lgkmcnt(0)')
    stamp(a, 2)
    a(f'v_lshlrev_b32 v{T}, 4, v{LANE}')
    a('s_lshl_b32 s28, s21, 16')
    a('s_lshl_b32 s29, s22, 12')
    a('s_add_u32 s28, s28, s29')
    a(f'v_add_u32 v{T+1}, s28, v{T}')
    for mb in range(4):
        for nb in range(4):
            c = ACC2 + (mb * 4 + nb) * 4
            a(f'ds_write_b128 v{T+1}, v[{c}:{c+3}] offset:{mb*16384 + nb*1024}')
    a('s_lshl_b32 s28, s24, 7')
    a('s_lshl_b32 s29, s21, 6')
    a('s_add_u32 s28, s28, s29')
    a('s_lshl_b32 s29, s22, 4')
    a('s_add_u32 s28, s28, s29')
    a(f'v_add_u32 v{T+2}, s28, v{L16}')
    a(f'v_lshlrev_b32 v{T+2}, 11, v{T+2}')
    a(f'v_lshl_add_u32 v{T+3}, v{G4}, 3, s32')
    a(f'v_add_u32 v{T+2}, v{T+2}, v{T+3}')
    for nb in range(4):
        a(f'buffer_load_dwordx2 v[{24+2*nb}:{25+2*nb}], v{T+2}, s[40:43], 0 offen offset:{nb*32}')
        a(f'buffer_load_dwordx2 v[{32+2*nb}:{33+2*nb}], v{T+3}, s[36:39], 0 offen offset:{nb*32}')
    a('s_waitcnt lgkmcnt(0)')
    a('s_barrier')
    a('s_lshl_b32 s28, s21, 16')
    a('s_lshl_b32 s29, s22, 14')
    a('s_add_u32 s28, s28, s29')
    a(f'v_add_u32 v{T+1}, s28, v{T}')
    for src in range(4):
        for nb in range(4):
            d = 128 + (src * 4 + nb) * 4
            a(f'ds_read_b128 v[{d}:{d+3}], v{T+1} offset:{src*4096 + nb*1024}')
    a('s_mov_b32 s50, 0xffff0000')
    a('s_waitcnt vmcnt(0) lgkmcnt(0)')
    for i in range(16):
        a(f'v_add_f32 v{128+i}, v{128+i}, v{144+i}')
        a(f'v_add_f32 v{160+i}, v{160+i}, v{176+i}')
    for i in range(16):
        a(f'v_add_f32 v{128+i}, v{128+i}, v{160+i}')
    for nb in range(4):
        for h in range(2):
            r = 128 + nb * 4 + 2 * h
            a(f'v_lshlrev_b32 v40, 16, v{24+2*nb+h}')
            a(f'v_and_b32 v41, s50, v{24+2*nb+h}')
            a(f'v_lshlrev_b32 v42, 16, v{32+2*nb+h}')
            a(f'v_and_b32 v43, s50, v{32+2*nb+h}')
            a(f'v_add_f32 v{r}, v{r}, v42')
            a(f'v_add_f32 v{r+1}, v{r+1}, v43')
            a(f'v_add_f32 v{r}, v{r}, v40')
            a(f'v_add_f32 v{r+1}, v{r+1}, v41')
            a(f'v_cvt_pk_bf16_f32 v{44+2*nb+h}, v{r}, v{r+1}')
        a(f'buffer_store_dwordx2 v[{44+2*nb}:{45+2*nb}], v{T+2}, s[44:47], 0 offen offset:{nb*32}')
    stamp(a, 3)
    if OPT('STAMP'):
        a('s_waitcnt vmcnt(0)')
    stamp(a, 4)
    stamp(a, 6, True)
    stamp_flush(a, 7, 1)
    a('g2_exit:')
    a('s_endpgm')
    return descriptor(name, 192, 100)


X_OFF = 0x2200000
X_SZ = 256 * 32768
FLAG_OFF = 0x2A00000
FLAG_SZ = 256 * 512
OFLAG_OFF = 0x2B00000
H_SLOT = 32768
H_LDS = 4 * H_SLOT


def gen_gemm2b(a):
    name = 'gemm2_kernel'
    kernel_begin(a, name)
    a('s_cmp_ge_u32 s2, 256')
    a('s_cbranch_scc1 g2_exit')
    a('s_load_dwordx2 s[4:5], s[0:1], 88')
    a('s_load_dwordx2 s[6:7], s[0:1], 24')
    a('s_load_dwordx2 s[56:57], s[0:1], 56')
    a('s_load_dwordx2 s[58:59], s[0:1], 64')
    a('s_load_dwordx2 s[60:61], s[0:1], 0')
    a('s_load_dwordx2 s[62:63], s[0:1], 72')
    a('s_load_dwordx2 s[64:65], s[0:1], 80')
    LANE, G4, L16, T = 14, 15, 16, 17
    VA2, VB2, VGA2, VGB2 = 2, 4, 9, 10
    a('v_lshrrev_b32 v1, 6, v0')
    a(f'v_and_b32 v{LANE}, 63, v0')
    a('s_nop 0')
    a('v_readfirstlane_b32 s20, v1')
    a(f'v_lshrrev_b32 v{G4}, 4, v{LANE}')
    a(f'v_and_b32 v{L16}, 15, v{LANE}')
    a('s_nop 1')
    a('s_and_b32 s21, s20, 1')
    a('s_bfe_u32 s23, s20, 0x10001')
    a('s_lshr_b32 s22, s20, 2')
    a('s_and_b32 s26, s2, 7')
    a('s_lshr_b32 s27, s2, 3')
    a('s_and_b32 s33, s26, 1')
    a('s_lshr_b32 s24, s26, 1')
    a('s_lshl_b32 s24, s24, 2')
    a('s_and_b32 s28, s27, 3')
    a('s_add_u32 s24, s24, s28')
    a('s_lshr_b32 s25, s27, 2')
    a(f'v_lshrrev_b32 v{T}, 3, v{LANE}')
    a(f'v_and_b32 v{T+1}, 7, v{LANE}')
    a(f'v_xor_b32 v{T+1}, v{T+1}, v{T}')
    a('s_lshl_b32 s28, s24, 7')
    a('s_lshl_b32 s29, s20, 3')
    a('s_add_u32 s28, s28, s29')
    a(f'v_add_u32 v{T}, s28, v{T}')
    a('s_movk_i32 s29, 9216')
    a(f'v_mul_lo_u32 v{T}, v{T}, s29')
    a(f'v_lshl_add_u32 v{T}, v{T+1}, 4, v{T}')
    a('s_mul_i32 s28, s33, 4608')
    a(f'v_add_u32 v{VGA2}, s28, v{T}')
    a('s_lshl_b32 s30, s20, 10')
    a(f'v_lshrrev_b32 v{T}, 3, v{LANE}')
    a(f'v_bfe_u32 v{T+1}, v{LANE}, 4, 1')
    a('s_lshl_b32 s28, s21, 1')
    a(f'v_or_b32 v{T+1}, s28, v{T+1}')
    a(f'v_bfe_u32 v{T+2}, v{LANE}, 1, 2')
    a(f'v_xor_b32 v{T+2}, v{T+2}, v{T+1}')
    a(f'v_and_b32 v{T+3}, 1, v{LANE}')
    a(f'v_lshlrev_b32 v{T+3}, 4, v{T+3}')
    a(f'v_lshl_add_u32 v{T+3}, v{T+2}, 5, v{T+3}')
    a('s_lshl_b32 s28, s20, 3')
    a(f'v_add_u32 v{T}, s28, v{T}')
    a(f'v_lshl_add_u32 v{T}, v{T}, 11, v{T+3}')
    a('s_lshl_b32 s32, s25, 8')
    a(f'v_add_u32 v{VGB2}, s32, v{T}')
    a('s_waitcnt lgkmcnt(0)')
    srd(a, 8, 4, ACT2_SZ, ACT2_OFF)
    a('s_cmp_eq_u32 s33, 0')
    a('s_cbranch_scc0 g2_kh1')
    srd(a, 12, 6, 1024 * 2048)
    a(f's_sub_u32 s16, s56, 0x{1024*2048:x}')
    a('s_subb_u32 s17, s57, 0')
    a('s_and_b32 s17, s17, 0xffff')
    a(f's_mov_b32 s18, 0x{4608*2048:x}')
    a('s_mov_b32 s19, 0x00020000')
    a('s_branch g2_khd')
    a('g2_kh1:')
    srd(a, 12, 56, (3584 - 1280) * 2048, 1280 * 2048)
    srd(a, 16, 56, (3584 - 1280) * 2048, 1280 * 2048)
    a('g2_khd:')
    vq = VQ()
    NS = 36

    def grp(j):
        sl = j % 4
        out = []
        for q in range(2):
            out.append(([f's_add_u32 m0, s30, 0x{sl*H_SLOT + q*8192:x}',
                         f's_mov_b32 s28, 0x{j*128 + q*64*9216:x}',
                         f'buffer_load_dwordx4 v{VGA2}, s[8:11], s28 offen lds'], j))
        sr = 's[12:15]' if j < 16 else 's[16:19]'
        for q in range(2):
            out.append(([f's_add_u32 m0, s30, 0x{sl*H_SLOT + 16384 + q*8192:x}',
                         f's_mov_b32 s28, 0x{j*64*2048 + q*128:x}',
                         f'buffer_load_dwordx4 v{VGB2}, {sr}, s28 offen lds'], j))
        return out

    def emit_grp(g):
        for l in g[0]:
            a(l)
        vq.push(g[1])

    for j in range(4):
        for g in grp(j):
            emit_grp(g)
    stamp(a, 5, True)
    stamp(a, 0)
    srd(a, 36, 58, 2048)
    srd(a, 40, 60, XN_SZ)
    srd(a, 44, 62, XN_SZ)
    srd(a, 48, 4, X_SZ, X_OFF)
    srd(a, 52, 4, FLAG_SZ, FLAG_OFF)
    a('s_lshl_b32 s28, s22, 2')
    a(f'v_add_u32 v{T}, s28, v{G4}')
    a(f'v_and_b32 v{T+1}, 7, v{LANE}')
    a(f'v_xor_b32 v{T}, v{T}, v{T+1}')
    a(f'v_lshlrev_b32 v{T}, 4, v{T}')
    a(f'v_lshl_add_u32 v{T}, v{L16}, 7, v{T}')
    a('s_lshl_b32 s28, s21, 13')
    a(f'v_add_u32 v{VA2}, s28, v{T}')
    a(f'v_add_u32 v{VA2+1}, 0x10000, v{VA2}')
    a(f'v_lshrrev_b32 v{T}, 2, v{L16}')
    a(f'v_lshl_add_u32 v{T+1}, v{G4}, 3, v{T}')
    a('s_lshl_b32 s28, s22, 5')
    a(f'v_add_u32 v{T+1}, s28, v{T+1}')
    a(f'v_lshrrev_b32 v{T+2}, 1, v{T}')
    a(f'v_and_b32 v{T+3}, 1, v{G4}')
    a(f'v_lshl_or_b32 v{T+2}, v{T+3}, 1, v{T+2}')
    a(f'v_and_b32 v{T+4}, 3, v{LANE}')
    a(f'v_lshlrev_b32 v{T+4}, 3, v{T+4}')
    a(f'v_lshl_add_u32 v{T+5}, v{T+1}, 7, v{T+4}')
    a('s_lshl_b32 s28, s23, 13')
    a('s_add_u32 s28, s28, 16384')
    a(f'v_add_u32 v{T+5}, s28, v{T+5}')
    for nb in range(4):
        a(f'v_xor_b32 v{T+6}, {nb}, v{T+2}')
        a(f'v_lshl_add_u32 v{VB2+nb}, v{T+6}, 5, v{T+5}')
        a(f'v_add_u32 v{24+nb}, 0x10000, v{VB2+nb}')
    ACC2 = 64
    SETS2 = (32, 128)
    for i in range(64):
        a(f'v_mov_b32 v{ACC2+i}, 0')

    def frag_reads(j):
        S = SETS2[j & 1]
        sl = j % 4
        hi = sl >> 1
        so = (sl & 1) * H_SLOT
        out = []
        for mb in range(4):
            out.append(f'ds_read_b128 v[{S+4*mb}:{S+4*mb+3}], v{VA2+hi} offset:{so + mb*2048}')
        for nb in range(4):
            d = S + 16 + 4 * nb
            vb = (24 if hi else VB2) + nb
            for t in range(2):
                out.append(f'ds_read_b64_tr_b16 v[{d+2*t}:{d+2*t+1}], v{vb} offset:{so + t*512}')
        return out

    def mfmas(j):
        S = SETS2[j & 1]
        out = []
        for nb in range(4):
            for mb in range(4):
                c = ACC2 + (mb * 4 + nb) * 4
                out.append(f'v_mfma_f32_16x16x32_bf16 v[{c}:{c+3}], v[{S+16+4*nb}:{S+19+4*nb}], v[{S+4*mb}:{S+4*mb+3}], v[{c}:{c+3}]')
        return out

    a(f's_waitcnt vmcnt({vq.wait_for({0})})')
    a('s_barrier')
    stamp(a, 1)
    for r in frag_reads(0):
        a(r)
    a('s_waitcnt lgkmcnt(0)')
    for j in range(NS):
        if j + 1 < NS:
            a(f's_waitcnt vmcnt({vq.wait_for({j + 1})})')
        a('s_barrier')
        dma = grp(j + 4) if j + 4 < NS else []
        rd = frag_reads(j + 1) if j + 1 < NS else []
        mm = mfmas(j)
        interleave(a, mm, rd, dma, emit_grp, 0, 4)
        a('s_waitcnt lgkmcnt(0)')
    stamp(a, 2)
    a(f'v_lshlrev_b32 v{T}, 4, v{LANE}')
    a('s_and_b32 s28, s20, 3')
    a('s_lshl_b32 s28, s28, 14')
    a('s_xor_b32 s29, s22, 1')
    a('s_lshl_b32 s29, s29, 13')
    a('s_add_u32 s29, s29, s28')
    a(f'v_add_u32 v{T+1}, s29, v{T}')
    a('s_lshl_b32 s29, s22, 13')
    a('s_add_u32 s29, s29, s28')
    a(f'v_add_u32 v{T+2}, s29, v{T}')
    a('s_cmp_eq_u32 s22, 0')
    a('s_cbranch_scc0 g2_ks1')
    for r in range(8):
        a(f'ds_write_b128 v{T+1}, v[{ACC2+32+4*r}:{ACC2+35+4*r}] offset:{r*1024}')
    a('s_branch g2_ksd')
    a('g2_ks1:')
    for r in range(8):
        a(f'ds_write_b128 v{T+1}, v[{ACC2+4*r}:{ACC2+3+4*r}] offset:{r*1024}')
    for r in range(32):
        a(f'v_mov_b32 v{ACC2+r}, v{ACC2+32+r}')
    a('g2_ksd:')
    a('s_waitcnt lgkmcnt(0)')
    a('s_barrier')
    for r in range(8):
        a(f'ds_read_b128 v[{128+4*r}:{131+4*r}], v{T+2} offset:{r*1024}')
    a('s_waitcnt lgkmcnt(0)')
    for r in range(32):
        a(f'v_add_f32 v{ACC2+r}, v{ACC2+r}, v{128+r}')
    a('s_lshl_b32 s28, s21, 1')
    a('s_add_u32 s28, s28, s22')
    a('s_lshl_b32 s67, s28, 7')
    a('s_lshl_b32 s28, s28, 13')
    a(f'v_add_u32 v{T+1}, s28, v{T}')
    a('s_cmp_eq_u32 s23, s33')
    a('s_cbranch_scc1 g2_recv')
    a('s_lshl_b32 s28, s2, 15')
    for r in range(8):
        a(f'buffer_store_dwordx4 v[{ACC2+4*r}:{ACC2+3+4*r}], v{T+1}, s[48:51], s28 offen offset:{r*1024 if r < 4 else (r-4)*1024} sc1' if r < 4 else
          f'buffer_store_dwordx4 v[{ACC2+4*r}:{ACC2+3+4*r}], v{T+1}, s[48:51], s29 offen offset:{(r-4)*1024} sc1')
        if r == 3:
            a('s_add_u32 s29, s28, 4096')
    a('s_waitcnt vmcnt(0)')
    a('s_lshl_b32 s28, s2, 9')
    a('s_add_u32 s28, s28, s67')
    a('v_mov_b32 v1, 1')
    a('v_mov_b32 v2, s28')
    a('s_mov_b64 exec, 1')
    a('buffer_store_dword v1, v2, s[52:55], 0 offen sc1')
    a('s_branch g2_fin')
    a('g2_recv:')
    a('s_lshl_b32 s28, s24, 7')
    a('s_lshl_b32 s29, s21, 6')
    a('s_add_u32 s28, s28, s29')
    a('s_lshl_b32 s29, s22, 5')
    a('s_add_u32 s28, s28, s29')
    a(f'v_add_u32 v{T+2}, s28, v{L16}')
    a(f'v_lshlrev_b32 v{T+2}, 11, v{T+2}')
    a('s_lshl_b32 s29, s23, 7')
    a('s_add_u32 s29, s29, s32')
    a(f'v_lshl_add_u32 v{T+3}, v{G4}, 3, s29')
    a(f'v_add_u32 v{T+2}, v{T+2}, v{T+3}')
    a('s_mov_b32 s34, 32768')
    for e in range(2):
        for nb in range(4):
            so = '0' if e == 0 else 's34'
            a(f'buffer_load_dwordx2 v[{32+8*e+2*nb}:{33+8*e+2*nb}], v{T+2}, s[40:43], {so} offen offset:{nb*32}')
    for nb in range(4):
        a(f'buffer_load_dwordx2 v[{48+2*nb}:{49+2*nb}], v{T+3}, s[36:39], 0 offen offset:{nb*32}')
    a('s_xor_b32 s35, s2, 1')
    a('s_lshl_b32 s28, s35, 9')
    a('s_add_u32 s28, s28, s67')
    a('v_mov_b32 v2, s28')
    a('g2_poll:')
    a('buffer_load_dword v1, v2, s[52:55], 0 offen sc1')
    a('s_waitcnt vmcnt(0)')
    a('v_readfirstlane_b32 s28, v1')
    a('s_nop 3')
    a('s_cmp_eq_u32 s28, 1')
    a('s_cbranch_scc1 g2_ready')
    a('s_sleep 1')
    a('s_branch g2_poll')
    a('g2_ready:')
    a('s_lshl_b32 s28, s35, 15')
    a('s_add_u32 s29, s28, 4096')
    for r in range(8):
        a(f'buffer_load_dwordx4 v[{128+4*r}:{131+4*r}], v{T+1}, s[48:51], s{28 if r < 4 else 29} offen offset:{(r % 4)*1024} sc1')
    a('s_mov_b32 s66, 0xffff0000')
    a('s_waitcnt vmcnt(0)')
    for r in range(32):
        a(f'v_add_f32 v{ACC2+r}, v{ACC2+r}, v{128+r}')
    for e in range(2):
        for nb in range(4):
            for h in range(2):
                r = ACC2 + (e * 4 + nb) * 4 + 2 * h
                xr = 32 + 8 * e + 2 * nb + h
                br = 48 + 2 * nb + h
                a(f'v_lshlrev_b32 v56, 16, v{xr}')
                a(f'v_and_b32 v57, s66, v{xr}')
                a(f'v_lshlrev_b32 v58, 16, v{br}')
                a(f'v_and_b32 v59, s66, v{br}')
                a(f'v_add_f32 v{r}, v{r}, v58')
                a(f'v_add_f32 v{r+1}, v{r+1}, v59')
                a(f'v_add_f32 v{r}, v{r}, v56')
                a(f'v_add_f32 v{r+1}, v{r+1}, v57')
                a(f'v_cvt_pk_bf16_f32 v{160+(e*4+nb)*2+h}, v{r}, v{r+1}')
            o = 160 + (e * 4 + nb) * 2
            so = '0' if e == 0 else 's34'
            a(f'buffer_store_dwordx2 v[{o}:{o+1}], v{T+2}, s[44:47], {so} offen offset:{nb*32}')
    a('g2_fin:')
    stamp(a, 3)
    if OPT('STAMP'):
        a('s_waitcnt vmcnt(0)')
    stamp(a, 4)
    stamp(a, 6, True)
    stamp_flush(a, 7, 1)
    a('g2_exit:')
    a('s_endpgm')
    return descriptor(name, 192, 100)


def gen_gemm2c(a):
    STAMP_REGS[:] = [96, 97, 98, 99, 100, 101, 75]
    name = 'gemm2_kernel'
    kernel_begin(a, name)
    a('s_cmp_ge_u32 s2, 256')
    a('s_cbranch_scc1 g2_exit')
    a('s_load_dwordx2 s[4:5], s[0:1], 88')
    a('s_load_dwordx2 s[6:7], s[0:1], 24')
    a('s_load_dwordx2 s[56:57], s[0:1], 56')
    a('s_load_dwordx2 s[58:59], s[0:1], 64')
    a('s_load_dwordx2 s[60:61], s[0:1], 0')
    a('s_load_dwordx2 s[62:63], s[0:1], 72')
    a('s_load_dwordx2 s[64:65], s[0:1], 80')
    LANE, G4, L16, T = 14, 15, 16, 17
    VA2, VB2, VGA2, VGB2 = 2, 4, 9, 10
    a('v_lshrrev_b32 v1, 6, v0')
    a(f'v_and_b32 v{LANE}, 63, v0')
    a('s_nop 0')
    a('v_readfirstlane_b32 s20, v1')
    a(f'v_lshrrev_b32 v{G4}, 4, v{LANE}')
    a(f'v_and_b32 v{L16}, 15, v{LANE}')
    a('s_nop 1')
    a('s_and_b32 s21, s20, 1')
    a('s_bfe_u32 s23, s20, 0x10001')
    a('s_lshr_b32 s22, s20, 2')
    a('s_and_b32 s26, s2, 7')
    a('s_lshr_b32 s27, s2, 3')
    a('s_and_b32 s33, s26, 1')
    a('s_lshr_b32 s24, s26, 1')
    a('s_lshl_b32 s24, s24, 2')
    a('s_and_b32 s28, s27, 3')
    a('s_add_u32 s24, s24, s28')
    a('s_lshr_b32 s25, s27, 2')
    a('s_lshl_b32 s28, s20, 11')
    a('s_lshl_b32 s29, s24, 7')
    a('s_add_u32 s28, s28, s29')
    a(f'v_add_u32 v{T}, s28, v{LANE}')
    a(f'v_lshlrev_b32 v{VGA2}, 4, v{T}')
    a('s_lshl_b32 s31, s20, 11')
    a('s_lshl_b32 s30, s20, 10')
    a(f'v_lshrrev_b32 v{T}, 3, v{LANE}')
    a(f'v_bfe_u32 v{T+1}, v{LANE}, 4, 1')
    a('s_lshl_b32 s28, s21, 1')
    a(f'v_or_b32 v{T+1}, s28, v{T+1}')
    a(f'v_bfe_u32 v{T+2}, v{LANE}, 1, 2')
    a(f'v_xor_b32 v{T+2}, v{T+2}, v{T+1}')
    a(f'v_and_b32 v{T+3}, 1, v{LANE}')
    a(f'v_lshlrev_b32 v{T+3}, 4, v{T+3}')
    a(f'v_lshl_add_u32 v{T+3}, v{T+2}, 5, v{T+3}')
    a('s_lshl_b32 s28, s20, 3')
    a(f'v_add_u32 v{T}, s28, v{T}')
    a(f'v_lshl_add_u32 v{T}, v{T}, 11, v{T+3}')
    a('s_lshl_b32 s32, s25, 8')
    a(f'v_add_u32 v{VGB2}, s32, v{T}')
    a('s_waitcnt lgkmcnt(0)')
    srd(a, 8, 4, ACT2_SZ, ACT2_OFF)
    a(f's_mul_i32 s28, s33, 0x{1792*2048:x}')
    a('s_add_u32 s12, s56, s28')
    a('s_addc_u32 s13, s57, 0')
    a('s_and_b32 s13, s13, 0xffff')
    a(f's_mov_b32 s14, 0x{1792*2048:x}')
    a('s_mov_b32 s15, 0x00020000')
    a('s_lshl_b32 s28, s33, 20')
    a('s_add_u32 s16, s6, s28')
    a('s_addc_u32 s17, s7, 0')
    a(f's_sub_u32 s16, s16, 0x{1792*2048:x}')
    a('s_subb_u32 s17, s17, 0')
    a('s_and_b32 s17, s17, 0xffff')
    a(f's_mov_b32 s18, 0x{36*131072:x}')
    a('s_mov_b32 s19, 0x00020000')
    a(f's_mul_i32 s68, s33, 0x{224*32768:x}')
    a(f's_add_u32 s68, s68, 0x{128*32768:x}')
    a('s_lshl_b32 s69, s33, 21')
    a(f's_sub_u32 s69, s69, 0x{224*32768:x}')
    vq = VQ()
    NS = 36

    def grp(j):
        sl = j % 4
        out = []
        for q in range(2):
            out.append(([f's_add_u32 m0, s31, 0x{sl*H_SLOT + q*1024:x}',
                         f's_add_u32 s28, s{68 if j < 28 else 69}, 0x{j*8*32768 + q*1024:x}',
                         f'buffer_load_dwordx4 v{VGA2}, s[8:11], s28 offen lds'], j))
        sr = 's[12:15]' if j < 28 else 's[16:19]'
        for q in range(2):
            out.append(([f's_add_u32 m0, s30, 0x{sl*H_SLOT + 16384 + q*8192:x}',
                         f's_mov_b32 s28, 0x{j*64*2048 + q*128:x}',
                         f'buffer_load_dwordx4 v{VGB2}, {sr}, s28 offen lds'], j))
        return out

    def emit_grp(g):
        for l in g[0]:
            a(l)
        vq.push(g[1])

    for j in range(4):
        for g in grp(j):
            emit_grp(g)
    stamp(a, 5, True)
    stamp(a, 0)
    srd(a, 80, 4, KVP_SZ, KVP_OFF)
    srd(a, 84, 4, PHIQ_SZ, PHIQ_OFF)
    a('s_and_b32 s70, s2, 31')
    a('s_lshr_b32 s71, s2, 5')
    a('s_lshl_b32 s28, s21, 12')
    a('s_bfe_u32 s29, s20, 0x10001')
    a('s_lshl_b32 s29, s29, 11')
    a('s_add_u32 s28, s28, s29')
    a(f'v_lshl_add_u32 v{T}, v{LANE}, 4, s28')
    a(f'v_add_u32 v{T+1}, 1024, v{T}')
    a('s_lshl_b32 s29, s21, 7')
    a('s_add_u32 s29, s29, 8192')
    a(f'v_lshl_add_u32 v{T+2}, v{G4}, 4, s29')
    a(f'v_add_u32 v{T+3}, 64, v{T+2}')
    a('s_cmp_lt_u32 s20, 4')
    a('s_cselect_b64 s[34:35], -1, 0')
    a(f'v_cndmask_b32 v{T}, v{T+2}, v{T}, s[34:35]')
    a(f'v_cndmask_b32 v13, v{T+3}, v{T+1}, s[34:35]')
    a('s_cselect_b32 s94, -1, 0x00010001')
    a('s_mov_b32 s95, s94')
    a(f's_mul_i32 s72, s70, {8*KVP_ENT}')
    a(f'v_mov_b32 v11, v{T}')
    ogrp = []
    for mt in range(8):
        ogrp.append(([f's_add_u32 s28, s72, {mt*KVP_ENT}', 's_mov_b64 exec, s[94:95]',
                      f'buffer_load_dwordx4 v[{160+8*mt}:{163+8*mt}], v11, s[80:83], s28 offen', 's_mov_b64 exec, -1'], 'o'))
        ogrp.append(([f's_add_u32 s28, s72, {mt*KVP_ENT}', 's_mov_b64 exec, s[94:95]',
                      f'buffer_load_dwordx4 v[{164+8*mt}:{167+8*mt}], v13, s[80:83], s28 offen', 's_mov_b64 exec, -1'], 'o'))
    a('s_lshl_b32 s28, s71, 8')
    a('s_lshl_b32 s29, s20, 5')
    a('s_add_u32 s28, s28, s29')
    a(f'v_add_u32 v{T+1}, s28, v{L16}')
    a('s_lshl_b32 s28, s71, 4')
    a('s_lshl_b32 s29, s20, 1')
    a('s_add_u32 s28, s28, s29')
    a('s_lshl_b32 s28, s28, 10')
    a('s_lshl_b32 s29, s70, 17')
    a('s_add_u32 s28, s28, s29')
    a(f'v_lshl_add_u32 v12, v{LANE}, 4, s28')
    a('s_lshl_b32 s28, s70, 11')
    a('s_add_u32 s28, s28, 0x400000')
    a(f'v_lshl_add_u32 v27, v{LANE}, 4, s28')
    for mb in range(2):
        ogrp.append(([f'buffer_load_dwordx4 v[{224+4*mb}:{227+4*mb}], v12, s[84:87], 0 offen offset:{mb*1024}'], 'oq'))
    for fb in range(2):
        ogrp.append(([f'buffer_load_dwordx4 v[{232+4*fb}:{235+4*fb}], v27, s[84:87], 0 offen offset:{fb*1024}'], 'oq'))
    a('s_lshl_b32 s28, s71, 8')
    a('s_lshl_b32 s29, s20, 5')
    a('s_add_u32 s28, s28, s29')
    a('s_lshl_b32 s29, s70, 13')
    a('s_add_u32 s28, s28, s29')
    a(f'v_add_u32 v28, s28, v{L16}')
    a(f'v_and_b32 v{T+3}, 1, v{G4}')
    a(f'v_lshl_add_u32 v28, v{T+3}, 4, v28')
    a(f'v_lshrrev_b32 v{T+3}, 1, v{G4}')
    a(f'v_lshl_add_u32 v28, v{T+3}, 11, v28')
    a('v_lshlrev_b32 v28, 4, v28')
    a(f'v_lshlrev_b32 v29, 4, v{LANE}')
    a(f'v_add_u32 v29, 0x{H_LDS:x}, v29')
    a('v_add_u32 v30, s30, v29')
    a(f'v_lshlrev_b32 v26, 8, v{G4}')
    a(f'v_add_u32 v26, 0x{H_LDS:x}, v26')

    def o_phase0(a):
        a.mark('vmwait')
        for mt in range(1, 8):
            for i in range(8):
                a(f'v_add_f32 v{160+i}, v{160+i}, v{160+8*mt+i}')
        for i in range(4):
            a(f'v_cvt_pk_bf16_f32 v{168+i}, v{160+2*i}, v{161+2*i}')
        a('s_mov_b64 exec, s[94:95]\nds_write_b128 v30, v[168:171]\ns_mov_b64 exec, -1')

    def o_phase1(a):
        a.mark('vmwait')
        PQ = 172
        for mb in range(2):
            for fb in range(2):
                d = PQ + (mb * 2 + fb) * 4
                a(f'v_mfma_f32_16x16x32_bf16 v[{d}:{d+3}], v[{232+4*fb}:{235+4*fb}], v[{224+4*mb}:{227+4*mb}], 0')
        a('s_mov_b32 s66, 0xffff0000')
        a(f's_mov_b32 s76, 0x{LOG2E:x}')
        for i in range(0, 16, 2):
            r = PQ + i
            a(f'v_cvt_pk_bf16_f32 v{160+(i>>1)}, v{r}, v{r+1}')
            a(f'v_lshlrev_b32 v{r}, 16, v{160+(i>>1)}')
            a(f'v_and_b32 v{r+1}, s66, v{160+(i>>1)}')
        MX, MN, S1, S2, E = 160, 162, 164, 166, 188
        for mb in range(2):
            p = PQ + mb * 8
            a(f'v_max3_f32 v{MX+mb}, v{p}, v{p+1}, v{p+2}')
            a(f'v_min3_f32 v{MN+mb}, v{p}, v{p+1}, v{p+2}')
            a(f'v_max3_f32 v{MX+mb}, v{MX+mb}, v{p+3}, v{p+4}')
            a(f'v_min3_f32 v{MN+mb}, v{MN+mb}, v{p+3}, v{p+4}')
            a(f'v_max3_f32 v{MX+mb}, v{MX+mb}, v{p+5}, v{p+6}')
            a(f'v_min3_f32 v{MN+mb}, v{MN+mb}, v{p+5}, v{p+6}')
            a(f'v_max_f32 v{MX+mb}, v{MX+mb}, v{p+7}')
            a(f'v_min_f32 v{MN+mb}, v{MN+mb}, v{p+7}')
        for mb in range(2):
            cross_groups(a, 'v_max_f32', MX + mb, 220)
            cross_groups(a, 'v_min_f32', MN + mb, 221)
        for mb in range(2):
            a(f'v_mul_f32 v{MX+mb}, s76, v{MX+mb}')
            a(f'v_mul_f32 v{MN+mb}, s76, v{MN+mb}')
        for mb in range(2):
            p = PQ + mb * 8
            e = E + mb * 16
            for i in range(8):
                a(f'v_fma_f32 v{e+i}, v{p+i}, s76, -v{MX+mb}')
                a(f'v_fma_f32 v{e+8+i}, -v{p+i}, s76, v{MN+mb}')
        for i in range(32):
            a(f'v_exp_f32 v{E+i}, v{E+i}')
        for mb in range(2):
            e = E + mb * 16
            for (S, b) in ((S1, e), (S2, e + 8)):
                a(f'v_add_f32 v{S+mb}, v{b}, v{b+1}')
                for i in range(2, 8):
                    a(f'v_add_f32 v{S+mb}, v{S+mb}, v{b+i}')
        for mb in range(2):
            cross_groups(a, 'v_add_f32', S1 + mb, 220)
            cross_groups(a, 'v_add_f32', S2 + mb, 221)
        for mb in range(2):
            a(f'v_rcp_f32 v{S1+mb}, v{S1+mb}')
            a(f'v_rcp_f32 v{S2+mb}, v{S2+mb}')
        for mb in range(2):
            e = E + mb * 16
            for i in range(8):
                a(f'v_mul_f32 v{e+i}, v{e+i}, v{S1+mb}')
                a(f'v_mul_f32 v{e+8+i}, v{e+8+i}, v{S2+mb}')
        for mb in range(2):
            for i in range(8):
                a(f'v_cvt_pk_bf16_f32 v{224+8*mb+i}, v{E+16*mb+2*i}, v{E+16*mb+2*i+1}')

    def o_phase2(a):
        KF0, NUM, DEN = 160, 184, 200
        for i in range(6):
            a(f'ds_read_b128 v[{KF0+4*i}:{KF0+3+4*i}], v{29 if i < 4 else 26} offset:{i*1024}')
        a('s_waitcnt lgkmcnt(0)')
        for ks in range(2):
            for mb in range(2):
                pf = 224 + (mb * 2 + ks) * 4
                for db in range(2):
                    d = NUM + (mb * 2 + db) * 4
                    kf = KF0 + (ks * 2 + db) * 4
                    cc = '0' if ks == 0 else f'v[{d}:{d+3}]'
                    a(f'v_mfma_f32_16x16x32_bf16 v[{d}:{d+3}], v[{kf}:{kf+3}], v[{pf}:{pf+3}], {cc}')
                d = DEN + mb * 4
                zf = KF0 + (4 + ks) * 4
                cc = '0' if ks == 0 else f'v[{d}:{d+3}]'
                a(f'v_mfma_f32_16x16x32_bf16 v[{d}:{d+3}], v[{zf}:{zf+3}], v[{pf}:{pf+3}], {cc}')
        a('s_mov_b32 s66, 0xffff0000')
        a(f's_mov_b32 s73, {2*32768}')
        for mb in range(2):
            dn = DEN + mb * 4
            round_bf16(a, dn, dn)
            a(f'v_add_f32 v{dn}, 0x{f2u(1e-6):x}, v{dn}')
            round_bf16(a, dn, dn)
            a(f'v_rcp_f32 v{dn+1}, v{dn}')
            for db in range(2):
                n = NUM + (mb * 2 + db) * 4
                for h in range(2):
                    a(f'v_cvt_pk_bf16_f32 v{208+h}, v{n+2*h}, v{n+2*h+1}')
                    a(f'v_lshlrev_b32 v{n+2*h}, 16, v{208+h}')
                    a(f'v_and_b32 v{n+2*h+1}, s66, v{208+h}')
                for i in range(4):
                    a(f'v_mul_f32 v{212+i}, v{n+i}, v{dn+1}')
                for i in range(4):
                    a(f'v_fma_f32 v{n+i}, -v{212+i}, v{dn}, v{n+i}')
                for i in range(4):
                    a(f'v_fmac_f32 v{212+i}, v{n+i}, v{dn+1}')
                o = 216 + db * 4 + mb * 2
                a(f'v_cvt_pk_bf16_f32 v{o}, v212, v213')
                a(f'v_cvt_pk_bf16_f32 v{o+1}, v214, v215')
        for db in range(2):
            o = 216 + db * 4
            a(f'v_permlane16_swap_b32 v{o}, v{o+2}')
            a(f'v_permlane16_swap_b32 v{o+1}, v{o+3}')
            a(f'buffer_store_dwordx4 v[{o}:{o+3}], v28, s[8:11], {"0" if db == 0 else "s73"} offen sc1')
            a.mark('os')

    class Collector:
        def __init__(self):
            self.items = []

        def __call__(self, text):
            self.items.append(text)

        def mark(self, m):
            self.items.append((m,))

    def emit_item(it):
        if isinstance(it, tuple):
            if it[0] == 'vmwait':
                a(f's_waitcnt vmcnt({vq.wait_for({"o", "oq"})})')
            else:
                vq.push('os')
        else:
            a(it)

    oc0 = Collector(); o_phase0(oc0)
    oc1 = Collector(); o_phase1(oc1)
    oc2 = Collector(); o_phase2(oc2)

    srd(a, 88, 4, 1024, OFLAG_OFF)
    srd(a, 36, 58, 2048)
    srd(a, 40, 60, XN_SZ)
    srd(a, 44, 62, XN_SZ)
    srd(a, 48, 4, X_SZ, X_OFF)
    srd(a, 52, 4, FLAG_SZ, FLAG_OFF)
    a('s_lshl_b32 s28, s22, 2')
    a(f'v_add_u32 v{T}, s28, v{G4}')
    a(f'v_lshlrev_b32 v{T}, 11, v{T}')
    a(f'v_lshl_add_u32 v{T}, v{L16}, 4, v{T}')
    a('s_lshl_b32 s28, s21, 10')
    a(f'v_add_u32 v{VA2}, s28, v{T}')
    a(f'v_add_u32 v{VA2+1}, 0x10000, v{VA2}')
    a(f'v_lshrrev_b32 v{T}, 2, v{L16}')
    a(f'v_lshl_add_u32 v{T+1}, v{G4}, 3, v{T}')
    a('s_lshl_b32 s28, s22, 5')
    a(f'v_add_u32 v{T+1}, s28, v{T+1}')
    a(f'v_lshrrev_b32 v{T+2}, 1, v{T}')
    a(f'v_and_b32 v{T+3}, 1, v{G4}')
    a(f'v_lshl_or_b32 v{T+2}, v{T+3}, 1, v{T+2}')
    a(f'v_and_b32 v{T+4}, 3, v{LANE}')
    a(f'v_lshlrev_b32 v{T+4}, 3, v{T+4}')
    a(f'v_lshl_add_u32 v{T+5}, v{T+1}, 7, v{T+4}')
    a('s_lshl_b32 s28, s23, 13')
    a('s_add_u32 s28, s28, 16384')
    a(f'v_add_u32 v{T+5}, s28, v{T+5}')
    for nb in range(4):
        a(f'v_xor_b32 v{T+6}, {nb}, v{T+2}')
        a(f'v_lshl_add_u32 v{VB2+nb}, v{T+6}, 5, v{T+5}')
        a(f'v_add_u32 v{240+nb}, 0x10000, v{VB2+nb}')
    ACC2 = 64
    SETS2 = (32, 128)
    for i in range(64):
        a(f'v_mov_b32 v{ACC2+i}, 0')

    def frag_reads(j):
        S = SETS2[j & 1]
        sl = j % 4
        hi = sl >> 1
        so = (sl & 1) * H_SLOT
        out = []
        for mb in range(4):
            out.append(f'ds_read_b128 v[{S+4*mb}:{S+4*mb+3}], v{VA2+hi} offset:{so + mb*256}')
        for nb in range(4):
            d = S + 16 + 4 * nb
            vb = (240 if hi else VB2) + nb
            for t in range(2):
                out.append(f'ds_read_b64_tr_b16 v[{d+2*t}:{d+2*t+1}], v{vb} offset:{so + t*512}')
        return out

    def mfmas(j):
        S = SETS2[j & 1]
        out = []
        for nb in range(4):
            for mb in range(4):
                c = ACC2 + (mb * 4 + nb) * 4
                out.append(f'v_mfma_f32_16x16x32_bf16 v[{c}:{c+3}], v[{S+16+4*nb}:{S+19+4*nb}], v[{S+4*mb}:{S+4*mb+3}], v[{c}:{c+3}]')
        return out

    a(f's_waitcnt vmcnt({vq.wait_for({0})})')
    a('s_barrier')
    stamp(a, 1)
    for r in frag_reads(0):
        a(r)
    a('s_waitcnt lgkmcnt(0)')
    for j in range(NS):
        if j + 1 < NS:
            a(f's_waitcnt vmcnt({vq.wait_for({j + 1})})')
        a('s_barrier')
        if OPT('STAMP_IT'):
            its = [int(x) for x in OPT('STAMP_IT').split(',')]
            if j in its:
                stamp(a, 2 + its.index(j))
        OJ = int(OPT('OJ', '0'))
        OP0, OP1, OP2, OPE, OFL = 6, 8, 16, 18, 22
        if j == OFL:
            a('s_cmp_lg_u32 s20, 0')
            a('s_cbranch_scc1 g2_noflag')
            a('s_lshl_b32 s28, s2, 2 ; @skip')
            a('v_mov_b32 v1, 1 ; @skip')
            a('v_mov_b32 v31, s28 ; @skip')
            a('s_mov_b64 exec, 1 ; @skip')
            a('buffer_store_dword v1, v31, s[88:91], 0 offen sc1 ; @skip')
            a('s_mov_b64 exec, -1 ; @skip')
            a('g2_noflag:')
        if j == 24:
            if OPT('STAMP2') and not OPT('STAMP3') and not OPT('STAMP_IT'):
                stamp(a, 2)
            a('s_lshr_b32 s28, s24, 1')
            a('s_lshl_b32 s28, s28, 7')
            a(f'v_and_b32 v31, 31, v{LANE}')
            a('v_lshlrev_b32 v31, 2, v31')
            a('g2_opoll:')
            a('buffer_load_dword v1, v31, s[88:91], s28 offen sc1')
            a('s_waitcnt vmcnt(0)')
            a('v_cmp_ne_u32 vcc, 1, v1')
            a('s_nop 3')
            a('s_cmp_eq_u64 vcc, 0')
            a('s_cbranch_scc1 g2_opolled')
            a('s_sleep 1')
            a('s_branch g2_opoll')
            a('g2_opolled:')
            if OPT('STAMP2') and not OPT('STAMP3') and not OPT('STAMP_IT'):
                stamp(a, 3)
        dma = grp(j + 4) if j + 4 < NS else []
        if j < 4:
            dma += ogrp[4 * j:4 * j + 4]
        if j == 4:
            dma += ogrp[16:]
        rd = frag_reads(j + 1) if j + 1 < NS else []
        mm = mfmas(j)
        src = oc0.items if OP0 <= j < OP1 else oc1.items if OP1 <= j < OP2 else (oc2.items if OP2 <= j <= OPE else None)
        if src:
            left = (OP1 - j) if j < OP1 else (OP2 - j) if j < OP2 else (OPE + 1 - j)
            share = -(-len(src) // left)
            chunk = -(-share // len(mm))
            fill = [src[:share][k:k + chunk] for k in range(0, share, chunk)]
            del src[:share]
            rd2 = list(rd); dm2 = list(dma)
            for idx, m in enumerate(mm):
                a(m)
                if dm2 and idx % 4 == 0:
                    emit_grp(dm2.pop(0))
                elif rd2:
                    a(rd2.pop(0))
                if fill:
                    for it in fill.pop(0):
                        emit_item(it)
            for r in rd2:
                a(r)
            for gg in dm2:
                emit_grp(gg)
            for f in fill:
                for it in f:
                    emit_item(it)
        else:
            interleave(a, mm, rd, dma, emit_grp, 0, 4 if j > 4 else 2)
        a('s_waitcnt lgkmcnt(0)')
    stamp(a, 4 if OPT('STAMP2') else 2)
    a(f'v_lshlrev_b32 v{T}, 4, v{LANE}')
    a('s_and_b32 s28, s20, 3')
    a('s_lshl_b32 s28, s28, 14')
    a('s_xor_b32 s29, s22, 1')
    a('s_lshl_b32 s29, s29, 13')
    a('s_add_u32 s29, s29, s28')
    a(f'v_add_u32 v{T+1}, s29, v{T}')
    a('s_lshl_b32 s29, s22, 13')
    a('s_add_u32 s29, s29, s28')
    a(f'v_add_u32 v{T+2}, s29, v{T}')
    a('s_cmp_eq_u32 s22, 0')
    a('s_cbranch_scc0 g2_ks1')
    for r in range(8):
        a(f'ds_write_b128 v{T+1}, v[{ACC2+32+4*r}:{ACC2+35+4*r}] offset:{r*1024}')
    a('s_branch g2_ksd')
    a('g2_ks1:')
    for r in range(8):
        a(f'ds_write_b128 v{T+1}, v[{ACC2+4*r}:{ACC2+3+4*r}] offset:{r*1024}')
    for r in range(32):
        a(f'v_mov_b32 v{ACC2+r}, v{ACC2+32+r}')
    a('g2_ksd:')
    a('s_waitcnt lgkmcnt(0)')
    a('s_barrier')
    for r in range(8):
        a(f'ds_read_b128 v[{128+4*r}:{131+4*r}], v{T+2} offset:{r*1024}')
    a('s_waitcnt lgkmcnt(0)')
    for r in range(32):
        a(f'v_add_f32 v{ACC2+r}, v{ACC2+r}, v{128+r}')
    a('s_lshl_b32 s28, s21, 1')
    a('s_add_u32 s28, s28, s22')
    a('s_lshl_b32 s67, s28, 7')
    a('s_lshl_b32 s28, s28, 13')
    a(f'v_add_u32 v{T+1}, s28, v{T}')
    a('s_cmp_eq_u32 s23, s33')
    a('s_cbranch_scc1 g2_recv')
    a('s_lshl_b32 s28, s2, 15')
    for r in range(8):
        a(f'buffer_store_dwordx4 v[{ACC2+4*r}:{ACC2+3+4*r}], v{T+1}, s[48:51], s28 offen offset:{r*1024 if r < 4 else (r-4)*1024} sc1' if r < 4 else
          f'buffer_store_dwordx4 v[{ACC2+4*r}:{ACC2+3+4*r}], v{T+1}, s[48:51], s29 offen offset:{(r-4)*1024} sc1')
        if r == 3:
            a('s_add_u32 s29, s28, 4096')
    a('s_waitcnt vmcnt(0)')
    a('s_lshl_b32 s28, s2, 9')
    a('s_add_u32 s28, s28, s67')
    a('v_mov_b32 v1, 1')
    a('v_mov_b32 v2, s28')
    a('s_mov_b64 exec, 1')
    a('buffer_store_dword v1, v2, s[52:55], 0 offen sc1')
    a('s_branch g2_fin')
    a('g2_recv:')
    a(f'v_lshrrev_b32 v{T+2}, 3, v{LANE}')
    a(f'v_and_b32 v{T+3}, 7, v{LANE}')
    a('s_lshl_b32 s28, s24, 7')
    a('s_lshl_b32 s29, s21, 6')
    a('s_add_u32 s28, s28, s29')
    a('s_lshl_b32 s29, s22, 5')
    a('s_add_u32 s28, s28, s29')
    a(f'v_add_u32 v{T+4}, s28, v{T+2}')
    a(f'v_lshlrev_b32 v{T+4}, 11, v{T+4}')
    a('s_lshl_b32 s29, s23, 7')
    a('s_add_u32 s29, s29, s32')
    a(f'v_lshl_add_u32 v{T+5}, v{T+3}, 4, s29')
    a(f'v_add_u32 v{T+4}, v{T+4}, v{T+5}')
    for i in range(4):
        a(f's_mov_b32 s34, {i*16384}')
        a(f'buffer_load_dwordx4 v[{32+4*i}:{35+4*i}], v{T+4}, s[40:43], s34 offen')
    a(f'buffer_load_dwordx4 v[48:51], v{T+5}, s[36:39], 0 offen')
    a('s_mul_i32 s28, s20, 8704')
    a('s_add_u32 s28, s28, 65536')
    a(f'v_mul_u32_u24 v{T+6}, 272, v{L16}')
    a(f'v_lshl_add_u32 v{T+6}, v{G4}, 4, v{T+6}')
    a(f'v_add_u32 v{T+6}, s28, v{T+6}')
    a(f'v_mul_u32_u24 v{T+2}, 272, v{T+2}')
    a(f'v_lshl_add_u32 v{T+2}, v{T+3}, 5, v{T+2}')
    a(f'v_add_u32 v{T+2}, s28, v{T+2}')
    a('s_xor_b32 s35, s2, 1')
    a('s_lshl_b32 s28, s35, 9')
    a('s_add_u32 s28, s28, s67')
    a('v_mov_b32 v2, s28')
    a('g2_poll:')
    a('buffer_load_dword v1, v2, s[52:55], 0 offen sc1')
    a('s_waitcnt vmcnt(0)')
    a('v_readfirstlane_b32 s28, v1')
    a('s_nop 3')
    a('s_cmp_eq_u32 s28, 1')
    a('s_cbranch_scc1 g2_ready')
    a('s_sleep 1')
    a('s_branch g2_poll')
    a('g2_ready:')
    a('s_lshl_b32 s28, s35, 15')
    a('s_add_u32 s29, s28, 4096')
    for r in range(8):
        a(f'buffer_load_dwordx4 v[{128+4*r}:{131+4*r}], v{T+1}, s[48:51], s{28 if r < 4 else 29} offen offset:{(r % 4)*1024} sc1')
    a('s_mov_b32 s66, 0xffff0000')
    a('s_waitcnt vmcnt(0)')
    for r in range(32):
        a(f'v_add_f32 v{ACC2+r}, v{ACC2+r}, v{128+r}')
    for e in range(2):
        for nb in range(4):
            r = ACC2 + (e * 4 + nb) * 4
            a(f'ds_write_b128 v{T+6}, v[{r}:{r+3}] offset:{e*4352 + nb*64}')
    for h in range(4):
        a(f'v_lshlrev_b32 v{52+2*h}, 16, v{48+h}')
        a(f'v_and_b32 v{53+2*h}, s66, v{48+h}')
    a('s_waitcnt lgkmcnt(0)')
    for i in range(4):
        a(f'ds_read_b128 v[{128+8*i}:{131+8*i}], v{T+2} offset:{i*2176}')
        a(f'ds_read_b128 v[{132+8*i}:{135+8*i}], v{T+2} offset:{i*2176 + 16}')
    for i in range(4):
        a(f's_waitcnt lgkmcnt({6-2*i})')
        for h in range(4):
            r = 128 + 8 * i + 2 * h
            a(f'v_lshlrev_b32 v60, 16, v{32+4*i+h}')
            a(f'v_and_b32 v61, s66, v{32+4*i+h}')
            a(f'v_add_f32 v{r}, v{r}, v{52+2*h}')
            a(f'v_add_f32 v{r+1}, v{r+1}, v{53+2*h}')
            a(f'v_add_f32 v{r}, v{r}, v60')
            a(f'v_add_f32 v{r+1}, v{r+1}, v61')
            a(f'v_cvt_pk_bf16_f32 v{160+4*i+h}, v{r}, v{r+1}')
        a(f's_mov_b32 s34, {i*16384}')
        a(f'buffer_store_dwordx4 v[{160+4*i}:{163+4*i}], v{T+4}, s[44:47], s34 offen')
    a('g2_fin:')
    if not OPT('STAMP2'):
        stamp(a, 3)
        if OPT('STAMP'):
            a('s_waitcnt vmcnt(0)')
        stamp(a, 4)
    stamp(a, 6, True)
    stamp_flush(a, 7, 1)
    a('g2_exit:')
    a('s_endpgm')
    return descriptor(name, 256, 102 if OPT('STAMP') else 96)


def main():
    a = Asm()
    descs = []
    descs.append(gen_ln(a))
    descs.append(gen_gemm1(a))
    fused = not OPT('SEP_O')
    if not fused:
        descs.append(gen_o(a))
    descs.append(gen_gemm2c(a) if fused else gen_gemm2b(a))
    head = open('cdna_kernels/%s.s.ref' % NAME).read().split('; @launch')[0]
    out = head
    out += '; @launch kernel=ln_kernel grid=(512,1,1) block=(256,1,1) lds=0\n'
    out += f'; @launch kernel=gemm1_kernel grid=(256,1,1) block=(512,1,1) lds={G1_LDS}\n'
    if not fused:
        out += '; @launch kernel=attn_o_kernel grid=(256,1,1) block=(256,1,1) lds=8192\n'
    out += f'; @launch kernel=gemm2_kernel grid=(256,1,1) block=(512,1,1) lds={H_LDS + 8192}\n'
    out += '.amdgcn_target "amdgcn-amd-amdhsa--gfx950"\n.text\n'
    out += a.finalize()
    out += '.section .rodata,"a"\n'
    for d in descs:
        out += '.p2align 6\n' + d
    path = sys.argv[1] if len(sys.argv) > 1 else 'cdna_kernels/%s.s' % NAME
    open(path, 'w').write(out)
    print('wrote', path, len(out))


if __name__ == '__main__':
    main()
```

```python
import sys, os
from asmlib import Asm
OPT = lambda k, d='': os.environ.get(k, d)

NAME = 'parallel_sum__linear_kernel_hedgehog__dense_activation_gelu__prompt'
XN_OFF = 0
XN_SZ = 2048 * 1024 * 2
ACT2_OFF = 0x400000
ACT2_SZ = 2048 * 4608 * 2
PHIQ_OFF = 0x1600000
PHIQ_SZ = 2048 * 2048 * 2
KVP_OFF = 0x1E00000
KVP_ENT = 8448
KVP_SZ = 8 * 32 * KVP_ENT

LOG2E = 0x3fb8aa3b


def f2u(x):
    import struct
    return struct.unpack('<I', struct.pack('<f', x))[0]


def srd(a, d, base, size, off=0):
    if off:
        a(f's_add_u32 s{d}, s{base}, 0x{off:x}')
        a(f's_addc_u32 s{d+1}, s{base+1}, 0')
    else:
        a(f's_mov_b32 s{d}, s{base}')
        a(f's_mov_b32 s{d+1}, s{base+1}')
    a(f's_and_b32 s{d+1}, s{d+1}, 0xffff')
    a(f's_mov_b32 s{d+2}, 0x{size:x}')
    a(f's_mov_b32 s{d+3}, 0x00020000')


STAMP_OFF = 0x3000000
STAMP_REGS = [80, 81, 82, 83, 84, 85, 86]


def stamp(a, idx, real=False):
    if not OPT('STAMP'):
        return
    a('s_memrealtime s[78:79]' if real else 's_memtime s[78:79]')
    a('s_waitcnt lgkmcnt(0)')
    a(f's_mov_b32 s{STAMP_REGS[idx]}, s78')


def stamp_flush(a, n, kern):
    if not OPT('STAMP'):
        return
    a('s_mov_b64 exec, -1')
    srd(a, 92, 4, 0x1000000, STAMP_OFF + kern * 0x40000)
    a('s_lshl_b32 s78, s2, 3')
    a('s_add_u32 s78, s78, s20')
    a('s_lshl_b32 s78, s78, 6')
    a('v_mov_b32 v1, 0')
    for i in range(n):
        a(f'v_mov_b32 v2, s{STAMP_REGS[i]}')
        a(f'buffer_store_dword v2, v1, s[92:95], s78 offen offset:{4*i}')


def kernel_begin(a, name):
    a.raw(f'.globl {name}')
    a.raw('.p2align 8')
    a.raw(f'.type {name},@function')
    a.raw(f'{name}:')


def descriptor(name, vgpr, sgpr=96):
    acc = (vgpr + 3) // 4 * 4
    return f'''.amdhsa_kernel {name}
  .amdhsa_next_free_vgpr {vgpr}
  .amdhsa_next_free_sgpr {sgpr}
  .amdhsa_accum_offset {acc}
  .amdhsa_group_segment_fixed_size 0
  .amdhsa_kernarg_size 96
  .amdhsa_user_sgpr_count 2
  .amdhsa_user_sgpr_kernarg_segment_ptr 1
  .amdhsa_system_sgpr_workgroup_id_x 1
.end_amdhsa_kernel
'''


def allreduce16(a, op, v, tmp):
    for r in (8, 4, 2, 1):
        a(f'{op}_dpp v{tmp}, v{v}, v{v} row_ror:{r} row_mask:0xf bank_mask:0xf')
        v, tmp = tmp, v
    return v


def cross_groups(a, op, v, t):
    a(f'v_mov_b32 v{t}, v{v}')
    a(f'v_permlane32_swap_b32 v{v}, v{t}')
    a(f'{op} v{v}, v{v}, v{t}')
    a(f'v_mov_b32 v{t}, v{v}')
    a(f'v_permlane16_swap_b32 v{v}, v{t}')
    a(f'{op} v{v}, v{v}, v{t}')


def round_bf16(a, d, s):
    a(f'v_cvt_pk_bf16_f32 v{d}, v{s}, v{s}')
    a(f'v_lshlrev_b32 v{d}, 16, v{d}')


def gen_ln(a):
    name = 'ln_kernel'
    kernel_begin(a, name)
    a('s_cmp_ge_u32 s2, 512')
    a('s_cbranch_scc1 ln_done')
    a('s_load_dwordx2 s[4:5], s[0:1], 0')
    a('s_load_dwordx2 s[6:7], s[0:1], 88')
    a('s_load_dwordx2 s[24:25], s[0:1], 8')
    a('s_load_dwordx2 s[26:27], s[0:1], 40')
    a('v_lshrrev_b32 v1, 6, v0')
    a('v_and_b32 v2, 63, v0')
    a('s_lshl_b32 s3, s2, 2')
    a('v_add_u32 v1, s3, v1')
    a('v_lshlrev_b32 v3, 10, v1')
    a('v_lshl_add_u32 v3, v2, 4, v3')
    a('v_lshlrev_b32 v1, 11, v1')
    a('v_lshl_add_u32 v1, v2, 4, v1')
    a('s_waitcnt lgkmcnt(0)')
    srd(a, 8, 4, XN_SZ)
    srd(a, 12, 6, XN_SZ, XN_OFF)
    a('buffer_load_dwordx4 v[4:7], v1, s[8:11], 0 offen')
    a('buffer_load_dwordx4 v[8:11], v1, s[8:11], 0 offen offset:1024')
    npf = 0
    if OPT('LNPF'):
        srd(a, 28, 24, 1024 * 3072 * 2)
        srd(a, 32, 26, 1024 * 3584 * 2)
        for i in range(int(OPT('LNPF'))):
            a(f's_mov_b32 s17, {i << 21}')
            if i < 3:
                a(f'buffer_load_dwordx4 v[64:67], v3, s[28:31], s17 offen')
                npf += 1
            a(f'buffer_load_dwordx4 v[68:71], v3, s[32:35], s17 offen')
            npf += 1
    a('s_mov_b32 s16, 0xffff0000')
    a(f's_waitcnt vmcnt({npf})')
    for i in range(8):
        a(f'v_lshlrev_b32 v{16+2*i}, 16, v{4+i}')
        a(f'v_and_b32 v{17+2*i}, s16, v{4+i}')
    for i in range(8):
        a(f'v_add_f32 v{32+i}, v{16+2*i}, v{17+2*i}')
    for i in range(4):
        a(f'v_add_f32 v{32+i}, v{32+2*i}, v{33+2*i}')
    a('v_add_f32 v32, v32, v33')
    a('v_add_f32 v34, v34, v35')
    a('v_add_f32 v32, v32, v34')
    r = allreduce16(a, 'v_add_f32', 32, 33)
    cross_groups(a, 'v_add_f32', r, 34)
    a(f'v_mul_f32 v40, 0x{f2u(1.0/1024):x}, v{r}')
    for i in range(16):
        a(f'v_sub_f32 v{44+i}, v{16+i}, v40')
    a('v_mul_f32 v32, v44, v44')
    a('v_mul_f32 v33, v45, v45')
    for i in range(2, 16, 2):
        a(f'v_fmac_f32 v32, v{44+i}, v{44+i}')
        a(f'v_fmac_f32 v33, v{45+i}, v{45+i}')
    a('v_add_f32 v32, v32, v33')
    r = allreduce16(a, 'v_add_f32', 32, 33)
    cross_groups(a, 'v_add_f32', r, 34)
    a(f'v_mul_f32 v41, 0x{f2u(1.0/1024):x}, v{r}')
    round_bf16(a, 40, 40)
    round_bf16(a, 41, 41)
    a(f'v_add_f32 v41, 0x{f2u(1e-5):x}, v41')
    round_bf16(a, 41, 41)
    a('v_sqrt_f32 v41, v41')
    round_bf16(a, 41, 41)
    a('v_rcp_f32 v42, v41')
    for i in range(0, 16, 2):
        a(f'v_sub_f32 v{16+i}, v{16+i}, v40')
        a(f'v_sub_f32 v{17+i}, v{17+i}, v40')
        a(f'v_cvt_pk_bf16_f32 v{44+i}, v{16+i}, v{17+i}')
        a(f'v_lshlrev_b32 v{16+i}, 16, v{44+i}')
        a(f'v_and_b32 v{17+i}, s16, v{44+i}')
    for i in range(16):
        a(f'v_mul_f32 v{44+i}, v{16+i}, v42')
    for i in range(16):
        a(f'v_fma_f32 v{16+i}, -v{44+i}, v41, v{16+i}')
    for i in range(16):
        a(f'v_fmac_f32 v{44+i}, v{16+i}, v42')
    for i in range(8):
        a(f'v_cvt_pk_bf16_f32 v{4+i}, v{44+2*i}, v{45+2*i}')
    a('buffer_store_dwordx4 v[4:7], v1, s[12:15], 0 offen' + OPT('LN_POL'))
    a('buffer_store_dwordx4 v[8:11], v1, s[12:15], 0 offen offset:1024' + OPT('LN_POL'))
    a('ln_done:')
    a('s_endpgm')
    return descriptor(name, 72, 40)


class VQ:
    def __init__(self):
        self.q = []

    def push(self, tag):
        self.q.append(tag)

    def wait_for(self, tags):
        last = -1
        for i, t in enumerate(self.q):
            if t in tags:
                last = i
        n = len(self.q) - 1 - last
        return min(n, 63)


def interleave(a, mm, rd, dma, emit_grp, first_dma=1, dma_every=4):
    rd = list(rd); dma = list(dma)
    for idx, m in enumerate(mm):
        a(m)
        if dma and idx >= first_dma and (idx - first_dma) % dma_every == 0:
            emit_grp(dma.pop(0))
        elif rd:
            a(rd.pop(0))
        elif dma:
            emit_grp(dma.pop(0))
    for r in rd:
        a(r)
    for g in dma:
        emit_grp(g)


class FlagSync:
    def __init__(self, a, tag, cnt, vsig, vcnt, vone, vt1, vt2, st):
        self.a, self.tag, self.cnt = a, tag, cnt
        self.vsig, self.vcnt, self.vone, self.vt1, self.vt2, self.st = vsig, vcnt, vone, vt1, vt2, st
        self.nfull = [0, 0, 0, 0]
        self.nempty = [0, 0, 0, 0]
        self.n = 0

    def setup(self, vlane, swave):
        a = self.a
        a(f'v_lshlrev_b32 v{self.vsig}, 2, v{vlane}')
        a(f'v_add_u32 v{self.vsig}, 0x{self.cnt + 512:x}, v{self.vsig}')
        a(f'v_mov_b32 v{self.vcnt}, 0x{self.cnt:x}')
        a(f'v_cmp_eq_u32 vcc, 0, v{vlane}')
        a(f'v_cndmask_b32 v{self.vsig}, v{self.vsig}, v{self.vcnt}, vcc')
        a(f'v_mov_b32 v{self.vone}, 1')
        a(f'v_lshlrev_b32 v{self.vt1}, 2, v{vlane}')
        a(f'v_and_b32 v{self.vt1}, 31, v{self.vt1}')
        a(f'v_add_u32 v{self.vt1}, v{self.vcnt}, v{self.vt1}')
        a(f'v_mov_b32 v{self.vt2}, 0')
        a(f'ds_write_b32 v{self.vt1}, v{self.vt2}')

    def sig_full(self, s):
        self.nfull[s % 4] += 8
        return f'ds_add_u32 v{self.vsig}, v{self.vone} offset:{4 * (s % 4)}'

    def sig_empty(self, s):
        self.nempty[s % 4] += 8
        return f'ds_add_u32 v{self.vsig}, v{self.vone} offset:{16 + 4 * (s % 4)}'

    def rd_full(self, s):
        return f'ds_read_b32 v{self.vt1}, v{self.vcnt} offset:{4 * (s % 4)}'

    def rd_empty(self, s):
        return f'ds_read_b32 v{self.vt2}, v{self.vcnt} offset:{16 + 4 * (s % 4)}'

    def check(self, kind, s, lgkm):
        a = self.a
        v = self.vt1 if kind == 'F' else self.vt2
        target = (self.nfull if kind == 'F' else self.nempty)[s % 4]
        rd = self.rd_full(s) if kind == 'F' else self.rd_empty(s)
        L = f'{self.tag}_c{self.n}'
        self.n += 1
        a(f's_waitcnt lgkmcnt({lgkm})')
        a(f'{L}r:')
        a(f'v_readfirstlane_b32 s{self.st}, v{v}')
        a('s_nop 1')
        a(f's_cmp_ge_u32 s{self.st}, {target}')
        a(f's_cbranch_scc1 {L}o')
        a(rd + ' ; @skip')
        a('s_waitcnt lgkmcnt(0) ; @skip')
        a(f's_branch {L}r ; @skip')
        a(f'{L}o:')


def flag_iter(a, fs, j, nst, mm, rd, dma, emit_grp, vmwait, cF, cE, extra=None):
    rd = list(rd); dma = list(dma)
    n = len(mm)
    need_full = rd and j >= 1
    need_empty = bool(dma)
    a(fs.sig_empty(j))
    if need_full:
        a(fs.rd_full(j + 1))
    since_e = None
    dma_ok = not need_empty
    for idx, m in enumerate(mm):
        a(m)
        if idx == cF and need_full:
            fs.check('F', j + 1, 0)
        if idx < cF:
            continue
        if need_empty and idx == cE - 3:
            a(fs.rd_empty(j))
            since_e = 0
            continue
        if need_empty and idx == cE:
            fs.check('E', j, since_e)
            dma_ok = True
            continue
        if idx == (int(OPT('FS_CS')) if OPT('FS_CS') else n - 2) and vmwait:
            a(vmwait())
            a(fs.sig_full(j + 2))
            continue
        if dma_ok and dma and (not rd or (idx - cE) % 3 == 1):
            emit_grp(dma.pop(0))
        elif rd:
            a(rd.pop(0))
            if since_e is not None and not dma_ok:
                since_e += 1
    for r in rd:
        a(r)
    for g in dma:
        emit_grp(g)
    a('s_waitcnt lgkmcnt(0)')


A_SLOT = 32768
B_BASE = 98304
B_SLOT = 14336
G1_DUMMY = B_BASE + 4 * B_SLOT
G1_LDS = G1_DUMMY + 8192
ACC = 128
SETS = (32, 76)
VA = 2
VB = 8
VGA = 11
VGB0 = 12
VGB1 = 13
VLANE = 14
VG4 = 15
VL16 = 16
VPF = 31
VPF2 = 30
VTMP = 17


def gemm1_common_setup(a):
    a('v_lshrrev_b32 v1, 6, v0')
    a(f'v_and_b32 v{VLANE}, 63, v0')
    a('s_nop 0')
    a('v_readfirstlane_b32 s20, v1')
    a(f'v_lshrrev_b32 v{VG4}, 4, v{VLANE}')
    a(f'v_and_b32 v{VL16}, 15, v{VLANE}')
    a('s_nop 1')
    a('s_lshr_b32 s21, s20, 1')
    a('s_and_b32 s22, s20, 1')
    a('s_and_b32 s26, s2, 7')
    a('s_lshr_b32 s27, s2, 3')
    a('s_and_b32 s24, s26, 1')
    a('s_lshl_b32 s24, s24, 2')
    a('s_and_b32 s28, s27, 3')
    a('s_add_u32 s24, s24, s28')
    a('s_lshr_b32 s25, s26, 1')
    a('s_lshl_b32 s25, s25, 2')
    a('s_bfe_u32 s28, s27, 0x20002')
    a('s_add_u32 s25, s25, s28')
    a('s_lshr_b32 s28, s27, 4')
    a('s_lshl_b32 s28, s28, 4')
    a('s_add_u32 s25, s25, s28')
    T = VTMP
    a('s_lshl_b32 s28, s21, 13')
    a(f'v_and_b32 v{T}, 7, v{VLANE}')
    a(f'v_xor_b32 v{T}, v{T}, v{VG4}')
    a(f'v_lshlrev_b32 v{T}, 4, v{T}')
    a(f'v_lshl_add_u32 v{T}, v{VL16}, 7, v{T}')
    a(f'v_add_u32 v{T}, s28, v{T}')
    a(f'v_xor_b32 v{T+1}, 64, v{T}')
    for sl in range(3):
        a(f'v_add_u32 v{VA+2*sl}, 0x{sl*A_SLOT:x}, v{T}')
        a(f'v_add_u32 v{VA+2*sl+1}, 0x{sl*A_SLOT:x}, v{T+1}')
    a(f'v_lshrrev_b32 v{T}, 3, v{VLANE}')
    a(f'v_and_b32 v{T+1}, 7, v{VLANE}')
    a(f'v_xor_b32 v{T+1}, v{T+1}, v{T}')
    a('s_lshl_b32 s28, s24, 8')
    a('s_lshl_b32 s29, s20, 5')
    a('s_add_u32 s28, s28, s29')
    a(f'v_add_u32 v{T}, s28, v{T}')
    a(f'v_lshlrev_b32 v{T}, 11, v{T}')
    a(f'v_lshl_add_u32 v{VGA}, v{T+1}, 4, v{T}')
    a(f'v_lshlrev_b32 v{VPF}, 4, v{VLANE}')
    a('s_lshl_b32 s30, s20, 12')
    a('s_lshl_b32 s31, s20, 10')
    a('s_and_b32 s77, s31, 0xc00')


def gemm1_late_setup(a):
    srd(a, 64, 72, 1024 * 1024 * 2)
    srd(a, 68, 74, 3584 * 1024 * 2)
    srd(a, 92, 4, 0x200000, FLAG_OFF)
    a('s_lshl_b32 s28, s2, 9')
    a('v_lshlrev_b32 v17, 7, v0')
    a('v_mov_b32 v18, 0')
    a('v_cmp_gt_u32 vcc, 4, v0')
    a('s_and_saveexec_b64 s[34:35], vcc')
    a('buffer_store_dword v18, v17, s[92:95], s28 offen')
    a('s_mov_b64 exec, s[34:35]')
    a('s_lshl_b32 s28, s2, 2')
    a(f's_add_u32 s28, s28, 0x{OFLAG_OFF - FLAG_OFF:x}')
    a('v_mov_b32 v17, 0')
    a('v_cmp_eq_u32 vcc, 0, v0')
    a('s_and_saveexec_b64 s[34:35], vcc')
    a('buffer_store_dword v18, v17, s[92:95], s28 offen')
    a('s_mov_b64 exec, s[34:35]')
    a('s_lshl_b32 s28, s2, 3')
    a('s_add_u32 s28, s28, s20')
    a('s_cmp_lt_u32 s28, 1024')
    a('s_cselect_b32 s88, s6, s58')
    a('s_cselect_b32 s89, s7, s59')
    a(f's_mov_b32 s90, 0x{1024*3584*2:x}')
    a(f's_cselect_b32 s90, 0x{1024*3072*2:x}, s90')
    if not OPT('PF_OLD'):
        a('s_cselect_b32 s29, 0xc0000, 0')
        a('s_cselect_b32 s91, 0, 0xe0000')
        a('s_add_u32 s29, s29, s91')
    a('s_and_b32 s89, s89, 0xffff')
    a('s_mov_b32 s91, 0x00020000')
    a('s_and_b32 s28, s28, 1023')
    a('s_lshl_b32 s28, s28, 10')
    if not OPT('PF_OLD'):
        a('s_add_u32 s28, s28, s29')
    a(f'v_add_u32 v{VPF2}, s28, v{VPF}')


def gemm1_variant(a, kind):
    w1 = kind == 'w1'
    NB = 7 if w1 else 6
    rowstride = 7168 if w1 else 6144
    nsecond = 6 if w1 else 4
    T = VTMP
    a(f'v_lshrrev_b32 v{T}, 2, v{VL16}')
    a(f'v_lshl_add_u32 v{T+1}, v{VG4}, 3, v{T}')
    a(f'v_lshrrev_b32 v{T+2}, 1, v{T}')
    a(f'v_and_b32 v{T+3}, 1, v{VG4}')
    a(f'v_lshl_or_b32 v{T+2}, v{T+3}, 1, v{T+2}')
    a(f'v_and_b32 v{T+4}, 3, v{VLANE}')
    a(f'v_lshlrev_b32 v{T+4}, 3, v{T+4}')
    a(f'v_lshl_add_u32 v{T+5}, v{T+1}, 7, v{T+4}')
    a(f'v_add_u32 v{T+5}, 0x{B_BASE:x}, v{T+5}')
    for e in range(2):
        if w1:
            a(f's_add_u32 s28, s22, {2*e}')
        else:
            a('s_lshl_b32 s28, s22, 1')
            a(f's_add_u32 s28, s28, {e}')
        a(f'v_xor_b32 v{T+6}, s28, v{T+2}')
        a(f'v_lshl_add_u32 v{VB+e}, v{T+6}, 5, v{T+5}')
    if w1:
        a(f'v_xor_b32 v{T+6}, s22, v{T+3}')
        a(f'v_lshl_add_u32 v{T+7}, v{T+1}, 6, v{T+4}')
        a(f'v_lshl_add_u32 v{T+7}, v{T+6}, 5, v{T+7}')
        a(f'v_add_u32 v{VB+2}, 0x{B_BASE+12288:x}, v{T+7}')
    colstride = 128 if w1 else 2048
    a(f'v_lshrrev_b32 v{T}, 3, v{VLANE}')
    a(f'v_bfe_u32 v{T+1}, v{VLANE}, 4, 1')
    a('s_and_b32 s28, s20, 1')
    a('s_lshl_b32 s28, s28, 1')
    a(f'v_or_b32 v{T+1}, s28, v{T+1}')
    a(f'v_bfe_u32 v{T+2}, v{VLANE}, 1, 2')
    a(f'v_xor_b32 v{T+2}, v{T+2}, v{T+1}')
    a(f'v_and_b32 v{T+3}, 1, v{VLANE}')
    a(f'v_lshlrev_b32 v{T+3}, 4, v{T+3}')
    a(f'v_lshl_add_u32 v{T+3}, v{T+2}, 5, v{T+3}')
    a('s_and_b32 s28, s20, 3')
    a('s_lshl_b32 s28, s28, 3')
    a(f'v_add_u32 v{T}, s28, v{T}')
    a(f's_mov_b32 s29, {rowstride}')
    a(f'v_mul_lo_u32 v{T}, v{T}, s29')
    a(f'v_add_u32 v{T}, v{T}, v{T+3}')
    a('s_lshr_b32 s28, s20, 2')
    a(f's_mul_i32 s28, s28, {colstride}')
    if w1:
        a('s_sub_u32 s32, s25, 16')
        a('s_mul_i32 s32, s32, 448')
    else:
        a('s_lshl_b32 s32, s25, 7')
    a('s_add_u32 s28, s28, s32')
    a(f'v_add_u32 v{VGB0}, s28, v{T}')
    a(f'v_add_u32 v{VGB1}, 0x{2*colstride:x}, v{VGB0}')
    if w1:
        a(f'v_lshrrev_b32 v{T}, 2, v{VLANE}')
        a('s_sub_u32 s28, s20, 4')
        a('s_lshl_b32 s28, s28, 4')
        a(f'v_add_u32 v{T}, s28, v{T}')
        a(f'v_mul_lo_u32 v{T}, v{T}, s29')
        a(f'v_bfe_u32 v{T+1}, v{VLANE}, 5, 1')
        a(f'v_bfe_u32 v{T+2}, v{VLANE}, 1, 1')
        a(f'v_xor_b32 v{T+2}, v{T+2}, v{T+1}')
        a(f'v_and_b32 v{T+3}, 1, v{VLANE}')
        a(f'v_lshlrev_b32 v{T+3}, 4, v{T+3}')
        a(f'v_lshl_add_u32 v{T+3}, v{T+2}, 5, v{T+3}')
        a(f'v_add_u32 v{T}, v{T}, v{T+3}')
        a('s_add_u32 s28, s32, 384')
        a(f'v_add_u32 v{T}, s28, v{T}')
        a('s_cmp_ge_u32 s20, 4')
        a('s_cselect_b64 s[34:35], -1, 0')
        a(f'v_cndmask_b32 v{VGB1}, v{VGB1}, v{T}, s[34:35]')
    a('s_waitcnt lgkmcnt(0)')
    stamp(a, 5, True)
    stamp(a, 0)
    srd(a, 8, 4, XN_SZ, XN_OFF)
    if w1:
        srd(a, 12, 58, 1024 * 3584 * 2)
    else:
        srd(a, 12, 6, 1024 * 3072 * 2)

    def param_loads():
        if w1:
            srd(a, 40, 60, 3584 * 2)
            a('s_lshl_b32 s28, s22, 5')
            a(f'v_lshl_add_u32 v{T}, v{VG4}, 3, s28')
            for nb in range(7):
                a(f'buffer_load_dwordx2 v[{240+2*nb}:{241+2*nb}], v{T}, s[40:43], s32 offen offset:{nb*64}')
        else:
            srd(a, 40, 56, 32 * 32 * 32 * 2)
            a('s_lshl_b32 s33, s25, 1')
            a('s_add_u32 s33, s33, s22')
            a('s_lshl_b32 s28, s33, 11')
            a(f'v_lshlrev_b32 v{T}, 8, v{VG4}')
            a(f'v_lshl_add_u32 v{T}, v{VL16}, 1, v{T}')
            for fb in range(2):
                for j in range(8):
                    off = (16 * (j // 4) + j % 4) * 64 + fb * 32
                    a(f'buffer_load_ushort v{224+8*fb+j}, v{T}, s[40:43], s28 offen offset:{off}')

    def late():
        if w1:
            srd(a, 16, 4, ACT2_SZ, ACT2_OFF)
        else:
            srd(a, 36, 4, PHIQ_SZ, PHIQ_OFF)
            srd(a, 44, 4, KVP_SZ, KVP_OFF)
        gemm1_late_setup(a)
        if not w1:
            for i in range(NB * 16):
                a(f'v_mov_b32 v{ACC+i}, 0')

    vq = VQ()
    lbl = [0]

    def grp_A(i):
        if OPT('G1_NOA'):
            return []
        out = []
        for q in range(4):
            out.append(([f's_add_u32 m0, s30, 0x{(i % 3) * A_SLOT + q * 1024:x}',
                         f's_mov_b32 s28, 0x{i * 128 + q * 16384:x}',
                         f'buffer_load_dwordx4 v{VGA}, s[8:11], s28 offen lds'], ('A', i)))
        return out

    def grp_B(j):
        if OPT('G1_NOB'):
            return []
        base = B_BASE + (j % 4) * B_SLOT
        L = f'g1{kind}_sk{lbl[0]}'
        lbl[0] += 1
        return [([f's_add_u32 m0, s31, 0x{base:x}',
                  f's_mov_b32 s28, 0x{j * 32 * rowstride:x}',
                  f'buffer_load_dwordx4 v{VGB0}, s[12:15], s28 offen lds'], ('B', j)),
                ([f's_cmp_ge_u32 s20, {nsecond}',
                  f's_cbranch_scc1 {L}',
                  f's_add_u32 m0, s31, 0x{base + 8192:x} ; @skip',
                  f's_mov_b32 s28, 0x{j * 32 * rowstride:x} ; @skip',
                  f'buffer_load_dwordx4 v{VGB1}, s[12:15], s28 offen lds ; @skip',
                  f'{L}:'], None)]

    def emit_grp(g):
        for l in g[0]:
            a(l)
        if g[1] is not None:
            vq.push(g[1])

    def issue_A(i):
        for g in grp_A(i):
            emit_grp(g)

    def issue_B(j):
        for g in grp_B(j):
            emit_grp(g)

    def frag_reads(j):
        S = SETS[j & 1]
        sl = (j // 2) % 3
        half = j & 1
        out = []
        for mb in range(4):
            out.append(f'ds_read_b128 v[{S+4*mb}:{S+4*mb+3}], v{VA+2*sl+half} offset:{mb*2048}')
        bs = (j % 4) * B_SLOT
        for nb in range(NB):
            d = S + 16 + 4 * nb
            if w1 and nb == 6:
                for t in range(2):
                    out.append(f'ds_read_b64_tr_b16 v[{d+2*t}:{d+2*t+1}], v{VB+2} offset:{bs + t*256}')
            else:
                G, e = nb // 2, nb % 2
                for t in range(2):
                    out.append(f'ds_read_b64_tr_b16 v[{d+2*t}:{d+2*t+1}], v{VB+e} offset:{bs + G*4096 + t*512}')
        return out

    def mfmas(j):
        S = SETS[j & 1]
        out = []
        for nb in range(NB):
            for mb in range(4):
                c = ACC + (nb * 4 + mb) * 4
                wf = f'v[{S+16+4*nb}:{S+19+4*nb}]'
                xf = f'v[{S+4*mb}:{S+4*mb+3}]'
                if (not w1) and nb >= 4:
                    out.append(f'v_mfma_f32_16x16x32_bf16 v[{c}:{c+3}], {xf}, {wf}, v[{c}:{c+3}]')
                else:
                    out.append(f'v_mfma_f32_16x16x32_bf16 v[{c}:{c+3}], {wf}, {xf}, v[{c}:{c+3}]')
        return out

    stamp(a, 1)
    def grp_pf(i):
        if OPT('NO_PF1'):
            return []
        return [([f's_add_u32 m0, s77, 0x{G1_DUMMY:x}',
                  f's_mov_b32 s28, 0x{i << 20:x}',
                  f'buffer_load_dwordx4 v{VPF2}, s[88:91], s28 offen lds'], None)]

    if w1:
        param_loads()
    issue_A(0); issue_B(0)
    if not w1:
        param_loads()
    issue_B(1); issue_A(1); issue_B(2); issue_B(3); issue_A(2)
    late()
    if w1:
        a(f's_waitcnt vmcnt({len(vq.q)})')
        a('s_mov_b32 s50, 0xffff0000')
        for nb in range(7):
            for mb in range(4):
                c = ACC + (nb * 4 + mb) * 4
                for h in range(2):
                    a(f'v_lshlrev_b32 v{c+2*h}, 16, v{240+2*nb+h}')
                    a(f'v_and_b32 v{c+2*h+1}, s50, v{240+2*nb+h}')
    if OPT('PF_OLD'):
        for g in grp_pf(0) + grp_pf(1):
            emit_grp(g)
    use_flags = bool(OPT('G1_FLAGS'))
    half_bar = bool(OPT('G1_HB'))
    if use_flags:
        fs = FlagSync(a, f'g1{kind}', G1_DUMMY + 4096, 25, 26, 27, 28, 29, 62)
        fs.setup(VLANE, 20)
        a(f's_waitcnt vmcnt({vq.wait_for({("A", 0), ("B", 0), ("B", 1)})}) lgkmcnt(0)')
    else:
        a(f's_waitcnt vmcnt({vq.wait_for({("A", 0), ("B", 0)})})')
    if OPT('PRIO'):
        a('s_cmp_ge_u32 s20, 4')
        a(f's_cbranch_scc0 g1{kind}_prio')
        a('s_setprio 1 ; @skip')
        a(f'g1{kind}_prio:')
    a('s_barrier')
    for r in frag_reads(0):
        a(r)
    a('s_waitcnt lgkmcnt(0)')
    for j in range(32):
        if half_bar:
            dma = []
            if j % 2 == 0:
                need = {("A", (j + 1) // 2), ("B", j + 1)}
                if j + 2 < 32:
                    need |= {("A", (j + 2) // 2), ("B", j + 2)}
                a(f's_waitcnt vmcnt({vq.wait_for(need)})')
                a('s_barrier')
                if j >= 2:
                    for jj in (j + 3, j + 4):
                        if 4 <= jj < 32:
                            dma += grp_B(jj)
                    if (j // 2 + 2) < 16 and j // 2 + 2 >= 3:
                        dma += grp_A(j // 2 + 2)
                else:
                    dma += grp_B(4)
        else:
            if not use_flags:
                if j + 1 < 32:
                    a(f's_waitcnt vmcnt({vq.wait_for({("A", (j + 1) // 2), ("B", j + 1)})})')
                a('s_barrier')
            dma = []
            if j + 4 < 32:
                dma += grp_B(j + 4)
            if j & 1 and (j // 2 + 3) < 16:
                dma += grp_A(j // 2 + 3)
        if OPT('PF_OLD'):
            if j in (2, 7, 12, 17, 22):
                dma += grp_pf(2 + (j - 2) // 5)
        else:
            sched = [int(x) for x in OPT('PF_SCHED', '0,1,4,9,14,19').split(',')]
            if j in sched:
                dma += grp_pf(sched.index(j))
        if j == 28 and not OPT('NO_PF'):
            dma.append(([f's_add_u32 m0, s77, 0x{G1_DUMMY:x}',
                         's_lshl_b32 s28, s2, 13',
                         's_add_u32 s28, s28, s31',
                         f'buffer_load_dwordx4 v{VPF}, s[64:67], s28 offen lds',
                         's_mul_i32 s76, s2, 28672',
                         's_mul_i32 s29, s20, 3584',
                         's_add_u32 s76, s76, s29'], None))
            for i in range(4):
                dma.append(([f'buffer_load_dwordx4 v{VPF}, s[68:71], s76 offen lds',
                             's_add_u32 s76, s76, 1024'], None))
        rd = frag_reads(j + 1) if j + 1 < 32 else []
        mm = mfmas(j)
        if OPT('G1_NOCOMP'):
            rd = []; mm = []
        if use_flags:
            vmw = (lambda jj=j: f's_waitcnt vmcnt({vq.wait_for({("A", (jj + 2) // 2), ("B", jj + 2)})})') if j + 2 < 32 else None
            flag_iter(a, fs, j, 32, mm, rd, dma, emit_grp, vmw, int(OPT('G1_CF', '2')), int(OPT('G1_CE', '9')))
        else:
            interleave(a, mm, rd, dma, emit_grp, int(OPT('G1_FD', '1')), int(OPT('G1_DE', '4')))
            a('s_waitcnt lgkmcnt(0)')
    if use_flags or half_bar:
        a('s_barrier')
    stamp(a, 2)
    if w1:
        epilogue_w1(a)
    else:
        epilogue_qkv(a)


def epilogue_w1(a):
    T = VTMP
    c1 = -2.0 * 0.7978845608028654 * 1.4426950408889634
    c2 = c1 * 0.044715
    a(f's_mov_b32 s44, 0x{f2u(c1):x}')
    a(f's_mov_b32 s46, 0x{f2u(c2):x}')
    a(f's_mov_b32 s47, 0x{f2u(c2):x}')
    a('s_mov_b32 s48, 1.0')
    a('s_mov_b32 s49, 1.0')
    a('s_lshl_b32 s28, s24, 8')
    a('s_lshl_b32 s29, s21, 6')
    a('s_add_u32 s28, s28, s29')
    a(f'v_add_u32 v{T}, s28, v{VL16}')
    a(f'v_and_b32 v{T+1}, 1, v{VG4}')
    a(f'v_lshl_add_u32 v{T}, v{T+1}, 4, v{T}')
    a(f'v_lshrrev_b32 v{T+1}, 1, v{VG4}')
    a(f'v_lshl_add_u32 v{T}, v{T+1}, 11, v{T}')
    a(f'v_lshlrev_b32 v{T}, 4, v{T}')
    a('s_lshr_b32 s28, s32, 4')
    a('s_lshl_b32 s29, s22, 1')
    a('s_add_u32 s28, s28, s29')
    a('s_add_u32 s28, s28, 128')
    a('s_lshl_b32 s52, s28, 15')
    W = 64
    O = 32
    a('v_mov_b32 v60, s44')
    a('v_mov_b32 v61, s44')
    for nb in range(7):
        for mb in range(4):
            c = ACC + (nb * 4 + mb) * 4
            w = W + mb * 4
            for h in range(2):
                a(f'v_pk_mul_f32 v[{w+2*h}:{w+2*h+1}], v[{c+2*h}:{c+2*h+1}], v[{c+2*h}:{c+2*h+1}]')
            for h in range(2):
                a(f'v_pk_fma_f32 v[{w+2*h}:{w+2*h+1}], v[{w+2*h}:{w+2*h+1}], s[46:47], v[60:61]')
            for h in range(2):
                a(f'v_pk_mul_f32 v[{w+2*h}:{w+2*h+1}], v[{w+2*h}:{w+2*h+1}], v[{c+2*h}:{c+2*h+1}]')
        for i in range(16):
            a(f'v_exp_f32 v{W+i}, v{W+i}')
        for h in range(8):
            a(f'v_pk_add_f32 v[{W+2*h}:{W+2*h+1}], v[{W+2*h}:{W+2*h+1}], s[48:49]')
        for i in range(16):
            a(f'v_rcp_f32 v{W+i}, v{W+i}')
        o = O + (nb & 1) * 8
        for mb in range(4):
            c = ACC + (nb * 4 + mb) * 4
            w = W + mb * 4
            for h in range(2):
                a(f'v_pk_mul_f32 v[{w+2*h}:{w+2*h+1}], v[{w+2*h}:{w+2*h+1}], v[{c+2*h}:{c+2*h+1}]')
            a(f'v_cvt_pk_bf16_f32 v{o+2*mb}, v{w}, v{w+1}')
            a(f'v_cvt_pk_bf16_f32 v{o+2*mb+1}, v{w+2}, v{w+3}')
        for p in range(2):
            a(f'v_permlane16_swap_b32 v{o+4*p}, v{o+4*p+2}')
            a(f'v_permlane16_swap_b32 v{o+4*p+1}, v{o+4*p+3}')
        a(f's_add_u32 s28, s52, 0x{nb*4*32768:x}')
        for p in range(2):
            a(f'buffer_store_dwordx4 v[{o+4*p}:{o+4*p+3}], v{T}, s[16:19], s28 offen offset:{p*512}{OPT("H_POL", " sc1")}')
    stamp(a, 3)
    if OPT('STAMP'):
        a('s_waitcnt vmcnt(0)')
    stamp(a, 4)
    stamp(a, 6, True)
    stamp_flush(a, 7, 0)
    a('s_endpgm')


def epilogue_qkv(a):
    T = VTMP
    QF, KF, VF = 32, 48, 64
    WP = 240

    def acc(nb, mb):
        return ACC + (nb * 4 + mb) * 4
    a('s_mov_b32 s50, 0xffff0000')
    a(f's_mov_b32 s51, 0x{LOG2E:x}')
    for i in range(8):
        a(f'v_lshl_or_b32 v{WP+i}, v{224+2*i+1}, 16, v{224+2*i}')
    for mb in range(4):
        for e in range(2):
            c = acc(e, mb)
            a(f'v_cvt_pk_bf16_f32 v{QF+4*mb+2*e}, v{c}, v{c+1}')
            a(f'v_cvt_pk_bf16_f32 v{QF+4*mb+2*e+1}, v{c+2}, v{c+3}')
            c = acc(2 + e, mb)
            a(f'v_cvt_pk_bf16_f32 v{KF+4*mb+2*e}, v{c}, v{c+1}')
            a(f'v_cvt_pk_bf16_f32 v{KF+4*mb+2*e+1}, v{c+2}, v{c+3}')
    for ks in range(2):
        for db in range(2):
            for e in range(2):
                c = acc(4 + db, 2 * ks + e)
                d = VF + (ks * 2 + db) * 4 + 2 * e
                a(f'v_cvt_pk_bf16_f32 v{d}, v{c}, v{c+1}')
                a(f'v_cvt_pk_bf16_f32 v{d+1}, v{c+2}, v{c+3}')
    PQ, PK = 128, 160
    for mb in range(4):
        for fb in range(2):
            d = PK + (mb * 2 + fb) * 4
            a(f'v_mfma_f32_16x16x32_bf16 v[{d}:{d+3}], v[{KF+4*mb}:{KF+4*mb+3}], v[{WP+4*fb}:{WP+4*fb+3}], 0')
    a('s_lshl_b32 s28, s24, 4')
    a('s_lshl_b32 s29, s21, 2')
    a('s_add_u32 s28, s28, s29')
    a('s_lshl_b32 s28, s28, 10')
    a('s_lshl_b32 s29, s33, 17')
    a('s_add_u32 s28, s28, s29')
    for mb in range(4):
        a(f'buffer_store_dwordx4 v[{QF+4*mb}:{QF+4*mb+3}], v{VPF}, s[36:39], s28 offen offset:{mb*1024}{OPT("H_POL", " sc1")}')
    a('s_or_b32 s28, s24, s21')
    a('s_cmp_lg_u32 s28, 0')
    a('s_cbranch_scc1 g1q_nowp')
    a('s_lshl_b32 s28, s33, 11 ; @skip')
    a('s_add_u32 s28, s28, 0x400000 ; @skip')
    a(f'buffer_store_dwordx4 v[{WP}:{WP+3}], v{VPF}, s[36:39], s28 offen ; @skip')
    a(f'buffer_store_dwordx4 v[{WP+4}:{WP+7}], v{VPF}, s[36:39], s28 offen offset:1024 ; @skip')
    a('g1q_nowp:')
    for i in range(0, 32, 2):
        r = PK + i
        a(f'v_cvt_pk_bf16_f32 v{T+(i>>1)%4}, v{r}, v{r+1}')
        a(f'v_lshlrev_b32 v{r}, 16, v{T+(i>>1)%4}')
        a(f'v_and_b32 v{r+1}, s50, v{T+(i>>1)%4}')
    KMX, KMN, KS1, KS2, KT = 80, 96, 32, 48, 112
    idx = [(mb, i) for mb in range(4) for i in range(4)]

    def pk(mb, fb, i):
        return PK + (mb * 2 + fb) * 4 + i
    for n, (mb, i) in enumerate(idx):
        a(f'v_max_f32 v{KMX+n}, v{pk(mb,0,i)}, v{pk(mb,1,i)}')
        a(f'v_min_f32 v{KMN+n}, v{pk(mb,0,i)}, v{pk(mb,1,i)}')
    for (base, op) in ((KMX, 'v_max_f32'), (KMN, 'v_min_f32')):
        src, dst = base, KT
        for r in (8, 4, 2, 1):
            for n in range(16):
                a(f'{op}_dpp v{dst+n}, v{src+n}, v{src+n} row_ror:{r} row_mask:0xf bank_mask:0xf')
            src, dst = dst, src
    EP = 128
    for n in range(16):
        a(f'v_mul_f32 v{KMX+n}, s51, v{KMX+n}')
        a(f'v_mul_f32 v{KMN+n}, s51, v{KMN+n}')
    for n, (mb, i) in enumerate(idx):
        for fb in range(2):
            r = pk(mb, fb, i)
            a(f'v_fma_f32 v{EP + r - PK}, v{r}, s51, -v{KMX+n}')
            a(f'v_fma_f32 v{r}, -v{r}, s51, v{KMN+n}')
    for r in range(64):
        a(f'v_exp_f32 v{128+r}, v{128+r}')
    for n, (mb, i) in enumerate(idx):
        a(f'v_add_f32 v{KS1+n}, v{EP + pk(mb,0,i) - PK}, v{EP + pk(mb,1,i) - PK}')
        a(f'v_add_f32 v{KS2+n}, v{pk(mb,0,i)}, v{pk(mb,1,i)}')
    for base in (KS1, KS2):
        src, dst = base, KT
        for r in (8, 4, 2, 1):
            for n in range(16):
                a(f'v_add_f32_dpp v{dst+n}, v{src+n}, v{src+n} row_ror:{r} row_mask:0xf bank_mask:0xf')
            src, dst = dst, src
    for n in range(16):
        a(f'v_rcp_f32 v{KS1+n}, v{KS1+n}')
        a(f'v_rcp_f32 v{KS2+n}, v{KS2+n}')
    for n, (mb, i) in enumerate(idx):
        for fb in range(2):
            r = pk(mb, fb, i)
            a(f'v_mul_f32 v{EP + r - PK}, v{EP + r - PK}, v{KS1+n}')
            a(f'v_mul_f32 v{r}, v{r}, v{KS2+n}')
    PF = 80
    for sg in range(2):
        for fb in range(2):
            for ks in range(2):
                d = PF + ((sg * 2 + fb) * 2 + ks) * 4
                for e in range(2):
                    r = (EP if sg == 0 else PK) + ((2 * ks + e) * 2 + fb) * 4
                    a(f'v_cvt_pk_bf16_f32 v{d+2*e}, v{r}, v{r+1}')
                    a(f'v_cvt_pk_bf16_f32 v{d+2*e+1}, v{r+2}, v{r+3}')
    ONES = 112
    for i in range(4):
        a(f'v_mov_b32 v{ONES+i}, 0x3f803f80')
    KV = 128
    Z = 160
    for ks in range(2):
        for F in range(4):
            pf = PF + (F * 2 + ks) * 4
            for db in range(2):
                d = KV + (F * 2 + db) * 4
                vf = VF + (ks * 2 + db) * 4
                cc = '0' if ks == 0 else f'v[{d}:{d+3}]'
                a(f'v_mfma_f32_16x16x32_bf16 v[{d}:{d+3}], v[{pf}:{pf+3}], v[{vf}:{vf+3}], {cc}')
            d = Z + F * 4
            cc = '0' if ks == 0 else f'v[{d}:{d+3}]'
            a(f'v_mfma_f32_16x16x32_bf16 v[{d}:{d+3}], v[{pf}:{pf+3}], v[{ONES}:{ONES+3}], {cc}')
    a('s_lshl_b32 s28, s22, 2')
    a('s_add_u32 s28, s28, s21')
    a('s_mul_i32 s28, s28, 12288')
    a(f'v_add_u32 v{T+6}, s28, v{VPF}')
    for r in range(12):
        a(f'ds_write_b128 v{T+6}, v[{KV+4*r}:{KV+4*r+3}] offset:{r*1024}')
    a('s_mul_i32 s28, s22, 49152')
    a('s_mul_i32 s29, s21, 3072')
    a('s_add_u32 s28, s28, s29')
    a(f'v_add_u32 v{T+6}, s28, v{VPF}')
    a('s_waitcnt lgkmcnt(0)')
    a('s_barrier')
    for p in range(4):
        for r in range(3):
            a(f'ds_read_b128 v[{32+12*p+4*r}:{35+12*p+4*r}], v{T+6} offset:{p*12288 + r*1024}')
    a('s_lshl_b32 s28, s33, 3')
    a('s_add_u32 s28, s28, s24')
    a(f's_mul_i32 s28, s28, {KVP_ENT}')
    a(f'v_lshlrev_b32 v{T+7}, 4, v{VG4}')
    a(f'v_cmp_eq_u32 vcc, 0, v{VL16}')
    a('s_waitcnt lgkmcnt(0)')
    for r in range(12):
        a(f'v_add_f32 v{32+r}, v{32+r}, v{44+r}')
        a(f'v_add_f32 v{56+r}, v{56+r}, v{68+r}')
    for r in range(12):
        a(f'v_add_f32 v{32+r}, v{32+r}, v{56+r}')

    def qoff(q):
        if q < 8:
            F, db = q >> 1, q & 1
            return ((db * 2 + (F >> 1)) * 2 + (F & 1)) * 1024
        return 8192 + (q - 8) * 64
    for wm in range(4):
        a(f's_cmp_lg_u32 s21, {wm}')
        a(f's_cbranch_scc1 g1q_st{wm}')
        for r in range(3):
            q = 3 * wm + r
            a(f's_add_u32 s29, s28, {qoff(q)} ; @skip')
            if q < 8:
                a(f'buffer_store_dwordx4 v[{32+4*r}:{35+4*r}], v{VPF}, s[44:47], s29 offen ; @skip')
            else:
                a('s_and_saveexec_b64 s[34:35], vcc ; @skip')
                a(f'buffer_store_dwordx4 v[{32+4*r}:{35+4*r}], v{T+7}, s[44:47], s29 offen ; @skip')
                a('s_mov_b64 exec, s[34:35] ; @skip')
        a(f'g1q_st{wm}:')
    a('g1q_end:')
    stamp(a, 3)
    if OPT('STAMP'):
        a('s_waitcnt vmcnt(0)')
    stamp(a, 4)
    stamp(a, 6, True)
    stamp_flush(a, 7, 0)
    a('s_endpgm')


def gen_gemm1(a):
    name = 'gemm1_kernel'
    kernel_begin(a, name)
    a('s_cmp_ge_u32 s2, 256')
    a('s_cbranch_scc1 g1_exit')
    a('s_load_dwordx2 s[4:5], s[0:1], 88')
    a('s_load_dwordx2 s[6:7], s[0:1], 8')
    a('s_load_dwordx2 s[56:57], s[0:1], 16')
    a('s_load_dwordx2 s[58:59], s[0:1], 40')
    a('s_load_dwordx2 s[60:61], s[0:1], 48')
    a('s_load_dwordx2 s[72:73], s[0:1], 24')
    a('s_load_dwordx2 s[74:75], s[0:1], 56')
    gemm1_common_setup(a)
    a('s_cmp_ge_u32 s25, 16')
    a('s_cbranch_scc1 g1_w1')
    gemm1_variant(a, 'qkv')
    a('g1_w1:')
    gemm1_variant(a, 'w1')
    a('g1_exit:')
    a('s_endpgm')
    return descriptor(name, 256, 100)


def gen_o(a):
    name = 'attn_o_kernel'
    kernel_begin(a, name)
    a('s_cmp_ge_u32 s2, 256')
    a('s_cbranch_scc1 o_done')
    a('s_load_dwordx2 s[4:5], s[0:1], 88')
    a('s_load_dwordx2 s[32:33], s[0:1], 24')
    a('s_load_dwordx2 s[34:35], s[0:1], 56')
    a('v_lshrrev_b32 v1, 6, v0')
    a('v_and_b32 v2, 63, v0')
    a('s_nop 0')
    a('v_readfirstlane_b32 s20, v1')
    a('v_lshrrev_b32 v3, 4, v2')
    a('v_and_b32 v4, 15, v2')
    a('s_and_b32 s21, s2, 31')
    a('s_lshr_b32 s22, s2, 5')
    a('s_waitcnt lgkmcnt(0)')
    srd(a, 8, 4, KVP_SZ, KVP_OFF)
    srd(a, 12, 4, PHIQ_SZ, PHIQ_OFF)
    srd(a, 16, 4, ACT2_SZ, ACT2_OFF)
    srd(a, 36, 4, FLAG_SZ, FLAG_OFF)
    a('s_lshl_b32 s23, s2, 9')
    a('v_lshlrev_b32 v5, 7, v0')
    a('v_mov_b32 v6, 0')
    a('v_cmp_gt_u32 vcc, 4, v0')
    a('s_and_saveexec_b64 s[24:25], vcc')
    a('buffer_store_dword v6, v5, s[36:39], s23 offen')
    a('s_mov_b64 exec, s[24:25]')
    a('s_and_b32 s23, s20, 1')
    a('s_lshr_b32 s24, s20, 1')
    a('s_lshl_b32 s25, s23, 12')
    a('s_lshl_b32 s26, s24, 7')
    a('s_add_u32 s25, s25, s26')
    a('v_lshlrev_b32 v5, 8, v4')
    a('v_lshl_add_u32 v5, v3, 5, v5')
    a('v_add_u32 v5, s25, v5')
    a(f's_mul_i32 s27, s21, {KVP_ENT}')
    for mt in range(8):
        a(f's_add_u32 s28, s27, {mt*32*KVP_ENT}')
        a(f'buffer_load_dwordx4 v[{32+8*mt}:{35+8*mt}], v5, s[8:11], s28 offen')
        a(f'buffer_load_dwordx4 v[{36+8*mt}:{39+8*mt}], v5, s[8:11], s28 offen offset:16')
    a('s_lshl_b32 s25, s23, 7')
    a('s_add_u32 s25, s25, 8192')
    a('v_lshl_add_u32 v6, v3, 5, s25')
    for mt in range(8):
        a(f's_add_u32 s28, s27, {mt*32*KVP_ENT}')
        a(f'buffer_load_dwordx4 v[{96+8*mt}:{99+8*mt}], v6, s[8:11], s28 offen')
        a(f'buffer_load_dwordx4 v[{100+8*mt}:{103+8*mt}], v6, s[8:11], s28 offen offset:16')
    a('s_lshl_b32 s25, s22, 8')
    a('s_lshl_b32 s26, s20, 6')
    a('s_add_u32 s25, s25, s26')
    a('v_add_u32 v7, s25, v4')
    a('v_lshlrev_b32 v8, 12, v7')
    a('s_lshl_b32 s26, s21, 7')
    a('v_lshl_add_u32 v9, v3, 4, s26')
    a('v_add_u32 v8, v8, v9')
    for mb in range(4):
        a(f's_mov_b32 s28, {mb*16*4096}')
        for ks in range(2):
            d = 160 + (mb * 2 + ks) * 4
            a(f'buffer_load_dwordx4 v[{d}:{d+3}], v8, s[12:15], s28 offen offset:{ks*64}')
    npf = 0
    if OPT('O_PF'):
        srd(a, 36, 32, 1024 * 1024 * 2)
        srd(a, 40, 34, 3584 * 1024 * 2)
        a('v_lshlrev_b32 v200, 4, v0')
        a('s_lshl_b32 s44, s2, 13')
        a('s_mul_i32 s45, s2, 28672')
        for r in range(2):
            a(f'buffer_load_dwordx4 v[{204+4*r}:{207+4*r}], v200, s[36:39], s44 offen')
            a('s_add_u32 s44, s44, 4096')
        for r in range(7):
            a(f'buffer_load_dwordx4 v[{212+4*r}:{215+4*r}], v200, s[40:43], s45 offen')
            a('s_add_u32 s45, s45, 4096')
        npf = 9
    a(f's_waitcnt vmcnt({8+npf})')
    for base in (32, 96):
        for mt in range(1, 8):
            for i in range(8):
                a(f'v_add_f32 v{base+i}, v{base+i}, v{base+8*mt+i}')
    for i in range(4):
        a(f'v_cvt_pk_bf16_f32 v{12+i}, v{32+2*i}, v{33+2*i}')
        a(f'v_cvt_pk_bf16_f32 v{16+i}, v{96+2*i}, v{97+2*i}')
    a('v_lshlrev_b32 v10, 4, v2')
    a('s_lshl_b32 s25, s20, 10')
    a('v_add_u32 v11, s25, v10')
    a('ds_write_b128 v11, v[12:15]')
    a('s_cmp_ge_u32 s20, 2')
    a('s_cbranch_scc1 o_skipz')
    a('ds_write_b128 v11, v[16:19] offset:4096')
    a('o_skipz:')
    a('s_waitcnt lgkmcnt(0)')
    a('s_barrier')
    for i in range(6):
        a(f'ds_read_b128 v[{32+4*i}:{35+4*i}], v10 offset:{i*1024}')
    a(f's_waitcnt vmcnt({npf}) lgkmcnt(0)')
    NUM = 64
    DEN = 96
    for ks in range(2):
        for mb in range(4):
            pf = 160 + (mb * 2 + ks) * 4
            for db in range(2):
                d = NUM + (mb * 2 + db) * 4
                kf = 32 + (ks * 2 + db) * 4
                cc = '0' if ks == 0 else f'v[{d}:{d+3}]'
                a(f'v_mfma_f32_16x16x32_bf16 v[{d}:{d+3}], v[{kf}:{kf+3}], v[{pf}:{pf+3}], {cc}')
            d = DEN + mb * 4
            zf = 32 + (4 + ks) * 4
            cc = '0' if ks == 0 else f'v[{d}:{d+3}]'
            a(f'v_mfma_f32_16x16x32_bf16 v[{d}:{d+3}], v[{zf}:{zf+3}], v[{pf}:{pf+3}], {cc}')
    a('s_mov_b32 s30, 0xffff0000')
    a('s_mov_b32 s29, 9216')
    a('v_mul_lo_u32 v8, v7, s29')
    a('s_lshl_b32 s26, s21, 6')
    a('v_lshl_add_u32 v9, v3, 3, s26')
    a('v_add_u32 v8, v8, v9')
    for mb in range(4):
        dn = DEN + mb * 4
        round_bf16(a, dn, dn)
        a(f'v_add_f32 v{dn}, 0x{f2u(1e-6):x}, v{dn}')
        round_bf16(a, dn, dn)
        a(f'v_rcp_f32 v{dn+1}, v{dn}')
        a(f's_mov_b32 s28, {mb*16*9216}')
        for db in range(2):
            n = NUM + (mb * 2 + db) * 4
            for h in range(2):
                a(f'v_cvt_pk_bf16_f32 v{12+h}, v{n+2*h}, v{n+2*h+1}')
                a(f'v_lshlrev_b32 v{n+2*h}, 16, v{12+h}')
                a(f'v_and_b32 v{n+2*h+1}, s30, v{12+h}')
            for i in range(4):
                a(f'v_mul_f32 v{16+i}, v{n+i}, v{dn+1}')
            for i in range(4):
                a(f'v_fma_f32 v{n+i}, -v{16+i}, v{dn}, v{n+i}')
            for i in range(4):
                a(f'v_fmac_f32 v{16+i}, v{n+i}, v{dn+1}')
            o = 20 + (mb * 2 + db) * 2
            a(f'v_cvt_pk_bf16_f32 v{o}, v16, v17')
            a(f'v_cvt_pk_bf16_f32 v{o+1}, v18, v19')
            a(f'buffer_store_dwordx2 v[{o}:{o+1}], v8, s[16:19], s28 offen offset:{db*32}')
    a('o_done:')
    a('s_endpgm')
    return descriptor(name, 240, 48)


G2_A = 32768
G2_BB = 98304
G2_B = 16384
G2_LDS = G2_BB + 3 * G2_B


def gen_gemm2(a):
    name = 'gemm2_kernel'
    kernel_begin(a, name)
    a('s_cmp_ge_u32 s2, 256')
    a('s_cbranch_scc1 g2_exit')
    a('s_load_dwordx2 s[4:5], s[0:1], 88')
    a('s_load_dwordx2 s[6:7], s[0:1], 24')
    a('s_load_dwordx2 s[56:57], s[0:1], 56')
    a('s_load_dwordx2 s[58:59], s[0:1], 64')
    a('s_load_dwordx2 s[60:61], s[0:1], 0')
    a('s_load_dwordx2 s[62:63], s[0:1], 72')
    LANE, G4, L16, T = 14, 15, 16, 17
    VA2, VB2, VGA2, VGB2 = 2, 5, 9, 10
    a('v_lshrrev_b32 v1, 6, v0')
    a(f'v_and_b32 v{LANE}, 63, v0')
    a('s_nop 0')
    a('v_readfirstlane_b32 s20, v1')
    a(f'v_lshrrev_b32 v{G4}, 4, v{LANE}')
    a(f'v_and_b32 v{L16}, 15, v{LANE}')
    a('s_nop 1')
    a('s_and_b32 s21, s20, 1')
    a('s_lshr_b32 s22, s20, 1')
    a('s_and_b32 s26, s2, 7')
    a('s_lshr_b32 s27, s2, 3')
    a('s_and_b32 s24, s26, 3')
    a('s_lshl_b32 s24, s24, 2')
    a('s_and_b32 s28, s27, 3')
    a('s_add_u32 s24, s24, s28')
    a('s_lshr_b32 s25, s26, 2')
    a('s_lshl_b32 s25, s25, 3')
    a('s_lshr_b32 s28, s27, 2')
    a('s_add_u32 s25, s25, s28')
    a('s_lshl_b32 s28, s22, 2')
    a(f'v_add_u32 v{T}, s28, v{G4}')
    a(f'v_xor_b32 v{T}, v{T}, v{L16}')
    a(f'v_lshlrev_b32 v{T}, 4, v{T}')
    a(f'v_lshl_add_u32 v{T}, v{L16}, 8, v{T}')
    a('s_lshl_b32 s28, s21, 14')
    a(f'v_add_u32 v{T}, s28, v{T}')
    for sl in range(3):
        a(f'v_add_u32 v{VA2+sl}, 0x{sl*G2_A:x}, v{T}')
    a(f'v_lshrrev_b32 v{T}, 2, v{L16}')
    a(f'v_lshl_add_u32 v{T+1}, v{G4}, 3, v{T}')
    a('s_lshl_b32 s28, s22, 5')
    a(f'v_add_u32 v{T+1}, s28, v{T+1}')
    a(f'v_lshrrev_b32 v{T+2}, 1, v{T}')
    a(f'v_and_b32 v{T+3}, 1, v{G4}')
    a(f'v_lshl_or_b32 v{T+2}, v{T+3}, 1, v{T+2}')
    a(f'v_and_b32 v{T+4}, 3, v{LANE}')
    a(f'v_lshlrev_b32 v{T+4}, 3, v{T+4}')
    a(f'v_lshl_add_u32 v{T+5}, v{T+1}, 7, v{T+4}')
    a(f'v_add_u32 v{T+5}, 0x{G2_BB:x}, v{T+5}')
    for nb in range(4):
        a(f'v_xor_b32 v{T+6}, {nb}, v{T+2}')
        a(f'v_lshl_add_u32 v{VB2+nb}, v{T+6}, 5, v{T+5}')
    a('s_lshl_b32 s28, s20, 2')
    a('s_and_b32 s29, s28, 15')
    a(f'v_add_u32 v{T}, s29, v{G4}')
    a(f'v_xor_b32 v{T}, v{T}, v{L16}')
    a('s_lshl_b32 s29, s24, 7')
    a('s_add_u32 s28, s28, s29')
    a(f'v_add_u32 v{T+1}, s28, v{G4}')
    a('s_mov_b32 s29, 9216')
    a(f'v_mul_lo_u32 v{T+1}, v{T+1}, s29')
    a(f'v_lshl_add_u32 v{VGA2}, v{T}, 4, v{T+1}')
    a('s_lshl_b32 s30, s20, 10')
    a(f'v_lshrrev_b32 v{T}, 3, v{LANE}')
    a(f'v_bfe_u32 v{T+1}, v{LANE}, 4, 1')
    a('s_lshl_b32 s28, s21, 1')
    a(f'v_or_b32 v{T+1}, s28, v{T+1}')
    a(f'v_bfe_u32 v{T+2}, v{LANE}, 1, 2')
    a(f'v_xor_b32 v{T+2}, v{T+2}, v{T+1}')
    a(f'v_and_b32 v{T+3}, 1, v{LANE}')
    a(f'v_lshlrev_b32 v{T+3}, 4, v{T+3}')
    a(f'v_lshl_add_u32 v{T+3}, v{T+2}, 5, v{T+3}')
    a('s_lshl_b32 s28, s20, 3')
    a(f'v_add_u32 v{T}, s28, v{T}')
    a(f'v_lshl_add_u32 v{T}, v{T}, 11, v{T+3}')
    a('s_lshl_b32 s32, s25, 7')
    a(f'v_add_u32 v{VGB2}, s32, v{T}')
    a('s_waitcnt lgkmcnt(0)')
    srd(a, 8, 4, ACT2_SZ, ACT2_OFF)
    srd(a, 12, 6, 1024 * 1024 * 2)
    srd(a, 16, 56, 3584 * 1024 * 2)
    srd(a, 36, 58, 2048)
    srd(a, 40, 60, XN_SZ)
    srd(a, 44, 62, XN_SZ)
    stamp(a, 5, True)
    stamp(a, 0)
    ACC2 = 64
    SETS2 = (24, 128)
    for i in range(64):
        a(f'v_mov_b32 v{ACC2+i}, 0')
    vq = VQ()
    NS = 36

    def grp(j):
        sl = j % 3
        out = []
        for q in range(4):
            if OPT('G2_NOA'):
                break
            out.append(([f's_add_u32 m0, s30, 0x{sl*G2_A + q*8192:x}',
                         f's_mov_b32 s28, 0x{j*256 + q*32*9216:x}',
                         f'buffer_load_dwordx4 v{VGA2}, s[8:11], s28 offen lds'], j))
        for q in range(2):
            if OPT('G2_NOB'):
                break
            k0 = j * 128 + q * 64
            if k0 < 1024:
                sr, ko = 's[12:15]', k0
            else:
                sr, ko = 's[16:19]', k0 - 1024
            out.append(([f's_add_u32 m0, s30, 0x{G2_BB + sl*G2_B + q*8192:x}',
                         f's_mov_b32 s28, 0x{ko*2048:x}',
                         f'buffer_load_dwordx4 v{VGB2}, {sr}, s28 offen lds'], j))
        return out

    def emit_grp(g):
        for l in g[0]:
            a(l)
        vq.push(g[1])

    def issue(j):
        for g in grp(j):
            emit_grp(g)

    def frag_reads(j):
        S = SETS2[j & 1]
        sl = j % 3
        out = []
        for mb in range(4):
            out.append(f'ds_read_b128 v[{S+4*mb}:{S+4*mb+3}], v{VA2+sl} offset:{mb*4096}')
        for nb in range(4):
            d = S + 16 + 4 * nb
            for t in range(2):
                out.append(f'ds_read_b64_tr_b16 v[{d+2*t}:{d+2*t+1}], v{VB2+nb} offset:{sl*G2_B + t*512}')
        return out

    def mfmas(j):
        S = SETS2[j & 1]
        out = []
        for nb in range(4):
            for mb in range(4):
                c = ACC2 + (mb * 4 + nb) * 4
                out.append(f'v_mfma_f32_16x16x32_bf16 v[{c}:{c+3}], v[{S+16+4*nb}:{S+19+4*nb}], v[{S+4*mb}:{S+4*mb+3}], v[{c}:{c+3}]')
        return out

    issue(0); issue(1); issue(2)
    a(f's_waitcnt vmcnt({vq.wait_for({0})})')
    a('s_barrier')
    stamp(a, 1)
    for r in frag_reads(0):
        a(r)
    a('s_waitcnt lgkmcnt(0)')
    for j in range(NS):
        if j + 1 < NS:
            a(f's_waitcnt vmcnt({vq.wait_for({j + 1})})')
        a('s_barrier')
        dma = grp(j + 3) if j + 3 < NS else []
        rd = frag_reads(j + 1) if j + 1 < NS else []
        mm = mfmas(j)
        if OPT('G2_NOCOMP'):
            rd = []; mm = []
        interleave(a, mm, rd, dma, emit_grp, 0, 3)
        a('s_waitcnt lgkmcnt(0)')
    stamp(a, 2)
    a(f'v_lshlrev_b32 v{T}, 4, v{LANE}')
    a('s_lshl_b32 s28, s21, 16')
    a('s_lshl_b32 s29, s22, 12')
    a('s_add_u32 s28, s28, s29')
    a(f'v_add_u32 v{T+1}, s28, v{T}')
    for mb in range(4):
        for nb in range(4):
            c = ACC2 + (mb * 4 + nb) * 4
            a(f'ds_write_b128 v{T+1}, v[{c}:{c+3}] offset:{mb*16384 + nb*1024}')
    a('s_lshl_b32 s28, s24, 7')
    a('s_lshl_b32 s29, s21, 6')
    a('s_add_u32 s28, s28, s29')
    a('s_lshl_b32 s29, s22, 4')
    a('s_add_u32 s28, s28, s29')
    a(f'v_add_u32 v{T+2}, s28, v{L16}')
    a(f'v_lshlrev_b32 v{T+2}, 11, v{T+2}')
    a(f'v_lshl_add_u32 v{T+3}, v{G4}, 3, s32')
    a(f'v_add_u32 v{T+2}, v{T+2}, v{T+3}')
    for nb in range(4):
        a(f'buffer_load_dwordx2 v[{24+2*nb}:{25+2*nb}], v{T+2}, s[40:43], 0 offen offset:{nb*32}')
        a(f'buffer_load_dwordx2 v[{32+2*nb}:{33+2*nb}], v{T+3}, s[36:39], 0 offen offset:{nb*32}')
    a('s_waitcnt lgkmcnt(0)')
    a('s_barrier')
    a('s_lshl_b32 s28, s21, 16')
    a('s_lshl_b32 s29, s22, 14')
    a('s_add_u32 s28, s28, s29')
    a(f'v_add_u32 v{T+1}, s28, v{T}')
    for src in range(4):
        for nb in range(4):
            d = 128 + (src * 4 + nb) * 4
            a(f'ds_read_b128 v[{d}:{d+3}], v{T+1} offset:{src*4096 + nb*1024}')
    a('s_mov_b32 s50, 0xffff0000')
    a('s_waitcnt vmcnt(0) lgkmcnt(0)')
    for i in range(16):
        a(f'v_add_f32 v{128+i}, v{128+i}, v{144+i}')
        a(f'v_add_f32 v{160+i}, v{160+i}, v{176+i}')
    for i in range(16):
        a(f'v_add_f32 v{128+i}, v{128+i}, v{160+i}')
    for nb in range(4):
        for h in range(2):
            r = 128 + nb * 4 + 2 * h
            a(f'v_lshlrev_b32 v40, 16, v{24+2*nb+h}')
            a(f'v_and_b32 v41, s50, v{24+2*nb+h}')
            a(f'v_lshlrev_b32 v42, 16, v{32+2*nb+h}')
            a(f'v_and_b32 v43, s50, v{32+2*nb+h}')
            a(f'v_add_f32 v{r}, v{r}, v42')
            a(f'v_add_f32 v{r+1}, v{r+1}, v43')
            a(f'v_add_f32 v{r}, v{r}, v40')
            a(f'v_add_f32 v{r+1}, v{r+1}, v41')
            a(f'v_cvt_pk_bf16_f32 v{44+2*nb+h}, v{r}, v{r+1}')
        a(f'buffer_store_dwordx2 v[{44+2*nb}:{45+2*nb}], v{T+2}, s[44:47], 0 offen offset:{nb*32}')
    stamp(a, 3)
    if OPT('STAMP'):
        a('s_waitcnt vmcnt(0)')
    stamp(a, 4)
    stamp(a, 6, True)
    stamp_flush(a, 7, 1)
    a('g2_exit:')
    a('s_endpgm')
    return descriptor(name, 192, 100)


X_OFF = 0x2200000
X_SZ = 256 * 32768
FLAG_OFF = 0x2A00000
FLAG_SZ = 256 * 512
OFLAG_OFF = 0x2B00000
H_SLOT = 32768
H_LDS = 4 * H_SLOT


def gen_gemm2b(a):
    name = 'gemm2_kernel'
    kernel_begin(a, name)
    a('s_cmp_ge_u32 s2, 256')
    a('s_cbranch_scc1 g2_exit')
    a('s_load_dwordx2 s[4:5], s[0:1], 88')
    a('s_load_dwordx2 s[6:7], s[0:1], 24')
    a('s_load_dwordx2 s[56:57], s[0:1], 56')
    a('s_load_dwordx2 s[58:59], s[0:1], 64')
    a('s_load_dwordx2 s[60:61], s[0:1], 0')
    a('s_load_dwordx2 s[62:63], s[0:1], 72')
    a('s_load_dwordx2 s[64:65], s[0:1], 80')
    LANE, G4, L16, T = 14, 15, 16, 17
    VA2, VB2, VGA2, VGB2 = 2, 4, 9, 10
    a('v_lshrrev_b32 v1, 6, v0')
    a(f'v_and_b32 v{LANE}, 63, v0')
    a('s_nop 0')
    a('v_readfirstlane_b32 s20, v1')
    a(f'v_lshrrev_b32 v{G4}, 4, v{LANE}')
    a(f'v_and_b32 v{L16}, 15, v{LANE}')
    a('s_nop 1')
    a('s_and_b32 s21, s20, 1')
    a('s_bfe_u32 s23, s20, 0x10001')
    a('s_lshr_b32 s22, s20, 2')
    a('s_and_b32 s26, s2, 7')
    a('s_lshr_b32 s27, s2, 3')
    a('s_and_b32 s33, s26, 1')
    a('s_lshr_b32 s24, s26, 1')
    a('s_lshl_b32 s24, s24, 2')
    a('s_and_b32 s28, s27, 3')
    a('s_add_u32 s24, s24, s28')
    a('s_lshr_b32 s25, s27, 2')
    a(f'v_lshrrev_b32 v{T}, 3, v{LANE}')
    a(f'v_and_b32 v{T+1}, 7, v{LANE}')
    a(f'v_xor_b32 v{T+1}, v{T+1}, v{T}')
    a('s_lshl_b32 s28, s24, 7')
    a('s_lshl_b32 s29, s20, 3')
    a('s_add_u32 s28, s28, s29')
    a(f'v_add_u32 v{T}, s28, v{T}')
    a('s_movk_i32 s29, 9216')
    a(f'v_mul_lo_u32 v{T}, v{T}, s29')
    a(f'v_lshl_add_u32 v{T}, v{T+1}, 4, v{T}')
    a('s_mul_i32 s28, s33, 4608')
    a(f'v_add_u32 v{VGA2}, s28, v{T}')
    a('s_lshl_b32 s30, s20, 10')
    a(f'v_lshrrev_b32 v{T}, 3, v{LANE}')
    a(f'v_bfe_u32 v{T+1}, v{LANE}, 4, 1')
    a('s_lshl_b32 s28, s21, 1')
    a(f'v_or_b32 v{T+1}, s28, v{T+1}')
    a(f'v_bfe_u32 v{T+2}, v{LANE}, 1, 2')
    a(f'v_xor_b32 v{T+2}, v{T+2}, v{T+1}')
    a(f'v_and_b32 v{T+3}, 1, v{LANE}')
    a(f'v_lshlrev_b32 v{T+3}, 4, v{T+3}')
    a(f'v_lshl_add_u32 v{T+3}, v{T+2}, 5, v{T+3}')
    a('s_lshl_b32 s28, s20, 3')
    a(f'v_add_u32 v{T}, s28, v{T}')
    a(f'v_lshl_add_u32 v{T}, v{T}, 11, v{T+3}')
    a('s_lshl_b32 s32, s25, 8')
    a(f'v_add_u32 v{VGB2}, s32, v{T}')
    a('s_waitcnt lgkmcnt(0)')
    srd(a, 8, 4, ACT2_SZ, ACT2_OFF)
    a('s_cmp_eq_u32 s33, 0')
    a('s_cbranch_scc0 g2_kh1')
    srd(a, 12, 6, 1024 * 2048)
    a(f's_sub_u32 s16, s56, 0x{1024*2048:x}')
    a('s_subb_u32 s17, s57, 0')
    a('s_and_b32 s17, s17, 0xffff')
    a(f's_mov_b32 s18, 0x{4608*2048:x}')
    a('s_mov_b32 s19, 0x00020000')
    a('s_branch g2_khd')
    a('g2_kh1:')
    srd(a, 12, 56, (3584 - 1280) * 2048, 1280 * 2048)
    srd(a, 16, 56, (3584 - 1280) * 2048, 1280 * 2048)
    a('g2_khd:')
    vq = VQ()
    NS = 36

    def grp(j):
        sl = j % 4
        out = []
        for q in range(2):
            out.append(([f's_add_u32 m0, s30, 0x{sl*H_SLOT + q*8192:x}',
                         f's_mov_b32 s28, 0x{j*128 + q*64*9216:x}',
                         f'buffer_load_dwordx4 v{VGA2}, s[8:11], s28 offen lds'], j))
        sr = 's[12:15]' if j < 16 else 's[16:19]'
        for q in range(2):
            out.append(([f's_add_u32 m0, s30, 0x{sl*H_SLOT + 16384 + q*8192:x}',
                         f's_mov_b32 s28, 0x{j*64*2048 + q*128:x}',
                         f'buffer_load_dwordx4 v{VGB2}, {sr}, s28 offen lds'], j))
        return out

    def emit_grp(g):
        for l in g[0]:
            a(l)
        vq.push(g[1])

    for j in range(4):
        for g in grp(j):
            emit_grp(g)
    stamp(a, 5, True)
    stamp(a, 0)
    srd(a, 36, 58, 2048)
    srd(a, 40, 60, XN_SZ)
    srd(a, 44, 62, XN_SZ)
    srd(a, 48, 4, X_SZ, X_OFF)
    srd(a, 52, 4, FLAG_SZ, FLAG_OFF)
    a('s_lshl_b32 s28, s22, 2')
    a(f'v_add_u32 v{T}, s28, v{G4}')
    a(f'v_and_b32 v{T+1}, 7, v{LANE}')
    a(f'v_xor_b32 v{T}, v{T}, v{T+1}')
    a(f'v_lshlrev_b32 v{T}, 4, v{T}')
    a(f'v_lshl_add_u32 v{T}, v{L16}, 7, v{T}')
    a('s_lshl_b32 s28, s21, 13')
    a(f'v_add_u32 v{VA2}, s28, v{T}')
    a(f'v_add_u32 v{VA2+1}, 0x10000, v{VA2}')
    a(f'v_lshrrev_b32 v{T}, 2, v{L16}')
    a(f'v_lshl_add_u32 v{T+1}, v{G4}, 3, v{T}')
    a('s_lshl_b32 s28, s22, 5')
    a(f'v_add_u32 v{T+1}, s28, v{T+1}')
    a(f'v_lshrrev_b32 v{T+2}, 1, v{T}')
    a(f'v_and_b32 v{T+3}, 1, v{G4}')
    a(f'v_lshl_or_b32 v{T+2}, v{T+3}, 1, v{T+2}')
    a(f'v_and_b32 v{T+4}, 3, v{LANE}')
    a(f'v_lshlrev_b32 v{T+4}, 3, v{T+4}')
    a(f'v_lshl_add_u32 v{T+5}, v{T+1}, 7, v{T+4}')
    a('s_lshl_b32 s28, s23, 13')
    a('s_add_u32 s28, s28, 16384')
    a(f'v_add_u32 v{T+5}, s28, v{T+5}')
    for nb in range(4):
        a(f'v_xor_b32 v{T+6}, {nb}, v{T+2}')
        a(f'v_lshl_add_u32 v{VB2+nb}, v{T+6}, 5, v{T+5}')
        a(f'v_add_u32 v{24+nb}, 0x10000, v{VB2+nb}')
    ACC2 = 64
    SETS2 = (32, 128)
    for i in range(64):
        a(f'v_mov_b32 v{ACC2+i}, 0')

    def frag_reads(j):
        S = SETS2[j & 1]
        sl = j % 4
        hi = sl >> 1
        so = (sl & 1) * H_SLOT
        out = []
        for mb in range(4):
            out.append(f'ds_read_b128 v[{S+4*mb}:{S+4*mb+3}], v{VA2+hi} offset:{so + mb*2048}')
        for nb in range(4):
            d = S + 16 + 4 * nb
            vb = (24 if hi else VB2) + nb
            for t in range(2):
                out.append(f'ds_read_b64_tr_b16 v[{d+2*t}:{d+2*t+1}], v{vb} offset:{so + t*512}')
        return out

    def mfmas(j):
        S = SETS2[j & 1]
        out = []
        for nb in range(4):
            for mb in range(4):
                c = ACC2 + (mb * 4 + nb) * 4
                out.append(f'v_mfma_f32_16x16x32_bf16 v[{c}:{c+3}], v[{S+16+4*nb}:{S+19+4*nb}], v[{S+4*mb}:{S+4*mb+3}], v[{c}:{c+3}]')
        return out

    a(f's_waitcnt vmcnt({vq.wait_for({0})})')
    a('s_barrier')
    stamp(a, 1)
    for r in frag_reads(0):
        a(r)
    a('s_waitcnt lgkmcnt(0)')
    for j in range(NS):
        if j + 1 < NS:
            a(f's_waitcnt vmcnt({vq.wait_for({j + 1})})')
        a('s_barrier')
        dma = grp(j + 4) if j + 4 < NS else []
        rd = frag_reads(j + 1) if j + 1 < NS else []
        mm = mfmas(j)
        interleave(a, mm, rd, dma, emit_grp, 0, 4)
        a('s_waitcnt lgkmcnt(0)')
    stamp(a, 2)
    a(f'v_lshlrev_b32 v{T}, 4, v{LANE}')
    a('s_and_b32 s28, s20, 3')
    a('s_lshl_b32 s28, s28, 14')
    a('s_xor_b32 s29, s22, 1')
    a('s_lshl_b32 s29, s29, 13')
    a('s_add_u32 s29, s29, s28')
    a(f'v_add_u32 v{T+1}, s29, v{T}')
    a('s_lshl_b32 s29, s22, 13')
    a('s_add_u32 s29, s29, s28')
    a(f'v_add_u32 v{T+2}, s29, v{T}')
    a('s_cmp_eq_u32 s22, 0')
    a('s_cbranch_scc0 g2_ks1')
    for r in range(8):
        a(f'ds_write_b128 v{T+1}, v[{ACC2+32+4*r}:{ACC2+35+4*r}] offset:{r*1024}')
    a('s_branch g2_ksd')
    a('g2_ks1:')
    for r in range(8):
        a(f'ds_write_b128 v{T+1}, v[{ACC2+4*r}:{ACC2+3+4*r}] offset:{r*1024}')
    for r in range(32):
        a(f'v_mov_b32 v{ACC2+r}, v{ACC2+32+r}')
    a('g2_ksd:')
    a('s_waitcnt lgkmcnt(0)')
    a('s_barrier')
    for r in range(8):
        a(f'ds_read_b128 v[{128+4*r}:{131+4*r}], v{T+2} offset:{r*1024}')
    a('s_waitcnt lgkmcnt(0)')
    for r in range(32):
        a(f'v_add_f32 v{ACC2+r}, v{ACC2+r}, v{128+r}')
    a('s_lshl_b32 s28, s21, 1')
    a('s_add_u32 s28, s28, s22')
    a('s_lshl_b32 s67, s28, 7')
    a('s_lshl_b32 s28, s28, 13')
    a(f'v_add_u32 v{T+1}, s28, v{T}')
    a('s_cmp_eq_u32 s23, s33')
    a('s_cbranch_scc1 g2_recv')
    a('s_lshl_b32 s28, s2, 15')
    for r in range(8):
        a(f'buffer_store_dwordx4 v[{ACC2+4*r}:{ACC2+3+4*r}], v{T+1}, s[48:51], s28 offen offset:{r*1024 if r < 4 else (r-4)*1024} sc1' if r < 4 else
          f'buffer_store_dwordx4 v[{ACC2+4*r}:{ACC2+3+4*r}], v{T+1}, s[48:51], s29 offen offset:{(r-4)*1024} sc1')
        if r == 3:
            a('s_add_u32 s29, s28, 4096')
    a('s_waitcnt vmcnt(0)')
    a('s_lshl_b32 s28, s2, 9')
    a('s_add_u32 s28, s28, s67')
    a('v_mov_b32 v1, 1')
    a('v_mov_b32 v2, s28')
    a('s_mov_b64 exec, 1')
    a('buffer_store_dword v1, v2, s[52:55], 0 offen sc1')
    a('s_branch g2_fin')
    a('g2_recv:')
    a('s_lshl_b32 s28, s24, 7')
    a('s_lshl_b32 s29, s21, 6')
    a('s_add_u32 s28, s28, s29')
    a('s_lshl_b32 s29, s22, 5')
    a('s_add_u32 s28, s28, s29')
    a(f'v_add_u32 v{T+2}, s28, v{L16}')
    a(f'v_lshlrev_b32 v{T+2}, 11, v{T+2}')
    a('s_lshl_b32 s29, s23, 7')
    a('s_add_u32 s29, s29, s32')
    a(f'v_lshl_add_u32 v{T+3}, v{G4}, 3, s29')
    a(f'v_add_u32 v{T+2}, v{T+2}, v{T+3}')
    a('s_mov_b32 s34, 32768')
    for e in range(2):
        for nb in range(4):
            so = '0' if e == 0 else 's34'
            a(f'buffer_load_dwordx2 v[{32+8*e+2*nb}:{33+8*e+2*nb}], v{T+2}, s[40:43], {so} offen offset:{nb*32}')
    for nb in range(4):
        a(f'buffer_load_dwordx2 v[{48+2*nb}:{49+2*nb}], v{T+3}, s[36:39], 0 offen offset:{nb*32}')
    a('s_xor_b32 s35, s2, 1')
    a('s_lshl_b32 s28, s35, 9')
    a('s_add_u32 s28, s28, s67')
    a('v_mov_b32 v2, s28')
    a('g2_poll:')
    a('buffer_load_dword v1, v2, s[52:55], 0 offen sc1')
    a('s_waitcnt vmcnt(0)')
    a('v_readfirstlane_b32 s28, v1')
    a('s_nop 3')
    a('s_cmp_eq_u32 s28, 1')
    a('s_cbranch_scc1 g2_ready')
    a('s_sleep 1')
    a('s_branch g2_poll')
    a('g2_ready:')
    a('s_lshl_b32 s28, s35, 15')
    a('s_add_u32 s29, s28, 4096')
    for r in range(8):
        a(f'buffer_load_dwordx4 v[{128+4*r}:{131+4*r}], v{T+1}, s[48:51], s{28 if r < 4 else 29} offen offset:{(r % 4)*1024} sc1')
    a('s_mov_b32 s66, 0xffff0000')
    a('s_waitcnt vmcnt(0)')
    for r in range(32):
        a(f'v_add_f32 v{ACC2+r}, v{ACC2+r}, v{128+r}')
    for e in range(2):
        for nb in range(4):
            for h in range(2):
                r = ACC2 + (e * 4 + nb) * 4 + 2 * h
                xr = 32 + 8 * e + 2 * nb + h
                br = 48 + 2 * nb + h
                a(f'v_lshlrev_b32 v56, 16, v{xr}')
                a(f'v_and_b32 v57, s66, v{xr}')
                a(f'v_lshlrev_b32 v58, 16, v{br}')
                a(f'v_and_b32 v59, s66, v{br}')
                a(f'v_add_f32 v{r}, v{r}, v58')
                a(f'v_add_f32 v{r+1}, v{r+1}, v59')
                a(f'v_add_f32 v{r}, v{r}, v56')
                a(f'v_add_f32 v{r+1}, v{r+1}, v57')
                a(f'v_cvt_pk_bf16_f32 v{160+(e*4+nb)*2+h}, v{r}, v{r+1}')
            o = 160 + (e * 4 + nb) * 2
            so = '0' if e == 0 else 's34'
            a(f'buffer_store_dwordx2 v[{o}:{o+1}], v{T+2}, s[44:47], {so} offen offset:{nb*32}')
    a('g2_fin:')
    stamp(a, 3)
    if OPT('STAMP'):
        a('s_waitcnt vmcnt(0)')
    stamp(a, 4)
    stamp(a, 6, True)
    stamp_flush(a, 7, 1)
    a('g2_exit:')
    a('s_endpgm')
    return descriptor(name, 192, 100)


def gen_gemm2c(a):
    STAMP_REGS[:] = [96, 97, 98, 99, 100, 101, 75]
    name = 'gemm2_kernel'
    kernel_begin(a, name)
    a('s_cmp_ge_u32 s2, 256')
    a('s_cbranch_scc1 g2_exit')
    a('s_load_dwordx2 s[4:5], s[0:1], 88')
    a('s_load_dwordx2 s[6:7], s[0:1], 24')
    a('s_load_dwordx2 s[56:57], s[0:1], 56')
    a('s_load_dwordx2 s[58:59], s[0:1], 64')
    a('s_load_dwordx2 s[60:61], s[0:1], 0')
    a('s_load_dwordx2 s[62:63], s[0:1], 72')
    a('s_load_dwordx2 s[64:65], s[0:1], 80')
    LANE, G4, L16, T = 14, 15, 16, 17
    VA2, VB2, VGA2, VGB2 = 2, 4, 9, 10
    a('v_lshrrev_b32 v1, 6, v0')
    a(f'v_and_b32 v{LANE}, 63, v0')
    a('s_nop 0')
    a('v_readfirstlane_b32 s20, v1')
    a(f'v_lshrrev_b32 v{G4}, 4, v{LANE}')
    a(f'v_and_b32 v{L16}, 15, v{LANE}')
    a('s_nop 1')
    a('s_and_b32 s21, s20, 1')
    a('s_bfe_u32 s23, s20, 0x10001')
    a('s_lshr_b32 s22, s20, 2')
    a('s_and_b32 s26, s2, 7')
    a('s_lshr_b32 s27, s2, 3')
    a('s_and_b32 s33, s26, 1')
    a('s_lshr_b32 s24, s26, 1')
    a('s_lshl_b32 s24, s24, 2')
    a('s_and_b32 s28, s27, 3')
    a('s_add_u32 s24, s24, s28')
    a('s_lshr_b32 s25, s27, 2')
    a('s_lshl_b32 s28, s20, 11')
    a('s_lshl_b32 s29, s24, 7')
    a('s_add_u32 s28, s28, s29')
    a(f'v_add_u32 v{T}, s28, v{LANE}')
    a(f'v_lshlrev_b32 v{VGA2}, 4, v{T}')
    a('s_lshl_b32 s31, s20, 11')
    a('s_lshl_b32 s30, s20, 10')
    a(f'v_lshrrev_b32 v{T}, 3, v{LANE}')
    a(f'v_bfe_u32 v{T+1}, v{LANE}, 4, 1')
    a('s_lshl_b32 s28, s21, 1')
    a(f'v_or_b32 v{T+1}, s28, v{T+1}')
    a(f'v_bfe_u32 v{T+2}, v{LANE}, 1, 2')
    a(f'v_xor_b32 v{T+2}, v{T+2}, v{T+1}')
    a(f'v_and_b32 v{T+3}, 1, v{LANE}')
    a(f'v_lshlrev_b32 v{T+3}, 4, v{T+3}')
    a(f'v_lshl_add_u32 v{T+3}, v{T+2}, 5, v{T+3}')
    a('s_lshl_b32 s28, s20, 3')
    a(f'v_add_u32 v{T}, s28, v{T}')
    a(f'v_lshl_add_u32 v{T}, v{T}, 11, v{T+3}')
    a('s_lshl_b32 s32, s25, 8')
    a(f'v_add_u32 v{VGB2}, s32, v{T}')
    a('s_waitcnt lgkmcnt(0)')
    srd(a, 8, 4, ACT2_SZ, ACT2_OFF)
    a(f's_mul_i32 s28, s33, 0x{1792*2048:x}')
    a('s_add_u32 s12, s56, s28')
    a('s_addc_u32 s13, s57, 0')
    a('s_and_b32 s13, s13, 0xffff')
    a(f's_mov_b32 s14, 0x{1792*2048:x}')
    a('s_mov_b32 s15, 0x00020000')
    a('s_lshl_b32 s28, s33, 20')
    a('s_add_u32 s16, s6, s28')
    a('s_addc_u32 s17, s7, 0')
    a(f's_sub_u32 s16, s16, 0x{1792*2048:x}')
    a('s_subb_u32 s17, s17, 0')
    a('s_and_b32 s17, s17, 0xffff')
    a(f's_mov_b32 s18, 0x{36*131072:x}')
    a('s_mov_b32 s19, 0x00020000')
    a(f's_mul_i32 s68, s33, 0x{224*32768:x}')
    a(f's_add_u32 s68, s68, 0x{128*32768:x}')
    a('s_lshl_b32 s69, s33, 21')
    a(f's_sub_u32 s69, s69, 0x{224*32768:x}')
    vq = VQ()
    NS = 36

    def grp(j):
        sl = j % 4
        out = []
        for q in range(2):
            out.append(([f's_add_u32 m0, s31, 0x{sl*H_SLOT + q*1024:x}',
                         f's_add_u32 s28, s{68 if j < 28 else 69}, 0x{j*8*32768 + q*1024:x}',
                         f'buffer_load_dwordx4 v{VGA2}, s[8:11], s28 offen lds'], j))
        sr = 's[12:15]' if j < 28 else 's[16:19]'
        for q in range(2):
            out.append(([f's_add_u32 m0, s30, 0x{sl*H_SLOT + 16384 + q*8192:x}',
                         f's_mov_b32 s28, 0x{j*64*2048 + q*128:x}',
                         f'buffer_load_dwordx4 v{VGB2}, {sr}, s28 offen lds'], j))
        return out

    def emit_grp(g):
        for l in g[0]:
            a(l)
        vq.push(g[1])

    for j in range(4):
        for g in grp(j):
            emit_grp(g)
    stamp(a, 5, True)
    stamp(a, 0)
    srd(a, 80, 4, KVP_SZ, KVP_OFF)
    srd(a, 84, 4, PHIQ_SZ, PHIQ_OFF)
    a('s_and_b32 s70, s2, 31')
    a('s_lshr_b32 s71, s2, 5')
    a('s_lshl_b32 s28, s21, 12')
    a('s_bfe_u32 s29, s20, 0x10001')
    a('s_lshl_b32 s29, s29, 11')
    a('s_add_u32 s28, s28, s29')
    a(f'v_lshl_add_u32 v{T}, v{LANE}, 4, s28')
    a(f'v_add_u32 v{T+1}, 1024, v{T}')
    a('s_lshl_b32 s29, s21, 7')
    a('s_add_u32 s29, s29, 8192')
    a(f'v_lshl_add_u32 v{T+2}, v{G4}, 4, s29')
    a(f'v_add_u32 v{T+3}, 64, v{T+2}')
    a('s_cmp_lt_u32 s20, 4')
    a('s_cselect_b64 s[34:35], -1, 0')
    a(f'v_cndmask_b32 v{T}, v{T+2}, v{T}, s[34:35]')
    a(f'v_cndmask_b32 v13, v{T+3}, v{T+1}, s[34:35]')
    a('s_cselect_b32 s94, -1, 0x00010001')
    a('s_mov_b32 s95, s94')
    a(f's_mul_i32 s72, s70, {8*KVP_ENT}')
    a(f'v_mov_b32 v11, v{T}')
    ogrp = []
    for mt in range(8):
        ogrp.append(([f's_add_u32 s28, s72, {mt*KVP_ENT}', 's_mov_b64 exec, s[94:95]',
                      f'buffer_load_dwordx4 v[{160+8*mt}:{163+8*mt}], v11, s[80:83], s28 offen', 's_mov_b64 exec, -1'], 'o'))
        ogrp.append(([f's_add_u32 s28, s72, {mt*KVP_ENT}', 's_mov_b64 exec, s[94:95]',
                      f'buffer_load_dwordx4 v[{164+8*mt}:{167+8*mt}], v13, s[80:83], s28 offen', 's_mov_b64 exec, -1'], 'o'))
    a('s_lshl_b32 s28, s71, 8')
    a('s_lshl_b32 s29, s20, 5')
    a('s_add_u32 s28, s28, s29')
    a(f'v_add_u32 v{T+1}, s28, v{L16}')
    a('s_lshl_b32 s28, s71, 4')
    a('s_lshl_b32 s29, s20, 1')
    a('s_add_u32 s28, s28, s29')
    a('s_lshl_b32 s28, s28, 10')
    a('s_lshl_b32 s29, s70, 17')
    a('s_add_u32 s28, s28, s29')
    a(f'v_lshl_add_u32 v12, v{LANE}, 4, s28')
    a('s_lshl_b32 s28, s70, 11')
    a('s_add_u32 s28, s28, 0x400000')
    a(f'v_lshl_add_u32 v27, v{LANE}, 4, s28')
    for mb in range(2):
        ogrp.append(([f'buffer_load_dwordx4 v[{224+4*mb}:{227+4*mb}], v12, s[84:87], 0 offen offset:{mb*1024}'], 'oq'))
    for fb in range(2):
        ogrp.append(([f'buffer_load_dwordx4 v[{232+4*fb}:{235+4*fb}], v27, s[84:87], 0 offen offset:{fb*1024}'], 'oq'))
    a('s_lshl_b32 s28, s71, 8')
    a('s_lshl_b32 s29, s20, 5')
    a('s_add_u32 s28, s28, s29')
    a('s_lshl_b32 s29, s70, 13')
    a('s_add_u32 s28, s28, s29')
    a(f'v_add_u32 v28, s28, v{L16}')
    a(f'v_and_b32 v{T+3}, 1, v{G4}')
    a(f'v_lshl_add_u32 v28, v{T+3}, 4, v28')
    a(f'v_lshrrev_b32 v{T+3}, 1, v{G4}')
    a(f'v_lshl_add_u32 v28, v{T+3}, 11, v28')
    a('v_lshlrev_b32 v28, 4, v28')
    a(f'v_lshlrev_b32 v29, 4, v{LANE}')
    a(f'v_add_u32 v29, 0x{H_LDS:x}, v29')
    a('v_add_u32 v30, s30, v29')
    a(f'v_lshlrev_b32 v26, 8, v{G4}')
    a(f'v_add_u32 v26, 0x{H_LDS:x}, v26')

    def o_phase0(a):
        a.mark('vmwait')
        for mt in range(1, 8):
            for i in range(8):
                a(f'v_add_f32 v{160+i}, v{160+i}, v{160+8*mt+i}')
        for i in range(4):
            a(f'v_cvt_pk_bf16_f32 v{168+i}, v{160+2*i}, v{161+2*i}')
        a('s_mov_b64 exec, s[94:95]\nds_write_b128 v30, v[168:171]\ns_mov_b64 exec, -1')

    def o_phase1(a):
        a.mark('vmwait')
        PQ = 172
        for mb in range(2):
            for fb in range(2):
                d = PQ + (mb * 2 + fb) * 4
                a(f'v_mfma_f32_16x16x32_bf16 v[{d}:{d+3}], v[{232+4*fb}:{235+4*fb}], v[{224+4*mb}:{227+4*mb}], 0')
        a('s_mov_b32 s66, 0xffff0000')
        a(f's_mov_b32 s76, 0x{LOG2E:x}')
        for i in range(0, 16, 2):
            r = PQ + i
            a(f'v_cvt_pk_bf16_f32 v{160+(i>>1)}, v{r}, v{r+1}')
            a(f'v_lshlrev_b32 v{r}, 16, v{160+(i>>1)}')
            a(f'v_and_b32 v{r+1}, s66, v{160+(i>>1)}')
        MX, MN, S1, S2, E = 160, 162, 164, 166, 188
        for mb in range(2):
            p = PQ + mb * 8
            a(f'v_max3_f32 v{MX+mb}, v{p}, v{p+1}, v{p+2}')
            a(f'v_min3_f32 v{MN+mb}, v{p}, v{p+1}, v{p+2}')
            a(f'v_max3_f32 v{MX+mb}, v{MX+mb}, v{p+3}, v{p+4}')
            a(f'v_min3_f32 v{MN+mb}, v{MN+mb}, v{p+3}, v{p+4}')
            a(f'v_max3_f32 v{MX+mb}, v{MX+mb}, v{p+5}, v{p+6}')
            a(f'v_min3_f32 v{MN+mb}, v{MN+mb}, v{p+5}, v{p+6}')
            a(f'v_max_f32 v{MX+mb}, v{MX+mb}, v{p+7}')
            a(f'v_min_f32 v{MN+mb}, v{MN+mb}, v{p+7}')
        for mb in range(2):
            cross_groups(a, 'v_max_f32', MX + mb, 220)
            cross_groups(a, 'v_min_f32', MN + mb, 221)
        for mb in range(2):
            a(f'v_mul_f32 v{MX+mb}, s76, v{MX+mb}')
            a(f'v_mul_f32 v{MN+mb}, s76, v{MN+mb}')
        for mb in range(2):
            p = PQ + mb * 8
            e = E + mb * 16
            for i in range(8):
                a(f'v_fma_f32 v{e+i}, v{p+i}, s76, -v{MX+mb}')
                a(f'v_fma_f32 v{e+8+i}, -v{p+i}, s76, v{MN+mb}')
        for i in range(32):
            a(f'v_exp_f32 v{E+i}, v{E+i}')
        for mb in range(2):
            e = E + mb * 16
            for (S, b) in ((S1, e), (S2, e + 8)):
                a(f'v_add_f32 v{S+mb}, v{b}, v{b+1}')
                for i in range(2, 8):
                    a(f'v_add_f32 v{S+mb}, v{S+mb}, v{b+i}')
        for mb in range(2):
            cross_groups(a, 'v_add_f32', S1 + mb, 220)
            cross_groups(a, 'v_add_f32', S2 + mb, 221)
        for mb in range(2):
            a(f'v_rcp_f32 v{S1+mb}, v{S1+mb}')
            a(f'v_rcp_f32 v{S2+mb}, v{S2+mb}')
        for mb in range(2):
            e = E + mb * 16
            for i in range(8):
                a(f'v_mul_f32 v{e+i}, v{e+i}, v{S1+mb}')
                a(f'v_mul_f32 v{e+8+i}, v{e+8+i}, v{S2+mb}')
        for mb in range(2):
            for i in range(8):
                a(f'v_cvt_pk_bf16_f32 v{224+8*mb+i}, v{E+16*mb+2*i}, v{E+16*mb+2*i+1}')

    def o_phase2(a):
        KF0, NUM, DEN = 160, 184, 200
        for i in range(6):
            a(f'ds_read_b128 v[{KF0+4*i}:{KF0+3+4*i}], v{29 if i < 4 else 26} offset:{i*1024}')
        a('s_waitcnt lgkmcnt(0)')
        for ks in range(2):
            for mb in range(2):
                pf = 224 + (mb * 2 + ks) * 4
                for db in range(2):
                    d = NUM + (mb * 2 + db) * 4
                    kf = KF0 + (ks * 2 + db) * 4
                    cc = '0' if ks == 0 else f'v[{d}:{d+3}]'
                    a(f'v_mfma_f32_16x16x32_bf16 v[{d}:{d+3}], v[{kf}:{kf+3}], v[{pf}:{pf+3}], {cc}')
                d = DEN + mb * 4
                zf = KF0 + (4 + ks) * 4
                cc = '0' if ks == 0 else f'v[{d}:{d+3}]'
                a(f'v_mfma_f32_16x16x32_bf16 v[{d}:{d+3}], v[{zf}:{zf+3}], v[{pf}:{pf+3}], {cc}')
        a('s_mov_b32 s66, 0xffff0000')
        a(f's_mov_b32 s73, {2*32768}')
        for mb in range(2):
            dn = DEN + mb * 4
            round_bf16(a, dn, dn)
            a(f'v_add_f32 v{dn}, 0x{f2u(1e-6):x}, v{dn}')
            round_bf16(a, dn, dn)
            a(f'v_rcp_f32 v{dn+1}, v{dn}')
            for db in range(2):
                n = NUM + (mb * 2 + db) * 4
                for h in range(2):
                    a(f'v_cvt_pk_bf16_f32 v{208+h}, v{n+2*h}, v{n+2*h+1}')
                    a(f'v_lshlrev_b32 v{n+2*h}, 16, v{208+h}')
                    a(f'v_and_b32 v{n+2*h+1}, s66, v{208+h}')
                for i in range(4):
                    a(f'v_mul_f32 v{212+i}, v{n+i}, v{dn+1}')
                for i in range(4):
                    a(f'v_fma_f32 v{n+i}, -v{212+i}, v{dn}, v{n+i}')
                for i in range(4):
                    a(f'v_fmac_f32 v{212+i}, v{n+i}, v{dn+1}')
                o = 216 + db * 4 + mb * 2
                a(f'v_cvt_pk_bf16_f32 v{o}, v212, v213')
                a(f'v_cvt_pk_bf16_f32 v{o+1}, v214, v215')
        for db in range(2):
            o = 216 + db * 4
            a(f'v_permlane16_swap_b32 v{o}, v{o+2}')
            a(f'v_permlane16_swap_b32 v{o+1}, v{o+3}')
            a(f'buffer_store_dwordx4 v[{o}:{o+3}], v28, s[8:11], {"0" if db == 0 else "s73"} offen sc1')
            a.mark('os')

    class Collector:
        def __init__(self):
            self.items = []

        def __call__(self, text):
            self.items.append(text)

        def mark(self, m):
            self.items.append((m,))

    def emit_item(it):
        if isinstance(it, tuple):
            if it[0] == 'vmwait':
                a(f's_waitcnt vmcnt({vq.wait_for({"o", "oq"})})')
            else:
                vq.push('os')
        else:
            a(it)

    oc0 = Collector(); o_phase0(oc0)
    oc1 = Collector(); o_phase1(oc1)
    oc2 = Collector(); o_phase2(oc2)

    srd(a, 88, 4, 1024, OFLAG_OFF)
    srd(a, 36, 58, 2048)
    srd(a, 40, 60, XN_SZ)
    srd(a, 44, 62, XN_SZ)
    srd(a, 48, 4, X_SZ, X_OFF)
    srd(a, 52, 4, FLAG_SZ, FLAG_OFF)
    a('s_lshl_b32 s28, s22, 2')
    a(f'v_add_u32 v{T}, s28, v{G4}')
    a(f'v_lshlrev_b32 v{T}, 11, v{T}')
    a(f'v_lshl_add_u32 v{T}, v{L16}, 4, v{T}')
    a('s_lshl_b32 s28, s21, 10')
    a(f'v_add_u32 v{VA2}, s28, v{T}')
    a(f'v_add_u32 v{VA2+1}, 0x10000, v{VA2}')
    a(f'v_lshrrev_b32 v{T}, 2, v{L16}')
    a(f'v_lshl_add_u32 v{T+1}, v{G4}, 3, v{T}')
    a('s_lshl_b32 s28, s22, 5')
    a(f'v_add_u32 v{T+1}, s28, v{T+1}')
    a(f'v_lshrrev_b32 v{T+2}, 1, v{T}')
    a(f'v_and_b32 v{T+3}, 1, v{G4}')
    a(f'v_lshl_or_b32 v{T+2}, v{T+3}, 1, v{T+2}')
    a(f'v_and_b32 v{T+4}, 3, v{LANE}')
    a(f'v_lshlrev_b32 v{T+4}, 3, v{T+4}')
    a(f'v_lshl_add_u32 v{T+5}, v{T+1}, 7, v{T+4}')
    a('s_lshl_b32 s28, s23, 13')
    a('s_add_u32 s28, s28, 16384')
    a(f'v_add_u32 v{T+5}, s28, v{T+5}')
    for nb in range(4):
        a(f'v_xor_b32 v{T+6}, {nb}, v{T+2}')
        a(f'v_lshl_add_u32 v{VB2+nb}, v{T+6}, 5, v{T+5}')
        a(f'v_add_u32 v{240+nb}, 0x10000, v{VB2+nb}')
    ACC2 = 64
    SETS2 = (32, 128)
    for i in range(64):
        a(f'v_mov_b32 v{ACC2+i}, 0')

    def frag_reads(j):
        S = SETS2[j & 1]
        sl = j % 4
        hi = sl >> 1
        so = (sl & 1) * H_SLOT
        out = []
        for mb in range(4):
            out.append(f'ds_read_b128 v[{S+4*mb}:{S+4*mb+3}], v{VA2+hi} offset:{so + mb*256}')
        for nb in range(4):
            d = S + 16 + 4 * nb
            vb = (240 if hi else VB2) + nb
            for t in range(2):
                out.append(f'ds_read_b64_tr_b16 v[{d+2*t}:{d+2*t+1}], v{vb} offset:{so + t*512}')
        return out

    def mfmas(j):
        S = SETS2[j & 1]
        out = []
        for nb in range(4):
            for mb in range(4):
                c = ACC2 + (mb * 4 + nb) * 4
                out.append(f'v_mfma_f32_16x16x32_bf16 v[{c}:{c+3}], v[{S+16+4*nb}:{S+19+4*nb}], v[{S+4*mb}:{S+4*mb+3}], v[{c}:{c+3}]')
        return out

    if OPT('PRIO'):
        a('s_cmp_ge_u32 s20, 4')
        a('s_cbranch_scc0 g2_prio')
        a('s_setprio 1 ; @skip')
        a('g2_prio:')
    a(f's_waitcnt vmcnt({vq.wait_for({0})})')
    a('s_barrier')
    stamp(a, 1)
    for r in frag_reads(0):
        a(r)
    a('s_waitcnt lgkmcnt(0)')
    for j in range(NS):
        if j + 1 < NS:
            a(f's_waitcnt vmcnt({vq.wait_for({j + 1})})')
        a('s_barrier')
        if OPT('STAMP_IT'):
            its = [int(x) for x in OPT('STAMP_IT').split(',')]
            if j in its:
                stamp(a, 2 + its.index(j))
        OJ = int(OPT('OJ', '0'))
        OP0, OP1, OP2, OPE, OFL = 6, 8, 16, 18, 22
        if j == OFL:
            a('s_cmp_lg_u32 s20, 0')
            a('s_cbranch_scc1 g2_noflag')
            a('s_lshl_b32 s28, s2, 2 ; @skip')
            a('v_mov_b32 v1, 1 ; @skip')
            a('v_mov_b32 v31, s28 ; @skip')
            a('s_mov_b64 exec, 1 ; @skip')
            a('buffer_store_dword v1, v31, s[88:91], 0 offen sc1 ; @skip')
            a('s_mov_b64 exec, -1 ; @skip')
            a('g2_noflag:')
        if j == 24:
            if OPT('STAMP2') and not OPT('STAMP3') and not OPT('STAMP_IT'):
                stamp(a, 2)
            a('s_lshr_b32 s28, s24, 1')
            a('s_lshl_b32 s28, s28, 7')
            a(f'v_and_b32 v31, 31, v{LANE}')
            a('v_lshlrev_b32 v31, 2, v31')
            a('g2_opoll:')
            a('buffer_load_dword v1, v31, s[88:91], s28 offen sc1')
            a('s_waitcnt vmcnt(0)')
            a('v_cmp_ne_u32 vcc, 1, v1')
            a('s_nop 3')
            a('s_cmp_eq_u64 vcc, 0')
            a('s_cbranch_scc1 g2_opolled')
            a('s_sleep 1')
            a('s_branch g2_opoll')
            a('g2_opolled:')
            if OPT('STAMP2') and not OPT('STAMP3') and not OPT('STAMP_IT'):
                stamp(a, 3)
        dma = grp(j + 4) if j + 4 < NS else []
        if j < 4:
            dma += ogrp[4 * j:4 * j + 4]
        if j == 4:
            dma += ogrp[16:]
        rd = frag_reads(j + 1) if j + 1 < NS else []
        mm = mfmas(j)
        src = oc0.items if OP0 <= j < OP1 else oc1.items if OP1 <= j < OP2 else (oc2.items if OP2 <= j <= OPE else None)
        if src:
            left = (OP1 - j) if j < OP1 else (OP2 - j) if j < OP2 else (OPE + 1 - j)
            share = -(-len(src) // left)
            chunk = -(-share // len(mm))
            fill = [src[:share][k:k + chunk] for k in range(0, share, chunk)]
            del src[:share]
            rd2 = list(rd); dm2 = list(dma)
            for idx, m in enumerate(mm):
                a(m)
                if dm2 and idx % 4 == 0:
                    emit_grp(dm2.pop(0))
                elif rd2:
                    a(rd2.pop(0))
                if fill:
                    for it in fill.pop(0):
                        emit_item(it)
            for r in rd2:
                a(r)
            for gg in dm2:
                emit_grp(gg)
            for f in fill:
                for it in f:
                    emit_item(it)
        else:
            interleave(a, mm, rd, dma, emit_grp, 0, 4 if j > 4 else 2)
        a('s_waitcnt lgkmcnt(0)')
    stamp(a, 4 if OPT('STAMP2') else 2)
    a(f'v_lshlrev_b32 v{T}, 4, v{LANE}')
    a('s_and_b32 s28, s20, 3')
    a('s_lshl_b32 s28, s28, 14')
    a('s_xor_b32 s29, s22, 1')
    a('s_lshl_b32 s29, s29, 13')
    a('s_add_u32 s29, s29, s28')
    a(f'v_add_u32 v{T+1}, s29, v{T}')
    a('s_lshl_b32 s29, s22, 13')
    a('s_add_u32 s29, s29, s28')
    a(f'v_add_u32 v{T+2}, s29, v{T}')
    a('s_cmp_eq_u32 s22, 0')
    a('s_cbranch_scc0 g2_ks1')
    for r in range(8):
        a(f'ds_write_b128 v{T+1}, v[{ACC2+32+4*r}:{ACC2+35+4*r}] offset:{r*1024}')
    a('s_branch g2_ksd')
    a('g2_ks1:')
    for r in range(8):
        a(f'ds_write_b128 v{T+1}, v[{ACC2+4*r}:{ACC2+3+4*r}] offset:{r*1024}')
    for r in range(32):
        a(f'v_mov_b32 v{ACC2+r}, v{ACC2+32+r}')
    a('g2_ksd:')
    a('s_waitcnt lgkmcnt(0)')
    a('s_barrier')
    for r in range(8):
        a(f'ds_read_b128 v[{128+4*r}:{131+4*r}], v{T+2} offset:{r*1024}')
    a('s_waitcnt lgkmcnt(0)')
    for r in range(32):
        a(f'v_add_f32 v{ACC2+r}, v{ACC2+r}, v{128+r}')
    a('s_lshl_b32 s28, s21, 1')
    a('s_add_u32 s28, s28, s22')
    a('s_lshl_b32 s67, s28, 7')
    a('s_lshl_b32 s28, s28, 13')
    a(f'v_add_u32 v{T+1}, s28, v{T}')
    a('s_cmp_eq_u32 s23, s33')
    a('s_cbranch_scc1 g2_recv')
    a('s_lshl_b32 s28, s2, 15')
    for r in range(8):
        a(f'buffer_store_dwordx4 v[{ACC2+4*r}:{ACC2+3+4*r}], v{T+1}, s[48:51], s28 offen offset:{r*1024 if r < 4 else (r-4)*1024} sc1' if r < 4 else
          f'buffer_store_dwordx4 v[{ACC2+4*r}:{ACC2+3+4*r}], v{T+1}, s[48:51], s29 offen offset:{(r-4)*1024} sc1')
        if r == 3:
            a('s_add_u32 s29, s28, 4096')
    a('s_waitcnt vmcnt(0)')
    a('s_lshl_b32 s28, s2, 9')
    a('s_add_u32 s28, s28, s67')
    a('v_mov_b32 v1, 1')
    a('v_mov_b32 v2, s28')
    a('s_mov_b64 exec, 1')
    a('buffer_store_dword v1, v2, s[52:55], 0 offen sc1')
    a('s_branch g2_fin')
    a('g2_recv:')
    a(f'v_lshrrev_b32 v{T+2}, 3, v{LANE}')
    a(f'v_and_b32 v{T+3}, 7, v{LANE}')
    a('s_lshl_b32 s28, s24, 7')
    a('s_lshl_b32 s29, s21, 6')
    a('s_add_u32 s28, s28, s29')
    a('s_lshl_b32 s29, s22, 5')
    a('s_add_u32 s28, s28, s29')
    a(f'v_add_u32 v{T+4}, s28, v{T+2}')
    a(f'v_lshlrev_b32 v{T+4}, 11, v{T+4}')
    a('s_lshl_b32 s29, s23, 7')
    a('s_add_u32 s29, s29, s32')
    a(f'v_lshl_add_u32 v{T+5}, v{T+3}, 4, s29')
    a(f'v_add_u32 v{T+4}, v{T+4}, v{T+5}')
    for i in range(4):
        a(f's_mov_b32 s34, {i*16384}')
        a(f'buffer_load_dwordx4 v[{32+4*i}:{35+4*i}], v{T+4}, s[40:43], s34 offen')
    a(f'buffer_load_dwordx4 v[48:51], v{T+5}, s[36:39], 0 offen')
    a('s_mul_i32 s28, s20, 8704')
    a('s_add_u32 s28, s28, 65536')
    a(f'v_mul_u32_u24 v{T+6}, 272, v{L16}')
    a(f'v_lshl_add_u32 v{T+6}, v{G4}, 4, v{T+6}')
    a(f'v_add_u32 v{T+6}, s28, v{T+6}')
    a(f'v_mul_u32_u24 v{T+2}, 272, v{T+2}')
    a(f'v_lshl_add_u32 v{T+2}, v{T+3}, 5, v{T+2}')
    a(f'v_add_u32 v{T+2}, s28, v{T+2}')
    a('s_xor_b32 s35, s2, 1')
    a('s_lshl_b32 s28, s35, 9')
    a('s_add_u32 s28, s28, s67')
    a('v_mov_b32 v2, s28')
    a('g2_poll:')
    a('buffer_load_dword v1, v2, s[52:55], 0 offen sc1')
    a('s_waitcnt vmcnt(0)')
    a('v_readfirstlane_b32 s28, v1')
    a('s_nop 3')
    a('s_cmp_eq_u32 s28, 1')
    a('s_cbranch_scc1 g2_ready')
    a('s_sleep 1')
    a('s_branch g2_poll')
    a('g2_ready:')
    a('s_lshl_b32 s28, s35, 15')
    a('s_add_u32 s29, s28, 4096')
    for r in range(8):
        a(f'buffer_load_dwordx4 v[{128+4*r}:{131+4*r}], v{T+1}, s[48:51], s{28 if r < 4 else 29} offen offset:{(r % 4)*1024} sc1')
    a('s_mov_b32 s66, 0xffff0000')
    a('s_waitcnt vmcnt(0)')
    for r in range(32):
        a(f'v_add_f32 v{ACC2+r}, v{ACC2+r}, v{128+r}')
    for e in range(2):
        for nb in range(4):
            r = ACC2 + (e * 4 + nb) * 4
            a(f'ds_write_b128 v{T+6}, v[{r}:{r+3}] offset:{e*4352 + nb*64}')
    for h in range(4):
        a(f'v_lshlrev_b32 v{52+2*h}, 16, v{48+h}')
        a(f'v_and_b32 v{53+2*h}, s66, v{48+h}')
    a('s_waitcnt lgkmcnt(0)')
    for i in range(4):
        a(f'ds_read_b128 v[{128+8*i}:{131+8*i}], v{T+2} offset:{i*2176}')
        a(f'ds_read_b128 v[{132+8*i}:{135+8*i}], v{T+2} offset:{i*2176 + 16}')
    for i in range(4):
        a(f's_waitcnt lgkmcnt({6-2*i})')
        for h in range(4):
            r = 128 + 8 * i + 2 * h
            a(f'v_lshlrev_b32 v60, 16, v{32+4*i+h}')
            a(f'v_and_b32 v61, s66, v{32+4*i+h}')
            a(f'v_add_f32 v{r}, v{r}, v{52+2*h}')
            a(f'v_add_f32 v{r+1}, v{r+1}, v{53+2*h}')
            a(f'v_add_f32 v{r}, v{r}, v60')
            a(f'v_add_f32 v{r+1}, v{r+1}, v61')
            a(f'v_cvt_pk_bf16_f32 v{160+4*i+h}, v{r}, v{r+1}')
        a(f's_mov_b32 s34, {i*16384}')
        a(f'buffer_store_dwordx4 v[{160+4*i}:{163+4*i}], v{T+4}, s[44:47], s34 offen')
    a('g2_fin:')
    if not OPT('STAMP2'):
        stamp(a, 3)
        if OPT('STAMP'):
            a('s_waitcnt vmcnt(0)')
        stamp(a, 4)
    stamp(a, 6, True)
    stamp_flush(a, 7, 1)
    a('g2_exit:')
    a('s_endpgm')
    return descriptor(name, 256, 102 if OPT('STAMP') else 96)


def main():
    a = Asm()
    descs = []
    descs.append(gen_ln(a))
    descs.append(gen_gemm1(a))
    fused = not OPT('SEP_O')
    if not fused:
        descs.append(gen_o(a))
    descs.append(gen_gemm2c(a) if fused else gen_gemm2b(a))
    head = open('cdna_kernels/%s.s.ref' % NAME).read().split('; @launch')[0]
    out = head
    out += '; @launch kernel=ln_kernel grid=(512,1,1) block=(256,1,1) lds=0\n'
    out += f'; @launch kernel=gemm1_kernel grid=(256,1,1) block=(512,1,1) lds={G1_LDS}\n'
    if not fused:
        out += '; @launch kernel=attn_o_kernel grid=(256,1,1) block=(256,1,1) lds=8192\n'
    out += f'; @launch kernel=gemm2_kernel grid=(256,1,1) block=(512,1,1) lds={H_LDS + 8192}\n'
    out += '.amdgcn_target "amdgcn-amd-amdhsa--gfx950"\n.text\n'
    out += a.finalize()
    out += '.section .rodata,"a"\n'
    for d in descs:
        out += '.p2align 6\n' + d
    path = sys.argv[1] if len(sys.argv) > 1 else 'cdna_kernels/%s.s' % NAME
    open(path, 'w').write(out)
    print('wrote', path, len(out))


if __name__ == '__main__':
    main()
```

```python
import sys, os
from asmlib import Asm
OPT = lambda k, d='': os.environ.get(k, d)

NAME = 'parallel_sum__linear_kernel_hedgehog__dense_activation_gelu__prompt'
XN_OFF = 0
XN_SZ = 2048 * 1024 * 2
ACT2_OFF = 0x400000
ACT2_SZ = 2048 * 4608 * 2
PHIQ_OFF = 0x1600000
PHIQ_SZ = 2048 * 2048 * 2
KVP_OFF = 0x1E00000
KVP_ENT = 8448
KVP_SZ = 8 * 32 * KVP_ENT

LOG2E = 0x3fb8aa3b
FUSE12 = not OPT('NOFUSE12')
FLAG_OFF = 0x2A00000
OFLAG_OFF = 0x2B00000
CNT_OFF = 0x2C00000


def f2u(x):
    import struct
    return struct.unpack('<I', struct.pack('<f', x))[0]


def srd(a, d, base, size, off=0):
    if off:
        a(f's_add_u32 s{d}, s{base}, 0x{off:x}')
        a(f's_addc_u32 s{d+1}, s{base+1}, 0')
    else:
        a(f's_mov_b32 s{d}, s{base}')
        a(f's_mov_b32 s{d+1}, s{base+1}')
    a(f's_and_b32 s{d+1}, s{d+1}, 0xffff')
    a(f's_mov_b32 s{d+2}, 0x{size:x}')
    a(f's_mov_b32 s{d+3}, 0x00020000')


STAMP_OFF = 0x3000000
STAMP_REGS = [80, 81, 82, 83, 84, 85, 86]


def stamp(a, idx, real=False):
    if not OPT('STAMP'):
        return
    a('s_memrealtime s[78:79]' if real else 's_memtime s[78:79]')
    a('s_waitcnt lgkmcnt(0)')
    a(f's_mov_b32 s{STAMP_REGS[idx]}, s78')


def stamp_flush(a, n, kern):
    if not OPT('STAMP'):
        return
    a('s_mov_b64 exec, -1')
    srd(a, 92, 4, 0x1000000, STAMP_OFF + kern * 0x40000)
    a('s_lshl_b32 s78, s2, 3')
    a('s_add_u32 s78, s78, s20')
    a('s_lshl_b32 s78, s78, 6')
    a('v_mov_b32 v1, 0')
    for i in range(n):
        a(f'v_mov_b32 v2, s{STAMP_REGS[i]}')
        a(f'buffer_store_dword v2, v1, s[92:95], s78 offen offset:{4*i}')


def kernel_begin(a, name):
    a.raw(f'.globl {name}')
    a.raw('.p2align 8')
    a.raw(f'.type {name},@function')
    a.raw(f'{name}:')


def descriptor(name, vgpr, sgpr=96):
    acc = (vgpr + 3) // 4 * 4
    return f'''.amdhsa_kernel {name}
  .amdhsa_next_free_vgpr {vgpr}
  .amdhsa_next_free_sgpr {sgpr}
  .amdhsa_accum_offset {acc}
  .amdhsa_group_segment_fixed_size 0
  .amdhsa_kernarg_size 96
  .amdhsa_user_sgpr_count 2
  .amdhsa_user_sgpr_kernarg_segment_ptr 1
  .amdhsa_system_sgpr_workgroup_id_x 1
.end_amdhsa_kernel
'''


def allreduce16(a, op, v, tmp):
    for r in (8, 4, 2, 1):
        a(f'{op}_dpp v{tmp}, v{v}, v{v} row_ror:{r} row_mask:0xf bank_mask:0xf')
        v, tmp = tmp, v
    return v


def cross_groups(a, op, v, t):
    a(f'v_mov_b32 v{t}, v{v}')
    a(f'v_permlane32_swap_b32 v{v}, v{t}')
    a(f'{op} v{v}, v{v}, v{t}')
    a(f'v_mov_b32 v{t}, v{v}')
    a(f'v_permlane16_swap_b32 v{v}, v{t}')
    a(f'{op} v{v}, v{v}, v{t}')


def round_bf16(a, d, s):
    a(f'v_cvt_pk_bf16_f32 v{d}, v{s}, v{s}')
    a(f'v_lshlrev_b32 v{d}, 16, v{d}')


def gen_ln(a):
    name = 'ln_kernel'
    kernel_begin(a, name)
    a('s_cmp_ge_u32 s2, 512')
    a('s_cbranch_scc1 ln_done')
    a('s_load_dwordx2 s[4:5], s[0:1], 0')
    a('s_load_dwordx2 s[6:7], s[0:1], 88')
    a('s_load_dwordx2 s[24:25], s[0:1], 8')
    a('s_load_dwordx2 s[26:27], s[0:1], 40')
    a('v_lshrrev_b32 v1, 6, v0')
    a('v_and_b32 v2, 63, v0')
    a('s_lshl_b32 s3, s2, 2')
    a('v_add_u32 v1, s3, v1')
    a('v_lshlrev_b32 v3, 10, v1')
    a('v_lshl_add_u32 v3, v2, 4, v3')
    a('v_lshlrev_b32 v1, 11, v1')
    a('v_lshl_add_u32 v1, v2, 4, v1')
    a('s_waitcnt lgkmcnt(0)')
    srd(a, 8, 4, XN_SZ)
    srd(a, 12, 6, XN_SZ, XN_OFF)
    a('buffer_load_dwordx4 v[4:7], v1, s[8:11], 0 offen')
    a('buffer_load_dwordx4 v[8:11], v1, s[8:11], 0 offen offset:1024')
    if FUSE12:
        srd(a, 36, 6, 0x300000, FLAG_OFF)
        a('s_cmp_ge_u32 s2, 256')
        a('s_cbranch_scc1 ln_noz')
        a('v_mov_b32 v61, 0')
        a('v_lshlrev_b32 v60, 7, v0')
        a('s_lshl_b32 s17, s2, 9')
        a('v_cmp_gt_u32 vcc, 4, v0')
        a('s_and_saveexec_b64 s[18:19], vcc')
        a('buffer_store_dword v61, v60, s[36:39], s17 offen')
        a('s_mov_b64 exec, s[18:19]')
        a('s_lshl_b32 s17, s2, 2')
        a(f's_add_u32 s17, s17, 0x{OFLAG_OFF - FLAG_OFF:x}')
        a('s_and_b32 s20, s2, 31')
        a('s_lshl_b32 s20, s20, 7')
        a(f's_add_u32 s20, s20, 0x{CNT_OFF - FLAG_OFF:x}')
        a('v_cmp_eq_u32 vcc, 0, v0')
        a('s_and_saveexec_b64 s[18:19], vcc')
        a('buffer_store_dword v61, v61, s[36:39], s17 offen')
        a('buffer_store_dword v61, v61, s[36:39], s20 offen')
        a('s_mov_b64 exec, s[18:19]')
        a('ln_noz:')
    npf = 0
    if OPT('LNPF'):
        srd(a, 28, 24, 1024 * 3072 * 2)
        srd(a, 32, 26, 1024 * 3584 * 2)
        for i in range(int(OPT('LNPF'))):
            a(f's_mov_b32 s17, {i << 21}')
            if i < 3:
                a(f'buffer_load_dwordx4 v[64:67], v3, s[28:31], s17 offen')
                npf += 1
            a(f'buffer_load_dwordx4 v[68:71], v3, s[32:35], s17 offen')
            npf += 1
    a('s_mov_b32 s16, 0xffff0000')
    a(f's_waitcnt vmcnt({0 if FUSE12 else npf})')
    for i in range(8):
        a(f'v_lshlrev_b32 v{16+2*i}, 16, v{4+i}')
        a(f'v_and_b32 v{17+2*i}, s16, v{4+i}')
    for i in range(8):
        a(f'v_add_f32 v{32+i}, v{16+2*i}, v{17+2*i}')
    for i in range(4):
        a(f'v_add_f32 v{32+i}, v{32+2*i}, v{33+2*i}')
    a('v_add_f32 v32, v32, v33')
    a('v_add_f32 v34, v34, v35')
    a('v_add_f32 v32, v32, v34')
    r = allreduce16(a, 'v_add_f32', 32, 33)
    cross_groups(a, 'v_add_f32', r, 34)
    a(f'v_mul_f32 v40, 0x{f2u(1.0/1024):x}, v{r}')
    for i in range(16):
        a(f'v_sub_f32 v{44+i}, v{16+i}, v40')
    a('v_mul_f32 v32, v44, v44')
    a('v_mul_f32 v33, v45, v45')
    for i in range(2, 16, 2):
        a(f'v_fmac_f32 v32, v{44+i}, v{44+i}')
        a(f'v_fmac_f32 v33, v{45+i}, v{45+i}')
    a('v_add_f32 v32, v32, v33')
    r = allreduce16(a, 'v_add_f32', 32, 33)
    cross_groups(a, 'v_add_f32', r, 34)
    a(f'v_mul_f32 v41, 0x{f2u(1.0/1024):x}, v{r}')
    round_bf16(a, 40, 40)
    round_bf16(a, 41, 41)
    a(f'v_add_f32 v41, 0x{f2u(1e-5):x}, v41')
    round_bf16(a, 41, 41)
    a('v_sqrt_f32 v41, v41')
    round_bf16(a, 41, 41)
    a('v_rcp_f32 v42, v41')
    for i in range(0, 16, 2):
        a(f'v_sub_f32 v{16+i}, v{16+i}, v40')
        a(f'v_sub_f32 v{17+i}, v{17+i}, v40')
        a(f'v_cvt_pk_bf16_f32 v{44+i}, v{16+i}, v{17+i}')
        a(f'v_lshlrev_b32 v{16+i}, 16, v{44+i}')
        a(f'v_and_b32 v{17+i}, s16, v{44+i}')
    for i in range(16):
        a(f'v_mul_f32 v{44+i}, v{16+i}, v42')
    for i in range(16):
        a(f'v_fma_f32 v{16+i}, -v{44+i}, v41, v{16+i}')
    for i in range(16):
        a(f'v_fmac_f32 v{44+i}, v{16+i}, v42')
    for i in range(8):
        a(f'v_cvt_pk_bf16_f32 v{4+i}, v{44+2*i}, v{45+2*i}')
    a('buffer_store_dwordx4 v[4:7], v1, s[12:15], 0 offen' + OPT('LN_POL'))
    a('buffer_store_dwordx4 v[8:11], v1, s[12:15], 0 offen offset:1024' + OPT('LN_POL'))
    a('ln_done:')
    a('s_endpgm')
    return descriptor(name, 72, 40)


class VQ:
    def __init__(self):
        self.q = []

    def push(self, tag):
        self.q.append(tag)

    def wait_for(self, tags):
        last = -1
        for i, t in enumerate(self.q):
            if t in tags:
                last = i
        n = len(self.q) - 1 - last
        return min(n, 63)


def interleave(a, mm, rd, dma, emit_grp, first_dma=1, dma_every=4):
    rd = list(rd); dma = list(dma)
    for idx, m in enumerate(mm):
        a(m)
        if dma and idx >= first_dma and (idx - first_dma) % dma_every == 0:
            emit_grp(dma.pop(0))
        elif rd:
            a(rd.pop(0))
        elif dma:
            emit_grp(dma.pop(0))
    for r in rd:
        a(r)
    for g in dma:
        emit_grp(g)


class FlagSync:
    def __init__(self, a, tag, cnt, vsig, vcnt, vone, vt1, vt2, st):
        self.a, self.tag, self.cnt = a, tag, cnt
        self.vsig, self.vcnt, self.vone, self.vt1, self.vt2, self.st = vsig, vcnt, vone, vt1, vt2, st
        self.nfull = [0, 0, 0, 0]
        self.nempty = [0, 0, 0, 0]
        self.n = 0

    def setup(self, vlane, swave):
        a = self.a
        a(f'v_lshlrev_b32 v{self.vsig}, 2, v{vlane}')
        a(f'v_add_u32 v{self.vsig}, 0x{self.cnt + 512:x}, v{self.vsig}')
        a(f'v_mov_b32 v{self.vcnt}, 0x{self.cnt:x}')
        a(f'v_cmp_eq_u32 vcc, 0, v{vlane}')
        a(f'v_cndmask_b32 v{self.vsig}, v{self.vsig}, v{self.vcnt}, vcc')
        a(f'v_mov_b32 v{self.vone}, 1')
        a(f'v_lshlrev_b32 v{self.vt1}, 2, v{vlane}')
        a(f'v_and_b32 v{self.vt1}, 31, v{self.vt1}')
        a(f'v_add_u32 v{self.vt1}, v{self.vcnt}, v{self.vt1}')
        a(f'v_mov_b32 v{self.vt2}, 0')
        a(f'ds_write_b32 v{self.vt1}, v{self.vt2}')

    def sig_full(self, s):
        self.nfull[s % 4] += 8
        return f'ds_add_u32 v{self.vsig}, v{self.vone} offset:{4 * (s % 4)}'

    def sig_empty(self, s):
        self.nempty[s % 4] += 8
        return f'ds_add_u32 v{self.vsig}, v{self.vone} offset:{16 + 4 * (s % 4)}'

    def rd_full(self, s):
        return f'ds_read_b32 v{self.vt1}, v{self.vcnt} offset:{4 * (s % 4)}'

    def rd_empty(self, s):
        return f'ds_read_b32 v{self.vt2}, v{self.vcnt} offset:{16 + 4 * (s % 4)}'

    def check(self, kind, s, lgkm):
        a = self.a
        v = self.vt1 if kind == 'F' else self.vt2
        target = (self.nfull if kind == 'F' else self.nempty)[s % 4]
        rd = self.rd_full(s) if kind == 'F' else self.rd_empty(s)
        L = f'{self.tag}_c{self.n}'
        self.n += 1
        a(f's_waitcnt lgkmcnt({lgkm})')
        a(f'{L}r:')
        a(f'v_readfirstlane_b32 s{self.st}, v{v}')
        a('s_nop 1')
        a(f's_cmp_ge_u32 s{self.st}, {target}')
        a(f's_cbranch_scc1 {L}o')
        a(rd + ' ; @skip')
        a('s_waitcnt lgkmcnt(0) ; @skip')
        a(f's_branch {L}r ; @skip')
        a(f'{L}o:')


def flag_iter(a, fs, j, nst, mm, rd, dma, emit_grp, vmwait, cF, cE, extra=None):
    rd = list(rd); dma = list(dma)
    n = len(mm)
    need_full = rd and j >= 1
    need_empty = bool(dma)
    a(fs.sig_empty(j))
    if need_full:
        a(fs.rd_full(j + 1))
    since_e = None
    dma_ok = not need_empty
    for idx, m in enumerate(mm):
        a(m)
        if idx == cF and need_full:
            fs.check('F', j + 1, 0)
        if idx < cF:
            continue
        if need_empty and idx == cE - 3:
            a(fs.rd_empty(j))
            since_e = 0
            continue
        if need_empty and idx == cE:
            fs.check('E', j, since_e)
            dma_ok = True
            continue
        if idx == (int(OPT('FS_CS')) if OPT('FS_CS') else n - 2) and vmwait:
            a(vmwait())
            a(fs.sig_full(j + 2))
            continue
        if dma_ok and dma and (not rd or (idx - cE) % 3 == 1):
            emit_grp(dma.pop(0))
        elif rd:
            a(rd.pop(0))
            if since_e is not None and not dma_ok:
                since_e += 1
    for r in rd:
        a(r)
    for g in dma:
        emit_grp(g)
    a('s_waitcnt lgkmcnt(0)')


A_SLOT = 32768
B_BASE = 98304
B_SLOT = 14336
G1_DUMMY = B_BASE + 4 * B_SLOT
G1_LDS = G1_DUMMY + 8192
ACC = 128
SETS = (32, 76)
VA = 2
VB = 8
VGA = 11
VGB0 = 12
VGB1 = 13
VLANE = 14
VG4 = 15
VL16 = 16
VPF = 31
VPF2 = 30
VTMP = 17


def gemm1_common_setup(a):
    a('v_lshrrev_b32 v1, 6, v0')
    a(f'v_and_b32 v{VLANE}, 63, v0')
    a('s_nop 0')
    a('v_readfirstlane_b32 s20, v1')
    a(f'v_lshrrev_b32 v{VG4}, 4, v{VLANE}')
    a(f'v_and_b32 v{VL16}, 15, v{VLANE}')
    a('s_nop 1')
    a('s_lshr_b32 s21, s20, 1')
    a('s_and_b32 s22, s20, 1')
    a('s_and_b32 s26, s2, 7')
    a('s_lshr_b32 s27, s2, 3')
    a('s_and_b32 s24, s26, 1')
    a('s_lshl_b32 s24, s24, 2')
    a('s_and_b32 s28, s27, 3')
    a('s_add_u32 s24, s24, s28')
    a('s_lshr_b32 s25, s26, 1')
    a('s_lshl_b32 s25, s25, 2')
    a('s_bfe_u32 s28, s27, 0x20002')
    a('s_add_u32 s25, s25, s28')
    a('s_lshr_b32 s28, s27, 4')
    a('s_lshl_b32 s28, s28, 4')
    a('s_add_u32 s25, s25, s28')
    T = VTMP
    a('s_lshl_b32 s28, s21, 13')
    a(f'v_and_b32 v{T}, 7, v{VLANE}')
    a(f'v_xor_b32 v{T}, v{T}, v{VG4}')
    a(f'v_lshlrev_b32 v{T}, 4, v{T}')
    a(f'v_lshl_add_u32 v{T}, v{VL16}, 7, v{T}')
    a(f'v_add_u32 v{T}, s28, v{T}')
    a(f'v_xor_b32 v{T+1}, 64, v{T}')
    for sl in range(3):
        a(f'v_add_u32 v{VA+2*sl}, 0x{sl*A_SLOT:x}, v{T}')
        a(f'v_add_u32 v{VA+2*sl+1}, 0x{sl*A_SLOT:x}, v{T+1}')
    a(f'v_lshrrev_b32 v{T}, 3, v{VLANE}')
    a(f'v_and_b32 v{T+1}, 7, v{VLANE}')
    a(f'v_xor_b32 v{T+1}, v{T+1}, v{T}')
    a('s_lshl_b32 s28, s24, 8')
    a('s_lshl_b32 s29, s20, 5')
    a('s_add_u32 s28, s28, s29')
    a(f'v_add_u32 v{T}, s28, v{T}')
    a(f'v_lshlrev_b32 v{T}, 11, v{T}')
    a(f'v_lshl_add_u32 v{VGA}, v{T+1}, 4, v{T}')
    a(f'v_lshlrev_b32 v{VPF}, 4, v{VLANE}')
    a('s_lshl_b32 s30, s20, 12')
    a('s_lshl_b32 s31, s20, 10')
    a('s_and_b32 s77, s31, 0xc00')


def gemm1_late_setup(a):
    srd(a, 64, 72, 1024 * 1024 * 2)
    srd(a, 68, 74, 3584 * 1024 * 2)
    srd(a, 92, 4, 0x300000, FLAG_OFF)
    if not FUSE12:
        a('s_lshl_b32 s28, s2, 9')
        a('v_lshlrev_b32 v17, 7, v0')
        a('v_mov_b32 v18, 0')
        a('v_cmp_gt_u32 vcc, 4, v0')
        a('s_and_saveexec_b64 s[34:35], vcc')
        a('buffer_store_dword v18, v17, s[92:95], s28 offen')
        a('s_mov_b64 exec, s[34:35]')
        a('s_lshl_b32 s28, s2, 2')
        a(f's_add_u32 s28, s28, 0x{OFLAG_OFF - FLAG_OFF:x}')
        a('v_mov_b32 v17, 0')
        a('v_cmp_eq_u32 vcc, 0, v0')
        a('s_and_saveexec_b64 s[34:35], vcc')
        a('buffer_store_dword v18, v17, s[92:95], s28 offen')
        a('s_mov_b64 exec, s[34:35]')
    a('s_lshl_b32 s28, s2, 3')
    a('s_add_u32 s28, s28, s20')
    a('s_cmp_lt_u32 s28, 1024')
    a('s_cselect_b32 s88, s6, s58')
    a('s_cselect_b32 s89, s7, s59')
    a(f's_mov_b32 s90, 0x{1024*3584*2:x}')
    a(f's_cselect_b32 s90, 0x{1024*3072*2:x}, s90')
    if not OPT('PF_OLD'):
        a('s_cselect_b32 s29, 0xc0000, 0')
        a('s_cselect_b32 s91, 0, 0xe0000')
        a('s_add_u32 s29, s29, s91')
    a('s_and_b32 s89, s89, 0xffff')
    a('s_mov_b32 s91, 0x00020000')
    a('s_and_b32 s28, s28, 1023')
    a('s_lshl_b32 s28, s28, 10')
    if not OPT('PF_OLD'):
        a('s_add_u32 s28, s28, s29')
    a(f'v_add_u32 v{VPF2}, s28, v{VPF}')


def gemm1_variant(a, kind):
    w1 = kind == 'w1'
    NB = 7 if w1 else 6
    rowstride = 7168 if w1 else 6144
    nsecond = 6 if w1 else 4
    T = VTMP
    a(f'v_lshrrev_b32 v{T}, 2, v{VL16}')
    a(f'v_lshl_add_u32 v{T+1}, v{VG4}, 3, v{T}')
    a(f'v_lshrrev_b32 v{T+2}, 1, v{T}')
    a(f'v_and_b32 v{T+3}, 1, v{VG4}')
    a(f'v_lshl_or_b32 v{T+2}, v{T+3}, 1, v{T+2}')
    a(f'v_and_b32 v{T+4}, 3, v{VLANE}')
    a(f'v_lshlrev_b32 v{T+4}, 3, v{T+4}')
    a(f'v_lshl_add_u32 v{T+5}, v{T+1}, 7, v{T+4}')
    a(f'v_add_u32 v{T+5}, 0x{B_BASE:x}, v{T+5}')
    for e in range(2):
        if w1:
            a(f's_add_u32 s28, s22, {2*e}')
        else:
            a('s_lshl_b32 s28, s22, 1')
            a(f's_add_u32 s28, s28, {e}')
        a(f'v_xor_b32 v{T+6}, s28, v{T+2}')
        a(f'v_lshl_add_u32 v{VB+e}, v{T+6}, 5, v{T+5}')
    if w1:
        a(f'v_xor_b32 v{T+6}, s22, v{T+3}')
        a(f'v_lshl_add_u32 v{T+7}, v{T+1}, 6, v{T+4}')
        a(f'v_lshl_add_u32 v{T+7}, v{T+6}, 5, v{T+7}')
        a(f'v_add_u32 v{VB+2}, 0x{B_BASE+12288:x}, v{T+7}')
    colstride = 128 if w1 else 2048
    a(f'v_lshrrev_b32 v{T}, 3, v{VLANE}')
    a(f'v_bfe_u32 v{T+1}, v{VLANE}, 4, 1')
    a('s_and_b32 s28, s20, 1')
    a('s_lshl_b32 s28, s28, 1')
    a(f'v_or_b32 v{T+1}, s28, v{T+1}')
    a(f'v_bfe_u32 v{T+2}, v{VLANE}, 1, 2')
    a(f'v_xor_b32 v{T+2}, v{T+2}, v{T+1}')
    a(f'v_and_b32 v{T+3}, 1, v{VLANE}')
    a(f'v_lshlrev_b32 v{T+3}, 4, v{T+3}')
    a(f'v_lshl_add_u32 v{T+3}, v{T+2}, 5, v{T+3}')
    a('s_and_b32 s28, s20, 3')
    a('s_lshl_b32 s28, s28, 3')
    a(f'v_add_u32 v{T}, s28, v{T}')
    a(f's_mov_b32 s29, {rowstride}')
    a(f'v_mul_lo_u32 v{T}, v{T}, s29')
    a(f'v_add_u32 v{T}, v{T}, v{T+3}')
    a('s_lshr_b32 s28, s20, 2')
    a(f's_mul_i32 s28, s28, {colstride}')
    if w1:
        a('s_sub_u32 s32, s25, 16')
        a('s_mul_i32 s32, s32, 448')
    else:
        a('s_lshl_b32 s32, s25, 7')
    a('s_add_u32 s28, s28, s32')
    a(f'v_add_u32 v{VGB0}, s28, v{T}')
    a(f'v_add_u32 v{VGB1}, 0x{2*colstride:x}, v{VGB0}')
    if w1:
        a(f'v_lshrrev_b32 v{T}, 2, v{VLANE}')
        a('s_sub_u32 s28, s20, 4')
        a('s_lshl_b32 s28, s28, 4')
        a(f'v_add_u32 v{T}, s28, v{T}')
        a(f'v_mul_lo_u32 v{T}, v{T}, s29')
        a(f'v_bfe_u32 v{T+1}, v{VLANE}, 5, 1')
        a(f'v_bfe_u32 v{T+2}, v{VLANE}, 1, 1')
        a(f'v_xor_b32 v{T+2}, v{T+2}, v{T+1}')
        a(f'v_and_b32 v{T+3}, 1, v{VLANE}')
        a(f'v_lshlrev_b32 v{T+3}, 4, v{T+3}')
        a(f'v_lshl_add_u32 v{T+3}, v{T+2}, 5, v{T+3}')
        a(f'v_add_u32 v{T}, v{T}, v{T+3}')
        a('s_add_u32 s28, s32, 384')
        a(f'v_add_u32 v{T}, s28, v{T}')
        a('s_cmp_ge_u32 s20, 4')
        a('s_cselect_b64 s[34:35], -1, 0')
        a(f'v_cndmask_b32 v{VGB1}, v{VGB1}, v{T}, s[34:35]')
    a('s_waitcnt lgkmcnt(0)')
    stamp(a, 5, True)
    stamp(a, 0)
    srd(a, 8, 4, XN_SZ, XN_OFF)
    if w1:
        srd(a, 12, 58, 1024 * 3584 * 2)
    else:
        srd(a, 12, 6, 1024 * 3072 * 2)

    def param_loads():
        if w1:
            srd(a, 40, 60, 3584 * 2)
            a('s_lshl_b32 s28, s22, 5')
            a(f'v_lshl_add_u32 v{T}, v{VG4}, 3, s28')
            for nb in range(7):
                a(f'buffer_load_dwordx2 v[{240+2*nb}:{241+2*nb}], v{T}, s[40:43], s32 offen offset:{nb*64}')
        else:
            srd(a, 40, 56, 32 * 32 * 32 * 2)
            a('s_lshl_b32 s33, s25, 1')
            a('s_add_u32 s33, s33, s22')
            a('s_lshl_b32 s28, s33, 11')
            a(f'v_lshlrev_b32 v{T}, 8, v{VG4}')
            a(f'v_lshl_add_u32 v{T}, v{VL16}, 1, v{T}')
            for fb in range(2):
                for j in range(8):
                    off = (16 * (j // 4) + j % 4) * 64 + fb * 32
                    a(f'buffer_load_ushort v{224+8*fb+j}, v{T}, s[40:43], s28 offen offset:{off}')

    def late():
        if w1:
            srd(a, 16, 4, ACT2_SZ, ACT2_OFF)
        else:
            srd(a, 36, 4, PHIQ_SZ, PHIQ_OFF)
            srd(a, 44, 4, KVP_SZ, KVP_OFF)
        gemm1_late_setup(a)
        if not w1:
            for i in range(NB * 16):
                a(f'v_mov_b32 v{ACC+i}, 0')

    vq = VQ()
    lbl = [0]

    def grp_A(i):
        if OPT('G1_NOA'):
            return []
        out = []
        for q in range(4):
            out.append(([f's_add_u32 m0, s30, 0x{(i % 3) * A_SLOT + q * 1024:x}',
                         f's_mov_b32 s28, 0x{i * 128 + q * 16384:x}',
                         f'buffer_load_dwordx4 v{VGA}, s[8:11], s28 offen lds'], ('A', i)))
        return out

    def grp_B(j):
        if OPT('G1_NOB'):
            return []
        base = B_BASE + (j % 4) * B_SLOT
        L = f'g1{kind}_sk{lbl[0]}'
        lbl[0] += 1
        return [([f's_add_u32 m0, s31, 0x{base:x}',
                  f's_mov_b32 s28, 0x{j * 32 * rowstride:x}',
                  f'buffer_load_dwordx4 v{VGB0}, s[12:15], s28 offen lds'], ('B', j)),
                ([f's_cmp_ge_u32 s20, {nsecond}',
                  f's_cbranch_scc1 {L}',
                  f's_add_u32 m0, s31, 0x{base + 8192:x} ; @skip',
                  f's_mov_b32 s28, 0x{j * 32 * rowstride:x} ; @skip',
                  f'buffer_load_dwordx4 v{VGB1}, s[12:15], s28 offen lds ; @skip',
                  f'{L}:'], None)]

    def emit_grp(g):
        for l in g[0]:
            a(l)
        if g[1] is not None:
            vq.push(g[1])

    def issue_A(i):
        for g in grp_A(i):
            emit_grp(g)

    def issue_B(j):
        for g in grp_B(j):
            emit_grp(g)

    def frag_reads(j):
        S = SETS[j & 1]
        sl = (j // 2) % 3
        half = j & 1
        out = []
        for mb in range(4):
            out.append(f'ds_read_b128 v[{S+4*mb}:{S+4*mb+3}], v{VA+2*sl+half} offset:{mb*2048}')
        bs = (j % 4) * B_SLOT
        for nb in range(NB):
            d = S + 16 + 4 * nb
            if w1 and nb == 6:
                for t in range(2):
                    out.append(f'ds_read_b64_tr_b16 v[{d+2*t}:{d+2*t+1}], v{VB+2} offset:{bs + t*256}')
            else:
                G, e = nb // 2, nb % 2
                for t in range(2):
                    out.append(f'ds_read_b64_tr_b16 v[{d+2*t}:{d+2*t+1}], v{VB+e} offset:{bs + G*4096 + t*512}')
        return out

    def mfmas(j):
        S = SETS[j & 1]
        out = []
        for nb in range(NB):
            for mb in range(4):
                c = ACC + (nb * 4 + mb) * 4
                wf = f'v[{S+16+4*nb}:{S+19+4*nb}]'
                xf = f'v[{S+4*mb}:{S+4*mb+3}]'
                if (not w1) and nb >= 4:
                    out.append(f'v_mfma_f32_16x16x32_bf16 v[{c}:{c+3}], {xf}, {wf}, v[{c}:{c+3}]')
                else:
                    out.append(f'v_mfma_f32_16x16x32_bf16 v[{c}:{c+3}], {wf}, {xf}, v[{c}:{c+3}]')
        return out

    stamp(a, 1)
    def grp_pf(i):
        if OPT('NO_PF1'):
            return []
        return [([f's_add_u32 m0, s77, 0x{G1_DUMMY:x}',
                  f's_mov_b32 s28, 0x{i << 20:x}',
                  f'buffer_load_dwordx4 v{VPF2}, s[88:91], s28 offen lds'], None)]

    if w1:
        param_loads()
    issue_A(0); issue_B(0)
    if not w1:
        param_loads()
    issue_B(1); issue_A(1); issue_B(2); issue_B(3); issue_A(2)
    late()
    if w1:
        a(f's_waitcnt vmcnt({len(vq.q)})')
        a('s_mov_b32 s50, 0xffff0000')
        for nb in range(7):
            for mb in range(4):
                c = ACC + (nb * 4 + mb) * 4
                for h in range(2):
                    a(f'v_lshlrev_b32 v{c+2*h}, 16, v{240+2*nb+h}')
                    a(f'v_and_b32 v{c+2*h+1}, s50, v{240+2*nb+h}')
    if OPT('PF_OLD'):
        for g in grp_pf(0) + grp_pf(1):
            emit_grp(g)
    use_flags = bool(OPT('G1_FLAGS'))
    half_bar = bool(OPT('G1_HB'))
    if use_flags:
        fs = FlagSync(a, f'g1{kind}', G1_DUMMY + 4096, 25, 26, 27, 28, 29, 62)
        fs.setup(VLANE, 20)
        a(f's_waitcnt vmcnt({vq.wait_for({("A", 0), ("B", 0), ("B", 1)})}) lgkmcnt(0)')
    else:
        a(f's_waitcnt vmcnt({vq.wait_for({("A", 0), ("B", 0)})})')
    if OPT('PRIO'):
        a('s_cmp_ge_u32 s20, 4')
        a(f's_cbranch_scc0 g1{kind}_prio')
        a('s_setprio 1 ; @skip')
        a(f'g1{kind}_prio:')
    a('s_barrier')
    for r in frag_reads(0):
        a(r)
    a('s_waitcnt lgkmcnt(0)')
    for j in range(32):
        if half_bar:
            dma = []
            if j % 2 == 0:
                need = {("A", (j + 1) // 2), ("B", j + 1)}
                if j + 2 < 32:
                    need |= {("A", (j + 2) // 2), ("B", j + 2)}
                a(f's_waitcnt vmcnt({vq.wait_for(need)})')
                a('s_barrier')
                if j >= 2:
                    for jj in (j + 3, j + 4):
                        if 4 <= jj < 32:
                            dma += grp_B(jj)
                    if (j // 2 + 2) < 16 and j // 2 + 2 >= 3:
                        dma += grp_A(j // 2 + 2)
                else:
                    dma += grp_B(4)
        else:
            if not use_flags:
                if j + 1 < 32:
                    a(f's_waitcnt vmcnt({vq.wait_for({("A", (j + 1) // 2), ("B", j + 1)})})')
                a('s_barrier')
            dma = []
            if j + 4 < 32:
                dma += grp_B(j + 4)
            if j & 1 and (j // 2 + 3) < 16:
                dma += grp_A(j // 2 + 3)
        if OPT('PF_OLD'):
            if j in (2, 7, 12, 17, 22):
                dma += grp_pf(2 + (j - 2) // 5)
        else:
            sched = [int(x) for x in OPT('PF_SCHED', '0,1,4,9,14,19').split(',')]
            if j in sched:
                dma += grp_pf(sched.index(j))
        if j == 28 and not OPT('NO_PF'):
            dma.append(([f's_add_u32 m0, s77, 0x{G1_DUMMY:x}',
                         's_lshl_b32 s28, s2, 13',
                         's_add_u32 s28, s28, s31',
                         f'buffer_load_dwordx4 v{VPF}, s[64:67], s28 offen lds',
                         's_mul_i32 s76, s2, 28672',
                         's_mul_i32 s29, s20, 3584',
                         's_add_u32 s76, s76, s29'], None))
            for i in range(4):
                dma.append(([f'buffer_load_dwordx4 v{VPF}, s[68:71], s76 offen lds',
                             's_add_u32 s76, s76, 1024'], None))
        rd = frag_reads(j + 1) if j + 1 < 32 else []
        mm = mfmas(j)
        if OPT('G1_NOCOMP'):
            rd = []; mm = []
        if use_flags:
            vmw = (lambda jj=j: f's_waitcnt vmcnt({vq.wait_for({("A", (jj + 2) // 2), ("B", jj + 2)})})') if j + 2 < 32 else None
            flag_iter(a, fs, j, 32, mm, rd, dma, emit_grp, vmw, int(OPT('G1_CF', '2')), int(OPT('G1_CE', '9')))
        else:
            interleave(a, mm, rd, dma, emit_grp, int(OPT('G1_FD', '1')), int(OPT('G1_DE', '4')))
            a('s_waitcnt lgkmcnt(0)')
    if use_flags or half_bar:
        a('s_barrier')
    stamp(a, 2)
    if w1:
        epilogue_w1(a)
    else:
        epilogue_qkv(a)


def phase_end(a, w1):
    if not FUSE12:
        a('s_endpgm')
        return
    a('s_waitcnt vmcnt(0)')
    a('s_barrier')
    if w1:
        a('s_sub_u32 s28, s25, 16')
        a('s_lshr_b32 s28, s28, 3')
        a('s_lshl_b32 s29, s24, 1')
        a('s_add_u32 s28, s28, s29')
    else:
        a('s_add_u32 s28, s25, 16')
    a('s_lshl_b32 s28, s28, 7')
    a(f's_add_u32 s28, s28, 0x{CNT_OFF - FLAG_OFF:x}')
    a('v_mov_b32 v17, 0')
    a('v_mov_b32 v18, 1')
    a('v_cmp_eq_u32 vcc, 0, v0')
    a('s_and_saveexec_b64 s[34:35], vcc')
    a('buffer_atomic_add v18, v17, s[92:95], s28 offen sc1')
    a('s_mov_b64 exec, s[34:35]')
    a('s_branch g12_p2')


def epilogue_w1(a):
    T = VTMP
    c1 = -2.0 * 0.7978845608028654 * 1.4426950408889634
    c2 = c1 * 0.044715
    a(f's_mov_b32 s44, 0x{f2u(c1):x}')
    a(f's_mov_b32 s46, 0x{f2u(c2):x}')
    a(f's_mov_b32 s47, 0x{f2u(c2):x}')
    a('s_mov_b32 s48, 1.0')
    a('s_mov_b32 s49, 1.0')
    a('s_lshl_b32 s28, s24, 8')
    a('s_lshl_b32 s29, s21, 6')
    a('s_add_u32 s28, s28, s29')
    a(f'v_add_u32 v{T}, s28, v{VL16}')
    a(f'v_and_b32 v{T+1}, 1, v{VG4}')
    a(f'v_lshl_add_u32 v{T}, v{T+1}, 4, v{T}')
    a(f'v_lshrrev_b32 v{T+1}, 1, v{VG4}')
    a(f'v_lshl_add_u32 v{T}, v{T+1}, 11, v{T}')
    a(f'v_lshlrev_b32 v{T}, 4, v{T}')
    a('s_lshr_b32 s28, s32, 4')
    a('s_lshl_b32 s29, s22, 1')
    a('s_add_u32 s28, s28, s29')
    a('s_add_u32 s28, s28, 128')
    a('s_lshl_b32 s52, s28, 15')
    W = 64
    O = 32
    a('v_mov_b32 v60, s44')
    a('v_mov_b32 v61, s44')
    for nb in range(7):
        for mb in range(4):
            c = ACC + (nb * 4 + mb) * 4
            w = W + mb * 4
            for h in range(2):
                a(f'v_pk_mul_f32 v[{w+2*h}:{w+2*h+1}], v[{c+2*h}:{c+2*h+1}], v[{c+2*h}:{c+2*h+1}]')
            for h in range(2):
                a(f'v_pk_fma_f32 v[{w+2*h}:{w+2*h+1}], v[{w+2*h}:{w+2*h+1}], s[46:47], v[60:61]')
            for h in range(2):
                a(f'v_pk_mul_f32 v[{w+2*h}:{w+2*h+1}], v[{w+2*h}:{w+2*h+1}], v[{c+2*h}:{c+2*h+1}]')
        for i in range(16):
            a(f'v_exp_f32 v{W+i}, v{W+i}')
        for h in range(8):
            a(f'v_pk_add_f32 v[{W+2*h}:{W+2*h+1}], v[{W+2*h}:{W+2*h+1}], s[48:49]')
        for i in range(16):
            a(f'v_rcp_f32 v{W+i}, v{W+i}')
        o = O + (nb & 1) * 8
        for mb in range(4):
            c = ACC + (nb * 4 + mb) * 4
            w = W + mb * 4
            for h in range(2):
                a(f'v_pk_mul_f32 v[{w+2*h}:{w+2*h+1}], v[{w+2*h}:{w+2*h+1}], v[{c+2*h}:{c+2*h+1}]')
            a(f'v_cvt_pk_bf16_f32 v{o+2*mb}, v{w}, v{w+1}')
            a(f'v_cvt_pk_bf16_f32 v{o+2*mb+1}, v{w+2}, v{w+3}')
        for p in range(2):
            a(f'v_permlane16_swap_b32 v{o+4*p}, v{o+4*p+2}')
            a(f'v_permlane16_swap_b32 v{o+4*p+1}, v{o+4*p+3}')
        a(f's_add_u32 s28, s52, 0x{nb*4*32768:x}')
        for p in range(2):
            a(f'buffer_store_dwordx4 v[{o+4*p}:{o+4*p+3}], v{T}, s[16:19], s28 offen offset:{p*512}{OPT("H_POL", " sc1")}')
    stamp(a, 3)
    if OPT('STAMP'):
        a('s_waitcnt vmcnt(0)')
    stamp(a, 4)
    stamp(a, 6, True)
    stamp_flush(a, 7, 0)
    phase_end(a, True)


def epilogue_qkv(a):
    T = VTMP
    QF, KF, VF = 32, 48, 64
    WP = 240

    def acc(nb, mb):
        return ACC + (nb * 4 + mb) * 4
    a('s_mov_b32 s50, 0xffff0000')
    a(f's_mov_b32 s51, 0x{LOG2E:x}')
    for i in range(8):
        a(f'v_lshl_or_b32 v{WP+i}, v{224+2*i+1}, 16, v{224+2*i}')
    for mb in range(4):
        for e in range(2):
            c = acc(e, mb)
            a(f'v_cvt_pk_bf16_f32 v{QF+4*mb+2*e}, v{c}, v{c+1}')
            a(f'v_cvt_pk_bf16_f32 v{QF+4*mb+2*e+1}, v{c+2}, v{c+3}')
            c = acc(2 + e, mb)
            a(f'v_cvt_pk_bf16_f32 v{KF+4*mb+2*e}, v{c}, v{c+1}')
            a(f'v_cvt_pk_bf16_f32 v{KF+4*mb+2*e+1}, v{c+2}, v{c+3}')
    for ks in range(2):
        for db in range(2):
            for e in range(2):
                c = acc(4 + db, 2 * ks + e)
                d = VF + (ks * 2 + db) * 4 + 2 * e
                a(f'v_cvt_pk_bf16_f32 v{d}, v{c}, v{c+1}')
                a(f'v_cvt_pk_bf16_f32 v{d+1}, v{c+2}, v{c+3}')
    PQ, PK = 128, 160
    for mb in range(4):
        for fb in range(2):
            d = PK + (mb * 2 + fb) * 4
            a(f'v_mfma_f32_16x16x32_bf16 v[{d}:{d+3}], v[{KF+4*mb}:{KF+4*mb+3}], v[{WP+4*fb}:{WP+4*fb+3}], 0')
    a('s_lshl_b32 s28, s24, 4')
    a('s_lshl_b32 s29, s21, 2')
    a('s_add_u32 s28, s28, s29')
    a('s_lshl_b32 s28, s28, 10')
    a('s_lshl_b32 s29, s33, 17')
    a('s_add_u32 s28, s28, s29')
    for mb in range(4):
        a(f'buffer_store_dwordx4 v[{QF+4*mb}:{QF+4*mb+3}], v{VPF}, s[36:39], s28 offen offset:{mb*1024}{OPT("H_POL", " sc1")}')
    a('s_or_b32 s28, s24, s21')
    a('s_cmp_lg_u32 s28, 0')
    a('s_cbranch_scc1 g1q_nowp')
    a('s_lshl_b32 s28, s33, 11 ; @skip')
    a('s_add_u32 s28, s28, 0x400000 ; @skip')
    a(f'buffer_store_dwordx4 v[{WP}:{WP+3}], v{VPF}, s[36:39], s28 offen sc1 ; @skip')
    a(f'buffer_store_dwordx4 v[{WP+4}:{WP+7}], v{VPF}, s[36:39], s28 offen offset:1024 sc1 ; @skip')
    a('g1q_nowp:')
    for i in range(0, 32, 2):
        r = PK + i
        a(f'v_cvt_pk_bf16_f32 v{T+(i>>1)%4}, v{r}, v{r+1}')
        a(f'v_lshlrev_b32 v{r}, 16, v{T+(i>>1)%4}')
        a(f'v_and_b32 v{r+1}, s50, v{T+(i>>1)%4}')
    KMX, KMN, KS1, KS2, KT = 80, 96, 32, 48, 112
    idx = [(mb, i) for mb in range(4) for i in range(4)]

    def pk(mb, fb, i):
        return PK + (mb * 2 + fb) * 4 + i
    for n, (mb, i) in enumerate(idx):
        a(f'v_max_f32 v{KMX+n}, v{pk(mb,0,i)}, v{pk(mb,1,i)}')
        a(f'v_min_f32 v{KMN+n}, v{pk(mb,0,i)}, v{pk(mb,1,i)}')
    for (base, op) in ((KMX, 'v_max_f32'), (KMN, 'v_min_f32')):
        src, dst = base, KT
        for r in (8, 4, 2, 1):
            for n in range(16):
                a(f'{op}_dpp v{dst+n}, v{src+n}, v{src+n} row_ror:{r} row_mask:0xf bank_mask:0xf')
            src, dst = dst, src
    EP = 128
    for n in range(16):
        a(f'v_mul_f32 v{KMX+n}, s51, v{KMX+n}')
        a(f'v_mul_f32 v{KMN+n}, s51, v{KMN+n}')
    for n, (mb, i) in enumerate(idx):
        for fb in range(2):
            r = pk(mb, fb, i)
            a(f'v_fma_f32 v{EP + r - PK}, v{r}, s51, -v{KMX+n}')
            a(f'v_fma_f32 v{r}, -v{r}, s51, v{KMN+n}')
    for r in range(64):
        a(f'v_exp_f32 v{128+r}, v{128+r}')
    for n, (mb, i) in enumerate(idx):
        a(f'v_add_f32 v{KS1+n}, v{EP + pk(mb,0,i) - PK}, v{EP + pk(mb,1,i) - PK}')
        a(f'v_add_f32 v{KS2+n}, v{pk(mb,0,i)}, v{pk(mb,1,i)}')
    for base in (KS1, KS2):
        src, dst = base, KT
        for r in (8, 4, 2, 1):
            for n in range(16):
                a(f'v_add_f32_dpp v{dst+n}, v{src+n}, v{src+n} row_ror:{r} row_mask:0xf bank_mask:0xf')
            src, dst = dst, src
    for n in range(16):
        a(f'v_rcp_f32 v{KS1+n}, v{KS1+n}')
        a(f'v_rcp_f32 v{KS2+n}, v{KS2+n}')
    for n, (mb, i) in enumerate(idx):
        for fb in range(2):
            r = pk(mb, fb, i)
            a(f'v_mul_f32 v{EP + r - PK}, v{EP + r - PK}, v{KS1+n}')
            a(f'v_mul_f32 v{r}, v{r}, v{KS2+n}')
    PF = 80
    for sg in range(2):
        for fb in range(2):
            for ks in range(2):
                d = PF + ((sg * 2 + fb) * 2 + ks) * 4
                for e in range(2):
                    r = (EP if sg == 0 else PK) + ((2 * ks + e) * 2 + fb) * 4
                    a(f'v_cvt_pk_bf16_f32 v{d+2*e}, v{r}, v{r+1}')
                    a(f'v_cvt_pk_bf16_f32 v{d+2*e+1}, v{r+2}, v{r+3}')
    ONES = 112
    for i in range(4):
        a(f'v_mov_b32 v{ONES+i}, 0x3f803f80')
    KV = 128
    Z = 160
    for ks in range(2):
        for F in range(4):
            pf = PF + (F * 2 + ks) * 4
            for db in range(2):
                d = KV + (F * 2 + db) * 4
                vf = VF + (ks * 2 + db) * 4
                cc = '0' if ks == 0 else f'v[{d}:{d+3}]'
                a(f'v_mfma_f32_16x16x32_bf16 v[{d}:{d+3}], v[{pf}:{pf+3}], v[{vf}:{vf+3}], {cc}')
            d = Z + F * 4
            cc = '0' if ks == 0 else f'v[{d}:{d+3}]'
            a(f'v_mfma_f32_16x16x32_bf16 v[{d}:{d+3}], v[{pf}:{pf+3}], v[{ONES}:{ONES+3}], {cc}')
    a('s_lshl_b32 s28, s22, 2')
    a('s_add_u32 s28, s28, s21')
    a('s_mul_i32 s28, s28, 12288')
    a(f'v_add_u32 v{T+6}, s28, v{VPF}')
    for r in range(12):
        a(f'ds_write_b128 v{T+6}, v[{KV+4*r}:{KV+4*r+3}] offset:{r*1024}')
    a('s_mul_i32 s28, s22, 49152')
    a('s_mul_i32 s29, s21, 3072')
    a('s_add_u32 s28, s28, s29')
    a(f'v_add_u32 v{T+6}, s28, v{VPF}')
    a('s_waitcnt lgkmcnt(0)')
    a('s_barrier')
    for p in range(4):
        for r in range(3):
            a(f'ds_read_b128 v[{32+12*p+4*r}:{35+12*p+4*r}], v{T+6} offset:{p*12288 + r*1024}')
    a('s_lshl_b32 s28, s33, 3')
    a('s_add_u32 s28, s28, s24')
    a(f's_mul_i32 s28, s28, {KVP_ENT}')
    a(f'v_lshlrev_b32 v{T+7}, 4, v{VG4}')
    a(f'v_cmp_eq_u32 vcc, 0, v{VL16}')
    a('s_waitcnt lgkmcnt(0)')
    for r in range(12):
        a(f'v_add_f32 v{32+r}, v{32+r}, v{44+r}')
        a(f'v_add_f32 v{56+r}, v{56+r}, v{68+r}')
    for r in range(12):
        a(f'v_add_f32 v{32+r}, v{32+r}, v{56+r}')

    def qoff(q):
        if q < 8:
            F, db = q >> 1, q & 1
            return ((db * 2 + (F >> 1)) * 2 + (F & 1)) * 1024
        return 8192 + (q - 8) * 64
    for wm in range(4):
        a(f's_cmp_lg_u32 s21, {wm}')
        a(f's_cbranch_scc1 g1q_st{wm}')
        for r in range(3):
            q = 3 * wm + r
            a(f's_add_u32 s29, s28, {qoff(q)} ; @skip')
            if q < 8:
                a(f'buffer_store_dwordx4 v[{32+4*r}:{35+4*r}], v{VPF}, s[44:47], s29 offen sc1 ; @skip')
            else:
                a('s_and_saveexec_b64 s[34:35], vcc ; @skip')
                a(f'buffer_store_dwordx4 v[{32+4*r}:{35+4*r}], v{T+7}, s[44:47], s29 offen sc1 ; @skip')
                a('s_mov_b64 exec, s[34:35] ; @skip')
        a(f'g1q_st{wm}:')
    a('g1q_end:')
    stamp(a, 3)
    if OPT('STAMP'):
        a('s_waitcnt vmcnt(0)')
    stamp(a, 4)
    stamp(a, 6, True)
    stamp_flush(a, 7, 0)
    phase_end(a, False)


def gen_gemm1(a):
    name = 'gemm1_kernel'
    kernel_begin(a, name)
    a('s_cmp_ge_u32 s2, 256')
    a('s_cbranch_scc1 g1_exit')
    a('s_load_dwordx2 s[4:5], s[0:1], 88')
    a('s_load_dwordx2 s[6:7], s[0:1], 8')
    a('s_load_dwordx2 s[56:57], s[0:1], 16')
    a('s_load_dwordx2 s[58:59], s[0:1], 40')
    a('s_load_dwordx2 s[60:61], s[0:1], 48')
    a('s_load_dwordx2 s[72:73], s[0:1], 24')
    a('s_load_dwordx2 s[74:75], s[0:1], 56')
    gemm1_common_setup(a)
    a('s_cmp_ge_u32 s25, 16')
    a('s_cbranch_scc1 g1_w1')
    gemm1_variant(a, 'qkv')
    a('g1_w1:')
    gemm1_variant(a, 'w1')
    a('g1_exit:')
    a('s_endpgm')
    return descriptor(name, 256, 102)


def gen_o(a):
    name = 'attn_o_kernel'
    kernel_begin(a, name)
    a('s_cmp_ge_u32 s2, 256')
    a('s_cbranch_scc1 o_done')
    a('s_load_dwordx2 s[4:5], s[0:1], 88')
    a('s_load_dwordx2 s[32:33], s[0:1], 24')
    a('s_load_dwordx2 s[34:35], s[0:1], 56')
    a('v_lshrrev_b32 v1, 6, v0')
    a('v_and_b32 v2, 63, v0')
    a('s_nop 0')
    a('v_readfirstlane_b32 s20, v1')
    a('v_lshrrev_b32 v3, 4, v2')
    a('v_and_b32 v4, 15, v2')
    a('s_and_b32 s21, s2, 31')
    a('s_lshr_b32 s22, s2, 5')
    a('s_waitcnt lgkmcnt(0)')
    srd(a, 8, 4, KVP_SZ, KVP_OFF)
    srd(a, 12, 4, PHIQ_SZ, PHIQ_OFF)
    srd(a, 16, 4, ACT2_SZ, ACT2_OFF)
    srd(a, 36, 4, FLAG_SZ, FLAG_OFF)
    a('s_lshl_b32 s23, s2, 9')
    a('v_lshlrev_b32 v5, 7, v0')
    a('v_mov_b32 v6, 0')
    a('v_cmp_gt_u32 vcc, 4, v0')
    a('s_and_saveexec_b64 s[24:25], vcc')
    a('buffer_store_dword v6, v5, s[36:39], s23 offen')
    a('s_mov_b64 exec, s[24:25]')
    a('s_and_b32 s23, s20, 1')
    a('s_lshr_b32 s24, s20, 1')
    a('s_lshl_b32 s25, s23, 12')
    a('s_lshl_b32 s26, s24, 7')
    a('s_add_u32 s25, s25, s26')
    a('v_lshlrev_b32 v5, 8, v4')
    a('v_lshl_add_u32 v5, v3, 5, v5')
    a('v_add_u32 v5, s25, v5')
    a(f's_mul_i32 s27, s21, {KVP_ENT}')
    for mt in range(8):
        a(f's_add_u32 s28, s27, {mt*32*KVP_ENT}')
        a(f'buffer_load_dwordx4 v[{32+8*mt}:{35+8*mt}], v5, s[8:11], s28 offen')
        a(f'buffer_load_dwordx4 v[{36+8*mt}:{39+8*mt}], v5, s[8:11], s28 offen offset:16')
    a('s_lshl_b32 s25, s23, 7')
    a('s_add_u32 s25, s25, 8192')
    a('v_lshl_add_u32 v6, v3, 5, s25')
    for mt in range(8):
        a(f's_add_u32 s28, s27, {mt*32*KVP_ENT}')
        a(f'buffer_load_dwordx4 v[{96+8*mt}:{99+8*mt}], v6, s[8:11], s28 offen')
        a(f'buffer_load_dwordx4 v[{100+8*mt}:{103+8*mt}], v6, s[8:11], s28 offen offset:16')
    a('s_lshl_b32 s25, s22, 8')
    a('s_lshl_b32 s26, s20, 6')
    a('s_add_u32 s25, s25, s26')
    a('v_add_u32 v7, s25, v4')
    a('v_lshlrev_b32 v8, 12, v7')
    a('s_lshl_b32 s26, s21, 7')
    a('v_lshl_add_u32 v9, v3, 4, s26')
    a('v_add_u32 v8, v8, v9')
    for mb in range(4):
        a(f's_mov_b32 s28, {mb*16*4096}')
        for ks in range(2):
            d = 160 + (mb * 2 + ks) * 4
            a(f'buffer_load_dwordx4 v[{d}:{d+3}], v8, s[12:15], s28 offen offset:{ks*64}')
    npf = 0
    if OPT('O_PF'):
        srd(a, 36, 32, 1024 * 1024 * 2)
        srd(a, 40, 34, 3584 * 1024 * 2)
        a('v_lshlrev_b32 v200, 4, v0')
        a('s_lshl_b32 s44, s2, 13')
        a('s_mul_i32 s45, s2, 28672')
        for r in range(2):
            a(f'buffer_load_dwordx4 v[{204+4*r}:{207+4*r}], v200, s[36:39], s44 offen')
            a('s_add_u32 s44, s44, 4096')
        for r in range(7):
            a(f'buffer_load_dwordx4 v[{212+4*r}:{215+4*r}], v200, s[40:43], s45 offen')
            a('s_add_u32 s45, s45, 4096')
        npf = 9
    a(f's_waitcnt vmcnt({8+npf})')
    for base in (32, 96):
        for mt in range(1, 8):
            for i in range(8):
                a(f'v_add_f32 v{base+i}, v{base+i}, v{base+8*mt+i}')
    for i in range(4):
        a(f'v_cvt_pk_bf16_f32 v{12+i}, v{32+2*i}, v{33+2*i}')
        a(f'v_cvt_pk_bf16_f32 v{16+i}, v{96+2*i}, v{97+2*i}')
    a('v_lshlrev_b32 v10, 4, v2')
    a('s_lshl_b32 s25, s20, 10')
    a('v_add_u32 v11, s25, v10')
    a('ds_write_b128 v11, v[12:15]')
    a('s_cmp_ge_u32 s20, 2')
    a('s_cbranch_scc1 o_skipz')
    a('ds_write_b128 v11, v[16:19] offset:4096')
    a('o_skipz:')
    a('s_waitcnt lgkmcnt(0)')
    a('s_barrier')
    for i in range(6):
        a(f'ds_read_b128 v[{32+4*i}:{35+4*i}], v10 offset:{i*1024}')
    a(f's_waitcnt vmcnt({npf}) lgkmcnt(0)')
    NUM = 64
    DEN = 96
    for ks in range(2):
        for mb in range(4):
            pf = 160 + (mb * 2 + ks) * 4
            for db in range(2):
                d = NUM + (mb * 2 + db) * 4
                kf = 32 + (ks * 2 + db) * 4
                cc = '0' if ks == 0 else f'v[{d}:{d+3}]'
                a(f'v_mfma_f32_16x16x32_bf16 v[{d}:{d+3}], v[{kf}:{kf+3}], v[{pf}:{pf+3}], {cc}')
            d = DEN + mb * 4
            zf = 32 + (4 + ks) * 4
            cc = '0' if ks == 0 else f'v[{d}:{d+3}]'
            a(f'v_mfma_f32_16x16x32_bf16 v[{d}:{d+3}], v[{zf}:{zf+3}], v[{pf}:{pf+3}], {cc}')
    a('s_mov_b32 s30, 0xffff0000')
    a('s_mov_b32 s29, 9216')
    a('v_mul_lo_u32 v8, v7, s29')
    a('s_lshl_b32 s26, s21, 6')
    a('v_lshl_add_u32 v9, v3, 3, s26')
    a('v_add_u32 v8, v8, v9')
    for mb in range(4):
        dn = DEN + mb * 4
        round_bf16(a, dn, dn)
        a(f'v_add_f32 v{dn}, 0x{f2u(1e-6):x}, v{dn}')
        round_bf16(a, dn, dn)
        a(f'v_rcp_f32 v{dn+1}, v{dn}')
        a(f's_mov_b32 s28, {mb*16*9216}')
        for db in range(2):
            n = NUM + (mb * 2 + db) * 4
            for h in range(2):
                a(f'v_cvt_pk_bf16_f32 v{12+h}, v{n+2*h}, v{n+2*h+1}')
                a(f'v_lshlrev_b32 v{n+2*h}, 16, v{12+h}')
                a(f'v_and_b32 v{n+2*h+1}, s30, v{12+h}')
            for i in range(4):
                a(f'v_mul_f32 v{16+i}, v{n+i}, v{dn+1}')
            for i in range(4):
                a(f'v_fma_f32 v{n+i}, -v{16+i}, v{dn}, v{n+i}')
            for i in range(4):
                a(f'v_fmac_f32 v{16+i}, v{n+i}, v{dn+1}')
            o = 20 + (mb * 2 + db) * 2
            a(f'v_cvt_pk_bf16_f32 v{o}, v16, v17')
            a(f'v_cvt_pk_bf16_f32 v{o+1}, v18, v19')
            a(f'buffer_store_dwordx2 v[{o}:{o+1}], v8, s[16:19], s28 offen offset:{db*32}')
    a('o_done:')
    a('s_endpgm')
    return descriptor(name, 240, 48)


G2_A = 32768
G2_BB = 98304
G2_B = 16384
G2_LDS = G2_BB + 3 * G2_B


def gen_gemm2(a):
    name = 'gemm2_kernel'
    kernel_begin(a, name)
    a('s_cmp_ge_u32 s2, 256')
    a('s_cbranch_scc1 g2_exit')
    a('s_load_dwordx2 s[4:5], s[0:1], 88')
    a('s_load_dwordx2 s[6:7], s[0:1], 24')
    a('s_load_dwordx2 s[56:57], s[0:1], 56')
    a('s_load_dwordx2 s[58:59], s[0:1], 64')
    a('s_load_dwordx2 s[60:61], s[0:1], 0')
    a('s_load_dwordx2 s[62:63], s[0:1], 72')
    LANE, G4, L16, T = 14, 15, 16, 17
    VA2, VB2, VGA2, VGB2 = 2, 5, 9, 10
    a('v_lshrrev_b32 v1, 6, v0')
    a(f'v_and_b32 v{LANE}, 63, v0')
    a('s_nop 0')
    a('v_readfirstlane_b32 s20, v1')
    a(f'v_lshrrev_b32 v{G4}, 4, v{LANE}')
    a(f'v_and_b32 v{L16}, 15, v{LANE}')
    a('s_nop 1')
    a('s_and_b32 s21, s20, 1')
    a('s_lshr_b32 s22, s20, 1')
    a('s_and_b32 s26, s2, 7')
    a('s_lshr_b32 s27, s2, 3')
    a('s_and_b32 s24, s26, 3')
    a('s_lshl_b32 s24, s24, 2')
    a('s_and_b32 s28, s27, 3')
    a('s_add_u32 s24, s24, s28')
    a('s_lshr_b32 s25, s26, 2')
    a('s_lshl_b32 s25, s25, 3')
    a('s_lshr_b32 s28, s27, 2')
    a('s_add_u32 s25, s25, s28')
    a('s_lshl_b32 s28, s22, 2')
    a(f'v_add_u32 v{T}, s28, v{G4}')
    a(f'v_xor_b32 v{T}, v{T}, v{L16}')
    a(f'v_lshlrev_b32 v{T}, 4, v{T}')
    a(f'v_lshl_add_u32 v{T}, v{L16}, 8, v{T}')
    a('s_lshl_b32 s28, s21, 14')
    a(f'v_add_u32 v{T}, s28, v{T}')
    for sl in range(3):
        a(f'v_add_u32 v{VA2+sl}, 0x{sl*G2_A:x}, v{T}')
    a(f'v_lshrrev_b32 v{T}, 2, v{L16}')
    a(f'v_lshl_add_u32 v{T+1}, v{G4}, 3, v{T}')
    a('s_lshl_b32 s28, s22, 5')
    a(f'v_add_u32 v{T+1}, s28, v{T+1}')
    a(f'v_lshrrev_b32 v{T+2}, 1, v{T}')
    a(f'v_and_b32 v{T+3}, 1, v{G4}')
    a(f'v_lshl_or_b32 v{T+2}, v{T+3}, 1, v{T+2}')
    a(f'v_and_b32 v{T+4}, 3, v{LANE}')
    a(f'v_lshlrev_b32 v{T+4}, 3, v{T+4}')
    a(f'v_lshl_add_u32 v{T+5}, v{T+1}, 7, v{T+4}')
    a(f'v_add_u32 v{T+5}, 0x{G2_BB:x}, v{T+5}')
    for nb in range(4):
        a(f'v_xor_b32 v{T+6}, {nb}, v{T+2}')
        a(f'v_lshl_add_u32 v{VB2+nb}, v{T+6}, 5, v{T+5}')
    a('s_lshl_b32 s28, s20, 2')
    a('s_and_b32 s29, s28, 15')
    a(f'v_add_u32 v{T}, s29, v{G4}')
    a(f'v_xor_b32 v{T}, v{T}, v{L16}')
    a('s_lshl_b32 s29, s24, 7')
    a('s_add_u32 s28, s28, s29')
    a(f'v_add_u32 v{T+1}, s28, v{G4}')
    a('s_mov_b32 s29, 9216')
    a(f'v_mul_lo_u32 v{T+1}, v{T+1}, s29')
    a(f'v_lshl_add_u32 v{VGA2}, v{T}, 4, v{T+1}')
    a('s_lshl_b32 s30, s20, 10')
    a(f'v_lshrrev_b32 v{T}, 3, v{LANE}')
    a(f'v_bfe_u32 v{T+1}, v{LANE}, 4, 1')
    a('s_lshl_b32 s28, s21, 1')
    a(f'v_or_b32 v{T+1}, s28, v{T+1}')
    a(f'v_bfe_u32 v{T+2}, v{LANE}, 1, 2')
    a(f'v_xor_b32 v{T+2}, v{T+2}, v{T+1}')
    a(f'v_and_b32 v{T+3}, 1, v{LANE}')
    a(f'v_lshlrev_b32 v{T+3}, 4, v{T+3}')
    a(f'v_lshl_add_u32 v{T+3}, v{T+2}, 5, v{T+3}')
    a('s_lshl_b32 s28, s20, 3')
    a(f'v_add_u32 v{T}, s28, v{T}')
    a(f'v_lshl_add_u32 v{T}, v{T}, 11, v{T+3}')
    a('s_lshl_b32 s32, s25, 7')
    a(f'v_add_u32 v{VGB2}, s32, v{T}')
    a('s_waitcnt lgkmcnt(0)')
    srd(a, 8, 4, ACT2_SZ, ACT2_OFF)
    srd(a, 12, 6, 1024 * 1024 * 2)
    srd(a, 16, 56, 3584 * 1024 * 2)
    srd(a, 36, 58, 2048)
    srd(a, 40, 60, XN_SZ)
    srd(a, 44, 62, XN_SZ)
    stamp(a, 5, True)
    stamp(a, 0)
    ACC2 = 64
    SETS2 = (24, 128)
    for i in range(64):
        a(f'v_mov_b32 v{ACC2+i}, 0')
    vq = VQ()
    NS = 36

    def grp(j):
        sl = j % 3
        out = []
        for q in range(4):
            if OPT('G2_NOA'):
                break
            out.append(([f's_add_u32 m0, s30, 0x{sl*G2_A + q*8192:x}',
                         f's_mov_b32 s28, 0x{j*256 + q*32*9216:x}',
                         f'buffer_load_dwordx4 v{VGA2}, s[8:11], s28 offen lds'], j))
        for q in range(2):
            if OPT('G2_NOB'):
                break
            k0 = j * 128 + q * 64
            if k0 < 1024:
                sr, ko = 's[12:15]', k0
            else:
                sr, ko = 's[16:19]', k0 - 1024
            out.append(([f's_add_u32 m0, s30, 0x{G2_BB + sl*G2_B + q*8192:x}',
                         f's_mov_b32 s28, 0x{ko*2048:x}',
                         f'buffer_load_dwordx4 v{VGB2}, {sr}, s28 offen lds'], j))
        return out

    def emit_grp(g):
        for l in g[0]:
            a(l)
        vq.push(g[1])

    def issue(j):
        for g in grp(j):
            emit_grp(g)

    def frag_reads(j):
        S = SETS2[j & 1]
        sl = j % 3
        out = []
        for mb in range(4):
            out.append(f'ds_read_b128 v[{S+4*mb}:{S+4*mb+3}], v{VA2+sl} offset:{mb*4096}')
        for nb in range(4):
            d = S + 16 + 4 * nb
            for t in range(2):
                out.append(f'ds_read_b64_tr_b16 v[{d+2*t}:{d+2*t+1}], v{VB2+nb} offset:{sl*G2_B + t*512}')
        return out

    def mfmas(j):
        S = SETS2[j & 1]
        out = []
        for nb in range(4):
            for mb in range(4):
                c = ACC2 + (mb * 4 + nb) * 4
                out.append(f'v_mfma_f32_16x16x32_bf16 v[{c}:{c+3}], v[{S+16+4*nb}:{S+19+4*nb}], v[{S+4*mb}:{S+4*mb+3}], v[{c}:{c+3}]')
        return out

    issue(0); issue(1); issue(2)
    a(f's_waitcnt vmcnt({vq.wait_for({0})})')
    a('s_barrier')
    stamp(a, 1)
    for r in frag_reads(0):
        a(r)
    a('s_waitcnt lgkmcnt(0)')
    for j in range(NS):
        if j + 1 < NS:
            a(f's_waitcnt vmcnt({vq.wait_for({j + 1})})')
        a('s_barrier')
        dma = grp(j + 3) if j + 3 < NS else []
        rd = frag_reads(j + 1) if j + 1 < NS else []
        mm = mfmas(j)
        if OPT('G2_NOCOMP'):
            rd = []; mm = []
        interleave(a, mm, rd, dma, emit_grp, 0, 3)
        a('s_waitcnt lgkmcnt(0)')
    stamp(a, 2)
    a(f'v_lshlrev_b32 v{T}, 4, v{LANE}')
    a('s_lshl_b32 s28, s21, 16')
    a('s_lshl_b32 s29, s22, 12')
    a('s_add_u32 s28, s28, s29')
    a(f'v_add_u32 v{T+1}, s28, v{T}')
    for mb in range(4):
        for nb in range(4):
            c = ACC2 + (mb * 4 + nb) * 4
            a(f'ds_write_b128 v{T+1}, v[{c}:{c+3}] offset:{mb*16384 + nb*1024}')
    a('s_lshl_b32 s28, s24, 7')
    a('s_lshl_b32 s29, s21, 6')
    a('s_add_u32 s28, s28, s29')
    a('s_lshl_b32 s29, s22, 4')
    a('s_add_u32 s28, s28, s29')
    a(f'v_add_u32 v{T+2}, s28, v{L16}')
    a(f'v_lshlrev_b32 v{T+2}, 11, v{T+2}')
    a(f'v_lshl_add_u32 v{T+3}, v{G4}, 3, s32')
    a(f'v_add_u32 v{T+2}, v{T+2}, v{T+3}')
    for nb in range(4):
        a(f'buffer_load_dwordx2 v[{24+2*nb}:{25+2*nb}], v{T+2}, s[40:43], 0 offen offset:{nb*32}')
        a(f'buffer_load_dwordx2 v[{32+2*nb}:{33+2*nb}], v{T+3}, s[36:39], 0 offen offset:{nb*32}')
    a('s_waitcnt lgkmcnt(0)')
    a('s_barrier')
    a('s_lshl_b32 s28, s21, 16')
    a('s_lshl_b32 s29, s22, 14')
    a('s_add_u32 s28, s28, s29')
    a(f'v_add_u32 v{T+1}, s28, v{T}')
    for src in range(4):
        for nb in range(4):
            d = 128 + (src * 4 + nb) * 4
            a(f'ds_read_b128 v[{d}:{d+3}], v{T+1} offset:{src*4096 + nb*1024}')
    a('s_mov_b32 s50, 0xffff0000')
    a('s_waitcnt vmcnt(0) lgkmcnt(0)')
    for i in range(16):
        a(f'v_add_f32 v{128+i}, v{128+i}, v{144+i}')
        a(f'v_add_f32 v{160+i}, v{160+i}, v{176+i}')
    for i in range(16):
        a(f'v_add_f32 v{128+i}, v{128+i}, v{160+i}')
    for nb in range(4):
        for h in range(2):
            r = 128 + nb * 4 + 2 * h
            a(f'v_lshlrev_b32 v40, 16, v{24+2*nb+h}')
            a(f'v_and_b32 v41, s50, v{24+2*nb+h}')
            a(f'v_lshlrev_b32 v42, 16, v{32+2*nb+h}')
            a(f'v_and_b32 v43, s50, v{32+2*nb+h}')
            a(f'v_add_f32 v{r}, v{r}, v42')
            a(f'v_add_f32 v{r+1}, v{r+1}, v43')
            a(f'v_add_f32 v{r}, v{r}, v40')
            a(f'v_add_f32 v{r+1}, v{r+1}, v41')
            a(f'v_cvt_pk_bf16_f32 v{44+2*nb+h}, v{r}, v{r+1}')
        a(f'buffer_store_dwordx2 v[{44+2*nb}:{45+2*nb}], v{T+2}, s[44:47], 0 offen offset:{nb*32}')
    stamp(a, 3)
    if OPT('STAMP'):
        a('s_waitcnt vmcnt(0)')
    stamp(a, 4)
    stamp(a, 6, True)
    stamp_flush(a, 7, 1)
    a('g2_exit:')
    a('s_endpgm')
    return descriptor(name, 192, 100)


X_OFF = 0x2200000
X_SZ = 256 * 32768
FLAG_OFF = 0x2A00000
FLAG_SZ = 256 * 512
CNT_OFF = 0x2C00000
OFLAG_OFF = 0x2B00000
H_SLOT = 32768
H_LDS = 4 * H_SLOT


def gen_gemm2b(a):
    name = 'gemm2_kernel'
    kernel_begin(a, name)
    a('s_cmp_ge_u32 s2, 256')
    a('s_cbranch_scc1 g2_exit')
    a('s_load_dwordx2 s[4:5], s[0:1], 88')
    a('s_load_dwordx2 s[6:7], s[0:1], 24')
    a('s_load_dwordx2 s[56:57], s[0:1], 56')
    a('s_load_dwordx2 s[58:59], s[0:1], 64')
    a('s_load_dwordx2 s[60:61], s[0:1], 0')
    a('s_load_dwordx2 s[62:63], s[0:1], 72')
    a('s_load_dwordx2 s[64:65], s[0:1], 80')
    LANE, G4, L16, T = 14, 15, 16, 17
    VA2, VB2, VGA2, VGB2 = 2, 4, 9, 10
    a('v_lshrrev_b32 v1, 6, v0')
    a(f'v_and_b32 v{LANE}, 63, v0')
    a('s_nop 0')
    a('v_readfirstlane_b32 s20, v1')
    a(f'v_lshrrev_b32 v{G4}, 4, v{LANE}')
    a(f'v_and_b32 v{L16}, 15, v{LANE}')
    a('s_nop 1')
    a('s_and_b32 s21, s20, 1')
    a('s_bfe_u32 s23, s20, 0x10001')
    a('s_lshr_b32 s22, s20, 2')
    a('s_and_b32 s26, s2, 7')
    a('s_lshr_b32 s27, s2, 3')
    a('s_and_b32 s33, s26, 1')
    a('s_lshr_b32 s24, s26, 1')
    a('s_lshl_b32 s24, s24, 2')
    a('s_and_b32 s28, s27, 3')
    a('s_add_u32 s24, s24, s28')
    a('s_lshr_b32 s25, s27, 2')
    a(f'v_lshrrev_b32 v{T}, 3, v{LANE}')
    a(f'v_and_b32 v{T+1}, 7, v{LANE}')
    a(f'v_xor_b32 v{T+1}, v{T+1}, v{T}')
    a('s_lshl_b32 s28, s24, 7')
    a('s_lshl_b32 s29, s20, 3')
    a('s_add_u32 s28, s28, s29')
    a(f'v_add_u32 v{T}, s28, v{T}')
    a('s_movk_i32 s29, 9216')
    a(f'v_mul_lo_u32 v{T}, v{T}, s29')
    a(f'v_lshl_add_u32 v{T}, v{T+1}, 4, v{T}')
    a('s_mul_i32 s28, s33, 4608')
    a(f'v_add_u32 v{VGA2}, s28, v{T}')
    a('s_lshl_b32 s30, s20, 10')
    a(f'v_lshrrev_b32 v{T}, 3, v{LANE}')
    a(f'v_bfe_u32 v{T+1}, v{LANE}, 4, 1')
    a('s_lshl_b32 s28, s21, 1')
    a(f'v_or_b32 v{T+1}, s28, v{T+1}')
    a(f'v_bfe_u32 v{T+2}, v{LANE}, 1, 2')
    a(f'v_xor_b32 v{T+2}, v{T+2}, v{T+1}')
    a(f'v_and_b32 v{T+3}, 1, v{LANE}')
    a(f'v_lshlrev_b32 v{T+3}, 4, v{T+3}')
    a(f'v_lshl_add_u32 v{T+3}, v{T+2}, 5, v{T+3}')
    a('s_lshl_b32 s28, s20, 3')
    a(f'v_add_u32 v{T}, s28, v{T}')
    a(f'v_lshl_add_u32 v{T}, v{T}, 11, v{T+3}')
    a('s_lshl_b32 s32, s25, 8')
    a(f'v_add_u32 v{VGB2}, s32, v{T}')
    a('s_waitcnt lgkmcnt(0)')
    srd(a, 8, 4, ACT2_SZ, ACT2_OFF)
    a('s_cmp_eq_u32 s33, 0')
    a('s_cbranch_scc0 g2_kh1')
    srd(a, 12, 6, 1024 * 2048)
    a(f's_sub_u32 s16, s56, 0x{1024*2048:x}')
    a('s_subb_u32 s17, s57, 0')
    a('s_and_b32 s17, s17, 0xffff')
    a(f's_mov_b32 s18, 0x{4608*2048:x}')
    a('s_mov_b32 s19, 0x00020000')
    a('s_branch g2_khd')
    a('g2_kh1:')
    srd(a, 12, 56, (3584 - 1280) * 2048, 1280 * 2048)
    srd(a, 16, 56, (3584 - 1280) * 2048, 1280 * 2048)
    a('g2_khd:')
    vq = VQ()
    NS = 36

    def grp(j):
        sl = j % 4
        out = []
        for q in range(2):
            out.append(([f's_add_u32 m0, s30, 0x{sl*H_SLOT + q*8192:x}',
                         f's_mov_b32 s28, 0x{j*128 + q*64*9216:x}',
                         f'buffer_load_dwordx4 v{VGA2}, s[8:11], s28 offen lds'], j))
        sr = 's[12:15]' if j < 16 else 's[16:19]'
        for q in range(2):
            out.append(([f's_add_u32 m0, s30, 0x{sl*H_SLOT + 16384 + q*8192:x}',
                         f's_mov_b32 s28, 0x{j*64*2048 + q*128:x}',
                         f'buffer_load_dwordx4 v{VGB2}, {sr}, s28 offen lds'], j))
        return out

    def emit_grp(g):
        for l in g[0]:
            a(l)
        vq.push(g[1])

    for j in range(4):
        for g in grp(j):
            emit_grp(g)
    stamp(a, 5, True)
    stamp(a, 0)
    srd(a, 36, 58, 2048)
    srd(a, 40, 60, XN_SZ)
    srd(a, 44, 62, XN_SZ)
    srd(a, 48, 4, X_SZ, X_OFF)
    srd(a, 52, 4, FLAG_SZ, FLAG_OFF)
    a('s_lshl_b32 s28, s22, 2')
    a(f'v_add_u32 v{T}, s28, v{G4}')
    a(f'v_and_b32 v{T+1}, 7, v{LANE}')
    a(f'v_xor_b32 v{T}, v{T}, v{T+1}')
    a(f'v_lshlrev_b32 v{T}, 4, v{T}')
    a(f'v_lshl_add_u32 v{T}, v{L16}, 7, v{T}')
    a('s_lshl_b32 s28, s21, 13')
    a(f'v_add_u32 v{VA2}, s28, v{T}')
    a(f'v_add_u32 v{VA2+1}, 0x10000, v{VA2}')
    a(f'v_lshrrev_b32 v{T}, 2, v{L16}')
    a(f'v_lshl_add_u32 v{T+1}, v{G4}, 3, v{T}')
    a('s_lshl_b32 s28, s22, 5')
    a(f'v_add_u32 v{T+1}, s28, v{T+1}')
    a(f'v_lshrrev_b32 v{T+2}, 1, v{T}')
    a(f'v_and_b32 v{T+3}, 1, v{G4}')
    a(f'v_lshl_or_b32 v{T+2}, v{T+3}, 1, v{T+2}')
    a(f'v_and_b32 v{T+4}, 3, v{LANE}')
    a(f'v_lshlrev_b32 v{T+4}, 3, v{T+4}')
    a(f'v_lshl_add_u32 v{T+5}, v{T+1}, 7, v{T+4}')
    a('s_lshl_b32 s28, s23, 13')
    a('s_add_u32 s28, s28, 16384')
    a(f'v_add_u32 v{T+5}, s28, v{T+5}')
    for nb in range(4):
        a(f'v_xor_b32 v{T+6}, {nb}, v{T+2}')
        a(f'v_lshl_add_u32 v{VB2+nb}, v{T+6}, 5, v{T+5}')
        a(f'v_add_u32 v{24+nb}, 0x10000, v{VB2+nb}')
    ACC2 = 64
    SETS2 = (32, 128)
    for i in range(64):
        a(f'v_mov_b32 v{ACC2+i}, 0')

    def frag_reads(j):
        S = SETS2[j & 1]
        sl = j % 4
        hi = sl >> 1
        so = (sl & 1) * H_SLOT
        out = []
        for mb in range(4):
            out.append(f'ds_read_b128 v[{S+4*mb}:{S+4*mb+3}], v{VA2+hi} offset:{so + mb*2048}')
        for nb in range(4):
            d = S + 16 + 4 * nb
            vb = (24 if hi else VB2) + nb
            for t in range(2):
                out.append(f'ds_read_b64_tr_b16 v[{d+2*t}:{d+2*t+1}], v{vb} offset:{so + t*512}')
        return out

    def mfmas(j):
        S = SETS2[j & 1]
        out = []
        for nb in range(4):
            for mb in range(4):
                c = ACC2 + (mb * 4 + nb) * 4
                out.append(f'v_mfma_f32_16x16x32_bf16 v[{c}:{c+3}], v[{S+16+4*nb}:{S+19+4*nb}], v[{S+4*mb}:{S+4*mb+3}], v[{c}:{c+3}]')
        return out

    a(f's_waitcnt vmcnt({vq.wait_for({0})})')
    a('s_barrier')
    stamp(a, 1)
    for r in frag_reads(0):
        a(r)
    a('s_waitcnt lgkmcnt(0)')
    for j in range(NS):
        if j + 1 < NS:
            a(f's_waitcnt vmcnt({vq.wait_for({j + 1})})')
        a('s_barrier')
        dma = grp(j + 4) if j + 4 < NS else []
        rd = frag_reads(j + 1) if j + 1 < NS else []
        mm = mfmas(j)
        interleave(a, mm, rd, dma, emit_grp, 0, 4)
        a('s_waitcnt lgkmcnt(0)')
    stamp(a, 2)
    a(f'v_lshlrev_b32 v{T}, 4, v{LANE}')
    a('s_and_b32 s28, s20, 3')
    a('s_lshl_b32 s28, s28, 14')
    a('s_xor_b32 s29, s22, 1')
    a('s_lshl_b32 s29, s29, 13')
    a('s_add_u32 s29, s29, s28')
    a(f'v_add_u32 v{T+1}, s29, v{T}')
    a('s_lshl_b32 s29, s22, 13')
    a('s_add_u32 s29, s29, s28')
    a(f'v_add_u32 v{T+2}, s29, v{T}')
    a('s_cmp_eq_u32 s22, 0')
    a('s_cbranch_scc0 g2_ks1')
    for r in range(8):
        a(f'ds_write_b128 v{T+1}, v[{ACC2+32+4*r}:{ACC2+35+4*r}] offset:{r*1024}')
    a('s_branch g2_ksd')
    a('g2_ks1:')
    for r in range(8):
        a(f'ds_write_b128 v{T+1}, v[{ACC2+4*r}:{ACC2+3+4*r}] offset:{r*1024}')
    for r in range(32):
        a(f'v_mov_b32 v{ACC2+r}, v{ACC2+32+r}')
    a('g2_ksd:')
    a('s_waitcnt lgkmcnt(0)')
    a('s_barrier')
    for r in range(8):
        a(f'ds_read_b128 v[{128+4*r}:{131+4*r}], v{T+2} offset:{r*1024}')
    a('s_waitcnt lgkmcnt(0)')
    for r in range(32):
        a(f'v_add_f32 v{ACC2+r}, v{ACC2+r}, v{128+r}')
    a('s_lshl_b32 s28, s21, 1')
    a('s_add_u32 s28, s28, s22')
    a('s_lshl_b32 s67, s28, 7')
    a('s_lshl_b32 s28, s28, 13')
    a(f'v_add_u32 v{T+1}, s28, v{T}')
    a('s_cmp_eq_u32 s23, s33')
    a('s_cbranch_scc1 g2_recv')
    a('s_lshl_b32 s28, s2, 15')
    for r in range(8):
        a(f'buffer_store_dwordx4 v[{ACC2+4*r}:{ACC2+3+4*r}], v{T+1}, s[48:51], s28 offen offset:{r*1024 if r < 4 else (r-4)*1024} sc1' if r < 4 else
          f'buffer_store_dwordx4 v[{ACC2+4*r}:{ACC2+3+4*r}], v{T+1}, s[48:51], s29 offen offset:{(r-4)*1024} sc1')
        if r == 3:
            a('s_add_u32 s29, s28, 4096')
    a('s_waitcnt vmcnt(0)')
    a('s_lshl_b32 s28, s2, 9')
    a('s_add_u32 s28, s28, s67')
    a('v_mov_b32 v1, 1')
    a('v_mov_b32 v2, s28')
    a('s_mov_b64 exec, 1')
    a('buffer_store_dword v1, v2, s[52:55], 0 offen sc1')
    a('s_branch g2_fin')
    a('g2_recv:')
    a('s_lshl_b32 s28, s24, 7')
    a('s_lshl_b32 s29, s21, 6')
    a('s_add_u32 s28, s28, s29')
    a('s_lshl_b32 s29, s22, 5')
    a('s_add_u32 s28, s28, s29')
    a(f'v_add_u32 v{T+2}, s28, v{L16}')
    a(f'v_lshlrev_b32 v{T+2}, 11, v{T+2}')
    a('s_lshl_b32 s29, s23, 7')
    a('s_add_u32 s29, s29, s32')
    a(f'v_lshl_add_u32 v{T+3}, v{G4}, 3, s29')
    a(f'v_add_u32 v{T+2}, v{T+2}, v{T+3}')
    a('s_mov_b32 s34, 32768')
    for e in range(2):
        for nb in range(4):
            so = '0' if e == 0 else 's34'
            a(f'buffer_load_dwordx2 v[{32+8*e+2*nb}:{33+8*e+2*nb}], v{T+2}, s[40:43], {so} offen offset:{nb*32}')
    for nb in range(4):
        a(f'buffer_load_dwordx2 v[{48+2*nb}:{49+2*nb}], v{T+3}, s[36:39], 0 offen offset:{nb*32}')
    a('s_xor_b32 s35, s2, 1')
    a('s_lshl_b32 s28, s35, 9')
    a('s_add_u32 s28, s28, s67')
    a('v_mov_b32 v2, s28')
    a('g2_poll:')
    a('buffer_load_dword v1, v2, s[52:55], 0 offen sc1')
    a('s_waitcnt vmcnt(0)')
    a('v_readfirstlane_b32 s28, v1')
    a('s_nop 3')
    a('s_cmp_eq_u32 s28, 1')
    a('s_cbranch_scc1 g2_ready')
    a('s_sleep 1')
    a('s_branch g2_poll')
    a('g2_ready:')
    a('s_lshl_b32 s28, s35, 15')
    a('s_add_u32 s29, s28, 4096')
    for r in range(8):
        a(f'buffer_load_dwordx4 v[{128+4*r}:{131+4*r}], v{T+1}, s[48:51], s{28 if r < 4 else 29} offen offset:{(r % 4)*1024} sc1')
    a('s_mov_b32 s66, 0xffff0000')
    a('s_waitcnt vmcnt(0)')
    for r in range(32):
        a(f'v_add_f32 v{ACC2+r}, v{ACC2+r}, v{128+r}')
    for e in range(2):
        for nb in range(4):
            for h in range(2):
                r = ACC2 + (e * 4 + nb) * 4 + 2 * h
                xr = 32 + 8 * e + 2 * nb + h
                br = 48 + 2 * nb + h
                a(f'v_lshlrev_b32 v56, 16, v{xr}')
                a(f'v_and_b32 v57, s66, v{xr}')
                a(f'v_lshlrev_b32 v58, 16, v{br}')
                a(f'v_and_b32 v59, s66, v{br}')
                a(f'v_add_f32 v{r}, v{r}, v58')
                a(f'v_add_f32 v{r+1}, v{r+1}, v59')
                a(f'v_add_f32 v{r}, v{r}, v56')
                a(f'v_add_f32 v{r+1}, v{r+1}, v57')
                a(f'v_cvt_pk_bf16_f32 v{160+(e*4+nb)*2+h}, v{r}, v{r+1}')
            o = 160 + (e * 4 + nb) * 2
            so = '0' if e == 0 else 's34'
            a(f'buffer_store_dwordx2 v[{o}:{o+1}], v{T+2}, s[44:47], {so} offen offset:{nb*32}')
    a('g2_fin:')
    stamp(a, 3)
    if OPT('STAMP'):
        a('s_waitcnt vmcnt(0)')
    stamp(a, 4)
    stamp(a, 6, True)
    stamp_flush(a, 7, 1)
    a('g2_exit:')
    a('s_endpgm')
    return descriptor(name, 192, 100)


def gen_gemm2c(a):
    STAMP_REGS[:] = [96, 97, 98, 99, 100, 101, 75]
    name = 'gemm2_kernel'
    if FUSE12:
        a('g12_p2:')
    else:
        kernel_begin(a, name)
        a('s_cmp_ge_u32 s2, 256')
        a('s_cbranch_scc1 g2_exit')
    a('s_load_dwordx2 s[4:5], s[0:1], 88')
    a('s_load_dwordx2 s[6:7], s[0:1], 24')
    a('s_load_dwordx2 s[56:57], s[0:1], 56')
    a('s_load_dwordx2 s[58:59], s[0:1], 64')
    a('s_load_dwordx2 s[60:61], s[0:1], 0')
    a('s_load_dwordx2 s[62:63], s[0:1], 72')
    a('s_load_dwordx2 s[64:65], s[0:1], 80')
    LANE, G4, L16, T = 14, 15, 16, 17
    VA2, VB2, VGA2, VGB2 = 2, 4, 9, 10
    a('v_lshrrev_b32 v1, 6, v0')
    a(f'v_and_b32 v{LANE}, 63, v0')
    a('s_nop 0')
    a('v_readfirstlane_b32 s20, v1')
    a(f'v_lshrrev_b32 v{G4}, 4, v{LANE}')
    a(f'v_and_b32 v{L16}, 15, v{LANE}')
    a('s_nop 1')
    a('s_and_b32 s21, s20, 1')
    a('s_bfe_u32 s23, s20, 0x10001')
    a('s_lshr_b32 s22, s20, 2')
    a('s_and_b32 s26, s2, 7')
    a('s_lshr_b32 s27, s2, 3')
    a('s_and_b32 s33, s26, 1')
    a('s_lshr_b32 s24, s26, 1')
    a('s_lshl_b32 s24, s24, 2')
    a('s_and_b32 s28, s27, 3')
    a('s_add_u32 s24, s24, s28')
    a('s_lshr_b32 s25, s27, 2')
    a('s_lshl_b32 s28, s20, 11')
    a('s_lshl_b32 s29, s24, 7')
    a('s_add_u32 s28, s28, s29')
    a(f'v_add_u32 v{T}, s28, v{LANE}')
    a(f'v_lshlrev_b32 v{VGA2}, 4, v{T}')
    a('s_lshl_b32 s31, s20, 11')
    a('s_lshl_b32 s30, s20, 10')
    a(f'v_lshrrev_b32 v{T}, 3, v{LANE}')
    a(f'v_bfe_u32 v{T+1}, v{LANE}, 4, 1')
    a('s_lshl_b32 s28, s21, 1')
    a(f'v_or_b32 v{T+1}, s28, v{T+1}')
    a(f'v_bfe_u32 v{T+2}, v{LANE}, 1, 2')
    a(f'v_xor_b32 v{T+2}, v{T+2}, v{T+1}')
    a(f'v_and_b32 v{T+3}, 1, v{LANE}')
    a(f'v_lshlrev_b32 v{T+3}, 4, v{T+3}')
    a(f'v_lshl_add_u32 v{T+3}, v{T+2}, 5, v{T+3}')
    a('s_lshl_b32 s28, s20, 3')
    a(f'v_add_u32 v{T}, s28, v{T}')
    a(f'v_lshl_add_u32 v{T}, v{T}, 11, v{T+3}')
    a('s_lshl_b32 s32, s25, 8')
    a(f'v_add_u32 v{VGB2}, s32, v{T}')
    a('s_waitcnt lgkmcnt(0)')
    srd(a, 8, 4, ACT2_SZ, ACT2_OFF)
    a(f's_mul_i32 s28, s33, 0x{1792*2048:x}')
    a('s_add_u32 s12, s56, s28')
    a('s_addc_u32 s13, s57, 0')
    a('s_and_b32 s13, s13, 0xffff')
    a(f's_mov_b32 s14, 0x{1792*2048:x}')
    a('s_mov_b32 s15, 0x00020000')
    a('s_lshl_b32 s28, s33, 20')
    a('s_add_u32 s16, s6, s28')
    a('s_addc_u32 s17, s7, 0')
    a(f's_sub_u32 s16, s16, 0x{1792*2048:x}')
    a('s_subb_u32 s17, s17, 0')
    a('s_and_b32 s17, s17, 0xffff')
    a(f's_mov_b32 s18, 0x{36*131072:x}')
    a('s_mov_b32 s19, 0x00020000')
    a(f's_mul_i32 s68, s33, 0x{224*32768:x}')
    a(f's_add_u32 s68, s68, 0x{128*32768:x}')
    a('s_lshl_b32 s69, s33, 21')
    a(f's_sub_u32 s69, s69, 0x{224*32768:x}')
    vq = VQ()
    NS = 36

    def grp(j):
        sl = j % 4
        out = []
        for q in range(2):
            out.append(([f's_add_u32 m0, s31, 0x{sl*H_SLOT + q*1024:x}',
                         f's_add_u32 s28, s{68 if j < 28 else 69}, 0x{j*8*32768 + q*1024:x}',
                         f'buffer_load_dwordx4 v{VGA2}, s[8:11], s28 offen lds'], j))
        sr = 's[12:15]' if j < 28 else 's[16:19]'
        for q in range(2):
            out.append(([f's_add_u32 m0, s30, 0x{sl*H_SLOT + 16384 + q*8192:x}',
                         f's_mov_b32 s28, 0x{j*64*2048 + q*128:x}',
                         f'buffer_load_dwordx4 v{VGB2}, {sr}, s28 offen lds'], j))
        return out

    def emit_grp(g):
        for l in g[0]:
            a(l)
        vq.push(g[1])

    if FUSE12:
        for j in range(4):
            for g in grp(j)[2:]:
                emit_grp(g)
        srd(a, 36, 4, 4096, CNT_OFF)
        a('s_lshr_b32 s28, s24, 1')
        a('s_lshl_b32 s28, s28, 1')
        a('s_add_u32 s28, s28, s33')
        a('s_lshl_b32 s28, s28, 7')
        a('s_bfe_u32 s29, s2, 0x40001')
        a('s_add_u32 s29, s29, 16')
        a('s_lshl_b32 s29, s29, 7')
        a('v_mov_b32 v31, 0')
        a('g12_poll:')
        a('buffer_load_dword v1, v31, s[36:39], s28 offen sc1')
        a('buffer_load_dword v30, v31, s[36:39], s29 offen sc1')
        a('s_waitcnt vmcnt(0)')
        a('v_min_u32 v1, v1, v30')
        a('s_nop 0')
        a('v_readfirstlane_b32 s34, v1')
        a('s_nop 3')
        a('s_cmp_ge_u32 s34, 8')
        a('s_cbranch_scc1 g12_go')
        a('s_sleep 2')
        a('s_branch g12_poll')
        a('g12_go:')
        for j in range(4):
            for g in grp(j)[:2]:
                emit_grp(g)
    else:
        for j in range(4):
            for g in grp(j):
                emit_grp(g)
    stamp(a, 5, True)
    stamp(a, 0)
    srd(a, 80, 4, KVP_SZ, KVP_OFF)
    srd(a, 84, 4, PHIQ_SZ, PHIQ_OFF)
    a('s_and_b32 s70, s2, 31')
    a('s_lshr_b32 s71, s2, 5')
    a('s_lshl_b32 s28, s21, 12')
    a('s_bfe_u32 s29, s20, 0x10001')
    a('s_lshl_b32 s29, s29, 11')
    a('s_add_u32 s28, s28, s29')
    a(f'v_lshl_add_u32 v{T}, v{LANE}, 4, s28')
    a(f'v_add_u32 v{T+1}, 1024, v{T}')
    a('s_lshl_b32 s29, s21, 7')
    a('s_add_u32 s29, s29, 8192')
    a(f'v_lshl_add_u32 v{T+2}, v{G4}, 4, s29')
    a(f'v_add_u32 v{T+3}, 64, v{T+2}')
    a('s_cmp_lt_u32 s20, 4')
    a('s_cselect_b64 s[34:35], -1, 0')
    a(f'v_cndmask_b32 v{T}, v{T+2}, v{T}, s[34:35]')
    a(f'v_cndmask_b32 v13, v{T+3}, v{T+1}, s[34:35]')
    a('s_cselect_b32 s94, -1, 0x00010001')
    a('s_mov_b32 s95, s94')
    a(f's_mul_i32 s72, s70, {8*KVP_ENT}')
    a(f'v_mov_b32 v11, v{T}')
    ogrp = []
    for mt in range(8):
        ogrp.append(([f's_add_u32 s28, s72, {mt*KVP_ENT}', 's_mov_b64 exec, s[94:95]',
                      f'buffer_load_dwordx4 v[{160+8*mt}:{163+8*mt}], v11, s[80:83], s28 offen', 's_mov_b64 exec, -1'], 'o'))
        ogrp.append(([f's_add_u32 s28, s72, {mt*KVP_ENT}', 's_mov_b64 exec, s[94:95]',
                      f'buffer_load_dwordx4 v[{164+8*mt}:{167+8*mt}], v13, s[80:83], s28 offen', 's_mov_b64 exec, -1'], 'o'))
    a('s_lshl_b32 s28, s71, 8')
    a('s_lshl_b32 s29, s20, 5')
    a('s_add_u32 s28, s28, s29')
    a(f'v_add_u32 v{T+1}, s28, v{L16}')
    a('s_lshl_b32 s28, s71, 4')
    a('s_lshl_b32 s29, s20, 1')
    a('s_add_u32 s28, s28, s29')
    a('s_lshl_b32 s28, s28, 10')
    a('s_lshl_b32 s29, s70, 17')
    a('s_add_u32 s28, s28, s29')
    a(f'v_lshl_add_u32 v12, v{LANE}, 4, s28')
    a('s_lshl_b32 s28, s70, 11')
    a('s_add_u32 s28, s28, 0x400000')
    a(f'v_lshl_add_u32 v27, v{LANE}, 4, s28')
    for mb in range(2):
        ogrp.append(([f'buffer_load_dwordx4 v[{224+4*mb}:{227+4*mb}], v12, s[84:87], 0 offen offset:{mb*1024}'], 'oq'))
    for fb in range(2):
        ogrp.append(([f'buffer_load_dwordx4 v[{232+4*fb}:{235+4*fb}], v27, s[84:87], 0 offen offset:{fb*1024}'], 'oq'))
    a('s_lshl_b32 s28, s71, 8')
    a('s_lshl_b32 s29, s20, 5')
    a('s_add_u32 s28, s28, s29')
    a('s_lshl_b32 s29, s70, 13')
    a('s_add_u32 s28, s28, s29')
    a(f'v_add_u32 v28, s28, v{L16}')
    a(f'v_and_b32 v{T+3}, 1, v{G4}')
    a(f'v_lshl_add_u32 v28, v{T+3}, 4, v28')
    a(f'v_lshrrev_b32 v{T+3}, 1, v{G4}')
    a(f'v_lshl_add_u32 v28, v{T+3}, 11, v28')
    a('v_lshlrev_b32 v28, 4, v28')
    a(f'v_lshlrev_b32 v29, 4, v{LANE}')
    a(f'v_add_u32 v29, 0x{H_LDS:x}, v29')
    a('v_add_u32 v30, s30, v29')
    a(f'v_lshlrev_b32 v26, 8, v{G4}')
    a(f'v_add_u32 v26, 0x{H_LDS:x}, v26')

    def o_phase0(a):
        a.mark('vmwait')
        for mt in range(1, 8):
            for i in range(8):
                a(f'v_add_f32 v{160+i}, v{160+i}, v{160+8*mt+i}')
        for i in range(4):
            a(f'v_cvt_pk_bf16_f32 v{168+i}, v{160+2*i}, v{161+2*i}')
        a('s_mov_b64 exec, s[94:95]\nds_write_b128 v30, v[168:171]\ns_mov_b64 exec, -1')

    def o_phase1(a):
        a.mark('vmwait')
        PQ = 172
        for mb in range(2):
            for fb in range(2):
                d = PQ + (mb * 2 + fb) * 4
                a(f'v_mfma_f32_16x16x32_bf16 v[{d}:{d+3}], v[{232+4*fb}:{235+4*fb}], v[{224+4*mb}:{227+4*mb}], 0')
        a('s_mov_b32 s66, 0xffff0000')
        a(f's_mov_b32 s76, 0x{LOG2E:x}')
        for i in range(0, 16, 2):
            r = PQ + i
            a(f'v_cvt_pk_bf16_f32 v{160+(i>>1)}, v{r}, v{r+1}')
            a(f'v_lshlrev_b32 v{r}, 16, v{160+(i>>1)}')
            a(f'v_and_b32 v{r+1}, s66, v{160+(i>>1)}')
        MX, MN, S1, S2, E = 160, 162, 164, 166, 188
        for mb in range(2):
            p = PQ + mb * 8
            a(f'v_max3_f32 v{MX+mb}, v{p}, v{p+1}, v{p+2}')
            a(f'v_min3_f32 v{MN+mb}, v{p}, v{p+1}, v{p+2}')
            a(f'v_max3_f32 v{MX+mb}, v{MX+mb}, v{p+3}, v{p+4}')
            a(f'v_min3_f32 v{MN+mb}, v{MN+mb}, v{p+3}, v{p+4}')
            a(f'v_max3_f32 v{MX+mb}, v{MX+mb}, v{p+5}, v{p+6}')
            a(f'v_min3_f32 v{MN+mb}, v{MN+mb}, v{p+5}, v{p+6}')
            a(f'v_max_f32 v{MX+mb}, v{MX+mb}, v{p+7}')
            a(f'v_min_f32 v{MN+mb}, v{MN+mb}, v{p+7}')
        for mb in range(2):
            cross_groups(a, 'v_max_f32', MX + mb, 220)
            cross_groups(a, 'v_min_f32', MN + mb, 221)
        for mb in range(2):
            a(f'v_mul_f32 v{MX+mb}, s76, v{MX+mb}')
            a(f'v_mul_f32 v{MN+mb}, s76, v{MN+mb}')
        for mb in range(2):
            p = PQ + mb * 8
            e = E + mb * 16
            for i in range(8):
                a(f'v_fma_f32 v{e+i}, v{p+i}, s76, -v{MX+mb}')
                a(f'v_fma_f32 v{e+8+i}, -v{p+i}, s76, v{MN+mb}')
        for i in range(32):
            a(f'v_exp_f32 v{E+i}, v{E+i}')
        for mb in range(2):
            e = E + mb * 16
            for (S, b) in ((S1, e), (S2, e + 8)):
                a(f'v_add_f32 v{S+mb}, v{b}, v{b+1}')
                for i in range(2, 8):
                    a(f'v_add_f32 v{S+mb}, v{S+mb}, v{b+i}')
        for mb in range(2):
            cross_groups(a, 'v_add_f32', S1 + mb, 220)
            cross_groups(a, 'v_add_f32', S2 + mb, 221)
        for mb in range(2):
            a(f'v_rcp_f32 v{S1+mb}, v{S1+mb}')
            a(f'v_rcp_f32 v{S2+mb}, v{S2+mb}')
        for mb in range(2):
            e = E + mb * 16
            for i in range(8):
                a(f'v_mul_f32 v{e+i}, v{e+i}, v{S1+mb}')
                a(f'v_mul_f32 v{e+8+i}, v{e+8+i}, v{S2+mb}')
        for mb in range(2):
            for i in range(8):
                a(f'v_cvt_pk_bf16_f32 v{224+8*mb+i}, v{E+16*mb+2*i}, v{E+16*mb+2*i+1}')

    def o_phase2(a):
        KF0, NUM, DEN = 160, 184, 200
        for i in range(6):
            a(f'ds_read_b128 v[{KF0+4*i}:{KF0+3+4*i}], v{29 if i < 4 else 26} offset:{i*1024}')
        a('s_waitcnt lgkmcnt(0)')
        for ks in range(2):
            for mb in range(2):
                pf = 224 + (mb * 2 + ks) * 4
                for db in range(2):
                    d = NUM + (mb * 2 + db) * 4
                    kf = KF0 + (ks * 2 + db) * 4
                    cc = '0' if ks == 0 else f'v[{d}:{d+3}]'
                    a(f'v_mfma_f32_16x16x32_bf16 v[{d}:{d+3}], v[{kf}:{kf+3}], v[{pf}:{pf+3}], {cc}')
                d = DEN + mb * 4
                zf = KF0 + (4 + ks) * 4
                cc = '0' if ks == 0 else f'v[{d}:{d+3}]'
                a(f'v_mfma_f32_16x16x32_bf16 v[{d}:{d+3}], v[{zf}:{zf+3}], v[{pf}:{pf+3}], {cc}')
        a('s_mov_b32 s66, 0xffff0000')
        a(f's_mov_b32 s73, {2*32768}')
        for mb in range(2):
            dn = DEN + mb * 4
            round_bf16(a, dn, dn)
            a(f'v_add_f32 v{dn}, 0x{f2u(1e-6):x}, v{dn}')
            round_bf16(a, dn, dn)
            a(f'v_rcp_f32 v{dn+1}, v{dn}')
            for db in range(2):
                n = NUM + (mb * 2 + db) * 4
                for h in range(2):
                    a(f'v_cvt_pk_bf16_f32 v{208+h}, v{n+2*h}, v{n+2*h+1}')
                    a(f'v_lshlrev_b32 v{n+2*h}, 16, v{208+h}')
                    a(f'v_and_b32 v{n+2*h+1}, s66, v{208+h}')
                for i in range(4):
                    a(f'v_mul_f32 v{212+i}, v{n+i}, v{dn+1}')
                for i in range(4):
                    a(f'v_fma_f32 v{n+i}, -v{212+i}, v{dn}, v{n+i}')
                for i in range(4):
                    a(f'v_fmac_f32 v{212+i}, v{n+i}, v{dn+1}')
                o = 216 + db * 4 + mb * 2
                a(f'v_cvt_pk_bf16_f32 v{o}, v212, v213')
                a(f'v_cvt_pk_bf16_f32 v{o+1}, v214, v215')
        for db in range(2):
            o = 216 + db * 4
            a(f'v_permlane16_swap_b32 v{o}, v{o+2}')
            a(f'v_permlane16_swap_b32 v{o+1}, v{o+3}')
            a(f'buffer_store_dwordx4 v[{o}:{o+3}], v28, s[8:11], {"0" if db == 0 else "s73"} offen sc1')
            a.mark('os')

    class Collector:
        def __init__(self):
            self.items = []

        def __call__(self, text):
            self.items.append(text)

        def mark(self, m):
            self.items.append((m,))

    def emit_item(it):
        if isinstance(it, tuple):
            if it[0] == 'vmwait':
                a(f's_waitcnt vmcnt({vq.wait_for({"o", "oq"})})')
            else:
                vq.push('os')
        else:
            a(it)

    oc0 = Collector(); o_phase0(oc0)
    oc1 = Collector(); o_phase1(oc1)
    oc2 = Collector(); o_phase2(oc2)

    srd(a, 88, 4, 1024, OFLAG_OFF)
    srd(a, 36, 58, 2048)
    srd(a, 40, 60, XN_SZ)
    srd(a, 44, 62, XN_SZ)
    srd(a, 48, 4, X_SZ, X_OFF)
    srd(a, 52, 4, FLAG_SZ, FLAG_OFF)
    a('s_lshl_b32 s28, s22, 2')
    a(f'v_add_u32 v{T}, s28, v{G4}')
    a(f'v_lshlrev_b32 v{T}, 11, v{T}')
    a(f'v_lshl_add_u32 v{T}, v{L16}, 4, v{T}')
    a('s_lshl_b32 s28, s21, 10')
    a(f'v_add_u32 v{VA2}, s28, v{T}')
    a(f'v_add_u32 v{VA2+1}, 0x10000, v{VA2}')
    a(f'v_lshrrev_b32 v{T}, 2, v{L16}')
    a(f'v_lshl_add_u32 v{T+1}, v{G4}, 3, v{T}')
    a('s_lshl_b32 s28, s22, 5')
    a(f'v_add_u32 v{T+1}, s28, v{T+1}')
    a(f'v_lshrrev_b32 v{T+2}, 1, v{T}')
    a(f'v_and_b32 v{T+3}, 1, v{G4}')
    a(f'v_lshl_or_b32 v{T+2}, v{T+3}, 1, v{T+2}')
    a(f'v_and_b32 v{T+4}, 3, v{LANE}')
    a(f'v_lshlrev_b32 v{T+4}, 3, v{T+4}')
    a(f'v_lshl_add_u32 v{T+5}, v{T+1}, 7, v{T+4}')
    a('s_lshl_b32 s28, s23, 13')
    a('s_add_u32 s28, s28, 16384')
    a(f'v_add_u32 v{T+5}, s28, v{T+5}')
    for nb in range(4):
        a(f'v_xor_b32 v{T+6}, {nb}, v{T+2}')
        a(f'v_lshl_add_u32 v{VB2+nb}, v{T+6}, 5, v{T+5}')
        a(f'v_add_u32 v{240+nb}, 0x10000, v{VB2+nb}')
    ACC2 = 64
    SETS2 = (32, 128)
    for i in range(64):
        a(f'v_mov_b32 v{ACC2+i}, 0')

    def frag_reads(j):
        S = SETS2[j & 1]
        sl = j % 4
        hi = sl >> 1
        so = (sl & 1) * H_SLOT
        out = []
        for mb in range(4):
            out.append(f'ds_read_b128 v[{S+4*mb}:{S+4*mb+3}], v{VA2+hi} offset:{so + mb*256}')
        for nb in range(4):
            d = S + 16 + 4 * nb
            vb = (240 if hi else VB2) + nb
            for t in range(2):
                out.append(f'ds_read_b64_tr_b16 v[{d+2*t}:{d+2*t+1}], v{vb} offset:{so + t*512}')
        return out

    def mfmas(j):
        S = SETS2[j & 1]
        out = []
        for nb in range(4):
            for mb in range(4):
                c = ACC2 + (mb * 4 + nb) * 4
                out.append(f'v_mfma_f32_16x16x32_bf16 v[{c}:{c+3}], v[{S+16+4*nb}:{S+19+4*nb}], v[{S+4*mb}:{S+4*mb+3}], v[{c}:{c+3}]')
        return out

    if OPT('PRIO'):
        a('s_cmp_ge_u32 s20, 4')
        a('s_cbranch_scc0 g2_prio')
        a('s_setprio 1 ; @skip')
        a('g2_prio:')
    a(f's_waitcnt vmcnt({vq.wait_for({0})})')
    a('s_barrier')
    stamp(a, 1)
    for r in frag_reads(0):
        a(r)
    a('s_waitcnt lgkmcnt(0)')
    for j in range(NS):
        if j + 1 < NS:
            a(f's_waitcnt vmcnt({vq.wait_for({j + 1})})')
        a('s_barrier')
        if OPT('STAMP_IT'):
            its = [int(x) for x in OPT('STAMP_IT').split(',')]
            if j in its:
                stamp(a, 2 + its.index(j))
        OJ = int(OPT('OJ', '0'))
        OP0, OP1, OP2, OPE, OFL = 6, 8, 16, 18, 22
        if j == OFL:
            a('s_cmp_lg_u32 s20, 0')
            a('s_cbranch_scc1 g2_noflag')
            a('s_lshl_b32 s28, s2, 2 ; @skip')
            a('v_mov_b32 v1, 1 ; @skip')
            a('v_mov_b32 v31, s28 ; @skip')
            a('s_mov_b64 exec, 1 ; @skip')
            a('buffer_store_dword v1, v31, s[88:91], 0 offen sc1 ; @skip')
            a('s_mov_b64 exec, -1 ; @skip')
            a('g2_noflag:')
        if j == 24:
            if OPT('STAMP2') and not OPT('STAMP3') and not OPT('STAMP_IT'):
                stamp(a, 2)
            a('s_lshr_b32 s28, s24, 1')
            a('s_lshl_b32 s28, s28, 7')
            a(f'v_and_b32 v31, 31, v{LANE}')
            a('v_lshlrev_b32 v31, 2, v31')
            a('g2_opoll:')
            a('buffer_load_dword v1, v31, s[88:91], s28 offen sc1')
            a('s_waitcnt vmcnt(0)')
            a('v_cmp_ne_u32 vcc, 1, v1')
            a('s_nop 3')
            a('s_cmp_eq_u64 vcc, 0')
            a('s_cbranch_scc1 g2_opolled')
            a('s_sleep 1')
            a('s_branch g2_opoll')
            a('g2_opolled:')
            if OPT('STAMP2') and not OPT('STAMP3') and not OPT('STAMP_IT'):
                stamp(a, 3)
        dma = grp(j + 4) if j + 4 < NS else []
        if j < 4:
            dma += ogrp[4 * j:4 * j + 4]
        if j == 4:
            dma += ogrp[16:]
        rd = frag_reads(j + 1) if j + 1 < NS else []
        mm = mfmas(j)
        src = oc0.items if OP0 <= j < OP1 else oc1.items if OP1 <= j < OP2 else (oc2.items if OP2 <= j <= OPE else None)
        if src:
            left = (OP1 - j) if j < OP1 else (OP2 - j) if j < OP2 else (OPE + 1 - j)
            share = -(-len(src) // left)
            chunk = -(-share // len(mm))
            fill = [src[:share][k:k + chunk] for k in range(0, share, chunk)]
            del src[:share]
            rd2 = list(rd); dm2 = list(dma)
            for idx, m in enumerate(mm):
                a(m)
                if dm2 and idx % 4 == 0:
                    emit_grp(dm2.pop(0))
                elif rd2:
                    a(rd2.pop(0))
                if fill:
                    for it in fill.pop(0):
                        emit_item(it)
            for r in rd2:
                a(r)
            for gg in dm2:
                emit_grp(gg)
            for f in fill:
                for it in f:
                    emit_item(it)
        else:
            interleave(a, mm, rd, dma, emit_grp, 0, 4 if j > 4 else 2)
        a('s_waitcnt lgkmcnt(0)')
    stamp(a, 4 if OPT('STAMP2') else 2)
    a(f'v_lshlrev_b32 v{T}, 4, v{LANE}')
    a('s_and_b32 s28, s20, 3')
    a('s_lshl_b32 s28, s28, 14')
    a('s_xor_b32 s29, s22, 1')
    a('s_lshl_b32 s29, s29, 13')
    a('s_add_u32 s29, s29, s28')
    a(f'v_add_u32 v{T+1}, s29, v{T}')
    a('s_lshl_b32 s29, s22, 13')
    a('s_add_u32 s29, s29, s28')
    a(f'v_add_u32 v{T+2}, s29, v{T}')
    a('s_cmp_eq_u32 s22, 0')
    a('s_cbranch_scc0 g2_ks1')
    for r in range(8):
        a(f'ds_write_b128 v{T+1}, v[{ACC2+32+4*r}:{ACC2+35+4*r}] offset:{r*1024}')
    a('s_branch g2_ksd')
    a('g2_ks1:')
    for r in range(8):
        a(f'ds_write_b128 v{T+1}, v[{ACC2+4*r}:{ACC2+3+4*r}] offset:{r*1024}')
    for r in range(32):
        a(f'v_mov_b32 v{ACC2+r}, v{ACC2+32+r}')
    a('g2_ksd:')
    a('s_waitcnt lgkmcnt(0)')
    a('s_barrier')
    for r in range(8):
        a(f'ds_read_b128 v[{128+4*r}:{131+4*r}], v{T+2} offset:{r*1024}')
    a('s_waitcnt lgkmcnt(0)')
    for r in range(32):
        a(f'v_add_f32 v{ACC2+r}, v{ACC2+r}, v{128+r}')
    a('s_lshl_b32 s28, s21, 1')
    a('s_add_u32 s28, s28, s22')
    a('s_lshl_b32 s67, s28, 7')
    a('s_lshl_b32 s28, s28, 13')
    a(f'v_add_u32 v{T+1}, s28, v{T}')
    a('s_cmp_eq_u32 s23, s33')
    a('s_cbranch_scc1 g2_recv')
    a('s_lshl_b32 s28, s2, 15')
    for r in range(8):
        a(f'buffer_store_dwordx4 v[{ACC2+4*r}:{ACC2+3+4*r}], v{T+1}, s[48:51], s28 offen offset:{r*1024 if r < 4 else (r-4)*1024} sc1' if r < 4 else
          f'buffer_store_dwordx4 v[{ACC2+4*r}:{ACC2+3+4*r}], v{T+1}, s[48:51], s29 offen offset:{(r-4)*1024} sc1')
        if r == 3:
            a('s_add_u32 s29, s28, 4096')
    a('s_waitcnt vmcnt(0)')
    a('s_lshl_b32 s28, s2, 9')
    a('s_add_u32 s28, s28, s67')
    a('v_mov_b32 v1, 1')
    a('v_mov_b32 v2, s28')
    a('s_mov_b64 exec, 1')
    a('buffer_store_dword v1, v2, s[52:55], 0 offen sc1')
    a('s_branch g2_fin')
    a('g2_recv:')
    a(f'v_lshrrev_b32 v{T+2}, 3, v{LANE}')
    a(f'v_and_b32 v{T+3}, 7, v{LANE}')
    a('s_lshl_b32 s28, s24, 7')
    a('s_lshl_b32 s29, s21, 6')
    a('s_add_u32 s28, s28, s29')
    a('s_lshl_b32 s29, s22, 5')
    a('s_add_u32 s28, s28, s29')
    a(f'v_add_u32 v{T+4}, s28, v{T+2}')
    a(f'v_lshlrev_b32 v{T+4}, 11, v{T+4}')
    a('s_lshl_b32 s29, s23, 7')
    a('s_add_u32 s29, s29, s32')
    a(f'v_lshl_add_u32 v{T+5}, v{T+3}, 4, s29')
    a(f'v_add_u32 v{T+4}, v{T+4}, v{T+5}')
    for i in range(4):
        a(f's_mov_b32 s34, {i*16384}')
        a(f'buffer_load_dwordx4 v[{32+4*i}:{35+4*i}], v{T+4}, s[40:43], s34 offen')
    a(f'buffer_load_dwordx4 v[48:51], v{T+5}, s[36:39], 0 offen')
    a('s_mul_i32 s28, s20, 8704')
    a('s_add_u32 s28, s28, 65536')
    a(f'v_mul_u32_u24 v{T+6}, 272, v{L16}')
    a(f'v_lshl_add_u32 v{T+6}, v{G4}, 4, v{T+6}')
    a(f'v_add_u32 v{T+6}, s28, v{T+6}')
    a(f'v_mul_u32_u24 v{T+2}, 272, v{T+2}')
    a(f'v_lshl_add_u32 v{T+2}, v{T+3}, 5, v{T+2}')
    a(f'v_add_u32 v{T+2}, s28, v{T+2}')
    a('s_xor_b32 s35, s2, 1')
    a('s_lshl_b32 s28, s35, 9')
    a('s_add_u32 s28, s28, s67')
    a('v_mov_b32 v2, s28')
    a('g2_poll:')
    a('buffer_load_dword v1, v2, s[52:55], 0 offen sc1')
    a('s_waitcnt vmcnt(0)')
    a('v_readfirstlane_b32 s28, v1')
    a('s_nop 3')
    a('s_cmp_eq_u32 s28, 1')
    a('s_cbranch_scc1 g2_ready')
    a('s_sleep 1')
    a('s_branch g2_poll')
    a('g2_ready:')
    a('s_lshl_b32 s28, s35, 15')
    a('s_add_u32 s29, s28, 4096')
    for r in range(8):
        a(f'buffer_load_dwordx4 v[{128+4*r}:{131+4*r}], v{T+1}, s[48:51], s{28 if r < 4 else 29} offen offset:{(r % 4)*1024} sc1')
    a('s_mov_b32 s66, 0xffff0000')
    a('s_waitcnt vmcnt(0)')
    for r in range(32):
        a(f'v_add_f32 v{ACC2+r}, v{ACC2+r}, v{128+r}')
    for e in range(2):
        for nb in range(4):
            r = ACC2 + (e * 4 + nb) * 4
            a(f'ds_write_b128 v{T+6}, v[{r}:{r+3}] offset:{e*4352 + nb*64}')
    for h in range(4):
        a(f'v_lshlrev_b32 v{52+2*h}, 16, v{48+h}')
        a(f'v_and_b32 v{53+2*h}, s66, v{48+h}')
    a('s_waitcnt lgkmcnt(0)')
    for i in range(4):
        a(f'ds_read_b128 v[{128+8*i}:{131+8*i}], v{T+2} offset:{i*2176}')
        a(f'ds_read_b128 v[{132+8*i}:{135+8*i}], v{T+2} offset:{i*2176 + 16}')
    for i in range(4):
        a(f's_waitcnt lgkmcnt({6-2*i})')
        for h in range(4):
            r = 128 + 8 * i + 2 * h
            a(f'v_lshlrev_b32 v60, 16, v{32+4*i+h}')
            a(f'v_and_b32 v61, s66, v{32+4*i+h}')
            a(f'v_add_f32 v{r}, v{r}, v{52+2*h}')
            a(f'v_add_f32 v{r+1}, v{r+1}, v{53+2*h}')
            a(f'v_add_f32 v{r}, v{r}, v60')
            a(f'v_add_f32 v{r+1}, v{r+1}, v61')
            a(f'v_cvt_pk_bf16_f32 v{160+4*i+h}, v{r}, v{r+1}')
        a(f's_mov_b32 s34, {i*16384}')
        a(f'buffer_store_dwordx4 v[{160+4*i}:{163+4*i}], v{T+4}, s[44:47], s34 offen')
    a('g2_fin:')
    if not OPT('STAMP2'):
        stamp(a, 3)
        if OPT('STAMP'):
            a('s_waitcnt vmcnt(0)')
        stamp(a, 4)
    stamp(a, 6, True)
    stamp_flush(a, 7, 1)
    a('g2_exit:')
    a('s_endpgm')
    return '' if FUSE12 else descriptor(name, 256, 102 if OPT('STAMP') else 96)


def main():
    a = Asm()
    descs = []
    descs.append(gen_ln(a))
    descs.append(gen_gemm1(a))
    fused = not OPT('SEP_O')
    if not fused:
        descs.append(gen_o(a))
    descs.append(gen_gemm2c(a) if fused else gen_gemm2b(a))
    head = open('cdna_kernels/%s.s.ref' % NAME).read().split('; @launch')[0]
    out = head
    out += '; @launch kernel=ln_kernel grid=(512,1,1) block=(256,1,1) lds=0\n'
    out += f'; @launch kernel=gemm1_kernel grid=(256,1,1) block=(512,1,1) lds={G1_LDS}\n'
    if not fused:
        out += '; @launch kernel=attn_o_kernel grid=(256,1,1) block=(256,1,1) lds=8192\n'
    if not FUSE12:
        out += f'; @launch kernel=gemm2_kernel grid=(256,1,1) block=(512,1,1) lds={H_LDS + 8192}\n'
    out += '.amdgcn_target "amdgcn-amd-amdhsa--gfx950"\n.text\n'
    out += a.finalize()
    out += '.section .rodata,"a"\n'
    for d in descs:
        if d:
            out += '.p2align 6\n' + d
    path = sys.argv[1] if len(sys.argv) > 1 else 'cdna_kernels/%s.s' % NAME
    open(path, 'w').write(out)
    print('wrote', path, len(out))


if __name__ == '__main__':
    main()
```

```python
import sys, os
from asmlib import Asm
OPT = lambda k, d='': os.environ.get(k, d)

NAME = 'parallel_sum__linear_kernel_hedgehog__dense_activation_gelu__prompt'
XN_OFF = 0
XN_SZ = 2048 * 1024 * 2
ACT2_OFF = 0x400000
ACT2_SZ = 2048 * 4608 * 2
PHIQ_OFF = 0x1600000
PHIQ_SZ = 2048 * 2048 * 2
KVP_OFF = 0x1E00000
KVP_ENT = 8448
KVP_SZ = 8 * 32 * KVP_ENT

LOG2E = 0x3fb8aa3b
FUSE12 = not OPT('NOFUSE12')
FLAG_OFF = 0x2A00000
OFLAG_OFF = 0x2B00000
CNT_OFF = 0x2C00000


def f2u(x):
    import struct
    return struct.unpack('<I', struct.pack('<f', x))[0]


def srd(a, d, base, size, off=0):
    if off:
        a(f's_add_u32 s{d}, s{base}, 0x{off:x}')
        a(f's_addc_u32 s{d+1}, s{base+1}, 0')
    else:
        a(f's_mov_b32 s{d}, s{base}')
        a(f's_mov_b32 s{d+1}, s{base+1}')
    a(f's_and_b32 s{d+1}, s{d+1}, 0xffff')
    a(f's_mov_b32 s{d+2}, 0x{size:x}')
    a(f's_mov_b32 s{d+3}, 0x00020000')


STAMP_OFF = 0x3000000
STAMP_REGS = [80, 81, 82, 83, 84, 85, 86]


def stamp(a, idx, real=False):
    if not OPT('STAMP'):
        return
    if OPT('STAMPB') and STAMP_REGS[0] == 80:
        return
    a('s_memrealtime s[78:79]' if real else 's_memtime s[78:79]')
    a('s_waitcnt lgkmcnt(0)')
    a(f's_mov_b32 s{STAMP_REGS[idx]}, s78')


def stamp_flush(a, n, kern):
    if not OPT('STAMP'):
        return
    if OPT('STAMPB') and kern == 0:
        return
    a('s_mov_b64 exec, -1')
    srd(a, 92, 4, 0x1000000, STAMP_OFF + kern * 0x40000)
    a('s_lshl_b32 s78, s2, 3')
    a('s_add_u32 s78, s78, s20')
    a('s_lshl_b32 s78, s78, 6')
    a('v_mov_b32 v1, 0')
    for i in range(n):
        a(f'v_mov_b32 v2, s{STAMP_REGS[i]}')
        a(f'buffer_store_dword v2, v1, s[92:95], s78 offen offset:{4*i}')


def kernel_begin(a, name):
    a.raw(f'.globl {name}')
    a.raw('.p2align 8')
    a.raw(f'.type {name},@function')
    a.raw(f'{name}:')


def descriptor(name, vgpr, sgpr=96):
    acc = (vgpr + 3) // 4 * 4
    return f'''.amdhsa_kernel {name}
  .amdhsa_next_free_vgpr {vgpr}
  .amdhsa_next_free_sgpr {sgpr}
  .amdhsa_accum_offset {acc}
  .amdhsa_group_segment_fixed_size 0
  .amdhsa_kernarg_size 96
  .amdhsa_user_sgpr_count 2
  .amdhsa_user_sgpr_kernarg_segment_ptr 1
  .amdhsa_system_sgpr_workgroup_id_x 1
.end_amdhsa_kernel
'''


def allreduce16(a, op, v, tmp):
    for r in (8, 4, 2, 1):
        a(f'{op}_dpp v{tmp}, v{v}, v{v} row_ror:{r} row_mask:0xf bank_mask:0xf')
        v, tmp = tmp, v
    return v


def cross_groups(a, op, v, t):
    a(f'v_mov_b32 v{t}, v{v}')
    a(f'v_permlane32_swap_b32 v{v}, v{t}')
    a(f'{op} v{v}, v{v}, v{t}')
    a(f'v_mov_b32 v{t}, v{v}')
    a(f'v_permlane16_swap_b32 v{v}, v{t}')
    a(f'{op} v{v}, v{v}, v{t}')


def round_bf16(a, d, s):
    a(f'v_cvt_pk_bf16_f32 v{d}, v{s}, v{s}')
    a(f'v_lshlrev_b32 v{d}, 16, v{d}')


def gen_ln(a):
    name = 'ln_kernel'
    kernel_begin(a, name)
    a('s_cmp_ge_u32 s2, 512')
    a('s_cbranch_scc1 ln_done')
    a('s_load_dwordx2 s[4:5], s[0:1], 0')
    a('s_load_dwordx2 s[6:7], s[0:1], 88')
    a('s_load_dwordx2 s[24:25], s[0:1], 8')
    a('s_load_dwordx2 s[26:27], s[0:1], 40')
    a('v_lshrrev_b32 v1, 6, v0')
    a('v_and_b32 v2, 63, v0')
    a('s_lshl_b32 s3, s2, 2')
    a('v_add_u32 v1, s3, v1')
    a('v_lshlrev_b32 v3, 10, v1')
    a('v_lshl_add_u32 v3, v2, 4, v3')
    a('v_lshlrev_b32 v1, 11, v1')
    a('v_lshl_add_u32 v1, v2, 4, v1')
    a('s_waitcnt lgkmcnt(0)')
    srd(a, 8, 4, XN_SZ)
    srd(a, 12, 6, XN_SZ, XN_OFF)
    a('buffer_load_dwordx4 v[4:7], v1, s[8:11], 0 offen')
    a('buffer_load_dwordx4 v[8:11], v1, s[8:11], 0 offen offset:1024')
    if FUSE12:
        srd(a, 36, 6, 0x300000, FLAG_OFF)
        a('s_cmp_ge_u32 s2, 256')
        a('s_cbranch_scc1 ln_noz')
        a('v_mov_b32 v61, 0')
        a('v_lshlrev_b32 v60, 7, v0')
        a('s_lshl_b32 s17, s2, 9')
        a('v_cmp_gt_u32 vcc, 4, v0')
        a('s_and_saveexec_b64 s[18:19], vcc')
        a('buffer_store_dword v61, v60, s[36:39], s17 offen')
        a('s_mov_b64 exec, s[18:19]')
        a('s_lshl_b32 s17, s2, 2')
        a(f's_add_u32 s17, s17, 0x{OFLAG_OFF - FLAG_OFF:x}')
        a('s_and_b32 s20, s2, 31')
        a('s_lshl_b32 s20, s20, 7')
        a(f's_add_u32 s20, s20, 0x{CNT_OFF - FLAG_OFF:x}')
        a('v_cmp_eq_u32 vcc, 0, v0')
        a('s_and_saveexec_b64 s[18:19], vcc')
        a('buffer_store_dword v61, v61, s[36:39], s17 offen')
        a('buffer_store_dword v61, v61, s[36:39], s20 offen')
        a('s_mov_b64 exec, s[18:19]')
        a('ln_noz:')
    npf = 0
    if OPT('LNPF'):
        srd(a, 28, 24, 1024 * 3072 * 2)
        srd(a, 32, 26, 1024 * 3584 * 2)
        for i in range(int(OPT('LNPF'))):
            a(f's_mov_b32 s17, {i << 21}')
            if i < 3:
                a(f'buffer_load_dwordx4 v[64:67], v3, s[28:31], s17 offen')
                npf += 1
            a(f'buffer_load_dwordx4 v[68:71], v3, s[32:35], s17 offen')
            npf += 1
    a('s_mov_b32 s16, 0xffff0000')
    a(f's_waitcnt vmcnt({0 if FUSE12 else npf})')
    for i in range(8):
        a(f'v_lshlrev_b32 v{16+2*i}, 16, v{4+i}')
        a(f'v_and_b32 v{17+2*i}, s16, v{4+i}')
    for i in range(8):
        a(f'v_add_f32 v{32+i}, v{16+2*i}, v{17+2*i}')
    for i in range(4):
        a(f'v_add_f32 v{32+i}, v{32+2*i}, v{33+2*i}')
    a('v_add_f32 v32, v32, v33')
    a('v_add_f32 v34, v34, v35')
    a('v_add_f32 v32, v32, v34')
    r = allreduce16(a, 'v_add_f32', 32, 33)
    cross_groups(a, 'v_add_f32', r, 34)
    a(f'v_mul_f32 v40, 0x{f2u(1.0/1024):x}, v{r}')
    for i in range(16):
        a(f'v_sub_f32 v{44+i}, v{16+i}, v40')
    a('v_mul_f32 v32, v44, v44')
    a('v_mul_f32 v33, v45, v45')
    for i in range(2, 16, 2):
        a(f'v_fmac_f32 v32, v{44+i}, v{44+i}')
        a(f'v_fmac_f32 v33, v{45+i}, v{45+i}')
    a('v_add_f32 v32, v32, v33')
    r = allreduce16(a, 'v_add_f32', 32, 33)
    cross_groups(a, 'v_add_f32', r, 34)
    a(f'v_mul_f32 v41, 0x{f2u(1.0/1024):x}, v{r}')
    round_bf16(a, 40, 40)
    round_bf16(a, 41, 41)
    a(f'v_add_f32 v41, 0x{f2u(1e-5):x}, v41')
    round_bf16(a, 41, 41)
    a('v_sqrt_f32 v41, v41')
    round_bf16(a, 41, 41)
    a('v_rcp_f32 v42, v41')
    for i in range(0, 16, 2):
        a(f'v_sub_f32 v{16+i}, v{16+i}, v40')
        a(f'v_sub_f32 v{17+i}, v{17+i}, v40')
        a(f'v_cvt_pk_bf16_f32 v{44+i}, v{16+i}, v{17+i}')
        a(f'v_lshlrev_b32 v{16+i}, 16, v{44+i}')
        a(f'v_and_b32 v{17+i}, s16, v{44+i}')
    for i in range(16):
        a(f'v_mul_f32 v{44+i}, v{16+i}, v42')
    for i in range(16):
        a(f'v_fma_f32 v{16+i}, -v{44+i}, v41, v{16+i}')
    for i in range(16):
        a(f'v_fmac_f32 v{44+i}, v{16+i}, v42')
    for i in range(8):
        a(f'v_cvt_pk_bf16_f32 v{4+i}, v{44+2*i}, v{45+2*i}')
    a('buffer_store_dwordx4 v[4:7], v1, s[12:15], 0 offen' + OPT('LN_POL'))
    a('buffer_store_dwordx4 v[8:11], v1, s[12:15], 0 offen offset:1024' + OPT('LN_POL'))
    a('ln_done:')
    a('s_endpgm')
    return descriptor(name, 72, 40)


class VQ:
    def __init__(self):
        self.q = []

    def push(self, tag):
        self.q.append(tag)

    def wait_for(self, tags):
        last = -1
        for i, t in enumerate(self.q):
            if t in tags:
                last = i
        n = len(self.q) - 1 - last
        return min(n, 63)


def interleave(a, mm, rd, dma, emit_grp, first_dma=1, dma_every=4):
    rd = list(rd); dma = list(dma)
    for idx, m in enumerate(mm):
        a(m)
        if dma and idx >= first_dma and (idx - first_dma) % dma_every == 0:
            emit_grp(dma.pop(0))
        elif rd:
            a(rd.pop(0))
        elif dma:
            emit_grp(dma.pop(0))
    for r in rd:
        a(r)
    for g in dma:
        emit_grp(g)


class FlagSync:
    def __init__(self, a, tag, cnt, vsig, vcnt, vone, vt1, vt2, st):
        self.a, self.tag, self.cnt = a, tag, cnt
        self.vsig, self.vcnt, self.vone, self.vt1, self.vt2, self.st = vsig, vcnt, vone, vt1, vt2, st
        self.nfull = [0, 0, 0, 0]
        self.nempty = [0, 0, 0, 0]
        self.n = 0

    def setup(self, vlane, swave):
        a = self.a
        a(f'v_lshlrev_b32 v{self.vsig}, 2, v{vlane}')
        a(f'v_add_u32 v{self.vsig}, 0x{self.cnt + 512:x}, v{self.vsig}')
        a(f'v_mov_b32 v{self.vcnt}, 0x{self.cnt:x}')
        a(f'v_cmp_eq_u32 vcc, 0, v{vlane}')
        a(f'v_cndmask_b32 v{self.vsig}, v{self.vsig}, v{self.vcnt}, vcc')
        a(f'v_mov_b32 v{self.vone}, 1')
        a(f'v_lshlrev_b32 v{self.vt1}, 2, v{vlane}')
        a(f'v_and_b32 v{self.vt1}, 31, v{self.vt1}')
        a(f'v_add_u32 v{self.vt1}, v{self.vcnt}, v{self.vt1}')
        a(f'v_mov_b32 v{self.vt2}, 0')
        a(f'ds_write_b32 v{self.vt1}, v{self.vt2}')

    def sig_full(self, s):
        self.nfull[s % 4] += 8
        return f'ds_add_u32 v{self.vsig}, v{self.vone} offset:{4 * (s % 4)}'

    def sig_empty(self, s):
        self.nempty[s % 4] += 8
        return f'ds_add_u32 v{self.vsig}, v{self.vone} offset:{16 + 4 * (s % 4)}'

    def rd_full(self, s):
        return f'ds_read_b32 v{self.vt1}, v{self.vcnt} offset:{4 * (s % 4)}'

    def rd_empty(self, s):
        return f'ds_read_b32 v{self.vt2}, v{self.vcnt} offset:{16 + 4 * (s % 4)}'

    def check(self, kind, s, lgkm):
        a = self.a
        v = self.vt1 if kind == 'F' else self.vt2
        target = (self.nfull if kind == 'F' else self.nempty)[s % 4]
        rd = self.rd_full(s) if kind == 'F' else self.rd_empty(s)
        L = f'{self.tag}_c{self.n}'
        self.n += 1
        a(f's_waitcnt lgkmcnt({lgkm})')
        a(f'{L}r:')
        a(f'v_readfirstlane_b32 s{self.st}, v{v}')
        a('s_nop 1')
        a(f's_cmp_ge_u32 s{self.st}, {target}')
        a(f's_cbranch_scc1 {L}o')
        a(rd + ' ; @skip')
        a('s_waitcnt lgkmcnt(0) ; @skip')
        a(f's_branch {L}r ; @skip')
        a(f'{L}o:')


def flag_iter(a, fs, j, nst, mm, rd, dma, emit_grp, vmwait, cF, cE, extra=None):
    rd = list(rd); dma = list(dma)
    n = len(mm)
    need_full = rd and j >= 1
    need_empty = bool(dma)
    a(fs.sig_empty(j))
    if need_full:
        a(fs.rd_full(j + 1))
    since_e = None
    dma_ok = not need_empty
    for idx, m in enumerate(mm):
        a(m)
        if idx == cF and need_full:
            fs.check('F', j + 1, 0)
        if idx < cF:
            continue
        if need_empty and idx == cE - 3:
            a(fs.rd_empty(j))
            since_e = 0
            continue
        if need_empty and idx == cE:
            fs.check('E', j, since_e)
            dma_ok = True
            continue
        if idx == (int(OPT('FS_CS')) if OPT('FS_CS') else n - 2) and vmwait:
            a(vmwait())
            a(fs.sig_full(j + 2))
            continue
        if dma_ok and dma and (not rd or (idx - cE) % 3 == 1):
            emit_grp(dma.pop(0))
        elif rd:
            a(rd.pop(0))
            if since_e is not None and not dma_ok:
                since_e += 1
    for r in rd:
        a(r)
    for g in dma:
        emit_grp(g)
    a('s_waitcnt lgkmcnt(0)')


A_SLOT = 32768
B_BASE = 98304
B_SLOT = 14336
G1_DUMMY = B_BASE + 4 * B_SLOT
G1_LDS = G1_DUMMY + 8192
ACC = 128
SETS = (32, 76)
VA = 2
VB = 8
VGA = 11
VGB0 = 12
VGB1 = 13
VLANE = 14
VG4 = 15
VL16 = 16
VPF = 31
VPF2 = 30
VTMP = 17


def gemm1_common_setup(a):
    a('v_lshrrev_b32 v1, 6, v0')
    a(f'v_and_b32 v{VLANE}, 63, v0')
    a('s_nop 0')
    a('v_readfirstlane_b32 s20, v1')
    a(f'v_lshrrev_b32 v{VG4}, 4, v{VLANE}')
    a(f'v_and_b32 v{VL16}, 15, v{VLANE}')
    a('s_nop 1')
    a('s_lshr_b32 s21, s20, 1')
    a('s_and_b32 s22, s20, 1')
    a('s_and_b32 s26, s2, 7')
    a('s_lshr_b32 s27, s2, 3')
    a('s_and_b32 s24, s26, 1')
    a('s_lshl_b32 s24, s24, 2')
    a('s_and_b32 s28, s27, 3')
    a('s_add_u32 s24, s24, s28')
    a('s_lshr_b32 s25, s26, 1')
    a('s_lshl_b32 s25, s25, 2')
    a('s_bfe_u32 s28, s27, 0x20002')
    a('s_add_u32 s25, s25, s28')
    a('s_lshr_b32 s28, s27, 4')
    a('s_lshl_b32 s28, s28, 4')
    a('s_add_u32 s25, s25, s28')
    T = VTMP
    a('s_lshl_b32 s28, s21, 13')
    a(f'v_and_b32 v{T}, 7, v{VLANE}')
    a(f'v_xor_b32 v{T}, v{T}, v{VG4}')
    a(f'v_lshlrev_b32 v{T}, 4, v{T}')
    a(f'v_lshl_add_u32 v{T}, v{VL16}, 7, v{T}')
    a(f'v_add_u32 v{T}, s28, v{T}')
    a(f'v_xor_b32 v{T+1}, 64, v{T}')
    for sl in range(3):
        a(f'v_add_u32 v{VA+2*sl}, 0x{sl*A_SLOT:x}, v{T}')
        a(f'v_add_u32 v{VA+2*sl+1}, 0x{sl*A_SLOT:x}, v{T+1}')
    a(f'v_lshrrev_b32 v{T}, 3, v{VLANE}')
    a(f'v_and_b32 v{T+1}, 7, v{VLANE}')
    a(f'v_xor_b32 v{T+1}, v{T+1}, v{T}')
    a('s_lshl_b32 s28, s24, 8')
    a('s_lshl_b32 s29, s20, 5')
    a('s_add_u32 s28, s28, s29')
    a(f'v_add_u32 v{T}, s28, v{T}')
    a(f'v_lshlrev_b32 v{T}, 11, v{T}')
    a(f'v_lshl_add_u32 v{VGA}, v{T+1}, 4, v{T}')
    a(f'v_lshlrev_b32 v{VPF}, 4, v{VLANE}')
    a('s_lshl_b32 s30, s20, 12')
    a('s_lshl_b32 s31, s20, 10')
    a('s_and_b32 s77, s31, 0xc00')


def gemm1_late_setup(a):
    srd(a, 64, 72, 1024 * 1024 * 2)
    srd(a, 68, 74, 3584 * 1024 * 2)
    srd(a, 92, 4, 0x300000, FLAG_OFF)
    if not FUSE12:
        a('s_lshl_b32 s28, s2, 9')
        a('v_lshlrev_b32 v17, 7, v0')
        a('v_mov_b32 v18, 0')
        a('v_cmp_gt_u32 vcc, 4, v0')
        a('s_and_saveexec_b64 s[34:35], vcc')
        a('buffer_store_dword v18, v17, s[92:95], s28 offen')
        a('s_mov_b64 exec, s[34:35]')
        a('s_lshl_b32 s28, s2, 2')
        a(f's_add_u32 s28, s28, 0x{OFLAG_OFF - FLAG_OFF:x}')
        a('v_mov_b32 v17, 0')
        a('v_cmp_eq_u32 vcc, 0, v0')
        a('s_and_saveexec_b64 s[34:35], vcc')
        a('buffer_store_dword v18, v17, s[92:95], s28 offen')
        a('s_mov_b64 exec, s[34:35]')
    a('s_lshl_b32 s28, s2, 3')
    a('s_add_u32 s28, s28, s20')
    a('s_cmp_lt_u32 s28, 1024')
    a('s_cselect_b32 s88, s6, s58')
    a('s_cselect_b32 s89, s7, s59')
    a(f's_mov_b32 s90, 0x{1024*3584*2:x}')
    a(f's_cselect_b32 s90, 0x{1024*3072*2:x}, s90')
    if not OPT('PF_OLD'):
        a('s_cselect_b32 s29, 0xc0000, 0')
        a('s_cselect_b32 s91, 0, 0xe0000')
        a('s_add_u32 s29, s29, s91')
    a('s_and_b32 s89, s89, 0xffff')
    a('s_mov_b32 s91, 0x00020000')
    a('s_and_b32 s28, s28, 1023')
    a('s_lshl_b32 s28, s28, 10')
    if not OPT('PF_OLD'):
        a('s_add_u32 s28, s28, s29')
    a(f'v_add_u32 v{VPF2}, s28, v{VPF}')


def gemm1_variant(a, kind):
    w1 = kind == 'w1'
    NB = 7 if w1 else 6
    rowstride = 7168 if w1 else 6144
    nsecond = 6 if w1 else 4
    T = VTMP
    a(f'v_lshrrev_b32 v{T}, 2, v{VL16}')
    a(f'v_lshl_add_u32 v{T+1}, v{VG4}, 3, v{T}')
    a(f'v_lshrrev_b32 v{T+2}, 1, v{T}')
    a(f'v_and_b32 v{T+3}, 1, v{VG4}')
    a(f'v_lshl_or_b32 v{T+2}, v{T+3}, 1, v{T+2}')
    a(f'v_and_b32 v{T+4}, 3, v{VLANE}')
    a(f'v_lshlrev_b32 v{T+4}, 3, v{T+4}')
    a(f'v_lshl_add_u32 v{T+5}, v{T+1}, 7, v{T+4}')
    a(f'v_add_u32 v{T+5}, 0x{B_BASE:x}, v{T+5}')
    for e in range(2):
        if w1:
            a(f's_add_u32 s28, s22, {2*e}')
        else:
            a('s_lshl_b32 s28, s22, 1')
            a(f's_add_u32 s28, s28, {e}')
        a(f'v_xor_b32 v{T+6}, s28, v{T+2}')
        a(f'v_lshl_add_u32 v{VB+e}, v{T+6}, 5, v{T+5}')
    if w1:
        a(f'v_xor_b32 v{T+6}, s22, v{T+3}')
        a(f'v_lshl_add_u32 v{T+7}, v{T+1}, 6, v{T+4}')
        a(f'v_lshl_add_u32 v{T+7}, v{T+6}, 5, v{T+7}')
        a(f'v_add_u32 v{VB+2}, 0x{B_BASE+12288:x}, v{T+7}')
    colstride = 128 if w1 else 2048
    a(f'v_lshrrev_b32 v{T}, 3, v{VLANE}')
    a(f'v_bfe_u32 v{T+1}, v{VLANE}, 4, 1')
    a('s_and_b32 s28, s20, 1')
    a('s_lshl_b32 s28, s28, 1')
    a(f'v_or_b32 v{T+1}, s28, v{T+1}')
    a(f'v_bfe_u32 v{T+2}, v{VLANE}, 1, 2')
    a(f'v_xor_b32 v{T+2}, v{T+2}, v{T+1}')
    a(f'v_and_b32 v{T+3}, 1, v{VLANE}')
    a(f'v_lshlrev_b32 v{T+3}, 4, v{T+3}')
    a(f'v_lshl_add_u32 v{T+3}, v{T+2}, 5, v{T+3}')
    a('s_and_b32 s28, s20, 3')
    a('s_lshl_b32 s28, s28, 3')
    a(f'v_add_u32 v{T}, s28, v{T}')
    a(f's_mov_b32 s29, {rowstride}')
    a(f'v_mul_lo_u32 v{T}, v{T}, s29')
    a(f'v_add_u32 v{T}, v{T}, v{T+3}')
    a('s_lshr_b32 s28, s20, 2')
    a(f's_mul_i32 s28, s28, {colstride}')
    if w1:
        a('s_sub_u32 s32, s25, 16')
        a('s_mul_i32 s32, s32, 448')
    else:
        a('s_lshl_b32 s32, s25, 7')
    a('s_add_u32 s28, s28, s32')
    a(f'v_add_u32 v{VGB0}, s28, v{T}')
    a(f'v_add_u32 v{VGB1}, 0x{2*colstride:x}, v{VGB0}')
    if w1:
        a(f'v_lshrrev_b32 v{T}, 2, v{VLANE}')
        a('s_sub_u32 s28, s20, 4')
        a('s_lshl_b32 s28, s28, 4')
        a(f'v_add_u32 v{T}, s28, v{T}')
        a(f'v_mul_lo_u32 v{T}, v{T}, s29')
        a(f'v_bfe_u32 v{T+1}, v{VLANE}, 5, 1')
        a(f'v_bfe_u32 v{T+2}, v{VLANE}, 1, 1')
        a(f'v_xor_b32 v{T+2}, v{T+2}, v{T+1}')
        a(f'v_and_b32 v{T+3}, 1, v{VLANE}')
        a(f'v_lshlrev_b32 v{T+3}, 4, v{T+3}')
        a(f'v_lshl_add_u32 v{T+3}, v{T+2}, 5, v{T+3}')
        a(f'v_add_u32 v{T}, v{T}, v{T+3}')
        a('s_add_u32 s28, s32, 384')
        a(f'v_add_u32 v{T}, s28, v{T}')
        a('s_cmp_ge_u32 s20, 4')
        a('s_cselect_b64 s[34:35], -1, 0')
        a(f'v_cndmask_b32 v{VGB1}, v{VGB1}, v{T}, s[34:35]')
    a('s_waitcnt lgkmcnt(0)')
    stamp(a, 5, True)
    stamp(a, 0)
    srd(a, 8, 4, XN_SZ, XN_OFF)
    if w1:
        srd(a, 12, 58, 1024 * 3584 * 2)
    else:
        srd(a, 12, 6, 1024 * 3072 * 2)

    def param_loads():
        if w1:
            srd(a, 40, 60, 3584 * 2)
            a('s_lshl_b32 s28, s22, 5')
            a(f'v_lshl_add_u32 v{T}, v{VG4}, 3, s28')
            for nb in range(7):
                a(f'buffer_load_dwordx2 v[{240+2*nb}:{241+2*nb}], v{T}, s[40:43], s32 offen offset:{nb*64}')
        else:
            srd(a, 40, 56, 32 * 32 * 32 * 2)
            a('s_lshl_b32 s33, s25, 1')
            a('s_add_u32 s33, s33, s22')
            a('s_lshl_b32 s28, s33, 11')
            a(f'v_lshlrev_b32 v{T}, 8, v{VG4}')
            a(f'v_lshl_add_u32 v{T}, v{VL16}, 1, v{T}')
            for fb in range(2):
                for j in range(8):
                    off = (16 * (j // 4) + j % 4) * 64 + fb * 32
                    a(f'buffer_load_ushort v{224+8*fb+j}, v{T}, s[40:43], s28 offen offset:{off}')

    def late():
        if w1:
            srd(a, 16, 4, ACT2_SZ, ACT2_OFF)
        else:
            srd(a, 36, 4, PHIQ_SZ, PHIQ_OFF)
            srd(a, 44, 4, KVP_SZ, KVP_OFF)
        gemm1_late_setup(a)
        if not w1:
            for i in range(NB * 16):
                a(f'v_mov_b32 v{ACC+i}, 0')

    vq = VQ()
    lbl = [0]

    def grp_A(i):
        if OPT('G1_NOA'):
            return []
        out = []
        for q in range(4):
            out.append(([f's_add_u32 m0, s30, 0x{(i % 3) * A_SLOT + q * 1024:x}',
                         f's_mov_b32 s28, 0x{i * 128 + q * 16384:x}',
                         f'buffer_load_dwordx4 v{VGA}, s[8:11], s28 offen lds'], ('A', i)))
        return out

    def grp_B(j):
        if OPT('G1_NOB'):
            return []
        base = B_BASE + (j % 4) * B_SLOT
        L = f'g1{kind}_sk{lbl[0]}'
        lbl[0] += 1
        return [([f's_add_u32 m0, s31, 0x{base:x}',
                  f's_mov_b32 s28, 0x{j * 32 * rowstride:x}',
                  f'buffer_load_dwordx4 v{VGB0}, s[12:15], s28 offen lds'], ('B', j)),
                ([f's_cmp_ge_u32 s20, {nsecond}',
                  f's_cbranch_scc1 {L}',
                  f's_add_u32 m0, s31, 0x{base + 8192:x} ; @skip',
                  f's_mov_b32 s28, 0x{j * 32 * rowstride:x} ; @skip',
                  f'buffer_load_dwordx4 v{VGB1}, s[12:15], s28 offen lds ; @skip',
                  f'{L}:'], None)]

    def emit_grp(g):
        for l in g[0]:
            a(l)
        if g[1] is not None:
            vq.push(g[1])

    def issue_A(i):
        for g in grp_A(i):
            emit_grp(g)

    def issue_B(j):
        for g in grp_B(j):
            emit_grp(g)

    def frag_reads(j):
        S = SETS[j & 1]
        sl = (j // 2) % 3
        half = j & 1
        out = []
        for mb in range(4):
            out.append(f'ds_read_b128 v[{S+4*mb}:{S+4*mb+3}], v{VA+2*sl+half} offset:{mb*2048}')
        bs = (j % 4) * B_SLOT
        for nb in range(NB):
            d = S + 16 + 4 * nb
            if w1 and nb == 6:
                for t in range(2):
                    out.append(f'ds_read_b64_tr_b16 v[{d+2*t}:{d+2*t+1}], v{VB+2} offset:{bs + t*256}')
            else:
                G, e = nb // 2, nb % 2
                for t in range(2):
                    out.append(f'ds_read_b64_tr_b16 v[{d+2*t}:{d+2*t+1}], v{VB+e} offset:{bs + G*4096 + t*512}')
        return out

    def mfmas(j):
        S = SETS[j & 1]
        out = []
        for nb in range(NB):
            for mb in range(4):
                c = ACC + (nb * 4 + mb) * 4
                wf = f'v[{S+16+4*nb}:{S+19+4*nb}]'
                xf = f'v[{S+4*mb}:{S+4*mb+3}]'
                if (not w1) and nb >= 4:
                    out.append(f'v_mfma_f32_16x16x32_bf16 v[{c}:{c+3}], {xf}, {wf}, v[{c}:{c+3}]')
                else:
                    out.append(f'v_mfma_f32_16x16x32_bf16 v[{c}:{c+3}], {wf}, {xf}, v[{c}:{c+3}]')
        return out

    stamp(a, 1)
    def grp_pf(i):
        if OPT('NO_PF1'):
            return []
        return [([f's_add_u32 m0, s77, 0x{G1_DUMMY:x}',
                  f's_mov_b32 s28, 0x{i << 20:x}',
                  f'buffer_load_dwordx4 v{VPF2}, s[88:91], s28 offen lds'], None)]

    if w1:
        param_loads()
    issue_A(0); issue_B(0)
    if not w1:
        param_loads()
    issue_B(1); issue_A(1); issue_B(2); issue_B(3); issue_A(2)
    late()
    if w1:
        a(f's_waitcnt vmcnt({len(vq.q)})')
        a('s_mov_b32 s50, 0xffff0000')
        for nb in range(7):
            for mb in range(4):
                c = ACC + (nb * 4 + mb) * 4
                for h in range(2):
                    a(f'v_lshlrev_b32 v{c+2*h}, 16, v{240+2*nb+h}')
                    a(f'v_and_b32 v{c+2*h+1}, s50, v{240+2*nb+h}')
    if OPT('PF_OLD'):
        for g in grp_pf(0) + grp_pf(1):
            emit_grp(g)
    use_flags = bool(OPT('G1_FLAGS'))
    half_bar = bool(OPT('G1_HB'))
    if use_flags:
        fs = FlagSync(a, f'g1{kind}', G1_DUMMY + 4096, 25, 26, 27, 28, 29, 62)
        fs.setup(VLANE, 20)
        a(f's_waitcnt vmcnt({vq.wait_for({("A", 0), ("B", 0), ("B", 1)})}) lgkmcnt(0)')
    else:
        a(f's_waitcnt vmcnt({vq.wait_for({("A", 0), ("B", 0)})})')
    if OPT('PRIO'):
        a('s_cmp_ge_u32 s20, 4')
        a(f's_cbranch_scc0 g1{kind}_prio')
        a('s_setprio 1 ; @skip')
        a(f'g1{kind}_prio:')
    a('s_barrier')
    for r in frag_reads(0):
        a(r)
    a('s_waitcnt lgkmcnt(0)')
    for j in range(32):
        if half_bar:
            dma = []
            if j % 2 == 0:
                need = {("A", (j + 1) // 2), ("B", j + 1)}
                if j + 2 < 32:
                    need |= {("A", (j + 2) // 2), ("B", j + 2)}
                a(f's_waitcnt vmcnt({vq.wait_for(need)})')
                a('s_barrier')
                if j >= 2:
                    for jj in (j + 3, j + 4):
                        if 4 <= jj < 32:
                            dma += grp_B(jj)
                    if (j // 2 + 2) < 16 and j // 2 + 2 >= 3:
                        dma += grp_A(j // 2 + 2)
                else:
                    dma += grp_B(4)
        else:
            if not use_flags:
                if j + 1 < 32:
                    a(f's_waitcnt vmcnt({vq.wait_for({("A", (j + 1) // 2), ("B", j + 1)})})')
                a('s_barrier')
            dma = []
            if j + 4 < 32:
                dma += grp_B(j + 4)
            if j & 1 and (j // 2 + 3) < 16:
                dma += grp_A(j // 2 + 3)
        if OPT('PF_OLD'):
            if j in (2, 7, 12, 17, 22):
                dma += grp_pf(2 + (j - 2) // 5)
        else:
            sched = [int(x) for x in OPT('PF_SCHED', '0,1,4,9,14,19').split(',')]
            if j in sched:
                dma += grp_pf(sched.index(j))
        if j == 28 and not OPT('NO_PF'):
            dma.append(([f's_add_u32 m0, s77, 0x{G1_DUMMY:x}',
                         's_lshl_b32 s28, s2, 13',
                         's_add_u32 s28, s28, s31',
                         f'buffer_load_dwordx4 v{VPF}, s[64:67], s28 offen lds',
                         's_mul_i32 s76, s2, 28672',
                         's_mul_i32 s29, s20, 3584',
                         's_add_u32 s76, s76, s29'], None))
            for i in range(4):
                dma.append(([f'buffer_load_dwordx4 v{VPF}, s[68:71], s76 offen lds',
                             's_add_u32 s76, s76, 1024'], None))
        rd = frag_reads(j + 1) if j + 1 < 32 else []
        mm = mfmas(j)
        if OPT('G1_NOCOMP'):
            rd = []; mm = []
        if use_flags:
            vmw = (lambda jj=j: f's_waitcnt vmcnt({vq.wait_for({("A", (jj + 2) // 2), ("B", jj + 2)})})') if j + 2 < 32 else None
            flag_iter(a, fs, j, 32, mm, rd, dma, emit_grp, vmw, int(OPT('G1_CF', '2')), int(OPT('G1_CE', '9')))
        else:
            interleave(a, mm, rd, dma, emit_grp, int(OPT('G1_FD', '1')), int(OPT('G1_DE', '4')))
            a('s_waitcnt lgkmcnt(0)')
    if use_flags or half_bar:
        a('s_barrier')
    stamp(a, 2)
    if w1:
        epilogue_w1(a)
    else:
        epilogue_qkv(a)


def phase_end(a, w1):
    if not FUSE12:
        a('s_endpgm')
        return
    if OPT('STAMPB'):
        STAMP_REGS[:] = [96, 97, 98, 99, 100, 101, 75]
        stamp(a, 5, True)
        stamp(a, 0)
    a('s_waitcnt vmcnt(0)')
    a('s_barrier')
    if OPT('STAMPB'):
        stamp(a, 1)
    if w1:
        a('s_sub_u32 s28, s25, 16')
        a('s_lshr_b32 s28, s28, 3')
        a('s_lshl_b32 s29, s24, 1')
        a('s_add_u32 s28, s28, s29')
    else:
        a('s_add_u32 s28, s25, 16')
    a('s_lshl_b32 s28, s28, 7')
    a(f's_add_u32 s28, s28, 0x{CNT_OFF - FLAG_OFF:x}')
    a('v_mov_b32 v17, 0')
    a('v_mov_b32 v18, 1')
    a('v_cmp_eq_u32 vcc, 0, v0')
    a('s_and_saveexec_b64 s[34:35], vcc')
    a('buffer_atomic_add v18, v17, s[92:95], s28 offen sc1')
    a('s_mov_b64 exec, s[34:35]')
    a('s_branch g12_p2')


def epilogue_w1(a):
    T = VTMP
    c1 = -2.0 * 0.7978845608028654 * 1.4426950408889634
    c2 = c1 * 0.044715
    a(f's_mov_b32 s44, 0x{f2u(c1):x}')
    a(f's_mov_b32 s46, 0x{f2u(c2):x}')
    a(f's_mov_b32 s47, 0x{f2u(c2):x}')
    a('s_mov_b32 s48, 1.0')
    a('s_mov_b32 s49, 1.0')
    a('s_lshl_b32 s28, s24, 8')
    a('s_lshl_b32 s29, s21, 6')
    a('s_add_u32 s28, s28, s29')
    a(f'v_add_u32 v{T}, s28, v{VL16}')
    a(f'v_and_b32 v{T+1}, 1, v{VG4}')
    a(f'v_lshl_add_u32 v{T}, v{T+1}, 4, v{T}')
    a(f'v_lshrrev_b32 v{T+1}, 1, v{VG4}')
    a(f'v_lshl_add_u32 v{T}, v{T+1}, 11, v{T}')
    a(f'v_lshlrev_b32 v{T}, 4, v{T}')
    a('s_lshr_b32 s28, s32, 4')
    a('s_lshl_b32 s29, s22, 1')
    a('s_add_u32 s28, s28, s29')
    a('s_add_u32 s28, s28, 128')
    a('s_lshl_b32 s52, s28, 15')
    W = 64
    O = 32
    a('v_mov_b32 v60, s44')
    a('v_mov_b32 v61, s44')
    for nb in range(7):
        for mb in range(4):
            c = ACC + (nb * 4 + mb) * 4
            w = W + mb * 4
            for h in range(2):
                a(f'v_pk_mul_f32 v[{w+2*h}:{w+2*h+1}], v[{c+2*h}:{c+2*h+1}], v[{c+2*h}:{c+2*h+1}]')
            for h in range(2):
                a(f'v_pk_fma_f32 v[{w+2*h}:{w+2*h+1}], v[{w+2*h}:{w+2*h+1}], s[46:47], v[60:61]')
            for h in range(2):
                a(f'v_pk_mul_f32 v[{w+2*h}:{w+2*h+1}], v[{w+2*h}:{w+2*h+1}], v[{c+2*h}:{c+2*h+1}]')
        for i in range(16):
            a(f'v_exp_f32 v{W+i}, v{W+i}')
        for h in range(8):
            a(f'v_pk_add_f32 v[{W+2*h}:{W+2*h+1}], v[{W+2*h}:{W+2*h+1}], s[48:49]')
        for i in range(16):
            a(f'v_rcp_f32 v{W+i}, v{W+i}')
        o = O + (nb & 1) * 8
        for mb in range(4):
            c = ACC + (nb * 4 + mb) * 4
            w = W + mb * 4
            for h in range(2):
                a(f'v_pk_mul_f32 v[{w+2*h}:{w+2*h+1}], v[{w+2*h}:{w+2*h+1}], v[{c+2*h}:{c+2*h+1}]')
            a(f'v_cvt_pk_bf16_f32 v{o+2*mb}, v{w}, v{w+1}')
            a(f'v_cvt_pk_bf16_f32 v{o+2*mb+1}, v{w+2}, v{w+3}')
        for p in range(2):
            a(f'v_permlane16_swap_b32 v{o+4*p}, v{o+4*p+2}')
            a(f'v_permlane16_swap_b32 v{o+4*p+1}, v{o+4*p+3}')
        a(f's_add_u32 s28, s52, 0x{nb*4*32768:x}')
        for p in range(2):
            a(f'buffer_store_dwordx4 v[{o+4*p}:{o+4*p+3}], v{T}, s[16:19], s28 offen offset:{p*512}{OPT("H_POL", " sc1")}')
    stamp(a, 3)
    if OPT('STAMP'):
        a('s_waitcnt vmcnt(0)')
    stamp(a, 4)
    stamp(a, 6, True)
    stamp_flush(a, 7, 0)
    phase_end(a, True)


def epilogue_qkv(a):
    T = VTMP
    QF, KF, VF = 32, 48, 64
    WP = 240

    def acc(nb, mb):
        return ACC + (nb * 4 + mb) * 4
    a('s_mov_b32 s50, 0xffff0000')
    a(f's_mov_b32 s51, 0x{LOG2E:x}')
    for i in range(8):
        a(f'v_lshl_or_b32 v{WP+i}, v{224+2*i+1}, 16, v{224+2*i}')
    for mb in range(4):
        for e in range(2):
            c = acc(e, mb)
            a(f'v_cvt_pk_bf16_f32 v{QF+4*mb+2*e}, v{c}, v{c+1}')
            a(f'v_cvt_pk_bf16_f32 v{QF+4*mb+2*e+1}, v{c+2}, v{c+3}')
            c = acc(2 + e, mb)
            a(f'v_cvt_pk_bf16_f32 v{KF+4*mb+2*e}, v{c}, v{c+1}')
            a(f'v_cvt_pk_bf16_f32 v{KF+4*mb+2*e+1}, v{c+2}, v{c+3}')
    for ks in range(2):
        for db in range(2):
            for e in range(2):
                c = acc(4 + db, 2 * ks + e)
                d = VF + (ks * 2 + db) * 4 + 2 * e
                a(f'v_cvt_pk_bf16_f32 v{d}, v{c}, v{c+1}')
                a(f'v_cvt_pk_bf16_f32 v{d+1}, v{c+2}, v{c+3}')
    PQ, PK = 128, 160
    for mb in range(4):
        for fb in range(2):
            d = PK + (mb * 2 + fb) * 4
            a(f'v_mfma_f32_16x16x32_bf16 v[{d}:{d+3}], v[{KF+4*mb}:{KF+4*mb+3}], v[{WP+4*fb}:{WP+4*fb+3}], 0')
    a('s_lshl_b32 s28, s24, 4')
    a('s_lshl_b32 s29, s21, 2')
    a('s_add_u32 s28, s28, s29')
    a('s_lshl_b32 s28, s28, 10')
    a('s_lshl_b32 s29, s33, 17')
    a('s_add_u32 s28, s28, s29')
    for mb in range(4):
        a(f'buffer_store_dwordx4 v[{QF+4*mb}:{QF+4*mb+3}], v{VPF}, s[36:39], s28 offen offset:{mb*1024}{OPT("H_POL", " sc1")}')
    a('s_or_b32 s28, s24, s21')
    a('s_cmp_lg_u32 s28, 0')
    a('s_cbranch_scc1 g1q_nowp')
    a('s_lshl_b32 s28, s33, 11 ; @skip')
    a('s_add_u32 s28, s28, 0x400000 ; @skip')
    a(f'buffer_store_dwordx4 v[{WP}:{WP+3}], v{VPF}, s[36:39], s28 offen sc1 ; @skip')
    a(f'buffer_store_dwordx4 v[{WP+4}:{WP+7}], v{VPF}, s[36:39], s28 offen offset:1024 sc1 ; @skip')
    a('g1q_nowp:')
    for i in range(0, 32, 2):
        r = PK + i
        a(f'v_cvt_pk_bf16_f32 v{T+(i>>1)%4}, v{r}, v{r+1}')
        a(f'v_lshlrev_b32 v{r}, 16, v{T+(i>>1)%4}')
        a(f'v_and_b32 v{r+1}, s50, v{T+(i>>1)%4}')
    KMX, KMN, KS1, KS2, KT = 80, 96, 32, 48, 112
    idx = [(mb, i) for mb in range(4) for i in range(4)]

    def pk(mb, fb, i):
        return PK + (mb * 2 + fb) * 4 + i
    for n, (mb, i) in enumerate(idx):
        a(f'v_max_f32 v{KMX+n}, v{pk(mb,0,i)}, v{pk(mb,1,i)}')
        a(f'v_min_f32 v{KMN+n}, v{pk(mb,0,i)}, v{pk(mb,1,i)}')
    for (base, op) in ((KMX, 'v_max_f32'), (KMN, 'v_min_f32')):
        src, dst = base, KT
        for r in (8, 4, 2, 1):
            for n in range(16):
                a(f'{op}_dpp v{dst+n}, v{src+n}, v{src+n} row_ror:{r} row_mask:0xf bank_mask:0xf')
            src, dst = dst, src
    EP = 128
    for n in range(16):
        a(f'v_mul_f32 v{KMX+n}, s51, v{KMX+n}')
        a(f'v_mul_f32 v{KMN+n}, s51, v{KMN+n}')
    for n, (mb, i) in enumerate(idx):
        for fb in range(2):
            r = pk(mb, fb, i)
            a(f'v_fma_f32 v{EP + r - PK}, v{r}, s51, -v{KMX+n}')
            a(f'v_fma_f32 v{r}, -v{r}, s51, v{KMN+n}')
    for r in range(64):
        a(f'v_exp_f32 v{128+r}, v{128+r}')
    for n, (mb, i) in enumerate(idx):
        a(f'v_add_f32 v{KS1+n}, v{EP + pk(mb,0,i) - PK}, v{EP + pk(mb,1,i) - PK}')
        a(f'v_add_f32 v{KS2+n}, v{pk(mb,0,i)}, v{pk(mb,1,i)}')
    for base in (KS1, KS2):
        src, dst = base, KT
        for r in (8, 4, 2, 1):
            for n in range(16):
                a(f'v_add_f32_dpp v{dst+n}, v{src+n}, v{src+n} row_ror:{r} row_mask:0xf bank_mask:0xf')
            src, dst = dst, src
    for n in range(16):
        a(f'v_rcp_f32 v{KS1+n}, v{KS1+n}')
        a(f'v_rcp_f32 v{KS2+n}, v{KS2+n}')
    for n, (mb, i) in enumerate(idx):
        for fb in range(2):
            r = pk(mb, fb, i)
            a(f'v_mul_f32 v{EP + r - PK}, v{EP + r - PK}, v{KS1+n}')
            a(f'v_mul_f32 v{r}, v{r}, v{KS2+n}')
    PF = 80
    for sg in range(2):
        for fb in range(2):
            for ks in range(2):
                d = PF + ((sg * 2 + fb) * 2 + ks) * 4
                for e in range(2):
                    r = (EP if sg == 0 else PK) + ((2 * ks + e) * 2 + fb) * 4
                    a(f'v_cvt_pk_bf16_f32 v{d+2*e}, v{r}, v{r+1}')
                    a(f'v_cvt_pk_bf16_f32 v{d+2*e+1}, v{r+2}, v{r+3}')
    ONES = 112
    for i in range(4):
        a(f'v_mov_b32 v{ONES+i}, 0x3f803f80')
    KV = 128
    Z = 160
    for ks in range(2):
        for F in range(4):
            pf = PF + (F * 2 + ks) * 4
            for db in range(2):
                d = KV + (F * 2 + db) * 4
                vf = VF + (ks * 2 + db) * 4
                cc = '0' if ks == 0 else f'v[{d}:{d+3}]'
                a(f'v_mfma_f32_16x16x32_bf16 v[{d}:{d+3}], v[{pf}:{pf+3}], v[{vf}:{vf+3}], {cc}')
            d = Z + F * 4
            cc = '0' if ks == 0 else f'v[{d}:{d+3}]'
            a(f'v_mfma_f32_16x16x32_bf16 v[{d}:{d+3}], v[{pf}:{pf+3}], v[{ONES}:{ONES+3}], {cc}')
    a('s_lshl_b32 s28, s22, 2')
    a('s_add_u32 s28, s28, s21')
    a('s_mul_i32 s28, s28, 12288')
    a(f'v_add_u32 v{T+6}, s28, v{VPF}')
    for r in range(12):
        a(f'ds_write_b128 v{T+6}, v[{KV+4*r}:{KV+4*r+3}] offset:{r*1024}')
    a('s_mul_i32 s28, s22, 49152')
    a('s_mul_i32 s29, s21, 3072')
    a('s_add_u32 s28, s28, s29')
    a(f'v_add_u32 v{T+6}, s28, v{VPF}')
    a('s_waitcnt lgkmcnt(0)')
    a('s_barrier')
    for p in range(4):
        for r in range(3):
            a(f'ds_read_b128 v[{32+12*p+4*r}:{35+12*p+4*r}], v{T+6} offset:{p*12288 + r*1024}')
    a('s_lshl_b32 s28, s33, 3')
    a('s_add_u32 s28, s28, s24')
    a(f's_mul_i32 s28, s28, {KVP_ENT}')
    a(f'v_lshlrev_b32 v{T+7}, 4, v{VG4}')
    a(f'v_cmp_eq_u32 vcc, 0, v{VL16}')
    a('s_waitcnt lgkmcnt(0)')
    for r in range(12):
        a(f'v_add_f32 v{32+r}, v{32+r}, v{44+r}')
        a(f'v_add_f32 v{56+r}, v{56+r}, v{68+r}')
    for r in range(12):
        a(f'v_add_f32 v{32+r}, v{32+r}, v{56+r}')

    def qoff(q):
        if q < 8:
            F, db = q >> 1, q & 1
            return ((db * 2 + (F >> 1)) * 2 + (F & 1)) * 1024
        return 8192 + (q - 8) * 64
    for wm in range(4):
        a(f's_cmp_lg_u32 s21, {wm}')
        a(f's_cbranch_scc1 g1q_st{wm}')
        for r in range(3):
            q = 3 * wm + r
            a(f's_add_u32 s29, s28, {qoff(q)} ; @skip')
            if q < 8:
                a(f'buffer_store_dwordx4 v[{32+4*r}:{35+4*r}], v{VPF}, s[44:47], s29 offen sc1 ; @skip')
            else:
                a('s_and_saveexec_b64 s[34:35], vcc ; @skip')
                a(f'buffer_store_dwordx4 v[{32+4*r}:{35+4*r}], v{T+7}, s[44:47], s29 offen sc1 ; @skip')
                a('s_mov_b64 exec, s[34:35] ; @skip')
        a(f'g1q_st{wm}:')
    a('g1q_end:')
    stamp(a, 3)
    if OPT('STAMP'):
        a('s_waitcnt vmcnt(0)')
    stamp(a, 4)
    stamp(a, 6, True)
    stamp_flush(a, 7, 0)
    phase_end(a, False)


def gen_gemm1(a):
    name = 'gemm1_kernel'
    kernel_begin(a, name)
    a('s_cmp_ge_u32 s2, 256')
    a('s_cbranch_scc1 g1_exit')
    a('s_load_dwordx2 s[4:5], s[0:1], 88')
    a('s_load_dwordx2 s[6:7], s[0:1], 8')
    a('s_load_dwordx2 s[56:57], s[0:1], 16')
    a('s_load_dwordx2 s[58:59], s[0:1], 40')
    a('s_load_dwordx2 s[60:61], s[0:1], 48')
    a('s_load_dwordx2 s[72:73], s[0:1], 24')
    a('s_load_dwordx2 s[74:75], s[0:1], 56')
    gemm1_common_setup(a)
    a('s_cmp_ge_u32 s25, 16')
    a('s_cbranch_scc1 g1_w1')
    gemm1_variant(a, 'qkv')
    a('g1_w1:')
    gemm1_variant(a, 'w1')
    a('g1_exit:')
    a('s_endpgm')
    return descriptor(name, 256, 102)


def gen_o(a):
    name = 'attn_o_kernel'
    kernel_begin(a, name)
    a('s_cmp_ge_u32 s2, 256')
    a('s_cbranch_scc1 o_done')
    a('s_load_dwordx2 s[4:5], s[0:1], 88')
    a('s_load_dwordx2 s[32:33], s[0:1], 24')
    a('s_load_dwordx2 s[34:35], s[0:1], 56')
    a('v_lshrrev_b32 v1, 6, v0')
    a('v_and_b32 v2, 63, v0')
    a('s_nop 0')
    a('v_readfirstlane_b32 s20, v1')
    a('v_lshrrev_b32 v3, 4, v2')
    a('v_and_b32 v4, 15, v2')
    a('s_and_b32 s21, s2, 31')
    a('s_lshr_b32 s22, s2, 5')
    a('s_waitcnt lgkmcnt(0)')
    srd(a, 8, 4, KVP_SZ, KVP_OFF)
    srd(a, 12, 4, PHIQ_SZ, PHIQ_OFF)
    srd(a, 16, 4, ACT2_SZ, ACT2_OFF)
    srd(a, 36, 4, FLAG_SZ, FLAG_OFF)
    a('s_lshl_b32 s23, s2, 9')
    a('v_lshlrev_b32 v5, 7, v0')
    a('v_mov_b32 v6, 0')
    a('v_cmp_gt_u32 vcc, 4, v0')
    a('s_and_saveexec_b64 s[24:25], vcc')
    a('buffer_store_dword v6, v5, s[36:39], s23 offen')
    a('s_mov_b64 exec, s[24:25]')
    a('s_and_b32 s23, s20, 1')
    a('s_lshr_b32 s24, s20, 1')
    a('s_lshl_b32 s25, s23, 12')
    a('s_lshl_b32 s26, s24, 7')
    a('s_add_u32 s25, s25, s26')
    a('v_lshlrev_b32 v5, 8, v4')
    a('v_lshl_add_u32 v5, v3, 5, v5')
    a('v_add_u32 v5, s25, v5')
    a(f's_mul_i32 s27, s21, {KVP_ENT}')
    for mt in range(8):
        a(f's_add_u32 s28, s27, {mt*32*KVP_ENT}')
        a(f'buffer_load_dwordx4 v[{32+8*mt}:{35+8*mt}], v5, s[8:11], s28 offen')
        a(f'buffer_load_dwordx4 v[{36+8*mt}:{39+8*mt}], v5, s[8:11], s28 offen offset:16')
    a('s_lshl_b32 s25, s23, 7')
    a('s_add_u32 s25, s25, 8192')
    a('v_lshl_add_u32 v6, v3, 5, s25')
    for mt in range(8):
        a(f's_add_u32 s28, s27, {mt*32*KVP_ENT}')
        a(f'buffer_load_dwordx4 v[{96+8*mt}:{99+8*mt}], v6, s[8:11], s28 offen')
        a(f'buffer_load_dwordx4 v[{100+8*mt}:{103+8*mt}], v6, s[8:11], s28 offen offset:16')
    a('s_lshl_b32 s25, s22, 8')
    a('s_lshl_b32 s26, s20, 6')
    a('s_add_u32 s25, s25, s26')
    a('v_add_u32 v7, s25, v4')
    a('v_lshlrev_b32 v8, 12, v7')
    a('s_lshl_b32 s26, s21, 7')
    a('v_lshl_add_u32 v9, v3, 4, s26')
    a('v_add_u32 v8, v8, v9')
    for mb in range(4):
        a(f's_mov_b32 s28, {mb*16*4096}')
        for ks in range(2):
            d = 160 + (mb * 2 + ks) * 4
            a(f'buffer_load_dwordx4 v[{d}:{d+3}], v8, s[12:15], s28 offen offset:{ks*64}')
    npf = 0
    if OPT('O_PF'):
        srd(a, 36, 32, 1024 * 1024 * 2)
        srd(a, 40, 34, 3584 * 1024 * 2)
        a('v_lshlrev_b32 v200, 4, v0')
        a('s_lshl_b32 s44, s2, 13')
        a('s_mul_i32 s45, s2, 28672')
        for r in range(2):
            a(f'buffer_load_dwordx4 v[{204+4*r}:{207+4*r}], v200, s[36:39], s44 offen')
            a('s_add_u32 s44, s44, 4096')
        for r in range(7):
            a(f'buffer_load_dwordx4 v[{212+4*r}:{215+4*r}], v200, s[40:43], s45 offen')
            a('s_add_u32 s45, s45, 4096')
        npf = 9
    a(f's_waitcnt vmcnt({8+npf})')
    for base in (32, 96):
        for mt in range(1, 8):
            for i in range(8):
                a(f'v_add_f32 v{base+i}, v{base+i}, v{base+8*mt+i}')
    for i in range(4):
        a(f'v_cvt_pk_bf16_f32 v{12+i}, v{32+2*i}, v{33+2*i}')
        a(f'v_cvt_pk_bf16_f32 v{16+i}, v{96+2*i}, v{97+2*i}')
    a('v_lshlrev_b32 v10, 4, v2')
    a('s_lshl_b32 s25, s20, 10')
    a('v_add_u32 v11, s25, v10')
    a('ds_write_b128 v11, v[12:15]')
    a('s_cmp_ge_u32 s20, 2')
    a('s_cbranch_scc1 o_skipz')
    a('ds_write_b128 v11, v[16:19] offset:4096')
    a('o_skipz:')
    a('s_waitcnt lgkmcnt(0)')
    a('s_barrier')
    for i in range(6):
        a(f'ds_read_b128 v[{32+4*i}:{35+4*i}], v10 offset:{i*1024}')
    a(f's_waitcnt vmcnt({npf}) lgkmcnt(0)')
    NUM = 64
    DEN = 96
    for ks in range(2):
        for mb in range(4):
            pf = 160 + (mb * 2 + ks) * 4
            for db in range(2):
                d = NUM + (mb * 2 + db) * 4
                kf = 32 + (ks * 2 + db) * 4
                cc = '0' if ks == 0 else f'v[{d}:{d+3}]'
                a(f'v_mfma_f32_16x16x32_bf16 v[{d}:{d+3}], v[{kf}:{kf+3}], v[{pf}:{pf+3}], {cc}')
            d = DEN + mb * 4
            zf = 32 + (4 + ks) * 4
            cc = '0' if ks == 0 else f'v[{d}:{d+3}]'
            a(f'v_mfma_f32_16x16x32_bf16 v[{d}:{d+3}], v[{zf}:{zf+3}], v[{pf}:{pf+3}], {cc}')
    a('s_mov_b32 s30, 0xffff0000')
    a('s_mov_b32 s29, 9216')
    a('v_mul_lo_u32 v8, v7, s29')
    a('s_lshl_b32 s26, s21, 6')
    a('v_lshl_add_u32 v9, v3, 3, s26')
    a('v_add_u32 v8, v8, v9')
    for mb in range(4):
        dn = DEN + mb * 4
        round_bf16(a, dn, dn)
        a(f'v_add_f32 v{dn}, 0x{f2u(1e-6):x}, v{dn}')
        round_bf16(a, dn, dn)
        a(f'v_rcp_f32 v{dn+1}, v{dn}')
        a(f's_mov_b32 s28, {mb*16*9216}')
        for db in range(2):
            n = NUM + (mb * 2 + db) * 4
            for h in range(2):
                a(f'v_cvt_pk_bf16_f32 v{12+h}, v{n+2*h}, v{n+2*h+1}')
                a(f'v_lshlrev_b32 v{n+2*h}, 16, v{12+h}')
                a(f'v_and_b32 v{n+2*h+1}, s30, v{12+h}')
            for i in range(4):
                a(f'v_mul_f32 v{16+i}, v{n+i}, v{dn+1}')
            for i in range(4):
                a(f'v_fma_f32 v{n+i}, -v{16+i}, v{dn}, v{n+i}')
            for i in range(4):
                a(f'v_fmac_f32 v{16+i}, v{n+i}, v{dn+1}')
            o = 20 + (mb * 2 + db) * 2
            a(f'v_cvt_pk_bf16_f32 v{o}, v16, v17')
            a(f'v_cvt_pk_bf16_f32 v{o+1}, v18, v19')
            a(f'buffer_store_dwordx2 v[{o}:{o+1}], v8, s[16:19], s28 offen offset:{db*32}')
    a('o_done:')
    a('s_endpgm')
    return descriptor(name, 240, 48)


G2_A = 32768
G2_BB = 98304
G2_B = 16384
G2_LDS = G2_BB + 3 * G2_B


def gen_gemm2(a):
    name = 'gemm2_kernel'
    kernel_begin(a, name)
    a('s_cmp_ge_u32 s2, 256')
    a('s_cbranch_scc1 g2_exit')
    a('s_load_dwordx2 s[4:5], s[0:1], 88')
    a('s_load_dwordx2 s[6:7], s[0:1], 24')
    a('s_load_dwordx2 s[56:57], s[0:1], 56')
    a('s_load_dwordx2 s[58:59], s[0:1], 64')
    a('s_load_dwordx2 s[60:61], s[0:1], 0')
    a('s_load_dwordx2 s[62:63], s[0:1], 72')
    LANE, G4, L16, T = 14, 15, 16, 17
    VA2, VB2, VGA2, VGB2 = 2, 5, 9, 10
    a('v_lshrrev_b32 v1, 6, v0')
    a(f'v_and_b32 v{LANE}, 63, v0')
    a('s_nop 0')
    a('v_readfirstlane_b32 s20, v1')
    a(f'v_lshrrev_b32 v{G4}, 4, v{LANE}')
    a(f'v_and_b32 v{L16}, 15, v{LANE}')
    a('s_nop 1')
    a('s_and_b32 s21, s20, 1')
    a('s_lshr_b32 s22, s20, 1')
    a('s_and_b32 s26, s2, 7')
    a('s_lshr_b32 s27, s2, 3')
    a('s_and_b32 s24, s26, 3')
    a('s_lshl_b32 s24, s24, 2')
    a('s_and_b32 s28, s27, 3')
    a('s_add_u32 s24, s24, s28')
    a('s_lshr_b32 s25, s26, 2')
    a('s_lshl_b32 s25, s25, 3')
    a('s_lshr_b32 s28, s27, 2')
    a('s_add_u32 s25, s25, s28')
    a('s_lshl_b32 s28, s22, 2')
    a(f'v_add_u32 v{T}, s28, v{G4}')
    a(f'v_xor_b32 v{T}, v{T}, v{L16}')
    a(f'v_lshlrev_b32 v{T}, 4, v{T}')
    a(f'v_lshl_add_u32 v{T}, v{L16}, 8, v{T}')
    a('s_lshl_b32 s28, s21, 14')
    a(f'v_add_u32 v{T}, s28, v{T}')
    for sl in range(3):
        a(f'v_add_u32 v{VA2+sl}, 0x{sl*G2_A:x}, v{T}')
    a(f'v_lshrrev_b32 v{T}, 2, v{L16}')
    a(f'v_lshl_add_u32 v{T+1}, v{G4}, 3, v{T}')
    a('s_lshl_b32 s28, s22, 5')
    a(f'v_add_u32 v{T+1}, s28, v{T+1}')
    a(f'v_lshrrev_b32 v{T+2}, 1, v{T}')
    a(f'v_and_b32 v{T+3}, 1, v{G4}')
    a(f'v_lshl_or_b32 v{T+2}, v{T+3}, 1, v{T+2}')
    a(f'v_and_b32 v{T+4}, 3, v{LANE}')
    a(f'v_lshlrev_b32 v{T+4}, 3, v{T+4}')
    a(f'v_lshl_add_u32 v{T+5}, v{T+1}, 7, v{T+4}')
    a(f'v_add_u32 v{T+5}, 0x{G2_BB:x}, v{T+5}')
    for nb in range(4):
        a(f'v_xor_b32 v{T+6}, {nb}, v{T+2}')
        a(f'v_lshl_add_u32 v{VB2+nb}, v{T+6}, 5, v{T+5}')
    a('s_lshl_b32 s28, s20, 2')
    a('s_and_b32 s29, s28, 15')
    a(f'v_add_u32 v{T}, s29, v{G4}')
    a(f'v_xor_b32 v{T}, v{T}, v{L16}')
    a('s_lshl_b32 s29, s24, 7')
    a('s_add_u32 s28, s28, s29')
    a(f'v_add_u32 v{T+1}, s28, v{G4}')
    a('s_mov_b32 s29, 9216')
    a(f'v_mul_lo_u32 v{T+1}, v{T+1}, s29')
    a(f'v_lshl_add_u32 v{VGA2}, v{T}, 4, v{T+1}')
    a('s_lshl_b32 s30, s20, 10')
    a(f'v_lshrrev_b32 v{T}, 3, v{LANE}')
    a(f'v_bfe_u32 v{T+1}, v{LANE}, 4, 1')
    a('s_lshl_b32 s28, s21, 1')
    a(f'v_or_b32 v{T+1}, s28, v{T+1}')
    a(f'v_bfe_u32 v{T+2}, v{LANE}, 1, 2')
    a(f'v_xor_b32 v{T+2}, v{T+2}, v{T+1}')
    a(f'v_and_b32 v{T+3}, 1, v{LANE}')
    a(f'v_lshlrev_b32 v{T+3}, 4, v{T+3}')
    a(f'v_lshl_add_u32 v{T+3}, v{T+2}, 5, v{T+3}')
    a('s_lshl_b32 s28, s20, 3')
    a(f'v_add_u32 v{T}, s28, v{T}')
    a(f'v_lshl_add_u32 v{T}, v{T}, 11, v{T+3}')
    a('s_lshl_b32 s32, s25, 7')
    a(f'v_add_u32 v{VGB2}, s32, v{T}')
    a('s_waitcnt lgkmcnt(0)')
    srd(a, 8, 4, ACT2_SZ, ACT2_OFF)
    srd(a, 12, 6, 1024 * 1024 * 2)
    srd(a, 16, 56, 3584 * 1024 * 2)
    srd(a, 36, 58, 2048)
    srd(a, 40, 60, XN_SZ)
    srd(a, 44, 62, XN_SZ)
    stamp(a, 5, True)
    stamp(a, 0)
    ACC2 = 64
    SETS2 = (24, 128)
    for i in range(64):
        a(f'v_mov_b32 v{ACC2+i}, 0')
    vq = VQ()
    NS = 36

    def grp(j):
        sl = j % 3
        out = []
        for q in range(4):
            if OPT('G2_NOA'):
                break
            out.append(([f's_add_u32 m0, s30, 0x{sl*G2_A + q*8192:x}',
                         f's_mov_b32 s28, 0x{j*256 + q*32*9216:x}',
                         f'buffer_load_dwordx4 v{VGA2}, s[8:11], s28 offen lds'], j))
        for q in range(2):
            if OPT('G2_NOB'):
                break
            k0 = j * 128 + q * 64
            if k0 < 1024:
                sr, ko = 's[12:15]', k0
            else:
                sr, ko = 's[16:19]', k0 - 1024
            out.append(([f's_add_u32 m0, s30, 0x{G2_BB + sl*G2_B + q*8192:x}',
                         f's_mov_b32 s28, 0x{ko*2048:x}',
                         f'buffer_load_dwordx4 v{VGB2}, {sr}, s28 offen lds'], j))
        return out

    def emit_grp(g):
        for l in g[0]:
            a(l)
        vq.push(g[1])

    def issue(j):
        for g in grp(j):
            emit_grp(g)

    def frag_reads(j):
        S = SETS2[j & 1]
        sl = j % 3
        out = []
        for mb in range(4):
            out.append(f'ds_read_b128 v[{S+4*mb}:{S+4*mb+3}], v{VA2+sl} offset:{mb*4096}')
        for nb in range(4):
            d = S + 16 + 4 * nb
            for t in range(2):
                out.append(f'ds_read_b64_tr_b16 v[{d+2*t}:{d+2*t+1}], v{VB2+nb} offset:{sl*G2_B + t*512}')
        return out

    def mfmas(j):
        S = SETS2[j & 1]
        out = []
        for nb in range(4):
            for mb in range(4):
                c = ACC2 + (mb * 4 + nb) * 4
                out.append(f'v_mfma_f32_16x16x32_bf16 v[{c}:{c+3}], v[{S+16+4*nb}:{S+19+4*nb}], v[{S+4*mb}:{S+4*mb+3}], v[{c}:{c+3}]')
        return out

    issue(0); issue(1); issue(2)
    a(f's_waitcnt vmcnt({vq.wait_for({0})})')
    a('s_barrier')
    stamp(a, 1)
    for r in frag_reads(0):
        a(r)
    a('s_waitcnt lgkmcnt(0)')
    for j in range(NS):
        if j + 1 < NS:
            a(f's_waitcnt vmcnt({vq.wait_for({j + 1})})')
        a('s_barrier')
        dma = grp(j + 3) if j + 3 < NS else []
        rd = frag_reads(j + 1) if j + 1 < NS else []
        mm = mfmas(j)
        if OPT('G2_NOCOMP'):
            rd = []; mm = []
        interleave(a, mm, rd, dma, emit_grp, 0, 3)
        a('s_waitcnt lgkmcnt(0)')
    stamp(a, 2)
    a(f'v_lshlrev_b32 v{T}, 4, v{LANE}')
    a('s_lshl_b32 s28, s21, 16')
    a('s_lshl_b32 s29, s22, 12')
    a('s_add_u32 s28, s28, s29')
    a(f'v_add_u32 v{T+1}, s28, v{T}')
    for mb in range(4):
        for nb in range(4):
            c = ACC2 + (mb * 4 + nb) * 4
            a(f'ds_write_b128 v{T+1}, v[{c}:{c+3}] offset:{mb*16384 + nb*1024}')
    a('s_lshl_b32 s28, s24, 7')
    a('s_lshl_b32 s29, s21, 6')
    a('s_add_u32 s28, s28, s29')
    a('s_lshl_b32 s29, s22, 4')
    a('s_add_u32 s28, s28, s29')
    a(f'v_add_u32 v{T+2}, s28, v{L16}')
    a(f'v_lshlrev_b32 v{T+2}, 11, v{T+2}')
    a(f'v_lshl_add_u32 v{T+3}, v{G4}, 3, s32')
    a(f'v_add_u32 v{T+2}, v{T+2}, v{T+3}')
    for nb in range(4):
        a(f'buffer_load_dwordx2 v[{24+2*nb}:{25+2*nb}], v{T+2}, s[40:43], 0 offen offset:{nb*32}')
        a(f'buffer_load_dwordx2 v[{32+2*nb}:{33+2*nb}], v{T+3}, s[36:39], 0 offen offset:{nb*32}')
    a('s_waitcnt lgkmcnt(0)')
    a('s_barrier')
    a('s_lshl_b32 s28, s21, 16')
    a('s_lshl_b32 s29, s22, 14')
    a('s_add_u32 s28, s28, s29')
    a(f'v_add_u32 v{T+1}, s28, v{T}')
    for src in range(4):
        for nb in range(4):
            d = 128 + (src * 4 + nb) * 4
            a(f'ds_read_b128 v[{d}:{d+3}], v{T+1} offset:{src*4096 + nb*1024}')
    a('s_mov_b32 s50, 0xffff0000')
    a('s_waitcnt vmcnt(0) lgkmcnt(0)')
    for i in range(16):
        a(f'v_add_f32 v{128+i}, v{128+i}, v{144+i}')
        a(f'v_add_f32 v{160+i}, v{160+i}, v{176+i}')
    for i in range(16):
        a(f'v_add_f32 v{128+i}, v{128+i}, v{160+i}')
    for nb in range(4):
        for h in range(2):
            r = 128 + nb * 4 + 2 * h
            a(f'v_lshlrev_b32 v40, 16, v{24+2*nb+h}')
            a(f'v_and_b32 v41, s50, v{24+2*nb+h}')
            a(f'v_lshlrev_b32 v42, 16, v{32+2*nb+h}')
            a(f'v_and_b32 v43, s50, v{32+2*nb+h}')
            a(f'v_add_f32 v{r}, v{r}, v42')
            a(f'v_add_f32 v{r+1}, v{r+1}, v43')
            a(f'v_add_f32 v{r}, v{r}, v40')
            a(f'v_add_f32 v{r+1}, v{r+1}, v41')
            a(f'v_cvt_pk_bf16_f32 v{44+2*nb+h}, v{r}, v{r+1}')
        a(f'buffer_store_dwordx2 v[{44+2*nb}:{45+2*nb}], v{T+2}, s[44:47], 0 offen offset:{nb*32}')
    stamp(a, 3)
    if OPT('STAMP'):
        a('s_waitcnt vmcnt(0)')
    stamp(a, 4)
    stamp(a, 6, True)
    stamp_flush(a, 7, 1)
    a('g2_exit:')
    a('s_endpgm')
    return descriptor(name, 192, 100)


X_OFF = 0x2200000
X_SZ = 256 * 32768
FLAG_OFF = 0x2A00000
FLAG_SZ = 256 * 512
CNT_OFF = 0x2C00000
OFLAG_OFF = 0x2B00000
H_SLOT = 32768
H_LDS = 4 * H_SLOT


def gen_gemm2b(a):
    name = 'gemm2_kernel'
    kernel_begin(a, name)
    a('s_cmp_ge_u32 s2, 256')
    a('s_cbranch_scc1 g2_exit')
    a('s_load_dwordx2 s[4:5], s[0:1], 88')
    a('s_load_dwordx2 s[6:7], s[0:1], 24')
    a('s_load_dwordx2 s[56:57], s[0:1], 56')
    a('s_load_dwordx2 s[58:59], s[0:1], 64')
    a('s_load_dwordx2 s[60:61], s[0:1], 0')
    a('s_load_dwordx2 s[62:63], s[0:1], 72')
    a('s_load_dwordx2 s[64:65], s[0:1], 80')
    LANE, G4, L16, T = 14, 15, 16, 17
    VA2, VB2, VGA2, VGB2 = 2, 4, 9, 10
    a('v_lshrrev_b32 v1, 6, v0')
    a(f'v_and_b32 v{LANE}, 63, v0')
    a('s_nop 0')
    a('v_readfirstlane_b32 s20, v1')
    a(f'v_lshrrev_b32 v{G4}, 4, v{LANE}')
    a(f'v_and_b32 v{L16}, 15, v{LANE}')
    a('s_nop 1')
    a('s_and_b32 s21, s20, 1')
    a('s_bfe_u32 s23, s20, 0x10001')
    a('s_lshr_b32 s22, s20, 2')
    a('s_and_b32 s26, s2, 7')
    a('s_lshr_b32 s27, s2, 3')
    a('s_and_b32 s33, s26, 1')
    a('s_lshr_b32 s24, s26, 1')
    a('s_lshl_b32 s24, s24, 2')
    a('s_and_b32 s28, s27, 3')
    a('s_add_u32 s24, s24, s28')
    a('s_lshr_b32 s25, s27, 2')
    a(f'v_lshrrev_b32 v{T}, 3, v{LANE}')
    a(f'v_and_b32 v{T+1}, 7, v{LANE}')
    a(f'v_xor_b32 v{T+1}, v{T+1}, v{T}')
    a('s_lshl_b32 s28, s24, 7')
    a('s_lshl_b32 s29, s20, 3')
    a('s_add_u32 s28, s28, s29')
    a(f'v_add_u32 v{T}, s28, v{T}')
    a('s_movk_i32 s29, 9216')
    a(f'v_mul_lo_u32 v{T}, v{T}, s29')
    a(f'v_lshl_add_u32 v{T}, v{T+1}, 4, v{T}')
    a('s_mul_i32 s28, s33, 4608')
    a(f'v_add_u32 v{VGA2}, s28, v{T}')
    a('s_lshl_b32 s30, s20, 10')
    a(f'v_lshrrev_b32 v{T}, 3, v{LANE}')
    a(f'v_bfe_u32 v{T+1}, v{LANE}, 4, 1')
    a('s_lshl_b32 s28, s21, 1')
    a(f'v_or_b32 v{T+1}, s28, v{T+1}')
    a(f'v_bfe_u32 v{T+2}, v{LANE}, 1, 2')
    a(f'v_xor_b32 v{T+2}, v{T+2}, v{T+1}')
    a(f'v_and_b32 v{T+3}, 1, v{LANE}')
    a(f'v_lshlrev_b32 v{T+3}, 4, v{T+3}')
    a(f'v_lshl_add_u32 v{T+3}, v{T+2}, 5, v{T+3}')
    a('s_lshl_b32 s28, s20, 3')
    a(f'v_add_u32 v{T}, s28, v{T}')
    a(f'v_lshl_add_u32 v{T}, v{T}, 11, v{T+3}')
    a('s_lshl_b32 s32, s25, 8')
    a(f'v_add_u32 v{VGB2}, s32, v{T}')
    a('s_waitcnt lgkmcnt(0)')
    srd(a, 8, 4, ACT2_SZ, ACT2_OFF)
    a('s_cmp_eq_u32 s33, 0')
    a('s_cbranch_scc0 g2_kh1')
    srd(a, 12, 6, 1024 * 2048)
    a(f's_sub_u32 s16, s56, 0x{1024*2048:x}')
    a('s_subb_u32 s17, s57, 0')
    a('s_and_b32 s17, s17, 0xffff')
    a(f's_mov_b32 s18, 0x{4608*2048:x}')
    a('s_mov_b32 s19, 0x00020000')
    a('s_branch g2_khd')
    a('g2_kh1:')
    srd(a, 12, 56, (3584 - 1280) * 2048, 1280 * 2048)
    srd(a, 16, 56, (3584 - 1280) * 2048, 1280 * 2048)
    a('g2_khd:')
    vq = VQ()
    NS = 36

    def grp(j):
        sl = j % 4
        out = []
        for q in range(2):
            out.append(([f's_add_u32 m0, s30, 0x{sl*H_SLOT + q*8192:x}',
                         f's_mov_b32 s28, 0x{j*128 + q*64*9216:x}',
                         f'buffer_load_dwordx4 v{VGA2}, s[8:11], s28 offen lds'], j))
        sr = 's[12:15]' if j < 16 else 's[16:19]'
        for q in range(2):
            out.append(([f's_add_u32 m0, s30, 0x{sl*H_SLOT + 16384 + q*8192:x}',
                         f's_mov_b32 s28, 0x{j*64*2048 + q*128:x}',
                         f'buffer_load_dwordx4 v{VGB2}, {sr}, s28 offen lds'], j))
        return out

    def emit_grp(g):
        for l in g[0]:
            a(l)
        vq.push(g[1])

    for j in range(4):
        for g in grp(j):
            emit_grp(g)
    stamp(a, 5, True)
    stamp(a, 0)
    srd(a, 36, 58, 2048)
    srd(a, 40, 60, XN_SZ)
    srd(a, 44, 62, XN_SZ)
    srd(a, 48, 4, X_SZ, X_OFF)
    srd(a, 52, 4, FLAG_SZ, FLAG_OFF)
    a('s_lshl_b32 s28, s22, 2')
    a(f'v_add_u32 v{T}, s28, v{G4}')
    a(f'v_and_b32 v{T+1}, 7, v{LANE}')
    a(f'v_xor_b32 v{T}, v{T}, v{T+1}')
    a(f'v_lshlrev_b32 v{T}, 4, v{T}')
    a(f'v_lshl_add_u32 v{T}, v{L16}, 7, v{T}')
    a('s_lshl_b32 s28, s21, 13')
    a(f'v_add_u32 v{VA2}, s28, v{T}')
    a(f'v_add_u32 v{VA2+1}, 0x10000, v{VA2}')
    a(f'v_lshrrev_b32 v{T}, 2, v{L16}')
    a(f'v_lshl_add_u32 v{T+1}, v{G4}, 3, v{T}')
    a('s_lshl_b32 s28, s22, 5')
    a(f'v_add_u32 v{T+1}, s28, v{T+1}')
    a(f'v_lshrrev_b32 v{T+2}, 1, v{T}')
    a(f'v_and_b32 v{T+3}, 1, v{G4}')
    a(f'v_lshl_or_b32 v{T+2}, v{T+3}, 1, v{T+2}')
    a(f'v_and_b32 v{T+4}, 3, v{LANE}')
    a(f'v_lshlrev_b32 v{T+4}, 3, v{T+4}')
    a(f'v_lshl_add_u32 v{T+5}, v{T+1}, 7, v{T+4}')
    a('s_lshl_b32 s28, s23, 13')
    a('s_add_u32 s28, s28, 16384')
    a(f'v_add_u32 v{T+5}, s28, v{T+5}')
    for nb in range(4):
        a(f'v_xor_b32 v{T+6}, {nb}, v{T+2}')
        a(f'v_lshl_add_u32 v{VB2+nb}, v{T+6}, 5, v{T+5}')
        a(f'v_add_u32 v{24+nb}, 0x10000, v{VB2+nb}')
    ACC2 = 64
    SETS2 = (32, 128)
    for i in range(64):
        a(f'v_mov_b32 v{ACC2+i}, 0')

    def frag_reads(j):
        S = SETS2[j & 1]
        sl = j % 4
        hi = sl >> 1
        so = (sl & 1) * H_SLOT
        out = []
        for mb in range(4):
            out.append(f'ds_read_b128 v[{S+4*mb}:{S+4*mb+3}], v{VA2+hi} offset:{so + mb*2048}')
        for nb in range(4):
            d = S + 16 + 4 * nb
            vb = (24 if hi else VB2) + nb
            for t in range(2):
                out.append(f'ds_read_b64_tr_b16 v[{d+2*t}:{d+2*t+1}], v{vb} offset:{so + t*512}')
        return out

    def mfmas(j):
        S = SETS2[j & 1]
        out = []
        for nb in range(4):
            for mb in range(4):
                c = ACC2 + (mb * 4 + nb) * 4
                out.append(f'v_mfma_f32_16x16x32_bf16 v[{c}:{c+3}], v[{S+16+4*nb}:{S+19+4*nb}], v[{S+4*mb}:{S+4*mb+3}], v[{c}:{c+3}]')
        return out

    a(f's_waitcnt vmcnt({vq.wait_for({0})})')
    a('s_barrier')
    stamp(a, 1)
    for r in frag_reads(0):
        a(r)
    a('s_waitcnt lgkmcnt(0)')
    for j in range(NS):
        if j + 1 < NS:
            a(f's_waitcnt vmcnt({vq.wait_for({j + 1})})')
        a('s_barrier')
        dma = grp(j + 4) if j + 4 < NS else []
        rd = frag_reads(j + 1) if j + 1 < NS else []
        mm = mfmas(j)
        interleave(a, mm, rd, dma, emit_grp, 0, 4)
        a('s_waitcnt lgkmcnt(0)')
    stamp(a, 2)
    a(f'v_lshlrev_b32 v{T}, 4, v{LANE}')
    a('s_and_b32 s28, s20, 3')
    a('s_lshl_b32 s28, s28, 14')
    a('s_xor_b32 s29, s22, 1')
    a('s_lshl_b32 s29, s29, 13')
    a('s_add_u32 s29, s29, s28')
    a(f'v_add_u32 v{T+1}, s29, v{T}')
    a('s_lshl_b32 s29, s22, 13')
    a('s_add_u32 s29, s29, s28')
    a(f'v_add_u32 v{T+2}, s29, v{T}')
    a('s_cmp_eq_u32 s22, 0')
    a('s_cbranch_scc0 g2_ks1')
    for r in range(8):
        a(f'ds_write_b128 v{T+1}, v[{ACC2+32+4*r}:{ACC2+35+4*r}] offset:{r*1024}')
    a('s_branch g2_ksd')
    a('g2_ks1:')
    for r in range(8):
        a(f'ds_write_b128 v{T+1}, v[{ACC2+4*r}:{ACC2+3+4*r}] offset:{r*1024}')
    for r in range(32):
        a(f'v_mov_b32 v{ACC2+r}, v{ACC2+32+r}')
    a('g2_ksd:')
    a('s_waitcnt lgkmcnt(0)')
    a('s_barrier')
    for r in range(8):
        a(f'ds_read_b128 v[{128+4*r}:{131+4*r}], v{T+2} offset:{r*1024}')
    a('s_waitcnt lgkmcnt(0)')
    for r in range(32):
        a(f'v_add_f32 v{ACC2+r}, v{ACC2+r}, v{128+r}')
    a('s_lshl_b32 s28, s21, 1')
    a('s_add_u32 s28, s28, s22')
    a('s_lshl_b32 s67, s28, 7')
    a('s_lshl_b32 s28, s28, 13')
    a(f'v_add_u32 v{T+1}, s28, v{T}')
    a('s_cmp_eq_u32 s23, s33')
    a('s_cbranch_scc1 g2_recv')
    a('s_lshl_b32 s28, s2, 15')
    for r in range(8):
        a(f'buffer_store_dwordx4 v[{ACC2+4*r}:{ACC2+3+4*r}], v{T+1}, s[48:51], s28 offen offset:{r*1024 if r < 4 else (r-4)*1024} sc1' if r < 4 else
          f'buffer_store_dwordx4 v[{ACC2+4*r}:{ACC2+3+4*r}], v{T+1}, s[48:51], s29 offen offset:{(r-4)*1024} sc1')
        if r == 3:
            a('s_add_u32 s29, s28, 4096')
    a('s_waitcnt vmcnt(0)')
    a('s_lshl_b32 s28, s2, 9')
    a('s_add_u32 s28, s28, s67')
    a('v_mov_b32 v1, 1')
    a('v_mov_b32 v2, s28')
    a('s_mov_b64 exec, 1')
    a('buffer_store_dword v1, v2, s[52:55], 0 offen sc1')
    a('s_branch g2_fin')
    a('g2_recv:')
    a('s_lshl_b32 s28, s24, 7')
    a('s_lshl_b32 s29, s21, 6')
    a('s_add_u32 s28, s28, s29')
    a('s_lshl_b32 s29, s22, 5')
    a('s_add_u32 s28, s28, s29')
    a(f'v_add_u32 v{T+2}, s28, v{L16}')
    a(f'v_lshlrev_b32 v{T+2}, 11, v{T+2}')
    a('s_lshl_b32 s29, s23, 7')
    a('s_add_u32 s29, s29, s32')
    a(f'v_lshl_add_u32 v{T+3}, v{G4}, 3, s29')
    a(f'v_add_u32 v{T+2}, v{T+2}, v{T+3}')
    a('s_mov_b32 s34, 32768')
    for e in range(2):
        for nb in range(4):
            so = '0' if e == 0 else 's34'
            a(f'buffer_load_dwordx2 v[{32+8*e+2*nb}:{33+8*e+2*nb}], v{T+2}, s[40:43], {so} offen offset:{nb*32}')
    for nb in range(4):
        a(f'buffer_load_dwordx2 v[{48+2*nb}:{49+2*nb}], v{T+3}, s[36:39], 0 offen offset:{nb*32}')
    a('s_xor_b32 s35, s2, 1')
    a('s_lshl_b32 s28, s35, 9')
    a('s_add_u32 s28, s28, s67')
    a('v_mov_b32 v2, s28')
    a('g2_poll:')
    a('buffer_load_dword v1, v2, s[52:55], 0 offen sc1')
    a('s_waitcnt vmcnt(0)')
    a('v_readfirstlane_b32 s28, v1')
    a('s_nop 3')
    a('s_cmp_eq_u32 s28, 1')
    a('s_cbranch_scc1 g2_ready')
    a('s_sleep 1')
    a('s_branch g2_poll')
    a('g2_ready:')
    a('s_lshl_b32 s28, s35, 15')
    a('s_add_u32 s29, s28, 4096')
    for r in range(8):
        a(f'buffer_load_dwordx4 v[{128+4*r}:{131+4*r}], v{T+1}, s[48:51], s{28 if r < 4 else 29} offen offset:{(r % 4)*1024} sc1')
    a('s_mov_b32 s66, 0xffff0000')
    a('s_waitcnt vmcnt(0)')
    for r in range(32):
        a(f'v_add_f32 v{ACC2+r}, v{ACC2+r}, v{128+r}')
    for e in range(2):
        for nb in range(4):
            for h in range(2):
                r = ACC2 + (e * 4 + nb) * 4 + 2 * h
                xr = 32 + 8 * e + 2 * nb + h
                br = 48 + 2 * nb + h
                a(f'v_lshlrev_b32 v56, 16, v{xr}')
                a(f'v_and_b32 v57, s66, v{xr}')
                a(f'v_lshlrev_b32 v58, 16, v{br}')
                a(f'v_and_b32 v59, s66, v{br}')
                a(f'v_add_f32 v{r}, v{r}, v58')
                a(f'v_add_f32 v{r+1}, v{r+1}, v59')
                a(f'v_add_f32 v{r}, v{r}, v56')
                a(f'v_add_f32 v{r+1}, v{r+1}, v57')
                a(f'v_cvt_pk_bf16_f32 v{160+(e*4+nb)*2+h}, v{r}, v{r+1}')
            o = 160 + (e * 4 + nb) * 2
            so = '0' if e == 0 else 's34'
            a(f'buffer_store_dwordx2 v[{o}:{o+1}], v{T+2}, s[44:47], {so} offen offset:{nb*32}')
    a('g2_fin:')
    stamp(a, 3)
    if OPT('STAMP'):
        a('s_waitcnt vmcnt(0)')
    stamp(a, 4)
    stamp(a, 6, True)
    stamp_flush(a, 7, 1)
    a('g2_exit:')
    a('s_endpgm')
    return descriptor(name, 192, 100)


def gen_gemm2c(a):
    STAMP_REGS[:] = [96, 97, 98, 99, 100, 101, 75]
    name = 'gemm2_kernel'
    if FUSE12:
        a('g12_p2:')
    else:
        kernel_begin(a, name)
        a('s_cmp_ge_u32 s2, 256')
        a('s_cbranch_scc1 g2_exit')
    a('s_load_dwordx2 s[4:5], s[0:1], 88')
    a('s_load_dwordx2 s[6:7], s[0:1], 24')
    a('s_load_dwordx2 s[56:57], s[0:1], 56')
    a('s_load_dwordx2 s[58:59], s[0:1], 64')
    a('s_load_dwordx2 s[60:61], s[0:1], 0')
    a('s_load_dwordx2 s[62:63], s[0:1], 72')
    a('s_load_dwordx2 s[64:65], s[0:1], 80')
    LANE, G4, L16, T = 14, 15, 16, 17
    VA2, VB2, VGA2, VGB2 = 2, 4, 9, 10
    a('v_lshrrev_b32 v1, 6, v0')
    a(f'v_and_b32 v{LANE}, 63, v0')
    a('s_nop 0')
    a('v_readfirstlane_b32 s20, v1')
    a(f'v_lshrrev_b32 v{G4}, 4, v{LANE}')
    a(f'v_and_b32 v{L16}, 15, v{LANE}')
    a('s_nop 1')
    a('s_and_b32 s21, s20, 1')
    a('s_bfe_u32 s23, s20, 0x10001')
    a('s_lshr_b32 s22, s20, 2')
    a('s_and_b32 s26, s2, 7')
    a('s_lshr_b32 s27, s2, 3')
    a('s_and_b32 s33, s26, 1')
    a('s_lshr_b32 s24, s26, 1')
    a('s_lshl_b32 s24, s24, 2')
    a('s_and_b32 s28, s27, 3')
    a('s_add_u32 s24, s24, s28')
    a('s_lshr_b32 s25, s27, 2')
    a('s_lshl_b32 s28, s20, 11')
    a('s_lshl_b32 s29, s24, 7')
    a('s_add_u32 s28, s28, s29')
    a(f'v_add_u32 v{T}, s28, v{LANE}')
    a(f'v_lshlrev_b32 v{VGA2}, 4, v{T}')
    a('s_lshl_b32 s31, s20, 11')
    a('s_lshl_b32 s30, s20, 10')
    a(f'v_lshrrev_b32 v{T}, 3, v{LANE}')
    a(f'v_bfe_u32 v{T+1}, v{LANE}, 4, 1')
    a('s_lshl_b32 s28, s21, 1')
    a(f'v_or_b32 v{T+1}, s28, v{T+1}')
    a(f'v_bfe_u32 v{T+2}, v{LANE}, 1, 2')
    a(f'v_xor_b32 v{T+2}, v{T+2}, v{T+1}')
    a(f'v_and_b32 v{T+3}, 1, v{LANE}')
    a(f'v_lshlrev_b32 v{T+3}, 4, v{T+3}')
    a(f'v_lshl_add_u32 v{T+3}, v{T+2}, 5, v{T+3}')
    a('s_lshl_b32 s28, s20, 3')
    a(f'v_add_u32 v{T}, s28, v{T}')
    a(f'v_lshl_add_u32 v{T}, v{T}, 11, v{T+3}')
    a('s_lshl_b32 s32, s25, 8')
    a(f'v_add_u32 v{VGB2}, s32, v{T}')
    a('s_waitcnt lgkmcnt(0)')
    srd(a, 8, 4, ACT2_SZ, ACT2_OFF)
    a(f's_mul_i32 s28, s33, 0x{1792*2048:x}')
    a('s_add_u32 s12, s56, s28')
    a('s_addc_u32 s13, s57, 0')
    a('s_and_b32 s13, s13, 0xffff')
    a(f's_mov_b32 s14, 0x{1792*2048:x}')
    a('s_mov_b32 s15, 0x00020000')
    a('s_lshl_b32 s28, s33, 20')
    a('s_add_u32 s16, s6, s28')
    a('s_addc_u32 s17, s7, 0')
    a(f's_sub_u32 s16, s16, 0x{1792*2048:x}')
    a('s_subb_u32 s17, s17, 0')
    a('s_and_b32 s17, s17, 0xffff')
    a(f's_mov_b32 s18, 0x{36*131072:x}')
    a('s_mov_b32 s19, 0x00020000')
    a(f's_mul_i32 s68, s33, 0x{224*32768:x}')
    a(f's_add_u32 s68, s68, 0x{128*32768:x}')
    a('s_lshl_b32 s69, s33, 21')
    a(f's_sub_u32 s69, s69, 0x{224*32768:x}')
    vq = VQ()
    NS = 36

    def grp(j):
        sl = j % 4
        out = []
        for q in range(2):
            out.append(([f's_add_u32 m0, s31, 0x{sl*H_SLOT + q*1024:x}',
                         f's_add_u32 s28, s{68 if j < 28 else 69}, 0x{j*8*32768 + q*1024:x}',
                         f'buffer_load_dwordx4 v{VGA2}, s[8:11], s28 offen lds'], j))
        sr = 's[12:15]' if j < 28 else 's[16:19]'
        for q in range(2):
            out.append(([f's_add_u32 m0, s30, 0x{sl*H_SLOT + 16384 + q*8192:x}',
                         f's_mov_b32 s28, 0x{j*64*2048 + q*128:x}',
                         f'buffer_load_dwordx4 v{VGB2}, {sr}, s28 offen lds'], j))
        return out

    def emit_grp(g):
        for l in g[0]:
            a(l)
        vq.push(g[1])


    def o_block():
        srd(a, 80, 4, KVP_SZ, KVP_OFF)
        srd(a, 84, 4, PHIQ_SZ, PHIQ_OFF)
        a('s_and_b32 s70, s2, 31')
        a('s_lshr_b32 s71, s2, 5')
        a('s_lshl_b32 s28, s21, 12')
        a('s_bfe_u32 s29, s20, 0x10001')
        a('s_lshl_b32 s29, s29, 11')
        a('s_add_u32 s28, s28, s29')
        a(f'v_lshl_add_u32 v{T}, v{LANE}, 4, s28')
        a(f'v_add_u32 v{T+1}, 1024, v{T}')
        a('s_lshl_b32 s29, s21, 7')
        a('s_add_u32 s29, s29, 8192')
        a(f'v_lshl_add_u32 v{T+2}, v{G4}, 4, s29')
        a(f'v_add_u32 v{T+3}, 64, v{T+2}')
        a('s_cmp_lt_u32 s20, 4')
        a('s_cselect_b64 s[34:35], -1, 0')
        a('s_cselect_b32 s94, -1, 0x00010001')
        a('s_mov_b32 s95, s94')
        a(f'v_cndmask_b32 v11, v{T+2}, v{T}, s[34:35]')
        a(f'v_cndmask_b32 v13, v{T+3}, v{T+1}, s[34:35]')
        a(f's_mul_i32 s72, s70, {8*KVP_ENT}')
        a('s_lshl_b32 s28, s71, 5')
        a('s_lshl_b32 s29, s20, 2')
        a('s_add_u32 s28, s28, s29')
        a('s_lshl_b32 s28, s28, 10')
        a('s_lshl_b32 s29, s70, 17')
        a('s_add_u32 s28, s28, s29')
        a(f'v_lshl_add_u32 v12, v{LANE}, 4, s28')
        a('s_lshl_b32 s28, s70, 11')
        a('s_add_u32 s28, s28, 0x400000')
        a(f'v_lshl_add_u32 v27, v{LANE}, 4, s28')
        QF, WPF, KP = 128, 144, 64
        for mb in range(4):
            a(f'buffer_load_dwordx4 v[{QF+4*mb}:{QF+3+4*mb}], v12, s[84:87], 0 offen offset:{mb*1024}')
        for fb in range(2):
            a(f'buffer_load_dwordx4 v[{WPF+4*fb}:{WPF+3+4*fb}], v27, s[84:87], 0 offen offset:{fb*1024}')
        a('s_mov_b64 exec, s[94:95]')
        for mt in range(8):
            a(f's_add_u32 s28, s72, {mt*KVP_ENT}')
            a(f'buffer_load_dwordx4 v[{KP+8*mt}:{KP+3+8*mt}], v11, s[80:83], s28 offen')
            a(f'buffer_load_dwordx4 v[{KP+4+8*mt}:{KP+7+8*mt}], v13, s[80:83], s28 offen')
        a('s_mov_b64 exec, -1')
        a('s_lshl_b32 s28, s71, 9')
        a('s_lshl_b32 s29, s20, 6')
        a('s_add_u32 s28, s28, s29')
        a('s_lshl_b32 s29, s70, 13')
        a('s_add_u32 s28, s28, s29')
        a(f'v_add_u32 v28, s28, v{L16}')
        a(f'v_and_b32 v{T+3}, 1, v{G4}')
        a(f'v_lshl_add_u32 v28, v{T+3}, 4, v28')
        a(f'v_lshrrev_b32 v{T+3}, 1, v{G4}')
        a(f'v_lshl_add_u32 v28, v{T+3}, 11, v28')
        a('v_lshlrev_b32 v28, 4, v28')
        a(f'v_lshlrev_b32 v29, 4, v{LANE}')
        a(f'v_add_u32 v29, 0x{H_LDS:x}, v29')
        a('v_add_u32 v30, s30, v29')
        a(f'v_lshlrev_b32 v26, 8, v{G4}')
        a(f'v_add_u32 v26, 0x{H_LDS:x}, v26')
        a('s_mov_b32 s66, 0xffff0000')
        a(f's_mov_b32 s76, 0x{LOG2E:x}')
        a('s_waitcnt vmcnt(16)')
        PQ = 152
        for mb in range(4):
            for fb in range(2):
                d = PQ + (mb * 2 + fb) * 4
                a(f'v_mfma_f32_16x16x32_bf16 v[{d}:{d+3}], v[{WPF+4*fb}:{WPF+3+4*fb}], v[{QF+4*mb}:{QF+3+4*mb}], 0')
        for i in range(0, 32, 2):
            r = PQ + i
            a(f'v_cvt_pk_bf16_f32 v{32+(i>>1)%8}, v{r}, v{r+1}')
            a(f'v_lshlrev_b32 v{r}, 16, v{32+(i>>1)%8}')
            a(f'v_and_b32 v{r+1}, s66, v{32+(i>>1)%8}')
        MX, MN, S1, S2, E = 32, 36, 40, 44, 184
        for mb in range(4):
            p = PQ + mb * 8
            a(f'v_max3_f32 v{MX+mb}, v{p}, v{p+1}, v{p+2}')
            a(f'v_min3_f32 v{MN+mb}, v{p}, v{p+1}, v{p+2}')
            a(f'v_max3_f32 v{MX+mb}, v{MX+mb}, v{p+3}, v{p+4}')
            a(f'v_min3_f32 v{MN+mb}, v{MN+mb}, v{p+3}, v{p+4}')
            a(f'v_max3_f32 v{MX+mb}, v{MX+mb}, v{p+5}, v{p+6}')
            a(f'v_min3_f32 v{MN+mb}, v{MN+mb}, v{p+5}, v{p+6}')
            a(f'v_max_f32 v{MX+mb}, v{MX+mb}, v{p+7}')
            a(f'v_min_f32 v{MN+mb}, v{MN+mb}, v{p+7}')
        for mb in range(4):
            cross_groups(a, 'v_max_f32', MX + mb, 48)
            cross_groups(a, 'v_min_f32', MN + mb, 49)
        for mb in range(4):
            a(f'v_mul_f32 v{MX+mb}, s76, v{MX+mb}')
            a(f'v_mul_f32 v{MN+mb}, s76, v{MN+mb}')
        for mb in range(4):
            p = PQ + mb * 8
            e = E + mb * 16
            for i in range(8):
                a(f'v_fma_f32 v{e+i}, v{p+i}, s76, -v{MX+mb}')
                a(f'v_fma_f32 v{e+8+i}, -v{p+i}, s76, v{MN+mb}')
        for i in range(64):
            a(f'v_exp_f32 v{E+i}, v{E+i}')
        for mb in range(4):
            e = E + mb * 16
            for (S, b) in ((S1, e), (S2, e + 8)):
                a(f'v_add_f32 v{S+mb}, v{b}, v{b+1}')
                for i in range(2, 8):
                    a(f'v_add_f32 v{S+mb}, v{S+mb}, v{b+i}')
        for mb in range(4):
            cross_groups(a, 'v_add_f32', S1 + mb, 48)
            cross_groups(a, 'v_add_f32', S2 + mb, 49)
        for mb in range(4):
            a(f'v_rcp_f32 v{S1+mb}, v{S1+mb}')
            a(f'v_rcp_f32 v{S2+mb}, v{S2+mb}')
        for mb in range(4):
            e = E + mb * 16
            for i in range(8):
                a(f'v_mul_f32 v{e+i}, v{e+i}, v{S1+mb}')
                a(f'v_mul_f32 v{e+8+i}, v{e+8+i}, v{S2+mb}')
        PF = 128
        for mb in range(4):
            for i in range(8):
                a(f'v_cvt_pk_bf16_f32 v{PF+8*mb+i}, v{E+16*mb+2*i}, v{E+16*mb+2*i+1}')
        a('s_waitcnt vmcnt(0)')
        for mt in range(1, 8):
            for i in range(8):
                a(f'v_add_f32 v{KP+i}, v{KP+i}, v{KP+8*mt+i}')
        for i in range(4):
            a(f'v_cvt_pk_bf16_f32 v{KP+8+i}, v{KP+2*i}, v{KP+1+2*i}')
        a('s_mov_b64 exec, s[94:95]')
        a(f'ds_write_b128 v30, v[{KP+8}:{KP+11}]')
        a('s_mov_b64 exec, -1')
        a('s_waitcnt lgkmcnt(0)')
        a('s_barrier')
        KF0, NUM, DEN = 80, 160, 192
        for i in range(6):
            a(f'ds_read_b128 v[{KF0+4*i}:{KF0+3+4*i}], v{29 if i < 4 else 26} offset:{i*1024}')
        a('s_waitcnt lgkmcnt(0)')
        for ks in range(2):
            for mb in range(4):
                pf = PF + (mb * 2 + ks) * 4
                for db in range(2):
                    d = NUM + (mb * 2 + db) * 4
                    kf = KF0 + (ks * 2 + db) * 4
                    cc = '0' if ks == 0 else f'v[{d}:{d+3}]'
                    a(f'v_mfma_f32_16x16x32_bf16 v[{d}:{d+3}], v[{kf}:{kf+3}], v[{pf}:{pf+3}], {cc}')
                d = DEN + mb * 4
                zf = KF0 + (4 + ks) * 4
                cc = '0' if ks == 0 else f'v[{d}:{d+3}]'
                a(f'v_mfma_f32_16x16x32_bf16 v[{d}:{d+3}], v[{zf}:{zf+3}], v[{pf}:{pf+3}], {cc}')
        a(f's_mov_b32 s73, {2*32768}')
        for mb in range(4):
            dn = DEN + mb * 4
            round_bf16(a, dn, dn)
            a(f'v_add_f32 v{dn}, 0x{f2u(1e-6):x}, v{dn}')
            round_bf16(a, dn, dn)
            a(f'v_rcp_f32 v{dn+1}, v{dn}')
        for mb in range(4):
            dn = DEN + mb * 4
            for db in range(2):
                n = NUM + (mb * 2 + db) * 4
                t = 32 + db * 8
                for h in range(2):
                    a(f'v_cvt_pk_bf16_f32 v{t+h}, v{n+2*h}, v{n+2*h+1}')
                    a(f'v_lshlrev_b32 v{n+2*h}, 16, v{t+h}')
                    a(f'v_and_b32 v{n+2*h+1}, s66, v{t+h}')
                for i in range(4):
                    a(f'v_mul_f32 v{t+4+i}, v{n+i}, v{dn+1}')
                for i in range(4):
                    a(f'v_fma_f32 v{n+i}, -v{t+4+i}, v{dn}, v{n+i}')
                for i in range(4):
                    a(f'v_fmac_f32 v{t+4+i}, v{n+i}, v{dn+1}')
                o = 208 + (mb >> 1) * 8 + db * 4 + (mb & 1) * 2
                a(f'v_cvt_pk_bf16_f32 v{o}, v{t+4}, v{t+5}')
                a(f'v_cvt_pk_bf16_f32 v{o+1}, v{t+6}, v{t+7}')
        for p in range(2):
            for db in range(2):
                o = 208 + p * 8 + db * 4
                a(f'v_permlane16_swap_b32 v{o}, v{o+2}')
                a(f'v_permlane16_swap_b32 v{o+1}, v{o+3}')
                a(f'buffer_store_dwordx4 v[{o}:{o+3}], v28, s[8:11], {"0" if db == 0 else "s73"} offen offset:{p*512} sc1')

    OBLK = FUSE12 and not OPT('NO_OBLK')
    if FUSE12:
        for j in range(4):
            for g in grp(j)[2:]:
                emit_grp(g)
        srd(a, 36, 4, 4096, CNT_OFF)
        a('s_lshr_b32 s28, s24, 1')
        a('s_lshl_b32 s28, s28, 1')
        a('s_add_u32 s28, s28, s33')
        a('s_lshl_b32 s28, s28, 7')
        a('s_bfe_u32 s29, s2, 0x40001')
        a('s_add_u32 s29, s29, 16')
        a('s_lshl_b32 s29, s29, 7')
        a('v_mov_b32 v31, 0')
        if OPT('STAMPB'):
            stamp(a, 2)
        if OBLK:
            a('s_mov_b32 s67, s28')
            a('s_cmp_ge_u32 s2, 128')
            a('s_cbranch_scc1 g12_poll')
            a('g12_pollq:')
            a('buffer_load_dword v1, v31, s[36:39], s29 offen sc1')
            a('s_waitcnt vmcnt(0)')
            a('v_readfirstlane_b32 s34, v1')
            a('s_nop 3')
            a('s_cmp_ge_u32 s34, 8')
            a('s_cbranch_scc1 g12_goq')
            a('s_sleep 2')
            a('s_branch g12_pollq')
            a('g12_goq:')
            o_block()
            a('v_mov_b32 v31, 0')
            a('g12_poll:')
            a('buffer_load_dword v1, v31, s[36:39], s67 offen sc1')
            a('s_waitcnt vmcnt(0)')
            a('v_readfirstlane_b32 s34, v1')
            a('s_nop 3')
            a('s_cmp_ge_u32 s34, 8')
            a('s_cbranch_scc1 g12_go')
            a('s_sleep 2')
            a('s_branch g12_poll')
        else:
            a('g12_poll:')
            a('buffer_load_dword v1, v31, s[36:39], s28 offen sc1')
            a('buffer_load_dword v30, v31, s[36:39], s29 offen sc1')
            a('s_waitcnt vmcnt(0)')
            a('v_min_u32 v1, v1, v30')
            a('s_nop 0')
            a('v_readfirstlane_b32 s34, v1')
            a('s_nop 3')
            a('s_cmp_ge_u32 s34, 8')
            a('s_cbranch_scc1 g12_go')
            a('s_sleep 2')
            a('s_branch g12_poll')
        a('g12_go:')
        if OPT('STAMPB'):
            stamp(a, 3)
        for j in range(4):
            for g in grp(j)[:2]:
                emit_grp(g)
    else:
        for j in range(4):
            for g in grp(j):
                emit_grp(g)
    if not OPT('STAMPB'):
        stamp(a, 5, True)
        stamp(a, 0)
    srd(a, 80, 4, KVP_SZ, KVP_OFF)
    srd(a, 84, 4, PHIQ_SZ, PHIQ_OFF)
    a('s_and_b32 s70, s2, 31')
    a('s_lshr_b32 s71, s2, 5')
    a('s_lshl_b32 s28, s21, 12')
    a('s_bfe_u32 s29, s20, 0x10001')
    a('s_lshl_b32 s29, s29, 11')
    a('s_add_u32 s28, s28, s29')
    a(f'v_lshl_add_u32 v{T}, v{LANE}, 4, s28')
    a(f'v_add_u32 v{T+1}, 1024, v{T}')
    a('s_lshl_b32 s29, s21, 7')
    a('s_add_u32 s29, s29, 8192')
    a(f'v_lshl_add_u32 v{T+2}, v{G4}, 4, s29')
    a(f'v_add_u32 v{T+3}, 64, v{T+2}')
    a('s_cmp_lt_u32 s20, 4')
    a('s_cselect_b64 s[34:35], -1, 0')
    a(f'v_cndmask_b32 v{T}, v{T+2}, v{T}, s[34:35]')
    a(f'v_cndmask_b32 v13, v{T+3}, v{T+1}, s[34:35]')
    a('s_cselect_b32 s94, -1, 0x00010001')
    a('s_mov_b32 s95, s94')
    a(f's_mul_i32 s72, s70, {8*KVP_ENT}')
    a(f'v_mov_b32 v11, v{T}')
    ogrp = []
    for mt in range(8):
        ogrp.append(([f's_add_u32 s28, s72, {mt*KVP_ENT}', 's_mov_b64 exec, s[94:95]',
                      f'buffer_load_dwordx4 v[{160+8*mt}:{163+8*mt}], v11, s[80:83], s28 offen', 's_mov_b64 exec, -1'], 'o'))
        ogrp.append(([f's_add_u32 s28, s72, {mt*KVP_ENT}', 's_mov_b64 exec, s[94:95]',
                      f'buffer_load_dwordx4 v[{164+8*mt}:{167+8*mt}], v13, s[80:83], s28 offen', 's_mov_b64 exec, -1'], 'o'))
    a('s_lshl_b32 s28, s71, 8')
    a('s_lshl_b32 s29, s20, 5')
    a('s_add_u32 s28, s28, s29')
    a(f'v_add_u32 v{T+1}, s28, v{L16}')
    a('s_lshl_b32 s28, s71, 4')
    a('s_lshl_b32 s29, s20, 1')
    a('s_add_u32 s28, s28, s29')
    a('s_lshl_b32 s28, s28, 10')
    a('s_lshl_b32 s29, s70, 17')
    a('s_add_u32 s28, s28, s29')
    a(f'v_lshl_add_u32 v12, v{LANE}, 4, s28')
    a('s_lshl_b32 s28, s70, 11')
    a('s_add_u32 s28, s28, 0x400000')
    a(f'v_lshl_add_u32 v27, v{LANE}, 4, s28')
    for mb in range(2):
        ogrp.append(([f'buffer_load_dwordx4 v[{224+4*mb}:{227+4*mb}], v12, s[84:87], 0 offen offset:{mb*1024}'], 'oq'))
    for fb in range(2):
        ogrp.append(([f'buffer_load_dwordx4 v[{232+4*fb}:{235+4*fb}], v27, s[84:87], 0 offen offset:{fb*1024}'], 'oq'))
    a('s_lshl_b32 s28, s71, 8')
    a('s_lshl_b32 s29, s20, 5')
    a('s_add_u32 s28, s28, s29')
    a('s_lshl_b32 s29, s70, 13')
    a('s_add_u32 s28, s28, s29')
    a(f'v_add_u32 v28, s28, v{L16}')
    a(f'v_and_b32 v{T+3}, 1, v{G4}')
    a(f'v_lshl_add_u32 v28, v{T+3}, 4, v28')
    a(f'v_lshrrev_b32 v{T+3}, 1, v{G4}')
    a(f'v_lshl_add_u32 v28, v{T+3}, 11, v28')
    a('v_lshlrev_b32 v28, 4, v28')
    a(f'v_lshlrev_b32 v29, 4, v{LANE}')
    a(f'v_add_u32 v29, 0x{H_LDS:x}, v29')
    a('v_add_u32 v30, s30, v29')
    a(f'v_lshlrev_b32 v26, 8, v{G4}')
    a(f'v_add_u32 v26, 0x{H_LDS:x}, v26')

    def o_phase0(a):
        a.mark('vmwait')
        for mt in range(1, 8):
            for i in range(8):
                a(f'v_add_f32 v{160+i}, v{160+i}, v{160+8*mt+i}')
        for i in range(4):
            a(f'v_cvt_pk_bf16_f32 v{168+i}, v{160+2*i}, v{161+2*i}')
        a('s_mov_b64 exec, s[94:95]\nds_write_b128 v30, v[168:171]\ns_mov_b64 exec, -1')

    def o_phase1(a):
        a.mark('vmwait')
        PQ = 172
        for mb in range(2):
            for fb in range(2):
                d = PQ + (mb * 2 + fb) * 4
                a(f'v_mfma_f32_16x16x32_bf16 v[{d}:{d+3}], v[{232+4*fb}:{235+4*fb}], v[{224+4*mb}:{227+4*mb}], 0')
        a('s_mov_b32 s66, 0xffff0000')
        a(f's_mov_b32 s76, 0x{LOG2E:x}')
        for i in range(0, 16, 2):
            r = PQ + i
            a(f'v_cvt_pk_bf16_f32 v{160+(i>>1)}, v{r}, v{r+1}')
            a(f'v_lshlrev_b32 v{r}, 16, v{160+(i>>1)}')
            a(f'v_and_b32 v{r+1}, s66, v{160+(i>>1)}')
        MX, MN, S1, S2, E = 160, 162, 164, 166, 188
        for mb in range(2):
            p = PQ + mb * 8
            a(f'v_max3_f32 v{MX+mb}, v{p}, v{p+1}, v{p+2}')
            a(f'v_min3_f32 v{MN+mb}, v{p}, v{p+1}, v{p+2}')
            a(f'v_max3_f32 v{MX+mb}, v{MX+mb}, v{p+3}, v{p+4}')
            a(f'v_min3_f32 v{MN+mb}, v{MN+mb}, v{p+3}, v{p+4}')
            a(f'v_max3_f32 v{MX+mb}, v{MX+mb}, v{p+5}, v{p+6}')
            a(f'v_min3_f32 v{MN+mb}, v{MN+mb}, v{p+5}, v{p+6}')
            a(f'v_max_f32 v{MX+mb}, v{MX+mb}, v{p+7}')
            a(f'v_min_f32 v{MN+mb}, v{MN+mb}, v{p+7}')
        for mb in range(2):
            cross_groups(a, 'v_max_f32', MX + mb, 220)
            cross_groups(a, 'v_min_f32', MN + mb, 221)
        for mb in range(2):
            a(f'v_mul_f32 v{MX+mb}, s76, v{MX+mb}')
            a(f'v_mul_f32 v{MN+mb}, s76, v{MN+mb}')
        for mb in range(2):
            p = PQ + mb * 8
            e = E + mb * 16
            for i in range(8):
                a(f'v_fma_f32 v{e+i}, v{p+i}, s76, -v{MX+mb}')
                a(f'v_fma_f32 v{e+8+i}, -v{p+i}, s76, v{MN+mb}')
        for i in range(32):
            a(f'v_exp_f32 v{E+i}, v{E+i}')
        for mb in range(2):
            e = E + mb * 16
            for (S, b) in ((S1, e), (S2, e + 8)):
                a(f'v_add_f32 v{S+mb}, v{b}, v{b+1}')
                for i in range(2, 8):
                    a(f'v_add_f32 v{S+mb}, v{S+mb}, v{b+i}')
        for mb in range(2):
            cross_groups(a, 'v_add_f32', S1 + mb, 220)
            cross_groups(a, 'v_add_f32', S2 + mb, 221)
        for mb in range(2):
            a(f'v_rcp_f32 v{S1+mb}, v{S1+mb}')
            a(f'v_rcp_f32 v{S2+mb}, v{S2+mb}')
        for mb in range(2):
            e = E + mb * 16
            for i in range(8):
                a(f'v_mul_f32 v{e+i}, v{e+i}, v{S1+mb}')
                a(f'v_mul_f32 v{e+8+i}, v{e+8+i}, v{S2+mb}')
        for mb in range(2):
            for i in range(8):
                a(f'v_cvt_pk_bf16_f32 v{224+8*mb+i}, v{E+16*mb+2*i}, v{E+16*mb+2*i+1}')

    def o_phase2(a):
        KF0, NUM, DEN = 160, 184, 200
        for i in range(6):
            a(f'ds_read_b128 v[{KF0+4*i}:{KF0+3+4*i}], v{29 if i < 4 else 26} offset:{i*1024}')
        a('s_waitcnt lgkmcnt(0)')
        for ks in range(2):
            for mb in range(2):
                pf = 224 + (mb * 2 + ks) * 4
                for db in range(2):
                    d = NUM + (mb * 2 + db) * 4
                    kf = KF0 + (ks * 2 + db) * 4
                    cc = '0' if ks == 0 else f'v[{d}:{d+3}]'
                    a(f'v_mfma_f32_16x16x32_bf16 v[{d}:{d+3}], v[{kf}:{kf+3}], v[{pf}:{pf+3}], {cc}')
                d = DEN + mb * 4
                zf = KF0 + (4 + ks) * 4
                cc = '0' if ks == 0 else f'v[{d}:{d+3}]'
                a(f'v_mfma_f32_16x16x32_bf16 v[{d}:{d+3}], v[{zf}:{zf+3}], v[{pf}:{pf+3}], {cc}')
        a('s_mov_b32 s66, 0xffff0000')
        a(f's_mov_b32 s73, {2*32768}')
        for mb in range(2):
            dn = DEN + mb * 4
            round_bf16(a, dn, dn)
            a(f'v_add_f32 v{dn}, 0x{f2u(1e-6):x}, v{dn}')
            round_bf16(a, dn, dn)
            a(f'v_rcp_f32 v{dn+1}, v{dn}')
            for db in range(2):
                n = NUM + (mb * 2 + db) * 4
                for h in range(2):
                    a(f'v_cvt_pk_bf16_f32 v{208+h}, v{n+2*h}, v{n+2*h+1}')
                    a(f'v_lshlrev_b32 v{n+2*h}, 16, v{208+h}')
                    a(f'v_and_b32 v{n+2*h+1}, s66, v{208+h}')
                for i in range(4):
                    a(f'v_mul_f32 v{212+i}, v{n+i}, v{dn+1}')
                for i in range(4):
                    a(f'v_fma_f32 v{n+i}, -v{212+i}, v{dn}, v{n+i}')
                for i in range(4):
                    a(f'v_fmac_f32 v{212+i}, v{n+i}, v{dn+1}')
                o = 216 + db * 4 + mb * 2
                a(f'v_cvt_pk_bf16_f32 v{o}, v212, v213')
                a(f'v_cvt_pk_bf16_f32 v{o+1}, v214, v215')
        for db in range(2):
            o = 216 + db * 4
            a(f'v_permlane16_swap_b32 v{o}, v{o+2}')
            a(f'v_permlane16_swap_b32 v{o+1}, v{o+3}')
            a(f'buffer_store_dwordx4 v[{o}:{o+3}], v28, s[8:11], {"0" if db == 0 else "s73"} offen sc1')
            a.mark('os')

    class Collector:
        def __init__(self):
            self.items = []

        def __call__(self, text):
            self.items.append(text)

        def mark(self, m):
            self.items.append((m,))

    def emit_item(it):
        if isinstance(it, tuple):
            if it[0] == 'vmwait':
                a(f's_waitcnt vmcnt({vq.wait_for({"o", "oq"})})')
            else:
                vq.push('os')
        else:
            a(it)

    oc0 = Collector(); o_phase0(oc0)
    oc1 = Collector(); o_phase1(oc1)
    oc2 = Collector(); o_phase2(oc2)

    srd(a, 88, 4, 1024, OFLAG_OFF)
    srd(a, 36, 58, 2048)
    srd(a, 40, 60, XN_SZ)
    srd(a, 44, 62, XN_SZ)
    srd(a, 48, 4, X_SZ, X_OFF)
    srd(a, 52, 4, FLAG_SZ, FLAG_OFF)
    a('s_lshl_b32 s28, s22, 2')
    a(f'v_add_u32 v{T}, s28, v{G4}')
    a(f'v_lshlrev_b32 v{T}, 11, v{T}')
    a(f'v_lshl_add_u32 v{T}, v{L16}, 4, v{T}')
    a('s_lshl_b32 s28, s21, 10')
    a(f'v_add_u32 v{VA2}, s28, v{T}')
    a(f'v_add_u32 v{VA2+1}, 0x10000, v{VA2}')
    a(f'v_lshrrev_b32 v{T}, 2, v{L16}')
    a(f'v_lshl_add_u32 v{T+1}, v{G4}, 3, v{T}')
    a('s_lshl_b32 s28, s22, 5')
    a(f'v_add_u32 v{T+1}, s28, v{T+1}')
    a(f'v_lshrrev_b32 v{T+2}, 1, v{T}')
    a(f'v_and_b32 v{T+3}, 1, v{G4}')
    a(f'v_lshl_or_b32 v{T+2}, v{T+3}, 1, v{T+2}')
    a(f'v_and_b32 v{T+4}, 3, v{LANE}')
    a(f'v_lshlrev_b32 v{T+4}, 3, v{T+4}')
    a(f'v_lshl_add_u32 v{T+5}, v{T+1}, 7, v{T+4}')
    a('s_lshl_b32 s28, s23, 13')
    a('s_add_u32 s28, s28, 16384')
    a(f'v_add_u32 v{T+5}, s28, v{T+5}')
    for nb in range(4):
        a(f'v_xor_b32 v{T+6}, {nb}, v{T+2}')
        a(f'v_lshl_add_u32 v{VB2+nb}, v{T+6}, 5, v{T+5}')
        a(f'v_add_u32 v{240+nb}, 0x10000, v{VB2+nb}')
    ACC2 = 64
    SETS2 = (32, 128)
    for i in range(64):
        a(f'v_mov_b32 v{ACC2+i}, 0')

    def frag_reads(j):
        S = SETS2[j & 1]
        sl = j % 4
        hi = sl >> 1
        so = (sl & 1) * H_SLOT
        out = []
        for mb in range(4):
            out.append(f'ds_read_b128 v[{S+4*mb}:{S+4*mb+3}], v{VA2+hi} offset:{so + mb*256}')
        for nb in range(4):
            d = S + 16 + 4 * nb
            vb = (240 if hi else VB2) + nb
            for t in range(2):
                out.append(f'ds_read_b64_tr_b16 v[{d+2*t}:{d+2*t+1}], v{vb} offset:{so + t*512}')
        return out

    def mfmas(j):
        S = SETS2[j & 1]
        out = []
        for nb in range(4):
            for mb in range(4):
                c = ACC2 + (mb * 4 + nb) * 4
                out.append(f'v_mfma_f32_16x16x32_bf16 v[{c}:{c+3}], v[{S+16+4*nb}:{S+19+4*nb}], v[{S+4*mb}:{S+4*mb+3}], v[{c}:{c+3}]')
        return out

    if OPT('PRIO'):
        a('s_cmp_ge_u32 s20, 4')
        a('s_cbranch_scc0 g2_prio')
        a('s_setprio 1 ; @skip')
        a('g2_prio:')
    a(f's_waitcnt vmcnt({vq.wait_for({0})})')
    a('s_barrier')
    stamp(a, 4 if OPT('STAMPB') else 1)
    for r in frag_reads(0):
        a(r)
    a('s_waitcnt lgkmcnt(0)')
    for j in range(NS):
        if j + 1 < NS:
            a(f's_waitcnt vmcnt({vq.wait_for({j + 1})})')
        a('s_barrier')
        if OPT('STAMP_IT'):
            its = [int(x) for x in OPT('STAMP_IT').split(',')]
            if j in its:
                stamp(a, 2 + its.index(j))
        OJ = int(OPT('OJ', '0'))
        OP0, OP1, OP2, OPE, OFL = (99, 99, 99, 99, 0) if OBLK else (6, 8, 16, 18, 22)
        if j == OFL:
            if OBLK:
                a('s_lshr_b32 s28, s2, 7')
                a('s_or_b32 s28, s28, s20')
                a('s_cmp_lg_u32 s28, 0')
            else:
                a('s_cmp_lg_u32 s20, 0')
            a('s_cbranch_scc1 g2_noflag')
            a('s_lshl_b32 s28, s2, 2 ; @skip')
            a('v_mov_b32 v1, 1 ; @skip')
            a('v_mov_b32 v31, s28 ; @skip')
            a('s_mov_b64 exec, 1 ; @skip')
            a('buffer_store_dword v1, v31, s[88:91], 0 offen sc1 ; @skip')
            a('s_mov_b64 exec, -1 ; @skip')
            a('g2_noflag:')
        if j == 24:
            if OPT('STAMP2') and not OPT('STAMP3') and not OPT('STAMP_IT'):
                stamp(a, 2)
            a(f's_lshr_b32 s28, s24, {2 if OBLK else 1}')
            a('s_lshl_b32 s28, s28, 7')
            a(f'v_and_b32 v31, 31, v{LANE}')
            a('v_lshlrev_b32 v31, 2, v31')
            a('g2_opoll:')
            a('buffer_load_dword v1, v31, s[88:91], s28 offen sc1')
            a('s_waitcnt vmcnt(0)')
            a('v_cmp_ne_u32 vcc, 1, v1')
            a('s_nop 3')
            a('s_cmp_eq_u64 vcc, 0')
            a('s_cbranch_scc1 g2_opolled')
            a('s_sleep 1')
            a('s_branch g2_opoll')
            a('g2_opolled:')
            if OPT('STAMP2') and not OPT('STAMP3') and not OPT('STAMP_IT'):
                stamp(a, 3)
        dma = grp(j + 4) if j + 4 < NS else []
        if j < 4 and not OBLK:
            dma += ogrp[4 * j:4 * j + 4]
        if j == 4 and not OBLK:
            dma += ogrp[16:]
        rd = frag_reads(j + 1) if j + 1 < NS else []
        mm = mfmas(j)
        src = oc0.items if OP0 <= j < OP1 else oc1.items if OP1 <= j < OP2 else (oc2.items if OP2 <= j <= OPE else None)
        if src:
            left = (OP1 - j) if j < OP1 else (OP2 - j) if j < OP2 else (OPE + 1 - j)
            share = -(-len(src) // left)
            chunk = -(-share // len(mm))
            fill = [src[:share][k:k + chunk] for k in range(0, share, chunk)]
            del src[:share]
            rd2 = list(rd); dm2 = list(dma)
            for idx, m in enumerate(mm):
                a(m)
                if dm2 and idx % 4 == 0:
                    emit_grp(dm2.pop(0))
                elif rd2:
                    a(rd2.pop(0))
                if fill:
                    for it in fill.pop(0):
                        emit_item(it)
            for r in rd2:
                a(r)
            for gg in dm2:
                emit_grp(gg)
            for f in fill:
                for it in f:
                    emit_item(it)
        else:
            interleave(a, mm, rd, dma, emit_grp, 0, 4 if (j > 4 or OBLK) else 2)
        a('s_waitcnt lgkmcnt(0)')
    if not OPT('STAMPB'):
        stamp(a, 4 if OPT('STAMP2') else 2)
    a(f'v_lshlrev_b32 v{T}, 4, v{LANE}')
    a('s_and_b32 s28, s20, 3')
    a('s_lshl_b32 s28, s28, 14')
    a('s_xor_b32 s29, s22, 1')
    a('s_lshl_b32 s29, s29, 13')
    a('s_add_u32 s29, s29, s28')
    a(f'v_add_u32 v{T+1}, s29, v{T}')
    a('s_lshl_b32 s29, s22, 13')
    a('s_add_u32 s29, s29, s28')
    a(f'v_add_u32 v{T+2}, s29, v{T}')
    a('s_cmp_eq_u32 s22, 0')
    a('s_cbranch_scc0 g2_ks1')
    for r in range(8):
        a(f'ds_write_b128 v{T+1}, v[{ACC2+32+4*r}:{ACC2+35+4*r}] offset:{r*1024}')
    a('s_branch g2_ksd')
    a('g2_ks1:')
    for r in range(8):
        a(f'ds_write_b128 v{T+1}, v[{ACC2+4*r}:{ACC2+3+4*r}] offset:{r*1024}')
    for r in range(32):
        a(f'v_mov_b32 v{ACC2+r}, v{ACC2+32+r}')
    a('g2_ksd:')
    a('s_waitcnt lgkmcnt(0)')
    a('s_barrier')
    for r in range(8):
        a(f'ds_read_b128 v[{128+4*r}:{131+4*r}], v{T+2} offset:{r*1024}')
    a('s_waitcnt lgkmcnt(0)')
    for r in range(32):
        a(f'v_add_f32 v{ACC2+r}, v{ACC2+r}, v{128+r}')
    a('s_lshl_b32 s28, s21, 1')
    a('s_add_u32 s28, s28, s22')
    a('s_lshl_b32 s67, s28, 7')
    a('s_lshl_b32 s28, s28, 13')
    a(f'v_add_u32 v{T+1}, s28, v{T}')
    a('s_cmp_eq_u32 s23, s33')
    a('s_cbranch_scc1 g2_recv')
    a('s_lshl_b32 s28, s2, 15')
    for r in range(8):
        a(f'buffer_store_dwordx4 v[{ACC2+4*r}:{ACC2+3+4*r}], v{T+1}, s[48:51], s28 offen offset:{r*1024 if r < 4 else (r-4)*1024} sc1' if r < 4 else
          f'buffer_store_dwordx4 v[{ACC2+4*r}:{ACC2+3+4*r}], v{T+1}, s[48:51], s29 offen offset:{(r-4)*1024} sc1')
        if r == 3:
            a('s_add_u32 s29, s28, 4096')
    a('s_waitcnt vmcnt(0)')
    a('s_lshl_b32 s28, s2, 9')
    a('s_add_u32 s28, s28, s67')
    a('v_mov_b32 v1, 1')
    a('v_mov_b32 v2, s28')
    a('s_mov_b64 exec, 1')
    a('buffer_store_dword v1, v2, s[52:55], 0 offen sc1')
    a('s_branch g2_fin')
    a('g2_recv:')
    a(f'v_lshrrev_b32 v{T+2}, 3, v{LANE}')
    a(f'v_and_b32 v{T+3}, 7, v{LANE}')
    a('s_lshl_b32 s28, s24, 7')
    a('s_lshl_b32 s29, s21, 6')
    a('s_add_u32 s28, s28, s29')
    a('s_lshl_b32 s29, s22, 5')
    a('s_add_u32 s28, s28, s29')
    a(f'v_add_u32 v{T+4}, s28, v{T+2}')
    a(f'v_lshlrev_b32 v{T+4}, 11, v{T+4}')
    a('s_lshl_b32 s29, s23, 7')
    a('s_add_u32 s29, s29, s32')
    a(f'v_lshl_add_u32 v{T+5}, v{T+3}, 4, s29')
    a(f'v_add_u32 v{T+4}, v{T+4}, v{T+5}')
    for i in range(4):
        a(f's_mov_b32 s34, {i*16384}')
        a(f'buffer_load_dwordx4 v[{32+4*i}:{35+4*i}], v{T+4}, s[40:43], s34 offen')
    a(f'buffer_load_dwordx4 v[48:51], v{T+5}, s[36:39], 0 offen')
    a('s_mul_i32 s28, s20, 8704')
    a('s_add_u32 s28, s28, 65536')
    a(f'v_mul_u32_u24 v{T+6}, 272, v{L16}')
    a(f'v_lshl_add_u32 v{T+6}, v{G4}, 4, v{T+6}')
    a(f'v_add_u32 v{T+6}, s28, v{T+6}')
    a(f'v_mul_u32_u24 v{T+2}, 272, v{T+2}')
    a(f'v_lshl_add_u32 v{T+2}, v{T+3}, 5, v{T+2}')
    a(f'v_add_u32 v{T+2}, s28, v{T+2}')
    a('s_xor_b32 s35, s2, 1')
    a('s_lshl_b32 s28, s35, 9')
    a('s_add_u32 s28, s28, s67')
    a('v_mov_b32 v2, s28')
    a('g2_poll:')
    a('buffer_load_dword v1, v2, s[52:55], 0 offen sc1')
    a('s_waitcnt vmcnt(0)')
    a('v_readfirstlane_b32 s28, v1')
    a('s_nop 3')
    a('s_cmp_eq_u32 s28, 1')
    a('s_cbranch_scc1 g2_ready')
    a('s_sleep 1')
    a('s_branch g2_poll')
    a('g2_ready:')
    a('s_lshl_b32 s28, s35, 15')
    a('s_add_u32 s29, s28, 4096')
    for r in range(8):
        a(f'buffer_load_dwordx4 v[{128+4*r}:{131+4*r}], v{T+1}, s[48:51], s{28 if r < 4 else 29} offen offset:{(r % 4)*1024} sc1')
    a('s_mov_b32 s66, 0xffff0000')
    a('s_waitcnt vmcnt(0)')
    for r in range(32):
        a(f'v_add_f32 v{ACC2+r}, v{ACC2+r}, v{128+r}')
    for e in range(2):
        for nb in range(4):
            r = ACC2 + (e * 4 + nb) * 4
            a(f'ds_write_b128 v{T+6}, v[{r}:{r+3}] offset:{e*4352 + nb*64}')
    for h in range(4):
        a(f'v_lshlrev_b32 v{52+2*h}, 16, v{48+h}')
        a(f'v_and_b32 v{53+2*h}, s66, v{48+h}')
    a('s_waitcnt lgkmcnt(0)')
    for i in range(4):
        a(f'ds_read_b128 v[{128+8*i}:{131+8*i}], v{T+2} offset:{i*2176}')
        a(f'ds_read_b128 v[{132+8*i}:{135+8*i}], v{T+2} offset:{i*2176 + 16}')
    for i in range(4):
        a(f's_waitcnt lgkmcnt({6-2*i})')
        for h in range(4):
            r = 128 + 8 * i + 2 * h
            a(f'v_lshlrev_b32 v60, 16, v{32+4*i+h}')
            a(f'v_and_b32 v61, s66, v{32+4*i+h}')
            a(f'v_add_f32 v{r}, v{r}, v{52+2*h}')
            a(f'v_add_f32 v{r+1}, v{r+1}, v{53+2*h}')
            a(f'v_add_f32 v{r}, v{r}, v60')
            a(f'v_add_f32 v{r+1}, v{r+1}, v61')
            a(f'v_cvt_pk_bf16_f32 v{160+4*i+h}, v{r}, v{r+1}')
        a(f's_mov_b32 s34, {i*16384}')
        a(f'buffer_store_dwordx4 v[{160+4*i}:{163+4*i}], v{T+4}, s[44:47], s34 offen')
    a('g2_fin:')
    if not OPT('STAMP2') and not OPT('STAMPB'):
        stamp(a, 3)
        if OPT('STAMP'):
            a('s_waitcnt vmcnt(0)')
        stamp(a, 4)
    stamp(a, 6, True)
    stamp_flush(a, 7, 1)
    a('g2_exit:')
    a('s_endpgm')
    return '' if FUSE12 else descriptor(name, 256, 102 if OPT('STAMP') else 96)


def main():
    a = Asm()
    descs = []
    descs.append(gen_ln(a))
    descs.append(gen_gemm1(a))
    fused = not OPT('SEP_O')
    if not fused:
        descs.append(gen_o(a))
    descs.append(gen_gemm2c(a) if fused else gen_gemm2b(a))
    head = open('cdna_kernels/%s.s.ref' % NAME).read().split('; @launch')[0]
    out = head
    out += '; @launch kernel=ln_kernel grid=(512,1,1) block=(256,1,1) lds=0\n'
    out += f'; @launch kernel=gemm1_kernel grid=(256,1,1) block=(512,1,1) lds={G1_LDS}\n'
    if not fused:
        out += '; @launch kernel=attn_o_kernel grid=(256,1,1) block=(256,1,1) lds=8192\n'
    if not FUSE12:
        out += f'; @launch kernel=gemm2_kernel grid=(256,1,1) block=(512,1,1) lds={H_LDS + 8192}\n'
    out += '.amdgcn_target "amdgcn-amd-amdhsa--gfx950"\n.text\n'
    out += a.finalize()
    out += '.section .rodata,"a"\n'
    for d in descs:
        if d:
            out += '.p2align 6\n' + d
    path = sys.argv[1] if len(sys.argv) > 1 else 'cdna_kernels/%s.s' % NAME
    open(path, 'w').write(out)
    print('wrote', path, len(out))


if __name__ == '__main__':
    main()
```

```python
import sys, os
from asmlib import Asm
OPT = lambda k, d='': os.environ.get(k, d)

NAME = 'parallel_sum__linear_kernel_hedgehog__dense_activation_gelu__prompt'
XN_OFF = 0
XN_SZ = 2048 * 1024 * 2
ACT2_OFF = 0x400000
ACT2_SZ = 2048 * 4608 * 2
PHIQ_OFF = 0x1600000
PHIQ_SZ = 2048 * 2048 * 2
KVP_OFF = 0x1E00000
KVP_ENT = 8448
KVP_SZ = 8 * 32 * KVP_ENT

LOG2E = 0x3fb8aa3b
FUSE12 = not OPT('NOFUSE12')
FLAG_OFF = 0x2A00000
OFLAG_OFF = 0x2B00000
CNT_OFF = 0x2C00000


def f2u(x):
    import struct
    return struct.unpack('<I', struct.pack('<f', x))[0]


def srd(a, d, base, size, off=0):
    if off:
        a(f's_add_u32 s{d}, s{base}, 0x{off:x}')
        a(f's_addc_u32 s{d+1}, s{base+1}, 0')
    else:
        a(f's_mov_b32 s{d}, s{base}')
        a(f's_mov_b32 s{d+1}, s{base+1}')
    a(f's_and_b32 s{d+1}, s{d+1}, 0xffff')
    a(f's_mov_b32 s{d+2}, 0x{size:x}')
    a(f's_mov_b32 s{d+3}, 0x00020000')


STAMP_OFF = 0x3000000
STAMP_REGS = [80, 81, 82, 83, 84, 85, 86]


def stamp(a, idx, real=False):
    if not OPT('STAMP'):
        return
    if OPT('STAMPB') and STAMP_REGS[0] == 80:
        return
    a('s_memrealtime s[78:79]' if real else 's_memtime s[78:79]')
    a('s_waitcnt lgkmcnt(0)')
    a(f's_mov_b32 s{STAMP_REGS[idx]}, s78')


def stamp_flush(a, n, kern):
    if not OPT('STAMP'):
        return
    if OPT('STAMPB') and kern == 0:
        return
    a('s_mov_b64 exec, -1')
    srd(a, 92, 4, 0x1000000, STAMP_OFF + kern * 0x40000)
    a('s_lshl_b32 s78, s2, 3')
    a('s_add_u32 s78, s78, s20')
    a('s_lshl_b32 s78, s78, 6')
    a('v_mov_b32 v1, 0')
    for i in range(n):
        a(f'v_mov_b32 v2, s{STAMP_REGS[i]}')
        a(f'buffer_store_dword v2, v1, s[92:95], s78 offen offset:{4*i}')


def kernel_begin(a, name):
    a.raw(f'.globl {name}')
    a.raw('.p2align 8')
    a.raw(f'.type {name},@function')
    a.raw(f'{name}:')


def descriptor(name, vgpr, sgpr=96):
    acc = (vgpr + 3) // 4 * 4
    return f'''.amdhsa_kernel {name}
  .amdhsa_next_free_vgpr {vgpr}
  .amdhsa_next_free_sgpr {sgpr}
  .amdhsa_accum_offset {acc}
  .amdhsa_group_segment_fixed_size 0
  .amdhsa_kernarg_size 96
  .amdhsa_user_sgpr_count 2
  .amdhsa_user_sgpr_kernarg_segment_ptr 1
  .amdhsa_system_sgpr_workgroup_id_x 1
.end_amdhsa_kernel
'''


def allreduce16(a, op, v, tmp):
    for r in (8, 4, 2, 1):
        a(f'{op}_dpp v{tmp}, v{v}, v{v} row_ror:{r} row_mask:0xf bank_mask:0xf')
        v, tmp = tmp, v
    return v


def cross_groups(a, op, v, t):
    a(f'v_mov_b32 v{t}, v{v}')
    a(f'v_permlane32_swap_b32 v{v}, v{t}')
    a(f'{op} v{v}, v{v}, v{t}')
    a(f'v_mov_b32 v{t}, v{v}')
    a(f'v_permlane16_swap_b32 v{v}, v{t}')
    a(f'{op} v{v}, v{v}, v{t}')


def round_bf16(a, d, s):
    a(f'v_cvt_pk_bf16_f32 v{d}, v{s}, v{s}')
    a(f'v_lshlrev_b32 v{d}, 16, v{d}')


def gen_ln(a):
    name = 'ln_kernel'
    kernel_begin(a, name)
    a('s_cmp_ge_u32 s2, 512')
    a('s_cbranch_scc1 ln_done')
    a('s_load_dwordx2 s[4:5], s[0:1], 0')
    a('s_load_dwordx2 s[6:7], s[0:1], 88')
    a('s_load_dwordx2 s[24:25], s[0:1], 8')
    a('s_load_dwordx2 s[26:27], s[0:1], 40')
    a('v_lshrrev_b32 v1, 6, v0')
    a('v_and_b32 v2, 63, v0')
    a('s_lshl_b32 s3, s2, 2')
    a('v_add_u32 v1, s3, v1')
    a('v_lshlrev_b32 v3, 10, v1')
    a('v_lshl_add_u32 v3, v2, 4, v3')
    a('v_lshlrev_b32 v1, 11, v1')
    a('v_lshl_add_u32 v1, v2, 4, v1')
    a('s_waitcnt lgkmcnt(0)')
    srd(a, 8, 4, XN_SZ)
    srd(a, 12, 6, XN_SZ, XN_OFF)
    a('buffer_load_dwordx4 v[4:7], v1, s[8:11], 0 offen')
    a('buffer_load_dwordx4 v[8:11], v1, s[8:11], 0 offen offset:1024')
    if FUSE12:
        srd(a, 36, 6, 0x300000, FLAG_OFF)
        a('s_cmp_ge_u32 s2, 256')
        a('s_cbranch_scc1 ln_noz')
        a('v_mov_b32 v61, 0')
        a('v_lshlrev_b32 v60, 7, v0')
        a('s_lshl_b32 s17, s2, 9')
        a('v_cmp_gt_u32 vcc, 4, v0')
        a('s_and_saveexec_b64 s[18:19], vcc')
        a('buffer_store_dword v61, v60, s[36:39], s17 offen')
        a('s_mov_b64 exec, s[18:19]')
        a('s_lshl_b32 s17, s2, 2')
        a(f's_add_u32 s17, s17, 0x{OFLAG_OFF - FLAG_OFF:x}')
        a('s_and_b32 s20, s2, 31')
        a('s_lshl_b32 s20, s20, 7')
        a(f's_add_u32 s20, s20, 0x{CNT_OFF - FLAG_OFF:x}')
        a('v_cmp_eq_u32 vcc, 0, v0')
        a('s_and_saveexec_b64 s[18:19], vcc')
        a('buffer_store_dword v61, v61, s[36:39], s17 offen')
        a('buffer_store_dword v61, v61, s[36:39], s20 offen')
        a('s_mov_b64 exec, s[18:19]')
        a('ln_noz:')
    npf = 0
    if OPT('LNPF'):
        srd(a, 28, 24, 1024 * 3072 * 2)
        srd(a, 32, 26, 1024 * 3584 * 2)
        for i in range(int(OPT('LNPF'))):
            a(f's_mov_b32 s17, {i << 21}')
            if i < 3:
                a(f'buffer_load_dwordx4 v[64:67], v3, s[28:31], s17 offen')
                npf += 1
            a(f'buffer_load_dwordx4 v[68:71], v3, s[32:35], s17 offen')
            npf += 1
    a('s_mov_b32 s16, 0xffff0000')
    a(f's_waitcnt vmcnt({0 if FUSE12 else npf})')
    for i in range(8):
        a(f'v_lshlrev_b32 v{16+2*i}, 16, v{4+i}')
        a(f'v_and_b32 v{17+2*i}, s16, v{4+i}')
    for i in range(8):
        a(f'v_add_f32 v{32+i}, v{16+2*i}, v{17+2*i}')
    for i in range(4):
        a(f'v_add_f32 v{32+i}, v{32+2*i}, v{33+2*i}')
    a('v_add_f32 v32, v32, v33')
    a('v_add_f32 v34, v34, v35')
    a('v_add_f32 v32, v32, v34')
    r = allreduce16(a, 'v_add_f32', 32, 33)
    cross_groups(a, 'v_add_f32', r, 34)
    a(f'v_mul_f32 v40, 0x{f2u(1.0/1024):x}, v{r}')
    for i in range(16):
        a(f'v_sub_f32 v{44+i}, v{16+i}, v40')
    a('v_mul_f32 v32, v44, v44')
    a('v_mul_f32 v33, v45, v45')
    for i in range(2, 16, 2):
        a(f'v_fmac_f32 v32, v{44+i}, v{44+i}')
        a(f'v_fmac_f32 v33, v{45+i}, v{45+i}')
    a('v_add_f32 v32, v32, v33')
    r = allreduce16(a, 'v_add_f32', 32, 33)
    cross_groups(a, 'v_add_f32', r, 34)
    a(f'v_mul_f32 v41, 0x{f2u(1.0/1024):x}, v{r}')
    round_bf16(a, 40, 40)
    round_bf16(a, 41, 41)
    a(f'v_add_f32 v41, 0x{f2u(1e-5):x}, v41')
    round_bf16(a, 41, 41)
    a('v_sqrt_f32 v41, v41')
    round_bf16(a, 41, 41)
    a('v_rcp_f32 v42, v41')
    for i in range(0, 16, 2):
        a(f'v_sub_f32 v{16+i}, v{16+i}, v40')
        a(f'v_sub_f32 v{17+i}, v{17+i}, v40')
        a(f'v_cvt_pk_bf16_f32 v{44+i}, v{16+i}, v{17+i}')
        a(f'v_lshlrev_b32 v{16+i}, 16, v{44+i}')
        a(f'v_and_b32 v{17+i}, s16, v{44+i}')
    for i in range(16):
        a(f'v_mul_f32 v{44+i}, v{16+i}, v42')
    for i in range(16):
        a(f'v_fma_f32 v{16+i}, -v{44+i}, v41, v{16+i}')
    for i in range(16):
        a(f'v_fmac_f32 v{44+i}, v{16+i}, v42')
    for i in range(8):
        a(f'v_cvt_pk_bf16_f32 v{4+i}, v{44+2*i}, v{45+2*i}')
    a('buffer_store_dwordx4 v[4:7], v1, s[12:15], 0 offen' + OPT('LN_POL'))
    a('buffer_store_dwordx4 v[8:11], v1, s[12:15], 0 offen offset:1024' + OPT('LN_POL'))
    a('ln_done:')
    a('s_endpgm')
    return descriptor(name, 72, 40)


class VQ:
    def __init__(self):
        self.q = []

    def push(self, tag):
        self.q.append(tag)

    def wait_for(self, tags):
        last = -1
        for i, t in enumerate(self.q):
            if t in tags:
                last = i
        n = len(self.q) - 1 - last
        return min(n, 63)


def interleave(a, mm, rd, dma, emit_grp, first_dma=1, dma_every=4):
    rd = list(rd); dma = list(dma)
    for idx, m in enumerate(mm):
        a(m)
        if dma and idx >= first_dma and (idx - first_dma) % dma_every == 0:
            emit_grp(dma.pop(0))
        elif rd:
            a(rd.pop(0))
        elif dma:
            emit_grp(dma.pop(0))
    for r in rd:
        a(r)
    for g in dma:
        emit_grp(g)


class FlagSync:
    def __init__(self, a, tag, cnt, vsig, vcnt, vone, vt1, vt2, st):
        self.a, self.tag, self.cnt = a, tag, cnt
        self.vsig, self.vcnt, self.vone, self.vt1, self.vt2, self.st = vsig, vcnt, vone, vt1, vt2, st
        self.nfull = [0, 0, 0, 0]
        self.nempty = [0, 0, 0, 0]
        self.n = 0

    def setup(self, vlane, swave):
        a = self.a
        a(f'v_lshlrev_b32 v{self.vsig}, 2, v{vlane}')
        a(f'v_add_u32 v{self.vsig}, 0x{self.cnt + 512:x}, v{self.vsig}')
        a(f'v_mov_b32 v{self.vcnt}, 0x{self.cnt:x}')
        a(f'v_cmp_eq_u32 vcc, 0, v{vlane}')
        a(f'v_cndmask_b32 v{self.vsig}, v{self.vsig}, v{self.vcnt}, vcc')
        a(f'v_mov_b32 v{self.vone}, 1')
        a(f'v_lshlrev_b32 v{self.vt1}, 2, v{vlane}')
        a(f'v_and_b32 v{self.vt1}, 31, v{self.vt1}')
        a(f'v_add_u32 v{self.vt1}, v{self.vcnt}, v{self.vt1}')
        a(f'v_mov_b32 v{self.vt2}, 0')
        a(f'ds_write_b32 v{self.vt1}, v{self.vt2}')

    def sig_full(self, s):
        self.nfull[s % 4] += 8
        return f'ds_add_u32 v{self.vsig}, v{self.vone} offset:{4 * (s % 4)}'

    def sig_empty(self, s):
        self.nempty[s % 4] += 8
        return f'ds_add_u32 v{self.vsig}, v{self.vone} offset:{16 + 4 * (s % 4)}'

    def rd_full(self, s):
        return f'ds_read_b32 v{self.vt1}, v{self.vcnt} offset:{4 * (s % 4)}'

    def rd_empty(self, s):
        return f'ds_read_b32 v{self.vt2}, v{self.vcnt} offset:{16 + 4 * (s % 4)}'

    def check(self, kind, s, lgkm):
        a = self.a
        v = self.vt1 if kind == 'F' else self.vt2
        target = (self.nfull if kind == 'F' else self.nempty)[s % 4]
        rd = self.rd_full(s) if kind == 'F' else self.rd_empty(s)
        L = f'{self.tag}_c{self.n}'
        self.n += 1
        a(f's_waitcnt lgkmcnt({lgkm})')
        a(f'{L}r:')
        a(f'v_readfirstlane_b32 s{self.st}, v{v}')
        a('s_nop 1')
        a(f's_cmp_ge_u32 s{self.st}, {target}')
        a(f's_cbranch_scc1 {L}o')
        a(rd + ' ; @skip')
        a('s_waitcnt lgkmcnt(0) ; @skip')
        a(f's_branch {L}r ; @skip')
        a(f'{L}o:')


def flag_iter(a, fs, j, nst, mm, rd, dma, emit_grp, vmwait, cF, cE, extra=None):
    rd = list(rd); dma = list(dma)
    n = len(mm)
    need_full = rd and j >= 1
    need_empty = bool(dma)
    a(fs.sig_empty(j))
    if need_full:
        a(fs.rd_full(j + 1))
    since_e = None
    dma_ok = not need_empty
    for idx, m in enumerate(mm):
        a(m)
        if idx == cF and need_full:
            fs.check('F', j + 1, 0)
        if idx < cF:
            continue
        if need_empty and idx == cE - 3:
            a(fs.rd_empty(j))
            since_e = 0
            continue
        if need_empty and idx == cE:
            fs.check('E', j, since_e)
            dma_ok = True
            continue
        if idx == (int(OPT('FS_CS')) if OPT('FS_CS') else n - 2) and vmwait:
            a(vmwait())
            a(fs.sig_full(j + 2))
            continue
        if dma_ok and dma and (not rd or (idx - cE) % 3 == 1):
            emit_grp(dma.pop(0))
        elif rd:
            a(rd.pop(0))
            if since_e is not None and not dma_ok:
                since_e += 1
    for r in rd:
        a(r)
    for g in dma:
        emit_grp(g)
    a('s_waitcnt lgkmcnt(0)')


A_SLOT = 32768
B_BASE = 98304
B_SLOT = 14336
G1_DUMMY = B_BASE + 4 * B_SLOT
G1_LDS = G1_DUMMY + 8192
ACC = 128
SETS = (32, 76)
VA = 2
VB = 8
VGA = 11
VGB0 = 12
VGB1 = 13
VLANE = 14
VG4 = 15
VL16 = 16
VPF = 31
VPF2 = 30
VTMP = 17


def gemm1_common_setup(a):
    a('v_lshrrev_b32 v1, 6, v0')
    a(f'v_and_b32 v{VLANE}, 63, v0')
    a('s_nop 0')
    a('v_readfirstlane_b32 s20, v1')
    a(f'v_lshrrev_b32 v{VG4}, 4, v{VLANE}')
    a(f'v_and_b32 v{VL16}, 15, v{VLANE}')
    a('s_nop 1')
    a('s_lshr_b32 s21, s20, 1')
    a('s_and_b32 s22, s20, 1')
    a('s_and_b32 s26, s2, 7')
    a('s_lshr_b32 s27, s2, 3')
    a('s_and_b32 s24, s26, 1')
    a('s_lshl_b32 s24, s24, 2')
    a('s_and_b32 s28, s27, 3')
    a('s_add_u32 s24, s24, s28')
    a('s_lshr_b32 s25, s26, 1')
    a('s_lshl_b32 s25, s25, 2')
    a('s_bfe_u32 s28, s27, 0x20002')
    a('s_add_u32 s25, s25, s28')
    a('s_lshr_b32 s28, s27, 4')
    a('s_lshl_b32 s28, s28, 4')
    a('s_add_u32 s25, s25, s28')
    T = VTMP
    a('s_lshl_b32 s28, s21, 13')
    a(f'v_and_b32 v{T}, 7, v{VLANE}')
    a(f'v_xor_b32 v{T}, v{T}, v{VG4}')
    a(f'v_lshlrev_b32 v{T}, 4, v{T}')
    a(f'v_lshl_add_u32 v{T}, v{VL16}, 7, v{T}')
    a(f'v_add_u32 v{T}, s28, v{T}')
    a(f'v_xor_b32 v{T+1}, 64, v{T}')
    for sl in range(3):
        a(f'v_add_u32 v{VA+2*sl}, 0x{sl*A_SLOT:x}, v{T}')
        a(f'v_add_u32 v{VA+2*sl+1}, 0x{sl*A_SLOT:x}, v{T+1}')
    a(f'v_lshrrev_b32 v{T}, 3, v{VLANE}')
    a(f'v_and_b32 v{T+1}, 7, v{VLANE}')
    a(f'v_xor_b32 v{T+1}, v{T+1}, v{T}')
    a('s_lshl_b32 s28, s24, 8')
    a('s_lshl_b32 s29, s20, 5')
    a('s_add_u32 s28, s28, s29')
    a(f'v_add_u32 v{T}, s28, v{T}')
    a(f'v_lshlrev_b32 v{T}, 11, v{T}')
    a(f'v_lshl_add_u32 v{VGA}, v{T+1}, 4, v{T}')
    a(f'v_lshlrev_b32 v{VPF}, 4, v{VLANE}')
    a('s_lshl_b32 s30, s20, 12')
    a('s_lshl_b32 s31, s20, 10')
    a('s_and_b32 s77, s31, 0xc00')


def gemm1_late_setup(a):
    srd(a, 64, 72, 1024 * 1024 * 2)
    srd(a, 68, 74, 3584 * 1024 * 2)
    srd(a, 92, 4, 0x300000, FLAG_OFF)
    if not FUSE12:
        a('s_lshl_b32 s28, s2, 9')
        a('v_lshlrev_b32 v17, 7, v0')
        a('v_mov_b32 v18, 0')
        a('v_cmp_gt_u32 vcc, 4, v0')
        a('s_and_saveexec_b64 s[34:35], vcc')
        a('buffer_store_dword v18, v17, s[92:95], s28 offen')
        a('s_mov_b64 exec, s[34:35]')
        a('s_lshl_b32 s28, s2, 2')
        a(f's_add_u32 s28, s28, 0x{OFLAG_OFF - FLAG_OFF:x}')
        a('v_mov_b32 v17, 0')
        a('v_cmp_eq_u32 vcc, 0, v0')
        a('s_and_saveexec_b64 s[34:35], vcc')
        a('buffer_store_dword v18, v17, s[92:95], s28 offen')
        a('s_mov_b64 exec, s[34:35]')
    a('s_lshl_b32 s28, s2, 3')
    a('s_add_u32 s28, s28, s20')
    a('s_cmp_lt_u32 s28, 1024')
    a('s_cselect_b32 s88, s6, s58')
    a('s_cselect_b32 s89, s7, s59')
    a(f's_mov_b32 s90, 0x{1024*3584*2:x}')
    a(f's_cselect_b32 s90, 0x{1024*3072*2:x}, s90')
    if not OPT('PF_OLD'):
        a('s_cselect_b32 s29, 0xc0000, 0')
        a('s_cselect_b32 s91, 0, 0xe0000')
        a('s_add_u32 s29, s29, s91')
    a('s_and_b32 s89, s89, 0xffff')
    a('s_mov_b32 s91, 0x00020000')
    a('s_and_b32 s28, s28, 1023')
    a('s_lshl_b32 s28, s28, 10')
    if not OPT('PF_OLD'):
        a('s_add_u32 s28, s28, s29')
    a(f'v_add_u32 v{VPF2}, s28, v{VPF}')


def gemm1_variant(a, kind):
    w1 = kind == 'w1'
    NB = 7 if w1 else 6
    rowstride = 7168 if w1 else 6144
    nsecond = 6 if w1 else 4
    T = VTMP
    a(f'v_lshrrev_b32 v{T}, 2, v{VL16}')
    a(f'v_lshl_add_u32 v{T+1}, v{VG4}, 3, v{T}')
    a(f'v_lshrrev_b32 v{T+2}, 1, v{T}')
    a(f'v_and_b32 v{T+3}, 1, v{VG4}')
    a(f'v_lshl_or_b32 v{T+2}, v{T+3}, 1, v{T+2}')
    a(f'v_and_b32 v{T+4}, 3, v{VLANE}')
    a(f'v_lshlrev_b32 v{T+4}, 3, v{T+4}')
    a(f'v_lshl_add_u32 v{T+5}, v{T+1}, 7, v{T+4}')
    a(f'v_add_u32 v{T+5}, 0x{B_BASE:x}, v{T+5}')
    for e in range(2):
        if w1:
            a(f's_add_u32 s28, s22, {2*e}')
        else:
            a('s_lshl_b32 s28, s22, 1')
            a(f's_add_u32 s28, s28, {e}')
        a(f'v_xor_b32 v{T+6}, s28, v{T+2}')
        a(f'v_lshl_add_u32 v{VB+e}, v{T+6}, 5, v{T+5}')
    if w1:
        a(f'v_xor_b32 v{T+6}, s22, v{T+3}')
        a(f'v_lshl_add_u32 v{T+7}, v{T+1}, 6, v{T+4}')
        a(f'v_lshl_add_u32 v{T+7}, v{T+6}, 5, v{T+7}')
        a(f'v_add_u32 v{VB+2}, 0x{B_BASE+12288:x}, v{T+7}')
    colstride = 128 if w1 else 2048
    a(f'v_lshrrev_b32 v{T}, 3, v{VLANE}')
    a(f'v_bfe_u32 v{T+1}, v{VLANE}, 4, 1')
    a('s_and_b32 s28, s20, 1')
    a('s_lshl_b32 s28, s28, 1')
    a(f'v_or_b32 v{T+1}, s28, v{T+1}')
    a(f'v_bfe_u32 v{T+2}, v{VLANE}, 1, 2')
    a(f'v_xor_b32 v{T+2}, v{T+2}, v{T+1}')
    a(f'v_and_b32 v{T+3}, 1, v{VLANE}')
    a(f'v_lshlrev_b32 v{T+3}, 4, v{T+3}')
    a(f'v_lshl_add_u32 v{T+3}, v{T+2}, 5, v{T+3}')
    a('s_and_b32 s28, s20, 3')
    a('s_lshl_b32 s28, s28, 3')
    a(f'v_add_u32 v{T}, s28, v{T}')
    a(f's_mov_b32 s29, {rowstride}')
    a(f'v_mul_lo_u32 v{T}, v{T}, s29')
    a(f'v_add_u32 v{T}, v{T}, v{T+3}')
    a('s_lshr_b32 s28, s20, 2')
    a(f's_mul_i32 s28, s28, {colstride}')
    if w1:
        a('s_sub_u32 s32, s25, 16')
        a('s_mul_i32 s32, s32, 448')
    else:
        a('s_lshl_b32 s32, s25, 7')
    a('s_add_u32 s28, s28, s32')
    a(f'v_add_u32 v{VGB0}, s28, v{T}')
    a(f'v_add_u32 v{VGB1}, 0x{2*colstride:x}, v{VGB0}')
    if w1:
        a(f'v_lshrrev_b32 v{T}, 2, v{VLANE}')
        a('s_sub_u32 s28, s20, 4')
        a('s_lshl_b32 s28, s28, 4')
        a(f'v_add_u32 v{T}, s28, v{T}')
        a(f'v_mul_lo_u32 v{T}, v{T}, s29')
        a(f'v_bfe_u32 v{T+1}, v{VLANE}, 5, 1')
        a(f'v_bfe_u32 v{T+2}, v{VLANE}, 1, 1')
        a(f'v_xor_b32 v{T+2}, v{T+2}, v{T+1}')
        a(f'v_and_b32 v{T+3}, 1, v{VLANE}')
        a(f'v_lshlrev_b32 v{T+3}, 4, v{T+3}')
        a(f'v_lshl_add_u32 v{T+3}, v{T+2}, 5, v{T+3}')
        a(f'v_add_u32 v{T}, v{T}, v{T+3}')
        a('s_add_u32 s28, s32, 384')
        a(f'v_add_u32 v{T}, s28, v{T}')
        a('s_cmp_ge_u32 s20, 4')
        a('s_cselect_b64 s[34:35], -1, 0')
        a(f'v_cndmask_b32 v{VGB1}, v{VGB1}, v{T}, s[34:35]')
    a('s_waitcnt lgkmcnt(0)')
    stamp(a, 5, True)
    stamp(a, 0)
    srd(a, 8, 4, XN_SZ, XN_OFF)
    if w1:
        srd(a, 12, 58, 1024 * 3584 * 2)
    else:
        srd(a, 12, 6, 1024 * 3072 * 2)

    def param_loads():
        if w1:
            srd(a, 40, 60, 3584 * 2)
            a('s_lshl_b32 s28, s22, 5')
            a(f'v_lshl_add_u32 v{T}, v{VG4}, 3, s28')
            for nb in range(7):
                a(f'buffer_load_dwordx2 v[{240+2*nb}:{241+2*nb}], v{T}, s[40:43], s32 offen offset:{nb*64}')
        else:
            srd(a, 40, 56, 32 * 32 * 32 * 2)
            a('s_lshl_b32 s33, s25, 1')
            a('s_add_u32 s33, s33, s22')
            a('s_lshl_b32 s28, s33, 11')
            a(f'v_lshlrev_b32 v{T}, 8, v{VG4}')
            a(f'v_lshl_add_u32 v{T}, v{VL16}, 1, v{T}')
            for fb in range(2):
                for j in range(8):
                    off = (16 * (j // 4) + j % 4) * 64 + fb * 32
                    a(f'buffer_load_ushort v{224+8*fb+j}, v{T}, s[40:43], s28 offen offset:{off}')

    def late():
        if w1:
            srd(a, 16, 4, ACT2_SZ, ACT2_OFF)
        else:
            srd(a, 36, 4, PHIQ_SZ, PHIQ_OFF)
            srd(a, 44, 4, KVP_SZ, KVP_OFF)
        gemm1_late_setup(a)
        if not w1:
            for i in range(NB * 16):
                a(f'v_mov_b32 v{ACC+i}, 0')

    vq = VQ()
    lbl = [0]

    def grp_A(i):
        if OPT('G1_NOA'):
            return []
        out = []
        for q in range(4):
            out.append(([f's_add_u32 m0, s30, 0x{(i % 3) * A_SLOT + q * 1024:x}',
                         f's_mov_b32 s28, 0x{i * 128 + q * 16384:x}',
                         f'buffer_load_dwordx4 v{VGA}, s[8:11], s28 offen lds'], ('A', i)))
        return out

    def grp_B(j):
        if OPT('G1_NOB'):
            return []
        base = B_BASE + (j % 4) * B_SLOT
        L = f'g1{kind}_sk{lbl[0]}'
        lbl[0] += 1
        return [([f's_add_u32 m0, s31, 0x{base:x}',
                  f's_mov_b32 s28, 0x{j * 32 * rowstride:x}',
                  f'buffer_load_dwordx4 v{VGB0}, s[12:15], s28 offen lds'], ('B', j)),
                ([f's_cmp_ge_u32 s20, {nsecond}',
                  f's_cbranch_scc1 {L}',
                  f's_add_u32 m0, s31, 0x{base + 8192:x} ; @skip',
                  f's_mov_b32 s28, 0x{j * 32 * rowstride:x} ; @skip',
                  f'buffer_load_dwordx4 v{VGB1}, s[12:15], s28 offen lds ; @skip',
                  f'{L}:'], None)]

    def emit_grp(g):
        for l in g[0]:
            a(l)
        if g[1] is not None:
            vq.push(g[1])

    def issue_A(i):
        for g in grp_A(i):
            emit_grp(g)

    def issue_B(j):
        for g in grp_B(j):
            emit_grp(g)

    def frag_reads(j):
        S = SETS[j & 1]
        sl = (j // 2) % 3
        half = j & 1
        out = []
        for mb in range(4):
            out.append(f'ds_read_b128 v[{S+4*mb}:{S+4*mb+3}], v{VA+2*sl+half} offset:{mb*2048}')
        bs = (j % 4) * B_SLOT
        for nb in range(NB):
            d = S + 16 + 4 * nb
            if w1 and nb == 6:
                for t in range(2):
                    out.append(f'ds_read_b64_tr_b16 v[{d+2*t}:{d+2*t+1}], v{VB+2} offset:{bs + t*256}')
            else:
                G, e = nb // 2, nb % 2
                for t in range(2):
                    out.append(f'ds_read_b64_tr_b16 v[{d+2*t}:{d+2*t+1}], v{VB+e} offset:{bs + G*4096 + t*512}')
        return out

    def mfmas(j):
        S = SETS[j & 1]
        out = []
        for nb in range(NB):
            for mb in range(4):
                c = ACC + (nb * 4 + mb) * 4
                wf = f'v[{S+16+4*nb}:{S+19+4*nb}]'
                xf = f'v[{S+4*mb}:{S+4*mb+3}]'
                if (not w1) and nb >= 4:
                    out.append(f'v_mfma_f32_16x16x32_bf16 v[{c}:{c+3}], {xf}, {wf}, v[{c}:{c+3}]')
                else:
                    out.append(f'v_mfma_f32_16x16x32_bf16 v[{c}:{c+3}], {wf}, {xf}, v[{c}:{c+3}]')
        return out

    stamp(a, 1)
    def grp_pf(i):
        if OPT('NO_PF1'):
            return []
        return [([f's_add_u32 m0, s77, 0x{G1_DUMMY:x}',
                  f's_mov_b32 s28, 0x{i << 20:x}',
                  f'buffer_load_dwordx4 v{VPF2}, s[88:91], s28 offen lds'], None)]

    if w1:
        param_loads()
    issue_A(0); issue_B(0)
    if not w1:
        param_loads()
    issue_B(1); issue_A(1); issue_B(2); issue_B(3); issue_A(2)
    late()
    if w1:
        a(f's_waitcnt vmcnt({len(vq.q)})')
        a('s_mov_b32 s50, 0xffff0000')
        for nb in range(7):
            for mb in range(4):
                c = ACC + (nb * 4 + mb) * 4
                for h in range(2):
                    a(f'v_lshlrev_b32 v{c+2*h}, 16, v{240+2*nb+h}')
                    a(f'v_and_b32 v{c+2*h+1}, s50, v{240+2*nb+h}')
    if OPT('PF_OLD'):
        for g in grp_pf(0) + grp_pf(1):
            emit_grp(g)
    use_flags = bool(OPT('G1_FLAGS'))
    half_bar = bool(OPT('G1_HB'))
    if use_flags:
        fs = FlagSync(a, f'g1{kind}', G1_DUMMY + 4096, 25, 26, 27, 28, 29, 62)
        fs.setup(VLANE, 20)
        a(f's_waitcnt vmcnt({vq.wait_for({("A", 0), ("B", 0), ("B", 1)})}) lgkmcnt(0)')
    else:
        a(f's_waitcnt vmcnt({vq.wait_for({("A", 0), ("B", 0)})})')
    if OPT('PRIO'):
        a('s_cmp_ge_u32 s20, 4')
        a(f's_cbranch_scc0 g1{kind}_prio')
        a('s_setprio 1 ; @skip')
        a(f'g1{kind}_prio:')
    a('s_barrier')
    for r in frag_reads(0):
        a(r)
    a('s_waitcnt lgkmcnt(0)')
    for j in range(32):
        if half_bar:
            dma = []
            if j % 2 == 0:
                need = {("A", (j + 1) // 2), ("B", j + 1)}
                if j + 2 < 32:
                    need |= {("A", (j + 2) // 2), ("B", j + 2)}
                a(f's_waitcnt vmcnt({vq.wait_for(need)})')
                a('s_barrier')
                if j >= 2:
                    for jj in (j + 3, j + 4):
                        if 4 <= jj < 32:
                            dma += grp_B(jj)
                    if (j // 2 + 2) < 16 and j // 2 + 2 >= 3:
                        dma += grp_A(j // 2 + 2)
                else:
                    dma += grp_B(4)
        else:
            if not use_flags:
                if j + 1 < 32:
                    a(f's_waitcnt vmcnt({vq.wait_for({("A", (j + 1) // 2), ("B", j + 1)})})')
                a('s_barrier')
            dma = []
            if j + 4 < 32:
                dma += grp_B(j + 4)
            if j & 1 and (j // 2 + 3) < 16:
                dma += grp_A(j // 2 + 3)
        if OPT('PF_OLD'):
            if j in (2, 7, 12, 17, 22):
                dma += grp_pf(2 + (j - 2) // 5)
        else:
            sched = [int(x) for x in OPT('PF_SCHED', '0,1,4,9,14,19').split(',')]
            if j in sched:
                dma += grp_pf(sched.index(j))
        if j == 28 and not OPT('NO_PF'):
            dma.append(([f's_add_u32 m0, s77, 0x{G1_DUMMY:x}',
                         's_lshl_b32 s28, s2, 13',
                         's_add_u32 s28, s28, s31',
                         f'buffer_load_dwordx4 v{VPF}, s[64:67], s28 offen lds',
                         's_mul_i32 s76, s2, 28672',
                         's_mul_i32 s29, s20, 3584',
                         's_add_u32 s76, s76, s29'], None))
            for i in range(4):
                dma.append(([f'buffer_load_dwordx4 v{VPF}, s[68:71], s76 offen lds',
                             's_add_u32 s76, s76, 1024'], None))
        rd = frag_reads(j + 1) if j + 1 < 32 else []
        mm = mfmas(j)
        if OPT('G1_NOCOMP'):
            rd = []; mm = []
        if use_flags:
            vmw = (lambda jj=j: f's_waitcnt vmcnt({vq.wait_for({("A", (jj + 2) // 2), ("B", jj + 2)})})') if j + 2 < 32 else None
            flag_iter(a, fs, j, 32, mm, rd, dma, emit_grp, vmw, int(OPT('G1_CF', '2')), int(OPT('G1_CE', '9')))
        else:
            interleave(a, mm, rd, dma, emit_grp, int(OPT('G1_FD', '1')), int(OPT('G1_DE', '4')))
            a('s_waitcnt lgkmcnt(0)')
    if use_flags or half_bar:
        a('s_barrier')
    stamp(a, 2)
    if w1:
        epilogue_w1(a)
    else:
        epilogue_qkv(a)


def phase_end(a, w1):
    if not FUSE12:
        a('s_endpgm')
        return
    if OPT('STAMPB'):
        STAMP_REGS[:] = [96, 97, 98, 99, 100, 101, 75]
        stamp(a, 5, True)
        stamp(a, 0)
    a('s_waitcnt vmcnt(0)')
    a('s_barrier')
    if OPT('STAMPB'):
        stamp(a, 1)
    uneven = not OPT('EVEN')
    tsplit = ((72 - int(OPT('NLO', '31'))) * 64) // 224
    if w1 and uneven:
        a('s_sub_u32 s29, s25, 16')
        a(f's_cmp_gt_u32 s29, {tsplit}')
        a('s_cselect_b32 s28, 1, 0')
        a('s_lshl_b32 s76, s24, 1')
        a('s_add_u32 s28, s28, s76')
    elif w1:
        a('s_sub_u32 s28, s25, 16')
        a('s_lshr_b32 s28, s28, 3')
        a('s_lshl_b32 s29, s24, 1')
        a('s_add_u32 s28, s28, s29')
    else:
        a('s_add_u32 s28, s25, 16')
    a('s_lshl_b32 s28, s28, 7')
    a(f's_add_u32 s28, s28, 0x{CNT_OFF - FLAG_OFF:x}')
    a('v_mov_b32 v17, 0')
    a('v_mov_b32 v18, 1')
    a('v_cmp_eq_u32 vcc, 0, v0')
    a('s_and_saveexec_b64 s[34:35], vcc')
    a('buffer_atomic_add v18, v17, s[92:95], s28 offen sc1')
    if w1 and uneven:
        a(f's_cmp_lg_u32 s29, {tsplit}')
        a('s_cbranch_scc1 g12_one')
        a('buffer_atomic_add v18, v17, s[92:95], s28 offen offset:128 sc1 ; @skip')
        a('g12_one:')
    a('s_mov_b64 exec, s[34:35]')
    a('s_branch g12_p2')


def epilogue_w1(a):
    T = VTMP
    c1 = -2.0 * 0.7978845608028654 * 1.4426950408889634
    c2 = c1 * 0.044715
    a(f's_mov_b32 s44, 0x{f2u(c1):x}')
    a(f's_mov_b32 s46, 0x{f2u(c2):x}')
    a(f's_mov_b32 s47, 0x{f2u(c2):x}')
    a('s_mov_b32 s48, 1.0')
    a('s_mov_b32 s49, 1.0')
    a('s_lshl_b32 s28, s24, 8')
    a('s_lshl_b32 s29, s21, 6')
    a('s_add_u32 s28, s28, s29')
    a(f'v_add_u32 v{T}, s28, v{VL16}')
    a(f'v_and_b32 v{T+1}, 1, v{VG4}')
    a(f'v_lshl_add_u32 v{T}, v{T+1}, 4, v{T}')
    a(f'v_lshrrev_b32 v{T+1}, 1, v{VG4}')
    a(f'v_lshl_add_u32 v{T}, v{T+1}, 11, v{T}')
    a(f'v_lshlrev_b32 v{T}, 4, v{T}')
    a('s_lshr_b32 s28, s32, 4')
    a('s_lshl_b32 s29, s22, 1')
    a('s_add_u32 s28, s28, s29')
    a('s_add_u32 s28, s28, 128')
    a('s_lshl_b32 s52, s28, 15')
    W = 64
    O = 32
    a('v_mov_b32 v60, s44')
    a('v_mov_b32 v61, s44')
    for nb in range(7):
        for mb in range(4):
            c = ACC + (nb * 4 + mb) * 4
            w = W + mb * 4
            for h in range(2):
                a(f'v_pk_mul_f32 v[{w+2*h}:{w+2*h+1}], v[{c+2*h}:{c+2*h+1}], v[{c+2*h}:{c+2*h+1}]')
            for h in range(2):
                a(f'v_pk_fma_f32 v[{w+2*h}:{w+2*h+1}], v[{w+2*h}:{w+2*h+1}], s[46:47], v[60:61]')
            for h in range(2):
                a(f'v_pk_mul_f32 v[{w+2*h}:{w+2*h+1}], v[{w+2*h}:{w+2*h+1}], v[{c+2*h}:{c+2*h+1}]')
        for i in range(16):
            a(f'v_exp_f32 v{W+i}, v{W+i}')
        for h in range(8):
            a(f'v_pk_add_f32 v[{W+2*h}:{W+2*h+1}], v[{W+2*h}:{W+2*h+1}], s[48:49]')
        for i in range(16):
            a(f'v_rcp_f32 v{W+i}, v{W+i}')
        o = O + (nb & 1) * 8
        for mb in range(4):
            c = ACC + (nb * 4 + mb) * 4
            w = W + mb * 4
            for h in range(2):
                a(f'v_pk_mul_f32 v[{w+2*h}:{w+2*h+1}], v[{w+2*h}:{w+2*h+1}], v[{c+2*h}:{c+2*h+1}]')
            a(f'v_cvt_pk_bf16_f32 v{o+2*mb}, v{w}, v{w+1}')
            a(f'v_cvt_pk_bf16_f32 v{o+2*mb+1}, v{w+2}, v{w+3}')
        for p in range(2):
            a(f'v_permlane16_swap_b32 v{o+4*p}, v{o+4*p+2}')
            a(f'v_permlane16_swap_b32 v{o+4*p+1}, v{o+4*p+3}')
        a(f's_add_u32 s28, s52, 0x{nb*4*32768:x}')
        for p in range(2):
            a(f'buffer_store_dwordx4 v[{o+4*p}:{o+4*p+3}], v{T}, s[16:19], s28 offen offset:{p*512}{OPT("H_POL", " sc1")}')
    stamp(a, 3)
    if OPT('STAMP'):
        a('s_waitcnt vmcnt(0)')
    stamp(a, 4)
    stamp(a, 6, True)
    stamp_flush(a, 7, 0)
    phase_end(a, True)


def epilogue_qkv(a):
    T = VTMP
    QF, KF, VF = 32, 48, 64
    WP = 240

    def acc(nb, mb):
        return ACC + (nb * 4 + mb) * 4
    a('s_mov_b32 s50, 0xffff0000')
    a(f's_mov_b32 s51, 0x{LOG2E:x}')
    for i in range(8):
        a(f'v_lshl_or_b32 v{WP+i}, v{224+2*i+1}, 16, v{224+2*i}')
    for mb in range(4):
        for e in range(2):
            c = acc(e, mb)
            a(f'v_cvt_pk_bf16_f32 v{QF+4*mb+2*e}, v{c}, v{c+1}')
            a(f'v_cvt_pk_bf16_f32 v{QF+4*mb+2*e+1}, v{c+2}, v{c+3}')
            c = acc(2 + e, mb)
            a(f'v_cvt_pk_bf16_f32 v{KF+4*mb+2*e}, v{c}, v{c+1}')
            a(f'v_cvt_pk_bf16_f32 v{KF+4*mb+2*e+1}, v{c+2}, v{c+3}')
    for ks in range(2):
        for db in range(2):
            for e in range(2):
                c = acc(4 + db, 2 * ks + e)
                d = VF + (ks * 2 + db) * 4 + 2 * e
                a(f'v_cvt_pk_bf16_f32 v{d}, v{c}, v{c+1}')
                a(f'v_cvt_pk_bf16_f32 v{d+1}, v{c+2}, v{c+3}')
    PQ, PK = 128, 160
    for mb in range(4):
        for fb in range(2):
            d = PK + (mb * 2 + fb) * 4
            a(f'v_mfma_f32_16x16x32_bf16 v[{d}:{d+3}], v[{KF+4*mb}:{KF+4*mb+3}], v[{WP+4*fb}:{WP+4*fb+3}], 0')
    a('s_lshl_b32 s28, s24, 4')
    a('s_lshl_b32 s29, s21, 2')
    a('s_add_u32 s28, s28, s29')
    a('s_lshl_b32 s28, s28, 10')
    a('s_lshl_b32 s29, s33, 17')
    a('s_add_u32 s28, s28, s29')
    for mb in range(4):
        a(f'buffer_store_dwordx4 v[{QF+4*mb}:{QF+4*mb+3}], v{VPF}, s[36:39], s28 offen offset:{mb*1024}{OPT("H_POL", " sc1")}')
    a('s_or_b32 s28, s24, s21')
    a('s_cmp_lg_u32 s28, 0')
    a('s_cbranch_scc1 g1q_nowp')
    a('s_lshl_b32 s28, s33, 11 ; @skip')
    a('s_add_u32 s28, s28, 0x400000 ; @skip')
    a(f'buffer_store_dwordx4 v[{WP}:{WP+3}], v{VPF}, s[36:39], s28 offen sc1 ; @skip')
    a(f'buffer_store_dwordx4 v[{WP+4}:{WP+7}], v{VPF}, s[36:39], s28 offen offset:1024 sc1 ; @skip')
    a('g1q_nowp:')
    for i in range(0, 32, 2):
        r = PK + i
        a(f'v_cvt_pk_bf16_f32 v{T+(i>>1)%4}, v{r}, v{r+1}')
        a(f'v_lshlrev_b32 v{r}, 16, v{T+(i>>1)%4}')
        a(f'v_and_b32 v{r+1}, s50, v{T+(i>>1)%4}')
    KMX, KMN, KS1, KS2, KT = 80, 96, 32, 48, 112
    idx = [(mb, i) for mb in range(4) for i in range(4)]

    def pk(mb, fb, i):
        return PK + (mb * 2 + fb) * 4 + i
    for n, (mb, i) in enumerate(idx):
        a(f'v_max_f32 v{KMX+n}, v{pk(mb,0,i)}, v{pk(mb,1,i)}')
        a(f'v_min_f32 v{KMN+n}, v{pk(mb,0,i)}, v{pk(mb,1,i)}')
    for (base, op) in ((KMX, 'v_max_f32'), (KMN, 'v_min_f32')):
        src, dst = base, KT
        for r in (8, 4, 2, 1):
            for n in range(16):
                a(f'{op}_dpp v{dst+n}, v{src+n}, v{src+n} row_ror:{r} row_mask:0xf bank_mask:0xf')
            src, dst = dst, src
    EP = 128
    for n in range(16):
        a(f'v_mul_f32 v{KMX+n}, s51, v{KMX+n}')
        a(f'v_mul_f32 v{KMN+n}, s51, v{KMN+n}')
    for n, (mb, i) in enumerate(idx):
        for fb in range(2):
            r = pk(mb, fb, i)
            a(f'v_fma_f32 v{EP + r - PK}, v{r}, s51, -v{KMX+n}')
            a(f'v_fma_f32 v{r}, -v{r}, s51, v{KMN+n}')
    for r in range(64):
        a(f'v_exp_f32 v{128+r}, v{128+r}')
    for n, (mb, i) in enumerate(idx):
        a(f'v_add_f32 v{KS1+n}, v{EP + pk(mb,0,i) - PK}, v{EP + pk(mb,1,i) - PK}')
        a(f'v_add_f32 v{KS2+n}, v{pk(mb,0,i)}, v{pk(mb,1,i)}')
    for base in (KS1, KS2):
        src, dst = base, KT
        for r in (8, 4, 2, 1):
            for n in range(16):
                a(f'v_add_f32_dpp v{dst+n}, v{src+n}, v{src+n} row_ror:{r} row_mask:0xf bank_mask:0xf')
            src, dst = dst, src
    for n in range(16):
        a(f'v_rcp_f32 v{KS1+n}, v{KS1+n}')
        a(f'v_rcp_f32 v{KS2+n}, v{KS2+n}')
    for n, (mb, i) in enumerate(idx):
        for fb in range(2):
            r = pk(mb, fb, i)
            a(f'v_mul_f32 v{EP + r - PK}, v{EP + r - PK}, v{KS1+n}')
            a(f'v_mul_f32 v{r}, v{r}, v{KS2+n}')
    PF = 80
    for sg in range(2):
        for fb in range(2):
            for ks in range(2):
                d = PF + ((sg * 2 + fb) * 2 + ks) * 4
                for e in range(2):
                    r = (EP if sg == 0 else PK) + ((2 * ks + e) * 2 + fb) * 4
                    a(f'v_cvt_pk_bf16_f32 v{d+2*e}, v{r}, v{r+1}')
                    a(f'v_cvt_pk_bf16_f32 v{d+2*e+1}, v{r+2}, v{r+3}')
    ONES = 112
    for i in range(4):
        a(f'v_mov_b32 v{ONES+i}, 0x3f803f80')
    KV = 128
    Z = 160
    for ks in range(2):
        for F in range(4):
            pf = PF + (F * 2 + ks) * 4
            for db in range(2):
                d = KV + (F * 2 + db) * 4
                vf = VF + (ks * 2 + db) * 4
                cc = '0' if ks == 0 else f'v[{d}:{d+3}]'
                a(f'v_mfma_f32_16x16x32_bf16 v[{d}:{d+3}], v[{pf}:{pf+3}], v[{vf}:{vf+3}], {cc}')
            d = Z + F * 4
            cc = '0' if ks == 0 else f'v[{d}:{d+3}]'
            a(f'v_mfma_f32_16x16x32_bf16 v[{d}:{d+3}], v[{pf}:{pf+3}], v[{ONES}:{ONES+3}], {cc}')
    a('s_lshl_b32 s28, s22, 2')
    a('s_add_u32 s28, s28, s21')
    a('s_mul_i32 s28, s28, 12288')
    a(f'v_add_u32 v{T+6}, s28, v{VPF}')
    for r in range(12):
        a(f'ds_write_b128 v{T+6}, v[{KV+4*r}:{KV+4*r+3}] offset:{r*1024}')
    a('s_mul_i32 s28, s22, 49152')
    a('s_mul_i32 s29, s21, 3072')
    a('s_add_u32 s28, s28, s29')
    a(f'v_add_u32 v{T+6}, s28, v{VPF}')
    a('s_waitcnt lgkmcnt(0)')
    a('s_barrier')
    for p in range(4):
        for r in range(3):
            a(f'ds_read_b128 v[{32+12*p+4*r}:{35+12*p+4*r}], v{T+6} offset:{p*12288 + r*1024}')
    a('s_lshl_b32 s28, s33, 3')
    a('s_add_u32 s28, s28, s24')
    a(f's_mul_i32 s28, s28, {KVP_ENT}')
    a(f'v_lshlrev_b32 v{T+7}, 4, v{VG4}')
    a(f'v_cmp_eq_u32 vcc, 0, v{VL16}')
    a('s_waitcnt lgkmcnt(0)')
    for r in range(12):
        a(f'v_add_f32 v{32+r}, v{32+r}, v{44+r}')
        a(f'v_add_f32 v{56+r}, v{56+r}, v{68+r}')
    for r in range(12):
        a(f'v_add_f32 v{32+r}, v{32+r}, v{56+r}')

    def qoff(q):
        if q < 8:
            F, db = q >> 1, q & 1
            return ((db * 2 + (F >> 1)) * 2 + (F & 1)) * 1024
        return 8192 + (q - 8) * 64
    for wm in range(4):
        a(f's_cmp_lg_u32 s21, {wm}')
        a(f's_cbranch_scc1 g1q_st{wm}')
        for r in range(3):
            q = 3 * wm + r
            a(f's_add_u32 s29, s28, {qoff(q)} ; @skip')
            if q < 8:
                a(f'buffer_store_dwordx4 v[{32+4*r}:{35+4*r}], v{VPF}, s[44:47], s29 offen sc1 ; @skip')
            else:
                a('s_and_saveexec_b64 s[34:35], vcc ; @skip')
                a(f'buffer_store_dwordx4 v[{32+4*r}:{35+4*r}], v{T+7}, s[44:47], s29 offen sc1 ; @skip')
                a('s_mov_b64 exec, s[34:35] ; @skip')
        a(f'g1q_st{wm}:')
    a('g1q_end:')
    stamp(a, 3)
    if OPT('STAMP'):
        a('s_waitcnt vmcnt(0)')
    stamp(a, 4)
    stamp(a, 6, True)
    stamp_flush(a, 7, 0)
    phase_end(a, False)


def gen_gemm1(a):
    name = 'gemm1_kernel'
    kernel_begin(a, name)
    a('s_cmp_ge_u32 s2, 256')
    a('s_cbranch_scc1 g1_exit')
    a('s_load_dwordx2 s[4:5], s[0:1], 88')
    a('s_load_dwordx2 s[6:7], s[0:1], 8')
    a('s_load_dwordx2 s[56:57], s[0:1], 16')
    a('s_load_dwordx2 s[58:59], s[0:1], 40')
    a('s_load_dwordx2 s[60:61], s[0:1], 48')
    a('s_load_dwordx2 s[72:73], s[0:1], 24')
    a('s_load_dwordx2 s[74:75], s[0:1], 56')
    gemm1_common_setup(a)
    a('s_cmp_ge_u32 s25, 16')
    a('s_cbranch_scc1 g1_w1')
    gemm1_variant(a, 'qkv')
    a('g1_w1:')
    gemm1_variant(a, 'w1')
    a('g1_exit:')
    a('s_endpgm')
    return descriptor(name, 256, 102)


def gen_o(a):
    name = 'attn_o_kernel'
    kernel_begin(a, name)
    a('s_cmp_ge_u32 s2, 256')
    a('s_cbranch_scc1 o_done')
    a('s_load_dwordx2 s[4:5], s[0:1], 88')
    a('s_load_dwordx2 s[32:33], s[0:1], 24')
    a('s_load_dwordx2 s[34:35], s[0:1], 56')
    a('v_lshrrev_b32 v1, 6, v0')
    a('v_and_b32 v2, 63, v0')
    a('s_nop 0')
    a('v_readfirstlane_b32 s20, v1')
    a('v_lshrrev_b32 v3, 4, v2')
    a('v_and_b32 v4, 15, v2')
    a('s_and_b32 s21, s2, 31')
    a('s_lshr_b32 s22, s2, 5')
    a('s_waitcnt lgkmcnt(0)')
    srd(a, 8, 4, KVP_SZ, KVP_OFF)
    srd(a, 12, 4, PHIQ_SZ, PHIQ_OFF)
    srd(a, 16, 4, ACT2_SZ, ACT2_OFF)
    srd(a, 36, 4, FLAG_SZ, FLAG_OFF)
    a('s_lshl_b32 s23, s2, 9')
    a('v_lshlrev_b32 v5, 7, v0')
    a('v_mov_b32 v6, 0')
    a('v_cmp_gt_u32 vcc, 4, v0')
    a('s_and_saveexec_b64 s[24:25], vcc')
    a('buffer_store_dword v6, v5, s[36:39], s23 offen')
    a('s_mov_b64 exec, s[24:25]')
    a('s_and_b32 s23, s20, 1')
    a('s_lshr_b32 s24, s20, 1')
    a('s_lshl_b32 s25, s23, 12')
    a('s_lshl_b32 s26, s24, 7')
    a('s_add_u32 s25, s25, s26')
    a('v_lshlrev_b32 v5, 8, v4')
    a('v_lshl_add_u32 v5, v3, 5, v5')
    a('v_add_u32 v5, s25, v5')
    a(f's_mul_i32 s27, s21, {KVP_ENT}')
    for mt in range(8):
        a(f's_add_u32 s28, s27, {mt*32*KVP_ENT}')
        a(f'buffer_load_dwordx4 v[{32+8*mt}:{35+8*mt}], v5, s[8:11], s28 offen')
        a(f'buffer_load_dwordx4 v[{36+8*mt}:{39+8*mt}], v5, s[8:11], s28 offen offset:16')
    a('s_lshl_b32 s25, s23, 7')
    a('s_add_u32 s25, s25, 8192')
    a('v_lshl_add_u32 v6, v3, 5, s25')
    for mt in range(8):
        a(f's_add_u32 s28, s27, {mt*32*KVP_ENT}')
        a(f'buffer_load_dwordx4 v[{96+8*mt}:{99+8*mt}], v6, s[8:11], s28 offen')
        a(f'buffer_load_dwordx4 v[{100+8*mt}:{103+8*mt}], v6, s[8:11], s28 offen offset:16')
    a('s_lshl_b32 s25, s22, 8')
    a('s_lshl_b32 s26, s20, 6')
    a('s_add_u32 s25, s25, s26')
    a('v_add_u32 v7, s25, v4')
    a('v_lshlrev_b32 v8, 12, v7')
    a('s_lshl_b32 s26, s21, 7')
    a('v_lshl_add_u32 v9, v3, 4, s26')
    a('v_add_u32 v8, v8, v9')
    for mb in range(4):
        a(f's_mov_b32 s28, {mb*16*4096}')
        for ks in range(2):
            d = 160 + (mb * 2 + ks) * 4
            a(f'buffer_load_dwordx4 v[{d}:{d+3}], v8, s[12:15], s28 offen offset:{ks*64}')
    npf = 0
    if OPT('O_PF'):
        srd(a, 36, 32, 1024 * 1024 * 2)
        srd(a, 40, 34, 3584 * 1024 * 2)
        a('v_lshlrev_b32 v200, 4, v0')
        a('s_lshl_b32 s44, s2, 13')
        a('s_mul_i32 s45, s2, 28672')
        for r in range(2):
            a(f'buffer_load_dwordx4 v[{204+4*r}:{207+4*r}], v200, s[36:39], s44 offen')
            a('s_add_u32 s44, s44, 4096')
        for r in range(7):
            a(f'buffer_load_dwordx4 v[{212+4*r}:{215+4*r}], v200, s[40:43], s45 offen')
            a('s_add_u32 s45, s45, 4096')
        npf = 9
    a(f's_waitcnt vmcnt({8+npf})')
    for base in (32, 96):
        for mt in range(1, 8):
            for i in range(8):
                a(f'v_add_f32 v{base+i}, v{base+i}, v{base+8*mt+i}')
    for i in range(4):
        a(f'v_cvt_pk_bf16_f32 v{12+i}, v{32+2*i}, v{33+2*i}')
        a(f'v_cvt_pk_bf16_f32 v{16+i}, v{96+2*i}, v{97+2*i}')
    a('v_lshlrev_b32 v10, 4, v2')
    a('s_lshl_b32 s25, s20, 10')
    a('v_add_u32 v11, s25, v10')
    a('ds_write_b128 v11, v[12:15]')
    a('s_cmp_ge_u32 s20, 2')
    a('s_cbranch_scc1 o_skipz')
    a('ds_write_b128 v11, v[16:19] offset:4096')
    a('o_skipz:')
    a('s_waitcnt lgkmcnt(0)')
    a('s_barrier')
    for i in range(6):
        a(f'ds_read_b128 v[{32+4*i}:{35+4*i}], v10 offset:{i*1024}')
    a(f's_waitcnt vmcnt({npf}) lgkmcnt(0)')
    NUM = 64
    DEN = 96
    for ks in range(2):
        for mb in range(4):
            pf = 160 + (mb * 2 + ks) * 4
            for db in range(2):
                d = NUM + (mb * 2 + db) * 4
                kf = 32 + (ks * 2 + db) * 4
                cc = '0' if ks == 0 else f'v[{d}:{d+3}]'
                a(f'v_mfma_f32_16x16x32_bf16 v[{d}:{d+3}], v[{kf}:{kf+3}], v[{pf}:{pf+3}], {cc}')
            d = DEN + mb * 4
            zf = 32 + (4 + ks) * 4
            cc = '0' if ks == 0 else f'v[{d}:{d+3}]'
            a(f'v_mfma_f32_16x16x32_bf16 v[{d}:{d+3}], v[{zf}:{zf+3}], v[{pf}:{pf+3}], {cc}')
    a('s_mov_b32 s30, 0xffff0000')
    a('s_mov_b32 s29, 9216')
    a('v_mul_lo_u32 v8, v7, s29')
    a('s_lshl_b32 s26, s21, 6')
    a('v_lshl_add_u32 v9, v3, 3, s26')
    a('v_add_u32 v8, v8, v9')
    for mb in range(4):
        dn = DEN + mb * 4
        round_bf16(a, dn, dn)
        a(f'v_add_f32 v{dn}, 0x{f2u(1e-6):x}, v{dn}')
        round_bf16(a, dn, dn)
        a(f'v_rcp_f32 v{dn+1}, v{dn}')
        a(f's_mov_b32 s28, {mb*16*9216}')
        for db in range(2):
            n = NUM + (mb * 2 + db) * 4
            for h in range(2):
                a(f'v_cvt_pk_bf16_f32 v{12+h}, v{n+2*h}, v{n+2*h+1}')
                a(f'v_lshlrev_b32 v{n+2*h}, 16, v{12+h}')
                a(f'v_and_b32 v{n+2*h+1}, s30, v{12+h}')
            for i in range(4):
                a(f'v_mul_f32 v{16+i}, v{n+i}, v{dn+1}')
            for i in range(4):
                a(f'v_fma_f32 v{n+i}, -v{16+i}, v{dn}, v{n+i}')
            for i in range(4):
                a(f'v_fmac_f32 v{16+i}, v{n+i}, v{dn+1}')
            o = 20 + (mb * 2 + db) * 2
            a(f'v_cvt_pk_bf16_f32 v{o}, v16, v17')
            a(f'v_cvt_pk_bf16_f32 v{o+1}, v18, v19')
            a(f'buffer_store_dwordx2 v[{o}:{o+1}], v8, s[16:19], s28 offen offset:{db*32}')
    a('o_done:')
    a('s_endpgm')
    return descriptor(name, 240, 48)


G2_A = 32768
G2_BB = 98304
G2_B = 16384
G2_LDS = G2_BB + 3 * G2_B


def gen_gemm2(a):
    name = 'gemm2_kernel'
    kernel_begin(a, name)
    a('s_cmp_ge_u32 s2, 256')
    a('s_cbranch_scc1 g2_exit')
    a('s_load_dwordx2 s[4:5], s[0:1], 88')
    a('s_load_dwordx2 s[6:7], s[0:1], 24')
    a('s_load_dwordx2 s[56:57], s[0:1], 56')
    a('s_load_dwordx2 s[58:59], s[0:1], 64')
    a('s_load_dwordx2 s[60:61], s[0:1], 0')
    a('s_load_dwordx2 s[62:63], s[0:1], 72')
    LANE, G4, L16, T = 14, 15, 16, 17
    VA2, VB2, VGA2, VGB2 = 2, 5, 9, 10
    a('v_lshrrev_b32 v1, 6, v0')
    a(f'v_and_b32 v{LANE}, 63, v0')
    a('s_nop 0')
    a('v_readfirstlane_b32 s20, v1')
    a(f'v_lshrrev_b32 v{G4}, 4, v{LANE}')
    a(f'v_and_b32 v{L16}, 15, v{LANE}')
    a('s_nop 1')
    a('s_and_b32 s21, s20, 1')
    a('s_lshr_b32 s22, s20, 1')
    a('s_and_b32 s26, s2, 7')
    a('s_lshr_b32 s27, s2, 3')
    a('s_and_b32 s24, s26, 3')
    a('s_lshl_b32 s24, s24, 2')
    a('s_and_b32 s28, s27, 3')
    a('s_add_u32 s24, s24, s28')
    a('s_lshr_b32 s25, s26, 2')
    a('s_lshl_b32 s25, s25, 3')
    a('s_lshr_b32 s28, s27, 2')
    a('s_add_u32 s25, s25, s28')
    a('s_lshl_b32 s28, s22, 2')
    a(f'v_add_u32 v{T}, s28, v{G4}')
    a(f'v_xor_b32 v{T}, v{T}, v{L16}')
    a(f'v_lshlrev_b32 v{T}, 4, v{T}')
    a(f'v_lshl_add_u32 v{T}, v{L16}, 8, v{T}')
    a('s_lshl_b32 s28, s21, 14')
    a(f'v_add_u32 v{T}, s28, v{T}')
    for sl in range(3):
        a(f'v_add_u32 v{VA2+sl}, 0x{sl*G2_A:x}, v{T}')
    a(f'v_lshrrev_b32 v{T}, 2, v{L16}')
    a(f'v_lshl_add_u32 v{T+1}, v{G4}, 3, v{T}')
    a('s_lshl_b32 s28, s22, 5')
    a(f'v_add_u32 v{T+1}, s28, v{T+1}')
    a(f'v_lshrrev_b32 v{T+2}, 1, v{T}')
    a(f'v_and_b32 v{T+3}, 1, v{G4}')
    a(f'v_lshl_or_b32 v{T+2}, v{T+3}, 1, v{T+2}')
    a(f'v_and_b32 v{T+4}, 3, v{LANE}')
    a(f'v_lshlrev_b32 v{T+4}, 3, v{T+4}')
    a(f'v_lshl_add_u32 v{T+5}, v{T+1}, 7, v{T+4}')
    a(f'v_add_u32 v{T+5}, 0x{G2_BB:x}, v{T+5}')
    for nb in range(4):
        a(f'v_xor_b32 v{T+6}, {nb}, v{T+2}')
        a(f'v_lshl_add_u32 v{VB2+nb}, v{T+6}, 5, v{T+5}')
    a('s_lshl_b32 s28, s20, 2')
    a('s_and_b32 s29, s28, 15')
    a(f'v_add_u32 v{T}, s29, v{G4}')
    a(f'v_xor_b32 v{T}, v{T}, v{L16}')
    a('s_lshl_b32 s29, s24, 7')
    a('s_add_u32 s28, s28, s29')
    a(f'v_add_u32 v{T+1}, s28, v{G4}')
    a('s_mov_b32 s29, 9216')
    a(f'v_mul_lo_u32 v{T+1}, v{T+1}, s29')
    a(f'v_lshl_add_u32 v{VGA2}, v{T}, 4, v{T+1}')
    a('s_lshl_b32 s30, s20, 10')
    a(f'v_lshrrev_b32 v{T}, 3, v{LANE}')
    a(f'v_bfe_u32 v{T+1}, v{LANE}, 4, 1')
    a('s_lshl_b32 s28, s21, 1')
    a(f'v_or_b32 v{T+1}, s28, v{T+1}')
    a(f'v_bfe_u32 v{T+2}, v{LANE}, 1, 2')
    a(f'v_xor_b32 v{T+2}, v{T+2}, v{T+1}')
    a(f'v_and_b32 v{T+3}, 1, v{LANE}')
    a(f'v_lshlrev_b32 v{T+3}, 4, v{T+3}')
    a(f'v_lshl_add_u32 v{T+3}, v{T+2}, 5, v{T+3}')
    a('s_lshl_b32 s28, s20, 3')
    a(f'v_add_u32 v{T}, s28, v{T}')
    a(f'v_lshl_add_u32 v{T}, v{T}, 11, v{T+3}')
    a('s_lshl_b32 s32, s25, 7')
    a(f'v_add_u32 v{VGB2}, s32, v{T}')
    a('s_waitcnt lgkmcnt(0)')
    srd(a, 8, 4, ACT2_SZ, ACT2_OFF)
    srd(a, 12, 6, 1024 * 1024 * 2)
    srd(a, 16, 56, 3584 * 1024 * 2)
    srd(a, 36, 58, 2048)
    srd(a, 40, 60, XN_SZ)
    srd(a, 44, 62, XN_SZ)
    stamp(a, 5, True)
    stamp(a, 0)
    ACC2 = 64
    SETS2 = (24, 128)
    for i in range(64):
        a(f'v_mov_b32 v{ACC2+i}, 0')
    vq = VQ()
    NS = 36

    def grp(j):
        sl = j % 3
        out = []
        for q in range(4):
            if OPT('G2_NOA'):
                break
            out.append(([f's_add_u32 m0, s30, 0x{sl*G2_A + q*8192:x}',
                         f's_mov_b32 s28, 0x{j*256 + q*32*9216:x}',
                         f'buffer_load_dwordx4 v{VGA2}, s[8:11], s28 offen lds'], j))
        for q in range(2):
            if OPT('G2_NOB'):
                break
            k0 = j * 128 + q * 64
            if k0 < 1024:
                sr, ko = 's[12:15]', k0
            else:
                sr, ko = 's[16:19]', k0 - 1024
            out.append(([f's_add_u32 m0, s30, 0x{G2_BB + sl*G2_B + q*8192:x}',
                         f's_mov_b32 s28, 0x{ko*2048:x}',
                         f'buffer_load_dwordx4 v{VGB2}, {sr}, s28 offen lds'], j))
        return out

    def emit_grp(g):
        for l in g[0]:
            a(l)
        vq.push(g[1])

    def issue(j):
        for g in grp(j):
            emit_grp(g)

    def frag_reads(j):
        S = SETS2[j & 1]
        sl = j % 3
        out = []
        for mb in range(4):
            out.append(f'ds_read_b128 v[{S+4*mb}:{S+4*mb+3}], v{VA2+sl} offset:{mb*4096}')
        for nb in range(4):
            d = S + 16 + 4 * nb
            for t in range(2):
                out.append(f'ds_read_b64_tr_b16 v[{d+2*t}:{d+2*t+1}], v{VB2+nb} offset:{sl*G2_B + t*512}')
        return out

    def mfmas(j):
        S = SETS2[j & 1]
        out = []
        for nb in range(4):
            for mb in range(4):
                c = ACC2 + (mb * 4 + nb) * 4
                out.append(f'v_mfma_f32_16x16x32_bf16 v[{c}:{c+3}], v[{S+16+4*nb}:{S+19+4*nb}], v[{S+4*mb}:{S+4*mb+3}], v[{c}:{c+3}]')
        return out

    issue(0); issue(1); issue(2)
    a(f's_waitcnt vmcnt({vq.wait_for({0})})')
    a('s_barrier')
    stamp(a, 1)
    for r in frag_reads(0):
        a(r)
    a('s_waitcnt lgkmcnt(0)')
    for j in range(NS):
        if j + 1 < NS:
            a(f's_waitcnt vmcnt({vq.wait_for({j + 1})})')
        a('s_barrier')
        dma = grp(j + 3) if j + 3 < NS else []
        rd = frag_reads(j + 1) if j + 1 < NS else []
        mm = mfmas(j)
        if OPT('G2_NOCOMP'):
            rd = []; mm = []
        interleave(a, mm, rd, dma, emit_grp, 0, 3)
        a('s_waitcnt lgkmcnt(0)')
    stamp(a, 2)
    a(f'v_lshlrev_b32 v{T}, 4, v{LANE}')
    a('s_lshl_b32 s28, s21, 16')
    a('s_lshl_b32 s29, s22, 12')
    a('s_add_u32 s28, s28, s29')
    a(f'v_add_u32 v{T+1}, s28, v{T}')
    for mb in range(4):
        for nb in range(4):
            c = ACC2 + (mb * 4 + nb) * 4
            a(f'ds_write_b128 v{T+1}, v[{c}:{c+3}] offset:{mb*16384 + nb*1024}')
    a('s_lshl_b32 s28, s24, 7')
    a('s_lshl_b32 s29, s21, 6')
    a('s_add_u32 s28, s28, s29')
    a('s_lshl_b32 s29, s22, 4')
    a('s_add_u32 s28, s28, s29')
    a(f'v_add_u32 v{T+2}, s28, v{L16}')
    a(f'v_lshlrev_b32 v{T+2}, 11, v{T+2}')
    a(f'v_lshl_add_u32 v{T+3}, v{G4}, 3, s32')
    a(f'v_add_u32 v{T+2}, v{T+2}, v{T+3}')
    for nb in range(4):
        a(f'buffer_load_dwordx2 v[{24+2*nb}:{25+2*nb}], v{T+2}, s[40:43], 0 offen offset:{nb*32}')
        a(f'buffer_load_dwordx2 v[{32+2*nb}:{33+2*nb}], v{T+3}, s[36:39], 0 offen offset:{nb*32}')
    a('s_waitcnt lgkmcnt(0)')
    a('s_barrier')
    a('s_lshl_b32 s28, s21, 16')
    a('s_lshl_b32 s29, s22, 14')
    a('s_add_u32 s28, s28, s29')
    a(f'v_add_u32 v{T+1}, s28, v{T}')
    for src in range(4):
        for nb in range(4):
            d = 128 + (src * 4 + nb) * 4
            a(f'ds_read_b128 v[{d}:{d+3}], v{T+1} offset:{src*4096 + nb*1024}')
    a('s_mov_b32 s50, 0xffff0000')
    a('s_waitcnt vmcnt(0) lgkmcnt(0)')
    for i in range(16):
        a(f'v_add_f32 v{128+i}, v{128+i}, v{144+i}')
        a(f'v_add_f32 v{160+i}, v{160+i}, v{176+i}')
    for i in range(16):
        a(f'v_add_f32 v{128+i}, v{128+i}, v{160+i}')
    for nb in range(4):
        for h in range(2):
            r = 128 + nb * 4 + 2 * h
            a(f'v_lshlrev_b32 v40, 16, v{24+2*nb+h}')
            a(f'v_and_b32 v41, s50, v{24+2*nb+h}')
            a(f'v_lshlrev_b32 v42, 16, v{32+2*nb+h}')
            a(f'v_and_b32 v43, s50, v{32+2*nb+h}')
            a(f'v_add_f32 v{r}, v{r}, v42')
            a(f'v_add_f32 v{r+1}, v{r+1}, v43')
            a(f'v_add_f32 v{r}, v{r}, v40')
            a(f'v_add_f32 v{r+1}, v{r+1}, v41')
            a(f'v_cvt_pk_bf16_f32 v{44+2*nb+h}, v{r}, v{r+1}')
        a(f'buffer_store_dwordx2 v[{44+2*nb}:{45+2*nb}], v{T+2}, s[44:47], 0 offen offset:{nb*32}')
    stamp(a, 3)
    if OPT('STAMP'):
        a('s_waitcnt vmcnt(0)')
    stamp(a, 4)
    stamp(a, 6, True)
    stamp_flush(a, 7, 1)
    a('g2_exit:')
    a('s_endpgm')
    return descriptor(name, 192, 100)


X_OFF = 0x2200000
X_SZ = 256 * 32768
FLAG_OFF = 0x2A00000
FLAG_SZ = 256 * 512
CNT_OFF = 0x2C00000
OFLAG_OFF = 0x2B00000
H_SLOT = 32768
H_LDS = 4 * H_SLOT


def gen_gemm2b(a):
    name = 'gemm2_kernel'
    kernel_begin(a, name)
    a('s_cmp_ge_u32 s2, 256')
    a('s_cbranch_scc1 g2_exit')
    a('s_load_dwordx2 s[4:5], s[0:1], 88')
    a('s_load_dwordx2 s[6:7], s[0:1], 24')
    a('s_load_dwordx2 s[56:57], s[0:1], 56')
    a('s_load_dwordx2 s[58:59], s[0:1], 64')
    a('s_load_dwordx2 s[60:61], s[0:1], 0')
    a('s_load_dwordx2 s[62:63], s[0:1], 72')
    a('s_load_dwordx2 s[64:65], s[0:1], 80')
    LANE, G4, L16, T = 14, 15, 16, 17
    VA2, VB2, VGA2, VGB2 = 2, 4, 9, 10
    a('v_lshrrev_b32 v1, 6, v0')
    a(f'v_and_b32 v{LANE}, 63, v0')
    a('s_nop 0')
    a('v_readfirstlane_b32 s20, v1')
    a(f'v_lshrrev_b32 v{G4}, 4, v{LANE}')
    a(f'v_and_b32 v{L16}, 15, v{LANE}')
    a('s_nop 1')
    a('s_and_b32 s21, s20, 1')
    a('s_bfe_u32 s23, s20, 0x10001')
    a('s_lshr_b32 s22, s20, 2')
    a('s_and_b32 s26, s2, 7')
    a('s_lshr_b32 s27, s2, 3')
    a('s_and_b32 s33, s26, 1')
    a('s_lshr_b32 s24, s26, 1')
    a('s_lshl_b32 s24, s24, 2')
    a('s_and_b32 s28, s27, 3')
    a('s_add_u32 s24, s24, s28')
    a('s_lshr_b32 s25, s27, 2')
    a(f'v_lshrrev_b32 v{T}, 3, v{LANE}')
    a(f'v_and_b32 v{T+1}, 7, v{LANE}')
    a(f'v_xor_b32 v{T+1}, v{T+1}, v{T}')
    a('s_lshl_b32 s28, s24, 7')
    a('s_lshl_b32 s29, s20, 3')
    a('s_add_u32 s28, s28, s29')
    a(f'v_add_u32 v{T}, s28, v{T}')
    a('s_movk_i32 s29, 9216')
    a(f'v_mul_lo_u32 v{T}, v{T}, s29')
    a(f'v_lshl_add_u32 v{T}, v{T+1}, 4, v{T}')
    a('s_mul_i32 s28, s33, 4608')
    a(f'v_add_u32 v{VGA2}, s28, v{T}')
    a('s_lshl_b32 s30, s20, 10')
    a(f'v_lshrrev_b32 v{T}, 3, v{LANE}')
    a(f'v_bfe_u32 v{T+1}, v{LANE}, 4, 1')
    a('s_lshl_b32 s28, s21, 1')
    a(f'v_or_b32 v{T+1}, s28, v{T+1}')
    a(f'v_bfe_u32 v{T+2}, v{LANE}, 1, 2')
    a(f'v_xor_b32 v{T+2}, v{T+2}, v{T+1}')
    a(f'v_and_b32 v{T+3}, 1, v{LANE}')
    a(f'v_lshlrev_b32 v{T+3}, 4, v{T+3}')
    a(f'v_lshl_add_u32 v{T+3}, v{T+2}, 5, v{T+3}')
    a('s_lshl_b32 s28, s20, 3')
    a(f'v_add_u32 v{T}, s28, v{T}')
    a(f'v_lshl_add_u32 v{T}, v{T}, 11, v{T+3}')
    a('s_lshl_b32 s32, s25, 8')
    a(f'v_add_u32 v{VGB2}, s32, v{T}')
    a('s_waitcnt lgkmcnt(0)')
    srd(a, 8, 4, ACT2_SZ, ACT2_OFF)
    a('s_cmp_eq_u32 s33, 0')
    a('s_cbranch_scc0 g2_kh1')
    srd(a, 12, 6, 1024 * 2048)
    a(f's_sub_u32 s16, s56, 0x{1024*2048:x}')
    a('s_subb_u32 s17, s57, 0')
    a('s_and_b32 s17, s17, 0xffff')
    a(f's_mov_b32 s18, 0x{4608*2048:x}')
    a('s_mov_b32 s19, 0x00020000')
    a('s_branch g2_khd')
    a('g2_kh1:')
    srd(a, 12, 56, (3584 - 1280) * 2048, 1280 * 2048)
    srd(a, 16, 56, (3584 - 1280) * 2048, 1280 * 2048)
    a('g2_khd:')
    vq = VQ()
    NS = 36

    def grp(j):
        sl = j % 4
        out = []
        for q in range(2):
            out.append(([f's_add_u32 m0, s30, 0x{sl*H_SLOT + q*8192:x}',
                         f's_mov_b32 s28, 0x{j*128 + q*64*9216:x}',
                         f'buffer_load_dwordx4 v{VGA2}, s[8:11], s28 offen lds'], j))
        sr = 's[12:15]' if j < 16 else 's[16:19]'
        for q in range(2):
            out.append(([f's_add_u32 m0, s30, 0x{sl*H_SLOT + 16384 + q*8192:x}',
                         f's_mov_b32 s28, 0x{j*64*2048 + q*128:x}',
                         f'buffer_load_dwordx4 v{VGB2}, {sr}, s28 offen lds'], j))
        return out

    def emit_grp(g):
        for l in g[0]:
            a(l)
        vq.push(g[1])

    for j in range(4):
        for g in grp(j):
            emit_grp(g)
    stamp(a, 5, True)
    stamp(a, 0)
    srd(a, 36, 58, 2048)
    srd(a, 40, 60, XN_SZ)
    srd(a, 44, 62, XN_SZ)
    srd(a, 48, 4, X_SZ, X_OFF)
    srd(a, 52, 4, FLAG_SZ, FLAG_OFF)
    a('s_lshl_b32 s28, s22, 2')
    a(f'v_add_u32 v{T}, s28, v{G4}')
    a(f'v_and_b32 v{T+1}, 7, v{LANE}')
    a(f'v_xor_b32 v{T}, v{T}, v{T+1}')
    a(f'v_lshlrev_b32 v{T}, 4, v{T}')
    a(f'v_lshl_add_u32 v{T}, v{L16}, 7, v{T}')
    a('s_lshl_b32 s28, s21, 13')
    a(f'v_add_u32 v{VA2}, s28, v{T}')
    a(f'v_add_u32 v{VA2+1}, 0x10000, v{VA2}')
    a(f'v_lshrrev_b32 v{T}, 2, v{L16}')
    a(f'v_lshl_add_u32 v{T+1}, v{G4}, 3, v{T}')
    a('s_lshl_b32 s28, s22, 5')
    a(f'v_add_u32 v{T+1}, s28, v{T+1}')
    a(f'v_lshrrev_b32 v{T+2}, 1, v{T}')
    a(f'v_and_b32 v{T+3}, 1, v{G4}')
    a(f'v_lshl_or_b32 v{T+2}, v{T+3}, 1, v{T+2}')
    a(f'v_and_b32 v{T+4}, 3, v{LANE}')
    a(f'v_lshlrev_b32 v{T+4}, 3, v{T+4}')
    a(f'v_lshl_add_u32 v{T+5}, v{T+1}, 7, v{T+4}')
    a('s_lshl_b32 s28, s23, 13')
    a('s_add_u32 s28, s28, 16384')
    a(f'v_add_u32 v{T+5}, s28, v{T+5}')
    for nb in range(4):
        a(f'v_xor_b32 v{T+6}, {nb}, v{T+2}')
        a(f'v_lshl_add_u32 v{VB2+nb}, v{T+6}, 5, v{T+5}')
        a(f'v_add_u32 v{24+nb}, 0x10000, v{VB2+nb}')
    ACC2 = 64
    SETS2 = (32, 128)
    for i in range(64):
        a(f'v_mov_b32 v{ACC2+i}, 0')

    def frag_reads(j):
        S = SETS2[j & 1]
        sl = j % 4
        hi = sl >> 1
        so = (sl & 1) * H_SLOT
        out = []
        for mb in range(4):
            out.append(f'ds_read_b128 v[{S+4*mb}:{S+4*mb+3}], v{VA2+hi} offset:{so + mb*2048}')
        for nb in range(4):
            d = S + 16 + 4 * nb
            vb = (24 if hi else VB2) + nb
            for t in range(2):
                out.append(f'ds_read_b64_tr_b16 v[{d+2*t}:{d+2*t+1}], v{vb} offset:{so + t*512}')
        return out

    def mfmas(j):
        S = SETS2[j & 1]
        out = []
        for nb in range(4):
            for mb in range(4):
                c = ACC2 + (mb * 4 + nb) * 4
                out.append(f'v_mfma_f32_16x16x32_bf16 v[{c}:{c+3}], v[{S+16+4*nb}:{S+19+4*nb}], v[{S+4*mb}:{S+4*mb+3}], v[{c}:{c+3}]')
        return out

    a(f's_waitcnt vmcnt({vq.wait_for({0})})')
    a('s_barrier')
    stamp(a, 1)
    for r in frag_reads(0):
        a(r)
    a('s_waitcnt lgkmcnt(0)')
    for j in range(NS):
        if j + 1 < NS:
            a(f's_waitcnt vmcnt({vq.wait_for({j + 1})})')
        a('s_barrier')
        dma = grp(j + 4) if j + 4 < NS else []
        rd = frag_reads(j + 1) if j + 1 < NS else []
        mm = mfmas(j)
        interleave(a, mm, rd, dma, emit_grp, 0, 4)
        a('s_waitcnt lgkmcnt(0)')
    stamp(a, 2)
    a(f'v_lshlrev_b32 v{T}, 4, v{LANE}')
    a('s_and_b32 s28, s20, 3')
    a('s_lshl_b32 s28, s28, 14')
    a('s_xor_b32 s29, s22, 1')
    a('s_lshl_b32 s29, s29, 13')
    a('s_add_u32 s29, s29, s28')
    a(f'v_add_u32 v{T+1}, s29, v{T}')
    a('s_lshl_b32 s29, s22, 13')
    a('s_add_u32 s29, s29, s28')
    a(f'v_add_u32 v{T+2}, s29, v{T}')
    a('s_cmp_eq_u32 s22, 0')
    a('s_cbranch_scc0 g2_ks1')
    for r in range(8):
        a(f'ds_write_b128 v{T+1}, v[{ACC2+32+4*r}:{ACC2+35+4*r}] offset:{r*1024}')
    a('s_branch g2_ksd')
    a('g2_ks1:')
    for r in range(8):
        a(f'ds_write_b128 v{T+1}, v[{ACC2+4*r}:{ACC2+3+4*r}] offset:{r*1024}')
    for r in range(32):
        a(f'v_mov_b32 v{ACC2+r}, v{ACC2+32+r}')
    a('g2_ksd:')
    a('s_waitcnt lgkmcnt(0)')
    a('s_barrier')
    for r in range(8):
        a(f'ds_read_b128 v[{128+4*r}:{131+4*r}], v{T+2} offset:{r*1024}')
    a('s_waitcnt lgkmcnt(0)')
    for r in range(32):
        a(f'v_add_f32 v{ACC2+r}, v{ACC2+r}, v{128+r}')
    a('s_lshl_b32 s28, s21, 1')
    a('s_add_u32 s28, s28, s22')
    a('s_lshl_b32 s67, s28, 7')
    a('s_lshl_b32 s28, s28, 13')
    a(f'v_add_u32 v{T+1}, s28, v{T}')
    a('s_cmp_eq_u32 s23, s33')
    a('s_cbranch_scc1 g2_recv')
    a('s_lshl_b32 s28, s2, 15')
    for r in range(8):
        a(f'buffer_store_dwordx4 v[{ACC2+4*r}:{ACC2+3+4*r}], v{T+1}, s[48:51], s28 offen offset:{r*1024 if r < 4 else (r-4)*1024} sc1' if r < 4 else
          f'buffer_store_dwordx4 v[{ACC2+4*r}:{ACC2+3+4*r}], v{T+1}, s[48:51], s29 offen offset:{(r-4)*1024} sc1')
        if r == 3:
            a('s_add_u32 s29, s28, 4096')
    a('s_waitcnt vmcnt(0)')
    a('s_lshl_b32 s28, s2, 9')
    a('s_add_u32 s28, s28, s67')
    a('v_mov_b32 v1, 1')
    a('v_mov_b32 v2, s28')
    a('s_mov_b64 exec, 1')
    a('buffer_store_dword v1, v2, s[52:55], 0 offen sc1')
    a('s_branch g2_fin')
    a('g2_recv:')
    a('s_lshl_b32 s28, s24, 7')
    a('s_lshl_b32 s29, s21, 6')
    a('s_add_u32 s28, s28, s29')
    a('s_lshl_b32 s29, s22, 5')
    a('s_add_u32 s28, s28, s29')
    a(f'v_add_u32 v{T+2}, s28, v{L16}')
    a(f'v_lshlrev_b32 v{T+2}, 11, v{T+2}')
    a('s_lshl_b32 s29, s23, 7')
    a('s_add_u32 s29, s29, s32')
    a(f'v_lshl_add_u32 v{T+3}, v{G4}, 3, s29')
    a(f'v_add_u32 v{T+2}, v{T+2}, v{T+3}')
    a('s_mov_b32 s34, 32768')
    for e in range(2):
        for nb in range(4):
            so = '0' if e == 0 else 's34'
            a(f'buffer_load_dwordx2 v[{32+8*e+2*nb}:{33+8*e+2*nb}], v{T+2}, s[40:43], {so} offen offset:{nb*32}')
    for nb in range(4):
        a(f'buffer_load_dwordx2 v[{48+2*nb}:{49+2*nb}], v{T+3}, s[36:39], 0 offen offset:{nb*32}')
    a('s_xor_b32 s35, s2, 1')
    a('s_lshl_b32 s28, s35, 9')
    a('s_add_u32 s28, s28, s67')
    a('v_mov_b32 v2, s28')
    a('g2_poll:')
    a('buffer_load_dword v1, v2, s[52:55], 0 offen sc1')
    a('s_waitcnt vmcnt(0)')
    a('v_readfirstlane_b32 s28, v1')
    a('s_nop 3')
    a('s_cmp_eq_u32 s28, 1')
    a('s_cbranch_scc1 g2_ready')
    a('s_sleep 1')
    a('s_branch g2_poll')
    a('g2_ready:')
    a('s_lshl_b32 s28, s35, 15')
    a('s_add_u32 s29, s28, 4096')
    for r in range(8):
        a(f'buffer_load_dwordx4 v[{128+4*r}:{131+4*r}], v{T+1}, s[48:51], s{28 if r < 4 else 29} offen offset:{(r % 4)*1024} sc1')
    a('s_mov_b32 s66, 0xffff0000')
    a('s_waitcnt vmcnt(0)')
    for r in range(32):
        a(f'v_add_f32 v{ACC2+r}, v{ACC2+r}, v{128+r}')
    for e in range(2):
        for nb in range(4):
            for h in range(2):
                r = ACC2 + (e * 4 + nb) * 4 + 2 * h
                xr = 32 + 8 * e + 2 * nb + h
                br = 48 + 2 * nb + h
                a(f'v_lshlrev_b32 v56, 16, v{xr}')
                a(f'v_and_b32 v57, s66, v{xr}')
                a(f'v_lshlrev_b32 v58, 16, v{br}')
                a(f'v_and_b32 v59, s66, v{br}')
                a(f'v_add_f32 v{r}, v{r}, v58')
                a(f'v_add_f32 v{r+1}, v{r+1}, v59')
                a(f'v_add_f32 v{r}, v{r}, v56')
                a(f'v_add_f32 v{r+1}, v{r+1}, v57')
                a(f'v_cvt_pk_bf16_f32 v{160+(e*4+nb)*2+h}, v{r}, v{r+1}')
            o = 160 + (e * 4 + nb) * 2
            so = '0' if e == 0 else 's34'
            a(f'buffer_store_dwordx2 v[{o}:{o+1}], v{T+2}, s[44:47], {so} offen offset:{nb*32}')
    a('g2_fin:')
    stamp(a, 3)
    if OPT('STAMP'):
        a('s_waitcnt vmcnt(0)')
    stamp(a, 4)
    stamp(a, 6, True)
    stamp_flush(a, 7, 1)
    a('g2_exit:')
    a('s_endpgm')
    return descriptor(name, 192, 100)


def gen_gemm2c(a):
    STAMP_REGS[:] = [96, 97, 98, 99, 100, 101, 75]
    name = 'gemm2_kernel'
    if FUSE12:
        a('g12_p2:')
    else:
        kernel_begin(a, name)
        a('s_cmp_ge_u32 s2, 256')
        a('s_cbranch_scc1 g2_exit')
    a('s_load_dwordx2 s[4:5], s[0:1], 88')
    a('s_load_dwordx2 s[6:7], s[0:1], 24')
    a('s_load_dwordx2 s[56:57], s[0:1], 56')
    a('s_load_dwordx2 s[58:59], s[0:1], 64')
    a('s_load_dwordx2 s[60:61], s[0:1], 0')
    a('s_load_dwordx2 s[62:63], s[0:1], 72')
    a('s_load_dwordx2 s[64:65], s[0:1], 80')
    LANE, G4, L16, T = 14, 15, 16, 17
    VA2, VB2, VGA2, VGB2 = 2, 4, 9, 10
    a('v_lshrrev_b32 v1, 6, v0')
    a(f'v_and_b32 v{LANE}, 63, v0')
    a('s_nop 0')
    a('v_readfirstlane_b32 s20, v1')
    a(f'v_lshrrev_b32 v{G4}, 4, v{LANE}')
    a(f'v_and_b32 v{L16}, 15, v{LANE}')
    a('s_nop 1')
    a('s_and_b32 s21, s20, 1')
    a('s_bfe_u32 s23, s20, 0x10001')
    a('s_lshr_b32 s22, s20, 2')
    a('s_and_b32 s26, s2, 7')
    a('s_lshr_b32 s27, s2, 3')
    a('s_and_b32 s33, s26, 1')
    a('s_lshr_b32 s24, s26, 1')
    a('s_lshl_b32 s24, s24, 2')
    a('s_and_b32 s28, s27, 3')
    a('s_add_u32 s24, s24, s28')
    a('s_lshr_b32 s25, s27, 2')
    a('s_lshl_b32 s28, s20, 11')
    a('s_lshl_b32 s29, s24, 7')
    a('s_add_u32 s28, s28, s29')
    a(f'v_add_u32 v{T}, s28, v{LANE}')
    a(f'v_lshlrev_b32 v{VGA2}, 4, v{T}')
    a('s_lshl_b32 s31, s20, 11')
    a('s_lshl_b32 s30, s20, 10')
    a(f'v_lshrrev_b32 v{T}, 3, v{LANE}')
    a(f'v_bfe_u32 v{T+1}, v{LANE}, 4, 1')
    a('s_lshl_b32 s28, s21, 1')
    a(f'v_or_b32 v{T+1}, s28, v{T+1}')
    a(f'v_bfe_u32 v{T+2}, v{LANE}, 1, 2')
    a(f'v_xor_b32 v{T+2}, v{T+2}, v{T+1}')
    a(f'v_and_b32 v{T+3}, 1, v{LANE}')
    a(f'v_lshlrev_b32 v{T+3}, 4, v{T+3}')
    a(f'v_lshl_add_u32 v{T+3}, v{T+2}, 5, v{T+3}')
    a('s_lshl_b32 s28, s20, 3')
    a(f'v_add_u32 v{T}, s28, v{T}')
    a(f'v_lshl_add_u32 v{T}, v{T}, 11, v{T+3}')
    a('s_lshl_b32 s32, s25, 8')
    a(f'v_add_u32 v{VGB2}, s32, v{T}')
    a('s_waitcnt lgkmcnt(0)')
    srd(a, 8, 4, ACT2_SZ, ACT2_OFF)
    a(f's_mul_i32 s28, s33, 0x{1792*2048:x}')
    a('s_add_u32 s12, s56, s28')
    a('s_addc_u32 s13, s57, 0')
    a('s_and_b32 s13, s13, 0xffff')
    a(f's_mov_b32 s14, 0x{1792*2048:x}')
    a('s_mov_b32 s15, 0x00020000')
    a('s_lshl_b32 s28, s33, 20')
    a('s_add_u32 s16, s6, s28')
    a('s_addc_u32 s17, s7, 0')
    a(f's_sub_u32 s16, s16, 0x{1792*2048:x}')
    a('s_subb_u32 s17, s17, 0')
    a('s_and_b32 s17, s17, 0xffff')
    a(f's_mov_b32 s18, 0x{36*131072:x}')
    a('s_mov_b32 s19, 0x00020000')
    a(f's_mul_i32 s68, s33, 0x{224*32768:x}')
    a(f's_add_u32 s68, s68, 0x{128*32768:x}')
    a('s_lshl_b32 s69, s33, 21')
    a(f's_sub_u32 s69, s69, 0x{224*32768:x}')
    vq = VQ()
    NS = 36

    def grp(j):
        sl = j % 4
        out = []
        for q in range(2):
            out.append(([f's_add_u32 m0, s31, 0x{sl*H_SLOT + q*1024:x}',
                         f's_add_u32 s28, s{68 if j < 28 else 69}, 0x{j*8*32768 + q*1024:x}',
                         f'buffer_load_dwordx4 v{VGA2}, s[8:11], s28 offen lds'], j))
        sr = 's[12:15]' if j < 28 else 's[16:19]'
        for q in range(2):
            out.append(([f's_add_u32 m0, s30, 0x{sl*H_SLOT + 16384 + q*8192:x}',
                         f's_mov_b32 s28, 0x{j*64*2048 + q*128:x}',
                         f'buffer_load_dwordx4 v{VGB2}, {sr}, s28 offen lds'], j))
        return out

    def emit_grp(g):
        for l in g[0]:
            a(l)
        vq.push(g[1])


    def o_block():
        srd(a, 80, 4, KVP_SZ, KVP_OFF)
        srd(a, 84, 4, PHIQ_SZ, PHIQ_OFF)
        a('s_and_b32 s70, s2, 31')
        a('s_lshr_b32 s71, s2, 5')
        a('s_lshl_b32 s28, s21, 12')
        a('s_bfe_u32 s29, s20, 0x10001')
        a('s_lshl_b32 s29, s29, 11')
        a('s_add_u32 s28, s28, s29')
        a(f'v_lshl_add_u32 v{T}, v{LANE}, 4, s28')
        a(f'v_add_u32 v{T+1}, 1024, v{T}')
        a('s_lshl_b32 s29, s21, 7')
        a('s_add_u32 s29, s29, 8192')
        a(f'v_lshl_add_u32 v{T+2}, v{G4}, 4, s29')
        a(f'v_add_u32 v{T+3}, 64, v{T+2}')
        a('s_cmp_lt_u32 s20, 4')
        a('s_cselect_b64 s[34:35], -1, 0')
        a('s_cselect_b32 s94, -1, 0x00010001')
        a('s_mov_b32 s95, s94')
        a(f'v_cndmask_b32 v11, v{T+2}, v{T}, s[34:35]')
        a(f'v_cndmask_b32 v13, v{T+3}, v{T+1}, s[34:35]')
        a(f's_mul_i32 s72, s70, {8*KVP_ENT}')
        a('s_lshl_b32 s28, s71, 5')
        a('s_lshl_b32 s29, s20, 2')
        a('s_add_u32 s28, s28, s29')
        a('s_lshl_b32 s28, s28, 10')
        a('s_lshl_b32 s29, s70, 17')
        a('s_add_u32 s28, s28, s29')
        a(f'v_lshl_add_u32 v12, v{LANE}, 4, s28')
        a('s_lshl_b32 s28, s70, 11')
        a('s_add_u32 s28, s28, 0x400000')
        a(f'v_lshl_add_u32 v27, v{LANE}, 4, s28')
        QF, WPF, KP = 128, 144, 64
        for mb in range(4):
            a(f'buffer_load_dwordx4 v[{QF+4*mb}:{QF+3+4*mb}], v12, s[84:87], 0 offen offset:{mb*1024}')
        for fb in range(2):
            a(f'buffer_load_dwordx4 v[{WPF+4*fb}:{WPF+3+4*fb}], v27, s[84:87], 0 offen offset:{fb*1024}')
        a('s_mov_b64 exec, s[94:95]')
        for mt in range(8):
            a(f's_add_u32 s28, s72, {mt*KVP_ENT}')
            a(f'buffer_load_dwordx4 v[{KP+8*mt}:{KP+3+8*mt}], v11, s[80:83], s28 offen')
            a(f'buffer_load_dwordx4 v[{KP+4+8*mt}:{KP+7+8*mt}], v13, s[80:83], s28 offen')
        a('s_mov_b64 exec, -1')
        a('s_lshl_b32 s28, s71, 9')
        a('s_lshl_b32 s29, s20, 6')
        a('s_add_u32 s28, s28, s29')
        a('s_lshl_b32 s29, s70, 13')
        a('s_add_u32 s28, s28, s29')
        a(f'v_add_u32 v28, s28, v{L16}')
        a(f'v_and_b32 v{T+3}, 1, v{G4}')
        a(f'v_lshl_add_u32 v28, v{T+3}, 4, v28')
        a(f'v_lshrrev_b32 v{T+3}, 1, v{G4}')
        a(f'v_lshl_add_u32 v28, v{T+3}, 11, v28')
        a('v_lshlrev_b32 v28, 4, v28')
        a(f'v_lshlrev_b32 v29, 4, v{LANE}')
        a(f'v_add_u32 v29, 0x{H_LDS:x}, v29')
        a('v_add_u32 v30, s30, v29')
        a(f'v_lshlrev_b32 v26, 8, v{G4}')
        a(f'v_add_u32 v26, 0x{H_LDS:x}, v26')
        a('s_mov_b32 s66, 0xffff0000')
        a(f's_mov_b32 s76, 0x{LOG2E:x}')
        a('s_waitcnt vmcnt(16)')
        PQ = 152
        for mb in range(4):
            for fb in range(2):
                d = PQ + (mb * 2 + fb) * 4
                a(f'v_mfma_f32_16x16x32_bf16 v[{d}:{d+3}], v[{WPF+4*fb}:{WPF+3+4*fb}], v[{QF+4*mb}:{QF+3+4*mb}], 0')
        for i in range(0, 32, 2):
            r = PQ + i
            a(f'v_cvt_pk_bf16_f32 v{32+(i>>1)%8}, v{r}, v{r+1}')
            a(f'v_lshlrev_b32 v{r}, 16, v{32+(i>>1)%8}')
            a(f'v_and_b32 v{r+1}, s66, v{32+(i>>1)%8}')
        MX, MN, S1, S2, E = 32, 36, 40, 44, 184
        for mb in range(4):
            p = PQ + mb * 8
            a(f'v_max3_f32 v{MX+mb}, v{p}, v{p+1}, v{p+2}')
            a(f'v_min3_f32 v{MN+mb}, v{p}, v{p+1}, v{p+2}')
            a(f'v_max3_f32 v{MX+mb}, v{MX+mb}, v{p+3}, v{p+4}')
            a(f'v_min3_f32 v{MN+mb}, v{MN+mb}, v{p+3}, v{p+4}')
            a(f'v_max3_f32 v{MX+mb}, v{MX+mb}, v{p+5}, v{p+6}')
            a(f'v_min3_f32 v{MN+mb}, v{MN+mb}, v{p+5}, v{p+6}')
            a(f'v_max_f32 v{MX+mb}, v{MX+mb}, v{p+7}')
            a(f'v_min_f32 v{MN+mb}, v{MN+mb}, v{p+7}')
        for mb in range(4):
            cross_groups(a, 'v_max_f32', MX + mb, 48)
            cross_groups(a, 'v_min_f32', MN + mb, 49)
        for mb in range(4):
            a(f'v_mul_f32 v{MX+mb}, s76, v{MX+mb}')
            a(f'v_mul_f32 v{MN+mb}, s76, v{MN+mb}')
        for mb in range(4):
            p = PQ + mb * 8
            e = E + mb * 16
            for i in range(8):
                a(f'v_fma_f32 v{e+i}, v{p+i}, s76, -v{MX+mb}')
                a(f'v_fma_f32 v{e+8+i}, -v{p+i}, s76, v{MN+mb}')
        for i in range(64):
            a(f'v_exp_f32 v{E+i}, v{E+i}')
        for mb in range(4):
            e = E + mb * 16
            for (S, b) in ((S1, e), (S2, e + 8)):
                a(f'v_add_f32 v{S+mb}, v{b}, v{b+1}')
                for i in range(2, 8):
                    a(f'v_add_f32 v{S+mb}, v{S+mb}, v{b+i}')
        for mb in range(4):
            cross_groups(a, 'v_add_f32', S1 + mb, 48)
            cross_groups(a, 'v_add_f32', S2 + mb, 49)
        for mb in range(4):
            a(f'v_rcp_f32 v{S1+mb}, v{S1+mb}')
            a(f'v_rcp_f32 v{S2+mb}, v{S2+mb}')
        for mb in range(4):
            e = E + mb * 16
            for i in range(8):
                a(f'v_mul_f32 v{e+i}, v{e+i}, v{S1+mb}')
                a(f'v_mul_f32 v{e+8+i}, v{e+8+i}, v{S2+mb}')
        PF = 128
        for mb in range(4):
            for i in range(8):
                a(f'v_cvt_pk_bf16_f32 v{PF+8*mb+i}, v{E+16*mb+2*i}, v{E+16*mb+2*i+1}')
        a('s_waitcnt vmcnt(0)')
        for mt in range(1, 8):
            for i in range(8):
                a(f'v_add_f32 v{KP+i}, v{KP+i}, v{KP+8*mt+i}')
        for i in range(4):
            a(f'v_cvt_pk_bf16_f32 v{KP+8+i}, v{KP+2*i}, v{KP+1+2*i}')
        a('s_mov_b64 exec, s[94:95]')
        a(f'ds_write_b128 v30, v[{KP+8}:{KP+11}]')
        a('s_mov_b64 exec, -1')
        a('s_waitcnt lgkmcnt(0)')
        a('s_barrier')
        KF0, NUM, DEN = 80, 160, 192
        for i in range(6):
            a(f'ds_read_b128 v[{KF0+4*i}:{KF0+3+4*i}], v{29 if i < 4 else 26} offset:{i*1024}')
        a('s_waitcnt lgkmcnt(0)')
        for ks in range(2):
            for mb in range(4):
                pf = PF + (mb * 2 + ks) * 4
                for db in range(2):
                    d = NUM + (mb * 2 + db) * 4
                    kf = KF0 + (ks * 2 + db) * 4
                    cc = '0' if ks == 0 else f'v[{d}:{d+3}]'
                    a(f'v_mfma_f32_16x16x32_bf16 v[{d}:{d+3}], v[{kf}:{kf+3}], v[{pf}:{pf+3}], {cc}')
                d = DEN + mb * 4
                zf = KF0 + (4 + ks) * 4
                cc = '0' if ks == 0 else f'v[{d}:{d+3}]'
                a(f'v_mfma_f32_16x16x32_bf16 v[{d}:{d+3}], v[{zf}:{zf+3}], v[{pf}:{pf+3}], {cc}')
        a(f's_mov_b32 s73, {2*32768}')
        for mb in range(4):
            dn = DEN + mb * 4
            round_bf16(a, dn, dn)
            a(f'v_add_f32 v{dn}, 0x{f2u(1e-6):x}, v{dn}')
            round_bf16(a, dn, dn)
            a(f'v_rcp_f32 v{dn+1}, v{dn}')
        for mb in range(4):
            dn = DEN + mb * 4
            for db in range(2):
                n = NUM + (mb * 2 + db) * 4
                t = 32 + db * 8
                for h in range(2):
                    a(f'v_cvt_pk_bf16_f32 v{t+h}, v{n+2*h}, v{n+2*h+1}')
                    a(f'v_lshlrev_b32 v{n+2*h}, 16, v{t+h}')
                    a(f'v_and_b32 v{n+2*h+1}, s66, v{t+h}')
                for i in range(4):
                    a(f'v_mul_f32 v{t+4+i}, v{n+i}, v{dn+1}')
                for i in range(4):
                    a(f'v_fma_f32 v{n+i}, -v{t+4+i}, v{dn}, v{n+i}')
                for i in range(4):
                    a(f'v_fmac_f32 v{t+4+i}, v{n+i}, v{dn+1}')
                o = 208 + (mb >> 1) * 8 + db * 4 + (mb & 1) * 2
                a(f'v_cvt_pk_bf16_f32 v{o}, v{t+4}, v{t+5}')
                a(f'v_cvt_pk_bf16_f32 v{o+1}, v{t+6}, v{t+7}')
        for p in range(2):
            for db in range(2):
                o = 208 + p * 8 + db * 4
                a(f'v_permlane16_swap_b32 v{o}, v{o+2}')
                a(f'v_permlane16_swap_b32 v{o+1}, v{o+3}')
                a(f'buffer_store_dwordx4 v[{o}:{o+3}], v28, s[8:11], {"0" if db == 0 else "s73"} offen offset:{p*512} sc1')

    OBLK = FUSE12 and not OPT('NO_OBLK')
    if FUSE12:
        for j in range(4):
            for g in grp(j)[2:]:
                emit_grp(g)
        srd(a, 36, 4, 4096, CNT_OFF)
        a('s_lshr_b32 s28, s24, 1')
        a('s_lshl_b32 s28, s28, 1')
        a('s_add_u32 s28, s28, s33')
        a('s_lshl_b32 s28, s28, 7')
        a('s_bfe_u32 s29, s2, 0x40001')
        a('s_add_u32 s29, s29, 16')
        a('s_lshl_b32 s29, s29, 7')
        a('v_mov_b32 v31, 0')
        if OPT('STAMPB'):
            stamp(a, 2)
        if OBLK:
            a('s_mov_b32 s67, s28')
            a('s_cmp_ge_u32 s2, 128')
            a('s_cbranch_scc1 g12_poll')
            a('g12_pollq:')
            a('buffer_load_dword v1, v31, s[36:39], s29 offen sc1')
            a('s_waitcnt vmcnt(0)')
            a('v_readfirstlane_b32 s34, v1')
            a('s_nop 3')
            a('s_cmp_ge_u32 s34, 8')
            a('s_cbranch_scc1 g12_goq')
            a('s_sleep 2')
            a('s_branch g12_pollq')
            a('g12_goq:')
            o_block()
            a('v_mov_b32 v31, 0')
            a('g12_poll:')
            a('buffer_load_dword v1, v31, s[36:39], s67 offen sc1')
            a('s_waitcnt vmcnt(0)')
            a('v_readfirstlane_b32 s34, v1')
            a('s_nop 3')
            a('s_cmp_ge_u32 s34, 8')
            a('s_cbranch_scc1 g12_go')
            a('s_sleep 2')
            a('s_branch g12_poll')
        else:
            a('g12_poll:')
            a('buffer_load_dword v1, v31, s[36:39], s28 offen sc1')
            a('buffer_load_dword v30, v31, s[36:39], s29 offen sc1')
            a('s_waitcnt vmcnt(0)')
            a('v_min_u32 v1, v1, v30')
            a('s_nop 0')
            a('v_readfirstlane_b32 s34, v1')
            a('s_nop 3')
            a('s_cmp_ge_u32 s34, 8')
            a('s_cbranch_scc1 g12_go')
            a('s_sleep 2')
            a('s_branch g12_poll')
        a('g12_go:')
        if OPT('STAMPB'):
            stamp(a, 3)
        for j in range(4):
            for g in grp(j)[:2]:
                emit_grp(g)
    else:
        for j in range(4):
            for g in grp(j):
                emit_grp(g)
    if not OPT('STAMPB'):
        stamp(a, 5, True)
        stamp(a, 0)
    srd(a, 80, 4, KVP_SZ, KVP_OFF)
    srd(a, 84, 4, PHIQ_SZ, PHIQ_OFF)
    a('s_and_b32 s70, s2, 31')
    a('s_lshr_b32 s71, s2, 5')
    a('s_lshl_b32 s28, s21, 12')
    a('s_bfe_u32 s29, s20, 0x10001')
    a('s_lshl_b32 s29, s29, 11')
    a('s_add_u32 s28, s28, s29')
    a(f'v_lshl_add_u32 v{T}, v{LANE}, 4, s28')
    a(f'v_add_u32 v{T+1}, 1024, v{T}')
    a('s_lshl_b32 s29, s21, 7')
    a('s_add_u32 s29, s29, 8192')
    a(f'v_lshl_add_u32 v{T+2}, v{G4}, 4, s29')
    a(f'v_add_u32 v{T+3}, 64, v{T+2}')
    a('s_cmp_lt_u32 s20, 4')
    a('s_cselect_b64 s[34:35], -1, 0')
    a(f'v_cndmask_b32 v{T}, v{T+2}, v{T}, s[34:35]')
    a(f'v_cndmask_b32 v13, v{T+3}, v{T+1}, s[34:35]')
    a('s_cselect_b32 s94, -1, 0x00010001')
    a('s_mov_b32 s95, s94')
    a(f's_mul_i32 s72, s70, {8*KVP_ENT}')
    a(f'v_mov_b32 v11, v{T}')
    ogrp = []
    for mt in range(8):
        ogrp.append(([f's_add_u32 s28, s72, {mt*KVP_ENT}', 's_mov_b64 exec, s[94:95]',
                      f'buffer_load_dwordx4 v[{160+8*mt}:{163+8*mt}], v11, s[80:83], s28 offen', 's_mov_b64 exec, -1'], 'o'))
        ogrp.append(([f's_add_u32 s28, s72, {mt*KVP_ENT}', 's_mov_b64 exec, s[94:95]',
                      f'buffer_load_dwordx4 v[{164+8*mt}:{167+8*mt}], v13, s[80:83], s28 offen', 's_mov_b64 exec, -1'], 'o'))
    a('s_lshl_b32 s28, s71, 8')
    a('s_lshl_b32 s29, s20, 5')
    a('s_add_u32 s28, s28, s29')
    a(f'v_add_u32 v{T+1}, s28, v{L16}')
    a('s_lshl_b32 s28, s71, 4')
    a('s_lshl_b32 s29, s20, 1')
    a('s_add_u32 s28, s28, s29')
    a('s_lshl_b32 s28, s28, 10')
    a('s_lshl_b32 s29, s70, 17')
    a('s_add_u32 s28, s28, s29')
    a(f'v_lshl_add_u32 v12, v{LANE}, 4, s28')
    a('s_lshl_b32 s28, s70, 11')
    a('s_add_u32 s28, s28, 0x400000')
    a(f'v_lshl_add_u32 v27, v{LANE}, 4, s28')
    for mb in range(2):
        ogrp.append(([f'buffer_load_dwordx4 v[{224+4*mb}:{227+4*mb}], v12, s[84:87], 0 offen offset:{mb*1024}'], 'oq'))
    for fb in range(2):
        ogrp.append(([f'buffer_load_dwordx4 v[{232+4*fb}:{235+4*fb}], v27, s[84:87], 0 offen offset:{fb*1024}'], 'oq'))
    a('s_lshl_b32 s28, s71, 8')
    a('s_lshl_b32 s29, s20, 5')
    a('s_add_u32 s28, s28, s29')
    a('s_lshl_b32 s29, s70, 13')
    a('s_add_u32 s28, s28, s29')
    a(f'v_add_u32 v28, s28, v{L16}')
    a(f'v_and_b32 v{T+3}, 1, v{G4}')
    a(f'v_lshl_add_u32 v28, v{T+3}, 4, v28')
    a(f'v_lshrrev_b32 v{T+3}, 1, v{G4}')
    a(f'v_lshl_add_u32 v28, v{T+3}, 11, v28')
    a('v_lshlrev_b32 v28, 4, v28')
    a(f'v_lshlrev_b32 v29, 4, v{LANE}')
    a(f'v_add_u32 v29, 0x{H_LDS:x}, v29')
    a('v_add_u32 v30, s30, v29')
    a(f'v_lshlrev_b32 v26, 8, v{G4}')
    a(f'v_add_u32 v26, 0x{H_LDS:x}, v26')

    def o_phase0(a):
        a.mark('vmwait')
        for mt in range(1, 8):
            for i in range(8):
                a(f'v_add_f32 v{160+i}, v{160+i}, v{160+8*mt+i}')
        for i in range(4):
            a(f'v_cvt_pk_bf16_f32 v{168+i}, v{160+2*i}, v{161+2*i}')
        a('s_mov_b64 exec, s[94:95]\nds_write_b128 v30, v[168:171]\ns_mov_b64 exec, -1')

    def o_phase1(a):
        a.mark('vmwait')
        PQ = 172
        for mb in range(2):
            for fb in range(2):
                d = PQ + (mb * 2 + fb) * 4
                a(f'v_mfma_f32_16x16x32_bf16 v[{d}:{d+3}], v[{232+4*fb}:{235+4*fb}], v[{224+4*mb}:{227+4*mb}], 0')
        a('s_mov_b32 s66, 0xffff0000')
        a(f's_mov_b32 s76, 0x{LOG2E:x}')
        for i in range(0, 16, 2):
            r = PQ + i
            a(f'v_cvt_pk_bf16_f32 v{160+(i>>1)}, v{r}, v{r+1}')
            a(f'v_lshlrev_b32 v{r}, 16, v{160+(i>>1)}')
            a(f'v_and_b32 v{r+1}, s66, v{160+(i>>1)}')
        MX, MN, S1, S2, E = 160, 162, 164, 166, 188
        for mb in range(2):
            p = PQ + mb * 8
            a(f'v_max3_f32 v{MX+mb}, v{p}, v{p+1}, v{p+2}')
            a(f'v_min3_f32 v{MN+mb}, v{p}, v{p+1}, v{p+2}')
            a(f'v_max3_f32 v{MX+mb}, v{MX+mb}, v{p+3}, v{p+4}')
            a(f'v_min3_f32 v{MN+mb}, v{MN+mb}, v{p+3}, v{p+4}')
            a(f'v_max3_f32 v{MX+mb}, v{MX+mb}, v{p+5}, v{p+6}')
            a(f'v_min3_f32 v{MN+mb}, v{MN+mb}, v{p+5}, v{p+6}')
            a(f'v_max_f32 v{MX+mb}, v{MX+mb}, v{p+7}')
            a(f'v_min_f32 v{MN+mb}, v{MN+mb}, v{p+7}')
        for mb in range(2):
            cross_groups(a, 'v_max_f32', MX + mb, 220)
            cross_groups(a, 'v_min_f32', MN + mb, 221)
        for mb in range(2):
            a(f'v_mul_f32 v{MX+mb}, s76, v{MX+mb}')
            a(f'v_mul_f32 v{MN+mb}, s76, v{MN+mb}')
        for mb in range(2):
            p = PQ + mb * 8
            e = E + mb * 16
            for i in range(8):
                a(f'v_fma_f32 v{e+i}, v{p+i}, s76, -v{MX+mb}')
                a(f'v_fma_f32 v{e+8+i}, -v{p+i}, s76, v{MN+mb}')
        for i in range(32):
            a(f'v_exp_f32 v{E+i}, v{E+i}')
        for mb in range(2):
            e = E + mb * 16
            for (S, b) in ((S1, e), (S2, e + 8)):
                a(f'v_add_f32 v{S+mb}, v{b}, v{b+1}')
                for i in range(2, 8):
                    a(f'v_add_f32 v{S+mb}, v{S+mb}, v{b+i}')
        for mb in range(2):
            cross_groups(a, 'v_add_f32', S1 + mb, 220)
            cross_groups(a, 'v_add_f32', S2 + mb, 221)
        for mb in range(2):
            a(f'v_rcp_f32 v{S1+mb}, v{S1+mb}')
            a(f'v_rcp_f32 v{S2+mb}, v{S2+mb}')
        for mb in range(2):
            e = E + mb * 16
            for i in range(8):
                a(f'v_mul_f32 v{e+i}, v{e+i}, v{S1+mb}')
                a(f'v_mul_f32 v{e+8+i}, v{e+8+i}, v{S2+mb}')
        for mb in range(2):
            for i in range(8):
                a(f'v_cvt_pk_bf16_f32 v{224+8*mb+i}, v{E+16*mb+2*i}, v{E+16*mb+2*i+1}')

    def o_phase2(a):
        KF0, NUM, DEN = 160, 184, 200
        for i in range(6):
            a(f'ds_read_b128 v[{KF0+4*i}:{KF0+3+4*i}], v{29 if i < 4 else 26} offset:{i*1024}')
        a('s_waitcnt lgkmcnt(0)')
        for ks in range(2):
            for mb in range(2):
                pf = 224 + (mb * 2 + ks) * 4
                for db in range(2):
                    d = NUM + (mb * 2 + db) * 4
                    kf = KF0 + (ks * 2 + db) * 4
                    cc = '0' if ks == 0 else f'v[{d}:{d+3}]'
                    a(f'v_mfma_f32_16x16x32_bf16 v[{d}:{d+3}], v[{kf}:{kf+3}], v[{pf}:{pf+3}], {cc}')
                d = DEN + mb * 4
                zf = KF0 + (4 + ks) * 4
                cc = '0' if ks == 0 else f'v[{d}:{d+3}]'
                a(f'v_mfma_f32_16x16x32_bf16 v[{d}:{d+3}], v[{zf}:{zf+3}], v[{pf}:{pf+3}], {cc}')
        a('s_mov_b32 s66, 0xffff0000')
        a(f's_mov_b32 s73, {2*32768}')
        for mb in range(2):
            dn = DEN + mb * 4
            round_bf16(a, dn, dn)
            a(f'v_add_f32 v{dn}, 0x{f2u(1e-6):x}, v{dn}')
            round_bf16(a, dn, dn)
            a(f'v_rcp_f32 v{dn+1}, v{dn}')
            for db in range(2):
                n = NUM + (mb * 2 + db) * 4
                for h in range(2):
                    a(f'v_cvt_pk_bf16_f32 v{208+h}, v{n+2*h}, v{n+2*h+1}')
                    a(f'v_lshlrev_b32 v{n+2*h}, 16, v{208+h}')
                    a(f'v_and_b32 v{n+2*h+1}, s66, v{208+h}')
                for i in range(4):
                    a(f'v_mul_f32 v{212+i}, v{n+i}, v{dn+1}')
                for i in range(4):
                    a(f'v_fma_f32 v{n+i}, -v{212+i}, v{dn}, v{n+i}')
                for i in range(4):
                    a(f'v_fmac_f32 v{212+i}, v{n+i}, v{dn+1}')
                o = 216 + db * 4 + mb * 2
                a(f'v_cvt_pk_bf16_f32 v{o}, v212, v213')
                a(f'v_cvt_pk_bf16_f32 v{o+1}, v214, v215')
        for db in range(2):
            o = 216 + db * 4
            a(f'v_permlane16_swap_b32 v{o}, v{o+2}')
            a(f'v_permlane16_swap_b32 v{o+1}, v{o+3}')
            a(f'buffer_store_dwordx4 v[{o}:{o+3}], v28, s[8:11], {"0" if db == 0 else "s73"} offen sc1')
            a.mark('os')

    class Collector:
        def __init__(self):
            self.items = []

        def __call__(self, text):
            self.items.append(text)

        def mark(self, m):
            self.items.append((m,))

    def emit_item(it):
        if isinstance(it, tuple):
            if it[0] == 'vmwait':
                a(f's_waitcnt vmcnt({vq.wait_for({"o", "oq"})})')
            else:
                vq.push('os')
        else:
            a(it)

    oc0 = Collector(); o_phase0(oc0)
    oc1 = Collector(); o_phase1(oc1)
    oc2 = Collector(); o_phase2(oc2)

    srd(a, 88, 4, 1024, OFLAG_OFF)
    srd(a, 36, 58, 2048)
    srd(a, 40, 60, XN_SZ)
    srd(a, 44, 62, XN_SZ)
    srd(a, 48, 4, X_SZ, X_OFF)
    srd(a, 52, 4, FLAG_SZ, FLAG_OFF)
    a('s_lshl_b32 s28, s22, 2')
    a(f'v_add_u32 v{T}, s28, v{G4}')
    a(f'v_lshlrev_b32 v{T}, 11, v{T}')
    a(f'v_lshl_add_u32 v{T}, v{L16}, 4, v{T}')
    a('s_lshl_b32 s28, s21, 10')
    a(f'v_add_u32 v{VA2}, s28, v{T}')
    a(f'v_add_u32 v{VA2+1}, 0x10000, v{VA2}')
    a(f'v_lshrrev_b32 v{T}, 2, v{L16}')
    a(f'v_lshl_add_u32 v{T+1}, v{G4}, 3, v{T}')
    a('s_lshl_b32 s28, s22, 5')
    a(f'v_add_u32 v{T+1}, s28, v{T+1}')
    a(f'v_lshrrev_b32 v{T+2}, 1, v{T}')
    a(f'v_and_b32 v{T+3}, 1, v{G4}')
    a(f'v_lshl_or_b32 v{T+2}, v{T+3}, 1, v{T+2}')
    a(f'v_and_b32 v{T+4}, 3, v{LANE}')
    a(f'v_lshlrev_b32 v{T+4}, 3, v{T+4}')
    a(f'v_lshl_add_u32 v{T+5}, v{T+1}, 7, v{T+4}')
    a('s_lshl_b32 s28, s23, 13')
    a('s_add_u32 s28, s28, 16384')
    a(f'v_add_u32 v{T+5}, s28, v{T+5}')
    for nb in range(4):
        a(f'v_xor_b32 v{T+6}, {nb}, v{T+2}')
        a(f'v_lshl_add_u32 v{VB2+nb}, v{T+6}, 5, v{T+5}')
        a(f'v_add_u32 v{240+nb}, 0x10000, v{VB2+nb}')
    ACC2 = 64
    SETS2 = (32, 128)
    for i in range(64):
        a(f'v_mov_b32 v{ACC2+i}, 0')

    def frag_reads(j):
        S = SETS2[j & 1]
        sl = j % 4
        hi = sl >> 1
        so = (sl & 1) * H_SLOT
        out = []
        for mb in range(4):
            out.append(f'ds_read_b128 v[{S+4*mb}:{S+4*mb+3}], v{VA2+hi} offset:{so + mb*256}')
        for nb in range(4):
            d = S + 16 + 4 * nb
            vb = (240 if hi else VB2) + nb
            for t in range(2):
                out.append(f'ds_read_b64_tr_b16 v[{d+2*t}:{d+2*t+1}], v{vb} offset:{so + t*512}')
        return out

    def mfmas(j):
        S = SETS2[j & 1]
        out = []
        for nb in range(4):
            for mb in range(4):
                c = ACC2 + (mb * 4 + nb) * 4
                out.append(f'v_mfma_f32_16x16x32_bf16 v[{c}:{c+3}], v[{S+16+4*nb}:{S+19+4*nb}], v[{S+4*mb}:{S+4*mb+3}], v[{c}:{c+3}]')
        return out

    if OPT('PRIO'):
        a('s_cmp_ge_u32 s20, 4')
        a('s_cbranch_scc0 g2_prio')
        a('s_setprio 1 ; @skip')
        a('g2_prio:')
    a(f's_waitcnt vmcnt({vq.wait_for({0})})')
    a('s_barrier')
    stamp(a, 4 if OPT('STAMPB') else 1)
    for r in frag_reads(0):
        a(r)
    a('s_waitcnt lgkmcnt(0)')
    for j in range(NS):
        if j + 1 < NS:
            a(f's_waitcnt vmcnt({vq.wait_for({j + 1})})')
        a('s_barrier')
        if OPT('STAMP_IT'):
            its = [int(x) for x in OPT('STAMP_IT').split(',')]
            if j in its:
                stamp(a, 2 + its.index(j))
        OJ = int(OPT('OJ', '0'))
        OP0, OP1, OP2, OPE, OFL = (99, 99, 99, 99, 0) if OBLK else (6, 8, 16, 18, 22)
        if j == OFL:
            if OBLK:
                a('s_lshr_b32 s28, s2, 7')
                a('s_or_b32 s28, s28, s20')
                a('s_cmp_lg_u32 s28, 0')
            else:
                a('s_cmp_lg_u32 s20, 0')
            a('s_cbranch_scc1 g2_noflag')
            a('s_lshl_b32 s28, s2, 2 ; @skip')
            a('v_mov_b32 v1, 1 ; @skip')
            a('v_mov_b32 v31, s28 ; @skip')
            a('s_mov_b64 exec, 1 ; @skip')
            a('buffer_store_dword v1, v31, s[88:91], 0 offen sc1 ; @skip')
            a('s_mov_b64 exec, -1 ; @skip')
            a('g2_noflag:')
        if j == 24:
            if OPT('STAMP2') and not OPT('STAMP3') and not OPT('STAMP_IT'):
                stamp(a, 2)
            a(f's_lshr_b32 s28, s24, {2 if OBLK else 1}')
            a('s_lshl_b32 s28, s28, 7')
            a(f'v_and_b32 v31, 31, v{LANE}')
            a('v_lshlrev_b32 v31, 2, v31')
            a('g2_opoll:')
            a('buffer_load_dword v1, v31, s[88:91], s28 offen sc1')
            a('s_waitcnt vmcnt(0)')
            a('v_cmp_ne_u32 vcc, 1, v1')
            a('s_nop 3')
            a('s_cmp_eq_u64 vcc, 0')
            a('s_cbranch_scc1 g2_opolled')
            a('s_sleep 1')
            a('s_branch g2_opoll')
            a('g2_opolled:')
            if OPT('STAMP2') and not OPT('STAMP3') and not OPT('STAMP_IT'):
                stamp(a, 3)
        dma = grp(j + 4) if j + 4 < NS else []
        if j < 4 and not OBLK:
            dma += ogrp[4 * j:4 * j + 4]
        if j == 4 and not OBLK:
            dma += ogrp[16:]
        rd = frag_reads(j + 1) if j + 1 < NS else []
        mm = mfmas(j)
        src = oc0.items if OP0 <= j < OP1 else oc1.items if OP1 <= j < OP2 else (oc2.items if OP2 <= j <= OPE else None)
        if src:
            left = (OP1 - j) if j < OP1 else (OP2 - j) if j < OP2 else (OPE + 1 - j)
            share = -(-len(src) // left)
            chunk = -(-share // len(mm))
            fill = [src[:share][k:k + chunk] for k in range(0, share, chunk)]
            del src[:share]
            rd2 = list(rd); dm2 = list(dma)
            for idx, m in enumerate(mm):
                a(m)
                if dm2 and idx % 4 == 0:
                    emit_grp(dm2.pop(0))
                elif rd2:
                    a(rd2.pop(0))
                if fill:
                    for it in fill.pop(0):
                        emit_item(it)
            for r in rd2:
                a(r)
            for gg in dm2:
                emit_grp(gg)
            for f in fill:
                for it in f:
                    emit_item(it)
        else:
            interleave(a, mm, rd, dma, emit_grp, 0, 4 if (j > 4 or OBLK) else 2)
        a('s_waitcnt lgkmcnt(0)')
    if not OPT('STAMPB'):
        stamp(a, 4 if OPT('STAMP2') else 2)
    a(f'v_lshlrev_b32 v{T}, 4, v{LANE}')
    a('s_and_b32 s28, s20, 3')
    a('s_lshl_b32 s28, s28, 14')
    a('s_xor_b32 s29, s22, 1')
    a('s_lshl_b32 s29, s29, 13')
    a('s_add_u32 s29, s29, s28')
    a(f'v_add_u32 v{T+1}, s29, v{T}')
    a('s_lshl_b32 s29, s22, 13')
    a('s_add_u32 s29, s29, s28')
    a(f'v_add_u32 v{T+2}, s29, v{T}')
    a('s_cmp_eq_u32 s22, 0')
    a('s_cbranch_scc0 g2_ks1')
    for r in range(8):
        a(f'ds_write_b128 v{T+1}, v[{ACC2+32+4*r}:{ACC2+35+4*r}] offset:{r*1024}')
    a('s_branch g2_ksd')
    a('g2_ks1:')
    for r in range(8):
        a(f'ds_write_b128 v{T+1}, v[{ACC2+4*r}:{ACC2+3+4*r}] offset:{r*1024}')
    for r in range(32):
        a(f'v_mov_b32 v{ACC2+r}, v{ACC2+32+r}')
    a('g2_ksd:')
    a('s_waitcnt lgkmcnt(0)')
    a('s_barrier')
    for r in range(8):
        a(f'ds_read_b128 v[{128+4*r}:{131+4*r}], v{T+2} offset:{r*1024}')
    a('s_waitcnt lgkmcnt(0)')
    for r in range(32):
        a(f'v_add_f32 v{ACC2+r}, v{ACC2+r}, v{128+r}')
    a('s_lshl_b32 s28, s21, 1')
    a('s_add_u32 s28, s28, s22')
    a('s_lshl_b32 s67, s28, 7')
    a('s_lshl_b32 s28, s28, 13')
    a(f'v_add_u32 v{T+1}, s28, v{T}')
    a('s_cmp_eq_u32 s23, s33')
    a('s_cbranch_scc1 g2_recv')
    a('s_lshl_b32 s28, s2, 15')
    for r in range(8):
        a(f'buffer_store_dwordx4 v[{ACC2+4*r}:{ACC2+3+4*r}], v{T+1}, s[48:51], s28 offen offset:{r*1024 if r < 4 else (r-4)*1024} sc1' if r < 4 else
          f'buffer_store_dwordx4 v[{ACC2+4*r}:{ACC2+3+4*r}], v{T+1}, s[48:51], s29 offen offset:{(r-4)*1024} sc1')
        if r == 3:
            a('s_add_u32 s29, s28, 4096')
    a('s_waitcnt vmcnt(0)')
    a('s_lshl_b32 s28, s2, 9')
    a('s_add_u32 s28, s28, s67')
    a('v_mov_b32 v1, 1')
    a('v_mov_b32 v2, s28')
    a('s_mov_b64 exec, 1')
    a('buffer_store_dword v1, v2, s[52:55], 0 offen sc1')
    a('s_branch g2_fin')
    a('g2_recv:')
    a(f'v_lshrrev_b32 v{T+2}, 3, v{LANE}')
    a(f'v_and_b32 v{T+3}, 7, v{LANE}')
    a('s_lshl_b32 s28, s24, 7')
    a('s_lshl_b32 s29, s21, 6')
    a('s_add_u32 s28, s28, s29')
    a('s_lshl_b32 s29, s22, 5')
    a('s_add_u32 s28, s28, s29')
    a(f'v_add_u32 v{T+4}, s28, v{T+2}')
    a(f'v_lshlrev_b32 v{T+4}, 11, v{T+4}')
    a('s_lshl_b32 s29, s23, 7')
    a('s_add_u32 s29, s29, s32')
    a(f'v_lshl_add_u32 v{T+5}, v{T+3}, 4, s29')
    a(f'v_add_u32 v{T+4}, v{T+4}, v{T+5}')
    for i in range(4):
        a(f's_mov_b32 s34, {i*16384}')
        a(f'buffer_load_dwordx4 v[{32+4*i}:{35+4*i}], v{T+4}, s[40:43], s34 offen')
    a(f'buffer_load_dwordx4 v[48:51], v{T+5}, s[36:39], 0 offen')
    a('s_mul_i32 s28, s20, 8704')
    a('s_add_u32 s28, s28, 65536')
    a(f'v_mul_u32_u24 v{T+6}, 272, v{L16}')
    a(f'v_lshl_add_u32 v{T+6}, v{G4}, 4, v{T+6}')
    a(f'v_add_u32 v{T+6}, s28, v{T+6}')
    a(f'v_mul_u32_u24 v{T+2}, 272, v{T+2}')
    a(f'v_lshl_add_u32 v{T+2}, v{T+3}, 5, v{T+2}')
    a(f'v_add_u32 v{T+2}, s28, v{T+2}')
    a('s_xor_b32 s35, s2, 1')
    a('s_lshl_b32 s28, s35, 9')
    a('s_add_u32 s28, s28, s67')
    a('v_mov_b32 v2, s28')
    a('g2_poll:')
    a('buffer_load_dword v1, v2, s[52:55], 0 offen sc1')
    a('s_waitcnt vmcnt(0)')
    a('v_readfirstlane_b32 s28, v1')
    a('s_nop 3')
    a('s_cmp_eq_u32 s28, 1')
    a('s_cbranch_scc1 g2_ready')
    a('s_sleep 1')
    a('s_branch g2_poll')
    a('g2_ready:')
    a('s_lshl_b32 s28, s35, 15')
    a('s_add_u32 s29, s28, 4096')
    for r in range(8):
        a(f'buffer_load_dwordx4 v[{128+4*r}:{131+4*r}], v{T+1}, s[48:51], s{28 if r < 4 else 29} offen offset:{(r % 4)*1024} sc1')
    a('s_mov_b32 s66, 0xffff0000')
    a('s_waitcnt vmcnt(0)')
    for r in range(32):
        a(f'v_add_f32 v{ACC2+r}, v{ACC2+r}, v{128+r}')
    for e in range(2):
        for nb in range(4):
            r = ACC2 + (e * 4 + nb) * 4
            a(f'ds_write_b128 v{T+6}, v[{r}:{r+3}] offset:{e*4352 + nb*64}')
    for h in range(4):
        a(f'v_lshlrev_b32 v{52+2*h}, 16, v{48+h}')
        a(f'v_and_b32 v{53+2*h}, s66, v{48+h}')
    a('s_waitcnt lgkmcnt(0)')
    for i in range(4):
        a(f'ds_read_b128 v[{128+8*i}:{131+8*i}], v{T+2} offset:{i*2176}')
        a(f'ds_read_b128 v[{132+8*i}:{135+8*i}], v{T+2} offset:{i*2176 + 16}')
    for i in range(4):
        a(f's_waitcnt lgkmcnt({6-2*i})')
        for h in range(4):
            r = 128 + 8 * i + 2 * h
            a(f'v_lshlrev_b32 v60, 16, v{32+4*i+h}')
            a(f'v_and_b32 v61, s66, v{32+4*i+h}')
            a(f'v_add_f32 v{r}, v{r}, v{52+2*h}')
            a(f'v_add_f32 v{r+1}, v{r+1}, v{53+2*h}')
            a(f'v_add_f32 v{r}, v{r}, v60')
            a(f'v_add_f32 v{r+1}, v{r+1}, v61')
            a(f'v_cvt_pk_bf16_f32 v{160+4*i+h}, v{r}, v{r+1}')
        a(f's_mov_b32 s34, {i*16384}')
        a(f'buffer_store_dwordx4 v[{160+4*i}:{163+4*i}], v{T+4}, s[44:47], s34 offen')
    a('g2_fin:')
    if not OPT('STAMP2') and not OPT('STAMPB'):
        stamp(a, 3)
        if OPT('STAMP'):
            a('s_waitcnt vmcnt(0)')
        stamp(a, 4)
    stamp(a, 6, True)
    stamp_flush(a, 7, 1)
    a('g2_exit:')
    a('s_endpgm')
    return '' if FUSE12 else descriptor(name, 256, 102 if OPT('STAMP') else 96)


def gen_gemm2d(a):
    STAMP_REGS[:] = [96, 97, 98, 99, 100, 101, 75]
    NLO = int(OPT('NLO', '31'))
    NHI = 72 - NLO
    a('g12_p2:')
    a('s_load_dwordx2 s[4:5], s[0:1], 88')
    a('s_load_dwordx2 s[6:7], s[0:1], 24')
    a('s_load_dwordx2 s[56:57], s[0:1], 56')
    a('s_load_dwordx2 s[58:59], s[0:1], 64')
    a('s_load_dwordx2 s[60:61], s[0:1], 0')
    a('s_load_dwordx2 s[62:63], s[0:1], 72')
    LANE, G4, L16, T = 14, 15, 16, 17
    VA2, VB2, VGA2, VGB2 = 2, 4, 9, 10
    a('v_lshrrev_b32 v1, 6, v0')
    a(f'v_and_b32 v{LANE}, 63, v0')
    a('s_nop 0')
    a('v_readfirstlane_b32 s20, v1')
    a(f'v_lshrrev_b32 v{G4}, 4, v{LANE}')
    a(f'v_and_b32 v{L16}, 15, v{LANE}')
    a('s_nop 1')
    a('s_and_b32 s21, s20, 1')
    a('s_bfe_u32 s23, s20, 0x10001')
    a('s_lshr_b32 s22, s20, 2')
    a('s_lshr_b32 s33, s2, 7')
    a('s_and_b32 s26, s2, 7')
    a('s_bfe_u32 s27, s2, 0x40003')
    a('s_lshr_b32 s24, s26, 1')
    a('s_lshl_b32 s24, s24, 2')
    a('s_and_b32 s28, s27, 3')
    a('s_add_u32 s24, s24, s28')
    a('s_and_b32 s25, s26, 1')
    a('s_lshl_b32 s25, s25, 2')
    a('s_lshr_b32 s28, s27, 2')
    a('s_add_u32 s25, s25, s28')
    a('s_lshl_b32 s28, s20, 11')
    a('s_lshl_b32 s29, s24, 7')
    a('s_add_u32 s28, s28, s29')
    a(f'v_add_u32 v{T}, s28, v{LANE}')
    a(f'v_lshlrev_b32 v{VGA2}, 4, v{T}')
    a('s_lshl_b32 s31, s20, 11')
    a('s_lshl_b32 s30, s20, 10')
    a(f'v_lshrrev_b32 v{T}, 3, v{LANE}')
    a(f'v_bfe_u32 v{T+1}, v{LANE}, 4, 1')
    a('s_lshl_b32 s28, s21, 1')
    a(f'v_or_b32 v{T+1}, s28, v{T+1}')
    a(f'v_bfe_u32 v{T+2}, v{LANE}, 1, 2')
    a(f'v_xor_b32 v{T+2}, v{T+2}, v{T+1}')
    a(f'v_and_b32 v{T+3}, 1, v{LANE}')
    a(f'v_lshlrev_b32 v{T+3}, 4, v{T+3}')
    a(f'v_lshl_add_u32 v{T+3}, v{T+2}, 5, v{T+3}')
    a('s_lshl_b32 s28, s20, 3')
    a(f'v_add_u32 v{T}, s28, v{T}')
    a(f'v_lshl_add_u32 v{T}, v{T}, 11, v{T+3}')
    a('s_lshl_b32 s32, s25, 8')
    a(f'v_add_u32 v{VGB2}, s32, v{T}')
    def frag_addr():
        a('s_lshl_b32 s28, s22, 2')
        a(f'v_add_u32 v{T}, s28, v{G4}')
        a(f'v_lshlrev_b32 v{T}, 11, v{T}')
        a(f'v_lshl_add_u32 v{T}, v{L16}, 4, v{T}')
        a('s_lshl_b32 s28, s21, 10')
        a(f'v_add_u32 v{VA2}, s28, v{T}')
        a(f'v_add_u32 v{VA2+1}, 0x10000, v{VA2}')
        a(f'v_lshrrev_b32 v{T}, 2, v{L16}')
        a(f'v_lshl_add_u32 v{T+1}, v{G4}, 3, v{T}')
        a('s_lshl_b32 s28, s22, 5')
        a(f'v_add_u32 v{T+1}, s28, v{T+1}')
        a(f'v_lshrrev_b32 v{T+2}, 1, v{T}')
        a(f'v_and_b32 v{T+3}, 1, v{G4}')
        a(f'v_lshl_or_b32 v{T+2}, v{T+3}, 1, v{T+2}')
        a(f'v_and_b32 v{T+4}, 3, v{LANE}')
        a(f'v_lshlrev_b32 v{T+4}, 3, v{T+4}')
        a(f'v_lshl_add_u32 v{T+5}, v{T+1}, 7, v{T+4}')
        a('s_lshl_b32 s28, s23, 13')
        a('s_add_u32 s28, s28, 16384')
        a(f'v_add_u32 v{T+5}, s28, v{T+5}')
        for nb in range(4):
            a(f'v_xor_b32 v{T+6}, {nb}, v{T+2}')
            a(f'v_lshl_add_u32 v{VB2+nb}, v{T+6}, 5, v{T+5}')
            a(f'v_add_u32 v{240+nb}, 0x10000, v{VB2+nb}')

    a('s_waitcnt lgkmcnt(0)')
    srd(a, 8, 4, ACT2_SZ, ACT2_OFF)
    srd(a, 12, 56, 3584 * 2048)
    srd(a, 16, 6, 1024 * 2048)
    srd(a, 36, 4, 8192, CNT_OFF)
    ACC2 = 64
    SETS2 = (32, 128)

    def frag_reads(j):
        S = SETS2[j & 1]
        sl = j % 4
        hi = sl >> 1
        so = (sl & 1) * H_SLOT
        out = []
        for mb in range(4):
            out.append(f'ds_read_b128 v[{S+4*mb}:{S+4*mb+3}], v{VA2+hi} offset:{so + mb*256}')
        for nb in range(4):
            d = S + 16 + 4 * nb
            vb = (240 if hi else VB2) + nb
            for t in range(2):
                out.append(f'ds_read_b64_tr_b16 v[{d+2*t}:{d+2*t+1}], v{vb} offset:{so + t*512}')
        return out

    def mfmas(j):
        S = SETS2[j & 1]
        out = []
        for nb in range(4):
            for mb in range(4):
                c = ACC2 + (mb * 4 + nb) * 4
                out.append(f'v_mfma_f32_16x16x32_bf16 v[{c}:{c+3}], v[{S+16+4*nb}:{S+19+4*nb}], v[{S+4*mb}:{S+4*mb+3}], v[{c}:{c+3}]')
        return out

    def o_block():
        srd(a, 80, 4, KVP_SZ, KVP_OFF)
        srd(a, 84, 4, PHIQ_SZ, PHIQ_OFF)
        a('s_and_b32 s70, s2, 31')
        a('s_lshr_b32 s71, s2, 5')
        a('s_lshl_b32 s28, s21, 12')
        a('s_bfe_u32 s29, s20, 0x10001')
        a('s_lshl_b32 s29, s29, 11')
        a('s_add_u32 s28, s28, s29')
        a(f'v_lshl_add_u32 v{T}, v{LANE}, 4, s28')
        a(f'v_add_u32 v{T+1}, 1024, v{T}')
        a('s_lshl_b32 s29, s21, 7')
        a('s_add_u32 s29, s29, 8192')
        a(f'v_lshl_add_u32 v{T+2}, v{G4}, 4, s29')
        a(f'v_add_u32 v{T+3}, 64, v{T+2}')
        a('s_cmp_lt_u32 s20, 4')
        a('s_cselect_b64 s[34:35], -1, 0')
        a('s_cselect_b32 s94, -1, 0x00010001')
        a('s_mov_b32 s95, s94')
        a(f'v_cndmask_b32 v11, v{T+2}, v{T}, s[34:35]')
        a(f'v_cndmask_b32 v13, v{T+3}, v{T+1}, s[34:35]')
        a(f's_mul_i32 s72, s70, {8*KVP_ENT}')
        a('s_lshl_b32 s28, s71, 5')
        a('s_lshl_b32 s29, s20, 2')
        a('s_add_u32 s28, s28, s29')
        a('s_lshl_b32 s28, s28, 10')
        a('s_lshl_b32 s29, s70, 17')
        a('s_add_u32 s28, s28, s29')
        a(f'v_lshl_add_u32 v12, v{LANE}, 4, s28')
        a('s_lshl_b32 s28, s70, 11')
        a('s_add_u32 s28, s28, 0x400000')
        a(f'v_lshl_add_u32 v27, v{LANE}, 4, s28')
        QF, WPF, KP = 128, 144, 64
        for mb in range(4):
            a(f'buffer_load_dwordx4 v[{QF+4*mb}:{QF+3+4*mb}], v12, s[84:87], 0 offen offset:{mb*1024}')
        for fb in range(2):
            a(f'buffer_load_dwordx4 v[{WPF+4*fb}:{WPF+3+4*fb}], v27, s[84:87], 0 offen offset:{fb*1024}')
        a('s_mov_b64 exec, s[94:95]')
        for mt in range(8):
            a(f's_add_u32 s28, s72, {mt*KVP_ENT}')
            a(f'buffer_load_dwordx4 v[{KP+8*mt}:{KP+3+8*mt}], v11, s[80:83], s28 offen')
            a(f'buffer_load_dwordx4 v[{KP+4+8*mt}:{KP+7+8*mt}], v13, s[80:83], s28 offen')
        a('s_mov_b64 exec, -1')
        a('s_lshl_b32 s28, s71, 9')
        a('s_lshl_b32 s29, s20, 6')
        a('s_add_u32 s28, s28, s29')
        a('s_lshl_b32 s29, s70, 13')
        a('s_add_u32 s28, s28, s29')
        a(f'v_add_u32 v28, s28, v{L16}')
        a(f'v_and_b32 v{T+3}, 1, v{G4}')
        a(f'v_lshl_add_u32 v28, v{T+3}, 4, v28')
        a(f'v_lshrrev_b32 v{T+3}, 1, v{G4}')
        a(f'v_lshl_add_u32 v28, v{T+3}, 11, v28')
        a('v_lshlrev_b32 v28, 4, v28')
        a(f'v_lshlrev_b32 v29, 4, v{LANE}')
        a(f'v_add_u32 v29, 0x{H_LDS:x}, v29')
        a('v_add_u32 v30, s30, v29')
        a(f'v_lshlrev_b32 v26, 8, v{G4}')
        a(f'v_add_u32 v26, 0x{H_LDS:x}, v26')
        a('s_mov_b32 s66, 0xffff0000')
        a(f's_mov_b32 s76, 0x{LOG2E:x}')
        a('s_waitcnt vmcnt(16)')
        PQ = 152
        for mb in range(4):
            for fb in range(2):
                d = PQ + (mb * 2 + fb) * 4
                a(f'v_mfma_f32_16x16x32_bf16 v[{d}:{d+3}], v[{WPF+4*fb}:{WPF+3+4*fb}], v[{QF+4*mb}:{QF+3+4*mb}], 0')
        for i in range(0, 32, 2):
            r = PQ + i
            a(f'v_cvt_pk_bf16_f32 v{32+(i>>1)%8}, v{r}, v{r+1}')
            a(f'v_lshlrev_b32 v{r}, 16, v{32+(i>>1)%8}')
            a(f'v_and_b32 v{r+1}, s66, v{32+(i>>1)%8}')
        MX, MN, S1, S2, E = 32, 36, 40, 44, 184
        for mb in range(4):
            p = PQ + mb * 8
            a(f'v_max3_f32 v{MX+mb}, v{p}, v{p+1}, v{p+2}')
            a(f'v_min3_f32 v{MN+mb}, v{p}, v{p+1}, v{p+2}')
            a(f'v_max3_f32 v{MX+mb}, v{MX+mb}, v{p+3}, v{p+4}')
            a(f'v_min3_f32 v{MN+mb}, v{MN+mb}, v{p+3}, v{p+4}')
            a(f'v_max3_f32 v{MX+mb}, v{MX+mb}, v{p+5}, v{p+6}')
            a(f'v_min3_f32 v{MN+mb}, v{MN+mb}, v{p+5}, v{p+6}')
            a(f'v_max_f32 v{MX+mb}, v{MX+mb}, v{p+7}')
            a(f'v_min_f32 v{MN+mb}, v{MN+mb}, v{p+7}')
        for mb in range(4):
            cross_groups(a, 'v_max_f32', MX + mb, 48)
            cross_groups(a, 'v_min_f32', MN + mb, 49)
        for mb in range(4):
            a(f'v_mul_f32 v{MX+mb}, s76, v{MX+mb}')
            a(f'v_mul_f32 v{MN+mb}, s76, v{MN+mb}')
        for mb in range(4):
            p = PQ + mb * 8
            e = E + mb * 16
            for i in range(8):
                a(f'v_fma_f32 v{e+i}, v{p+i}, s76, -v{MX+mb}')
                a(f'v_fma_f32 v{e+8+i}, -v{p+i}, s76, v{MN+mb}')
        for i in range(64):
            a(f'v_exp_f32 v{E+i}, v{E+i}')
        for mb in range(4):
            e = E + mb * 16
            for (S, b) in ((S1, e), (S2, e + 8)):
                a(f'v_add_f32 v{S+mb}, v{b}, v{b+1}')
                for i in range(2, 8):
                    a(f'v_add_f32 v{S+mb}, v{S+mb}, v{b+i}')
        for mb in range(4):
            cross_groups(a, 'v_add_f32', S1 + mb, 48)
            cross_groups(a, 'v_add_f32', S2 + mb, 49)
        for mb in range(4):
            a(f'v_rcp_f32 v{S1+mb}, v{S1+mb}')
            a(f'v_rcp_f32 v{S2+mb}, v{S2+mb}')
        for mb in range(4):
            e = E + mb * 16
            for i in range(8):
                a(f'v_mul_f32 v{e+i}, v{e+i}, v{S1+mb}')
                a(f'v_mul_f32 v{e+8+i}, v{e+8+i}, v{S2+mb}')
        PF = 128
        for mb in range(4):
            for i in range(8):
                a(f'v_cvt_pk_bf16_f32 v{PF+8*mb+i}, v{E+16*mb+2*i}, v{E+16*mb+2*i+1}')
        a('s_waitcnt vmcnt(0)')
        for mt in range(1, 8):
            for i in range(8):
                a(f'v_add_f32 v{KP+i}, v{KP+i}, v{KP+8*mt+i}')
        for i in range(4):
            a(f'v_cvt_pk_bf16_f32 v{KP+8+i}, v{KP+2*i}, v{KP+1+2*i}')
        a('s_mov_b64 exec, s[94:95]')
        a(f'ds_write_b128 v30, v[{KP+8}:{KP+11}]')
        a('s_mov_b64 exec, -1')
        a('s_waitcnt lgkmcnt(0)')
        a('s_barrier')
        KF0, NUM, DEN = 80, 160, 192
        for i in range(6):
            a(f'ds_read_b128 v[{KF0+4*i}:{KF0+3+4*i}], v{29 if i < 4 else 26} offset:{i*1024}')
        a('s_waitcnt lgkmcnt(0)')
        for ks in range(2):
            for mb in range(4):
                pf = PF + (mb * 2 + ks) * 4
                for db in range(2):
                    d = NUM + (mb * 2 + db) * 4
                    kf = KF0 + (ks * 2 + db) * 4
                    cc = '0' if ks == 0 else f'v[{d}:{d+3}]'
                    a(f'v_mfma_f32_16x16x32_bf16 v[{d}:{d+3}], v[{kf}:{kf+3}], v[{pf}:{pf+3}], {cc}')
                d = DEN + mb * 4
                zf = KF0 + (4 + ks) * 4
                cc = '0' if ks == 0 else f'v[{d}:{d+3}]'
                a(f'v_mfma_f32_16x16x32_bf16 v[{d}:{d+3}], v[{zf}:{zf+3}], v[{pf}:{pf+3}], {cc}')
        a(f's_mov_b32 s73, {2*32768}')
        for mb in range(4):
            dn = DEN + mb * 4
            round_bf16(a, dn, dn)
            a(f'v_add_f32 v{dn}, 0x{f2u(1e-6):x}, v{dn}')
            round_bf16(a, dn, dn)
            a(f'v_rcp_f32 v{dn+1}, v{dn}')
        for mb in range(4):
            dn = DEN + mb * 4
            for db in range(2):
                n = NUM + (mb * 2 + db) * 4
                t = 32 + db * 8
                for h in range(2):
                    a(f'v_cvt_pk_bf16_f32 v{t+h}, v{n+2*h}, v{n+2*h+1}')
                    a(f'v_lshlrev_b32 v{n+2*h}, 16, v{t+h}')
                    a(f'v_and_b32 v{n+2*h+1}, s66, v{t+h}')
                for i in range(4):
                    a(f'v_mul_f32 v{t+4+i}, v{n+i}, v{dn+1}')
                for i in range(4):
                    a(f'v_fma_f32 v{n+i}, -v{t+4+i}, v{dn}, v{n+i}')
                for i in range(4):
                    a(f'v_fmac_f32 v{t+4+i}, v{n+i}, v{dn+1}')
                o = 208 + (mb >> 1) * 8 + db * 4 + (mb & 1) * 2
                a(f'v_cvt_pk_bf16_f32 v{o}, v{t+4}, v{t+5}')
                a(f'v_cvt_pk_bf16_f32 v{o+1}, v{t+6}, v{t+7}')
        for p in range(2):
            for db in range(2):
                o = 208 + p * 8 + db * 4
                a(f'v_permlane16_swap_b32 v{o}, v{o+2}')
                a(f'v_permlane16_swap_b32 v{o+1}, v{o+3}')
                a(f'buffer_store_dwordx4 v[{o}:{o+3}], v28, s[8:11], {"0" if db == 0 else "s73"} offen offset:{p*512} sc1')


    def body(kh):
        vq = VQ()
        NS = NLO if kh == 0 else NHI
        NH = NS - 16 if kh == 0 else NS
        H0 = NHI if kh == 0 else 0
        sfx = 'lo' if kh == 0 else 'hi'

        def grp(j):
            sl = j % 4
            out = []
            c = (128 + 8 * (H0 + j)) if j < NH else 8 * (j - NH)
            for q in range(2):
                out.append(([f's_add_u32 m0, s31, 0x{sl*H_SLOT + q*1024:x}',
                             f's_mov_b32 s28, 0x{c*32768 + q*1024:x}',
                             f'buffer_load_dwordx4 v{VGA2}, s[8:11], s28 offen lds'], j))
            sr, row = ('s[12:15]', 64 * (H0 + j)) if j < NH else ('s[16:19]', 64 * (j - NH))
            for q in range(2):
                out.append(([f's_add_u32 m0, s30, 0x{sl*H_SLOT + 16384 + q*8192:x}',
                             f's_mov_b32 s28, 0x{row*2048 + q*128:x}',
                             f'buffer_load_dwordx4 v{VGB2}, {sr}, s28 offen lds'], j))
            return out

        def emit_grp(g):
            for l in g[0]:
                a(l)
            vq.push(g[1])

        def poll(tag, sreg, target):
            a('v_mov_b32 v31, 0')
            a(f'g12_{tag}:')
            a(f'buffer_load_dword v1, v31, s[36:39], s{sreg} offen sc1')
            a('s_waitcnt vmcnt(0)')
            a('v_readfirstlane_b32 s34, v1')
            a('s_nop 3')
            a(f's_cmp_ge_u32 s34, {target}')
            a(f's_cbranch_scc1 g12_{tag}ok')
            a('s_sleep 2')
            a(f's_branch g12_{tag}')
            a(f'g12_{tag}ok:')

        for j in range(4):
            for g in grp(j)[2:]:
                emit_grp(g)
        tsplit = (NHI * 64) // 224
        a('s_lshr_b32 s67, s24, 1')
        a('s_lshl_b32 s67, s67, 1')
        a(f's_add_u32 s67, s67, {1 - kh}')
        a('s_lshl_b32 s67, s67, 7')
        if kh == 0:
            a('s_bfe_u32 s29, s2, 0x40001')
            a('s_add_u32 s29, s29, 16')
            a('s_lshl_b32 s29, s29, 7')
            poll('pq', 29, 8)
            o_block()
        poll('ph' + sfx, 67, (16 - tsplit) if kh == 0 else (tsplit + 1))
        for j in range(4):
            for g in grp(j)[:2]:
                emit_grp(g)
        frag_addr()
        srd(a, 88, 4, 1024, OFLAG_OFF)
        srd(a, 36, 58, 2048)
        srd(a, 40, 60, XN_SZ)
        srd(a, 44, 62, XN_SZ)
        srd(a, 48, 4, X_SZ, X_OFF)
        srd(a, 52, 4, FLAG_SZ, FLAG_OFF)
        for i in range(64):
            a(f'v_mov_b32 v{ACC2+i}, 0')
        a(f's_waitcnt vmcnt({vq.wait_for({0})})')
        a('s_barrier')
        for r in frag_reads(0):
            a(r)
        a('s_waitcnt lgkmcnt(0)')
        for j in range(NS):
            if j + 1 < NS:
                a(f's_waitcnt vmcnt({vq.wait_for({j + 1})})')
            a('s_barrier')
            if kh == 0 and j == 0:
                a('s_cmp_lg_u32 s20, 0')
                a('s_cbranch_scc1 g2_noflag')
                a('s_lshl_b32 s28, s2, 2 ; @skip')
                a('v_mov_b32 v1, 1 ; @skip')
                a('v_mov_b32 v31, s28 ; @skip')
                a('s_mov_b64 exec, 1 ; @skip')
                a('buffer_store_dword v1, v31, s[88:91], 0 offen sc1 ; @skip')
                a('s_mov_b64 exec, -1 ; @skip')
                a('g2_noflag:')
            if kh == 0 and j == NH - 4:
                a('s_lshr_b32 s28, s24, 2')
                a('s_lshl_b32 s28, s28, 7')
                a(f'v_and_b32 v31, 31, v{LANE}')
                a('v_lshlrev_b32 v31, 2, v31')
                a('g2_opoll:')
                a('buffer_load_dword v1, v31, s[88:91], s28 offen sc1')
                a('s_waitcnt vmcnt(0)')
                a('v_cmp_ne_u32 vcc, 1, v1')
                a('s_nop 3')
                a('s_cmp_eq_u64 vcc, 0')
                a('s_cbranch_scc1 g2_opolled')
                a('s_sleep 1')
                a('s_branch g2_opoll')
                a('g2_opolled:')
            dma = grp(j + 4) if j + 4 < NS else []
            rd = frag_reads(j + 1) if j + 1 < NS else []
            interleave(a, mfmas(j), rd, dma, emit_grp, 0, 4)
            a('s_waitcnt lgkmcnt(0)')

    a('s_cmp_lg_u32 s33, 0')
    a('s_cbranch_scc1 g2_hi')
    body(0)
    a('s_branch g2_tail')
    a('g2_hi:')
    body(1)
    a('g2_tail:')
    a(f'v_lshlrev_b32 v{T}, 4, v{LANE}')
    a('s_and_b32 s28, s20, 3')
    a('s_lshl_b32 s28, s28, 14')
    a('s_xor_b32 s29, s22, 1')
    a('s_lshl_b32 s29, s29, 13')
    a('s_add_u32 s29, s29, s28')
    a(f'v_add_u32 v{T+1}, s29, v{T}')
    a('s_lshl_b32 s29, s22, 13')
    a('s_add_u32 s29, s29, s28')
    a(f'v_add_u32 v{T+2}, s29, v{T}')
    a('s_cmp_eq_u32 s22, 0')
    a('s_cbranch_scc0 g2_ks1')
    for r in range(8):
        a(f'ds_write_b128 v{T+1}, v[{ACC2+32+4*r}:{ACC2+35+4*r}] offset:{r*1024}')
    a('s_branch g2_ksd')
    a('g2_ks1:')
    for r in range(8):
        a(f'ds_write_b128 v{T+1}, v[{ACC2+4*r}:{ACC2+3+4*r}] offset:{r*1024}')
    for r in range(32):
        a(f'v_mov_b32 v{ACC2+r}, v{ACC2+32+r}')
    a('g2_ksd:')
    a('s_waitcnt lgkmcnt(0)')
    a('s_barrier')
    for r in range(8):
        a(f'ds_read_b128 v[{128+4*r}:{131+4*r}], v{T+2} offset:{r*1024}')
    a('s_waitcnt lgkmcnt(0)')
    for r in range(32):
        a(f'v_add_f32 v{ACC2+r}, v{ACC2+r}, v{128+r}')
    a('s_lshl_b32 s28, s21, 1')
    a('s_add_u32 s28, s28, s22')
    a('s_lshl_b32 s67, s28, 7')
    a('s_lshl_b32 s28, s28, 13')
    a(f'v_add_u32 v{T+1}, s28, v{T}')
    a('s_cmp_eq_u32 s23, s33')
    a('s_cbranch_scc1 g2_recv')
    a('s_lshl_b32 s28, s2, 15')
    for r in range(8):
        a(f'buffer_store_dwordx4 v[{ACC2+4*r}:{ACC2+3+4*r}], v{T+1}, s[48:51], s28 offen offset:{r*1024 if r < 4 else (r-4)*1024} sc1' if r < 4 else
          f'buffer_store_dwordx4 v[{ACC2+4*r}:{ACC2+3+4*r}], v{T+1}, s[48:51], s29 offen offset:{(r-4)*1024} sc1')
        if r == 3:
            a('s_add_u32 s29, s28, 4096')
    a('s_waitcnt vmcnt(0)')
    a('s_lshl_b32 s28, s2, 9')
    a('s_add_u32 s28, s28, s67')
    a('v_mov_b32 v1, 1')
    a('v_mov_b32 v2, s28')
    a('s_mov_b64 exec, 1')
    a('buffer_store_dword v1, v2, s[52:55], 0 offen sc1')
    a('s_branch g2_fin')
    a('g2_recv:')
    a(f'v_lshrrev_b32 v{T+2}, 3, v{LANE}')
    a(f'v_and_b32 v{T+3}, 7, v{LANE}')
    a('s_lshl_b32 s28, s24, 7')
    a('s_lshl_b32 s29, s21, 6')
    a('s_add_u32 s28, s28, s29')
    a('s_lshl_b32 s29, s22, 5')
    a('s_add_u32 s28, s28, s29')
    a(f'v_add_u32 v{T+4}, s28, v{T+2}')
    a(f'v_lshlrev_b32 v{T+4}, 11, v{T+4}')
    a('s_lshl_b32 s29, s23, 7')
    a('s_add_u32 s29, s29, s32')
    a(f'v_lshl_add_u32 v{T+5}, v{T+3}, 4, s29')
    a(f'v_add_u32 v{T+4}, v{T+4}, v{T+5}')
    for i in range(4):
        a(f's_mov_b32 s34, {i*16384}')
        a(f'buffer_load_dwordx4 v[{32+4*i}:{35+4*i}], v{T+4}, s[40:43], s34 offen')
    a(f'buffer_load_dwordx4 v[48:51], v{T+5}, s[36:39], 0 offen')
    a('s_mul_i32 s28, s20, 8704')
    a('s_add_u32 s28, s28, 65536')
    a(f'v_mul_u32_u24 v{T+6}, 272, v{L16}')
    a(f'v_lshl_add_u32 v{T+6}, v{G4}, 4, v{T+6}')
    a(f'v_add_u32 v{T+6}, s28, v{T+6}')
    a(f'v_mul_u32_u24 v{T+2}, 272, v{T+2}')
    a(f'v_lshl_add_u32 v{T+2}, v{T+3}, 5, v{T+2}')
    a(f'v_add_u32 v{T+2}, s28, v{T+2}')
    a('s_xor_b32 s35, s2, 128')
    a('s_lshl_b32 s28, s35, 9')
    a('s_add_u32 s28, s28, s67')
    a('v_mov_b32 v2, s28')
    a('g2_poll:')
    a('buffer_load_dword v1, v2, s[52:55], 0 offen sc1')
    a('s_waitcnt vmcnt(0)')
    a('v_readfirstlane_b32 s28, v1')
    a('s_nop 3')
    a('s_cmp_eq_u32 s28, 1')
    a('s_cbranch_scc1 g2_ready')
    a('s_sleep 1')
    a('s_branch g2_poll')
    a('g2_ready:')
    a('s_lshl_b32 s28, s35, 15')
    a('s_add_u32 s29, s28, 4096')
    for r in range(8):
        a(f'buffer_load_dwordx4 v[{128+4*r}:{131+4*r}], v{T+1}, s[48:51], s{28 if r < 4 else 29} offen offset:{(r % 4)*1024} sc1')
    a('s_mov_b32 s66, 0xffff0000')
    a('s_waitcnt vmcnt(0)')
    for r in range(32):
        a(f'v_add_f32 v{ACC2+r}, v{ACC2+r}, v{128+r}')
    for e in range(2):
        for nb in range(4):
            r = ACC2 + (e * 4 + nb) * 4
            a(f'ds_write_b128 v{T+6}, v[{r}:{r+3}] offset:{e*4352 + nb*64}')
    for h in range(4):
        a(f'v_lshlrev_b32 v{52+2*h}, 16, v{48+h}')
        a(f'v_and_b32 v{53+2*h}, s66, v{48+h}')
    a('s_waitcnt lgkmcnt(0)')
    for i in range(4):
        a(f'ds_read_b128 v[{128+8*i}:{131+8*i}], v{T+2} offset:{i*2176}')
        a(f'ds_read_b128 v[{132+8*i}:{135+8*i}], v{T+2} offset:{i*2176 + 16}')
    for i in range(4):
        a(f's_waitcnt lgkmcnt({6-2*i})')
        for h in range(4):
            r = 128 + 8 * i + 2 * h
            a(f'v_lshlrev_b32 v60, 16, v{32+4*i+h}')
            a(f'v_and_b32 v61, s66, v{32+4*i+h}')
            a(f'v_add_f32 v{r}, v{r}, v{52+2*h}')
            a(f'v_add_f32 v{r+1}, v{r+1}, v{53+2*h}')
            a(f'v_add_f32 v{r}, v{r}, v60')
            a(f'v_add_f32 v{r+1}, v{r+1}, v61')
            a(f'v_cvt_pk_bf16_f32 v{160+4*i+h}, v{r}, v{r+1}')
        a(f's_mov_b32 s34, {i*16384}')
        a(f'buffer_store_dwordx4 v[{160+4*i}:{163+4*i}], v{T+4}, s[44:47], s34 offen')
    a('g2_fin:')
    if not OPT('STAMP2') and not OPT('STAMPB'):
        stamp(a, 3)
        if OPT('STAMP'):
            a('s_waitcnt vmcnt(0)')
        stamp(a, 4)
    stamp(a, 6, True)
    stamp_flush(a, 7, 1)
    a('g2_exit:')
    a('s_endpgm')
    return ''


def main():
    a = Asm()
    descs = []
    descs.append(gen_ln(a))
    descs.append(gen_gemm1(a))
    fused = not OPT('SEP_O')
    if not fused:
        descs.append(gen_o(a))
    descs.append(gen_gemm2d(a) if (FUSE12 and not OPT('EVEN')) else gen_gemm2c(a) if fused else gen_gemm2b(a))
    head = open('cdna_kernels/%s.s.ref' % NAME).read().split('; @launch')[0]
    out = head
    out += '; @launch kernel=ln_kernel grid=(512,1,1) block=(256,1,1) lds=0\n'
    out += f'; @launch kernel=gemm1_kernel grid=(256,1,1) block=(512,1,1) lds={G1_LDS}\n'
    if not fused:
        out += '; @launch kernel=attn_o_kernel grid=(256,1,1) block=(256,1,1) lds=8192\n'
    if not FUSE12:
        out += f'; @launch kernel=gemm2_kernel grid=(256,1,1) block=(512,1,1) lds={H_LDS + 8192}\n'
    out += '.amdgcn_target "amdgcn-amd-amdhsa--gfx950"\n.text\n'
    out += a.finalize()
    out += '.section .rodata,"a"\n'
    for d in descs:
        if d:
            out += '.p2align 6\n' + d
    path = sys.argv[1] if len(sys.argv) > 1 else 'cdna_kernels/%s.s' % NAME
    open(path, 'w').write(out)
    print('wrote', path, len(out))


if __name__ == '__main__':
    main()
```
